```python
import torch

def _softmax(x, axis=-1):
    return torch.softmax(x, dim=axis)
def _gelu(x):
    return torch.nn.functional.gelu(x, approximate="tanh")
def _silu(x):
    return torch.nn.functional.silu(x)
def _sigmoid(x):
    return torch.sigmoid(x)
def _layernorm(x, axis=-1, eps=1e-5):
    m = x.mean(dim=axis, keepdim=True)
    v = x.var(dim=axis, keepdim=True, unbiased=False)
    return (x - m) / torch.sqrt(v + eps)
def _scatter_add(tgt, idx, src, axis=0):
    return tgt.clone().index_add_(axis, idx, src)
def _segment_sum(src, seg, n):
    out = torch.zeros((n,) + src.shape[1:], dtype=src.dtype)
    return out.index_add_(0, seg, src)
def _pad(x, pw):
    flat = tuple(v for pair in reversed(pw) for v in pair)
    return torch.nn.functional.pad(x, flat)

kernel_name = 'interleave_layers__spectral_gfnet__mixer_token_mlp__prompt'

def setup_inputs():

    _w = (lambda a: (lambda t: t.to(torch.bfloat16) if t.is_floating_point() else t)(torch.as_tensor(a)))
    def _A_setup():
        B, S, D = 1, 2048, 448
        Df = D // 2 + 1
        return {
            "x": _w((lambda *s: torch.randn(*s, dtype=torch.bfloat16) * 0.05)(B, S, D)),
            "w_r": _w((lambda *s: torch.randn(*s, dtype=torch.bfloat16) * 1.6)(S, Df) * 0.02),
            "w_i": _w((lambda *s: torch.randn(*s, dtype=torch.bfloat16) * 1.6)(S, Df) * 0.02),
        }
    _A_in = _A_setup()

    def _B_setup():
        B, S, D, F = 1, 2048, 448, 1792
        return {
            "x": _w((lambda *s: torch.randn(*s, dtype=torch.bfloat16) * 0.05)(B, S, D)),
            "w1": _w((lambda *s: torch.randn(*s, dtype=torch.bfloat16) * 0.4)(S, F) * (S ** -0.5)),
            "b1": _w((lambda *s: torch.randn(*s, dtype=torch.bfloat16) * 3.2)(F) * 0.02),
            "w2": _w((lambda *s: torch.randn(*s, dtype=torch.bfloat16) * 0.8)(F, S) * (F ** -0.5)),
            "b2": _w((lambda *s: torch.randn(*s, dtype=torch.bfloat16) * 3.2)(S) * 0.02),
        }
    _B_in = _B_setup()

    return {
        "A_x": _A_in["x"],
        "A_w_r": _A_in["w_r"],
        "A_w_i": _A_in["w_i"],
        "B_x": _B_in["x"],
        "B_w1": _B_in["w1"],
        "B_b1": _B_in["b1"],
        "B_w2": _B_in["w2"],
        "B_b2": _B_in["b2"],
    }

def reference(A_x, A_w_r, A_w_i, B_x, B_w1, B_b1, B_w2, B_b2):
    def _A_ref(x, w_r, w_i):
        B, S, D = x.shape
        X = (lambda x, axes=(-2,-1): torch.fft.rfft2(x.float(), dim=axes))(x, axes=(-2, -1))
        W = w_r + 1j * w_i
        X = X * W
        y = (lambda x, s, axes=(-2,-1): torch.fft.irfft2(x, s=s, dim=axes).to(torch.bfloat16))(X, (S, D), axes=(-2, -1))
        return y

    def _B_ref(x, w1, b1, w2, b2):
        B, S, D = x.shape
        h = _layernorm(x, axis=-1)
        u = torch.einsum("bsd,sf->bdf", h, w1) + b1
        u = _gelu(u)
        y = torch.einsum("bdf,fs->bds", u, w2) + b2
        return (lambda x, *d: x.permute(*d))(y, 0, 2, 1)

    x = A_x
    x = x + _A_ref(_layernorm(x, axis=-1), A_w_r, A_w_i)
    x = x + _B_ref(_layernorm(x, axis=-1), B_w1, B_b1, B_w2, B_b2)
    x = x + _A_ref(_layernorm(x, axis=-1), A_w_r, A_w_i)
    x = x + _B_ref(_layernorm(x, axis=-1), B_w1, B_b1, B_w2, B_b2)
    return x
```

```python
import re

def v(i, n=1):
    return "v%d" % i if n == 1 else "v[%d:%d]" % (i, i + n - 1)
def a(i, n=1):
    return "a%d" % i if n == 1 else "a[%d:%d]" % (i, i + n - 1)
def s(i, n=1):
    return "s%d" % i if n == 1 else "s[%d:%d]" % (i, i + n - 1)

_reg_re = re.compile(r'^(-|\|)?(?:abs\()?([vas])(?:(\d+)|\[(\d+):(\d+)\])\)?\|?$')

def parse_reg(tok):
    tok = tok.strip()
    if tok in ("vcc", "exec"):
        return [(tok, 0), (tok, 1)]
    if tok in ("vcc_lo", "exec_lo"):
        return [(tok[:-3], 0)]
    if tok in ("vcc_hi", "exec_hi"):
        return [(tok[:-3], 1)]
    if tok == "m0":
        return [("m0", 0)]
    m = _reg_re.match(tok)
    if not m:
        return []
    k = m.group(2)
    if m.group(3) is not None:
        return [(k, int(m.group(3)))]
    return [(k, i) for i in range(int(m.group(4)), int(m.group(5)) + 1)]

TRANS = ("v_exp_f32", "v_log_f32", "v_rcp_f32", "v_rsq_f32", "v_sqrt_f32", "v_sin_f32", "v_cos_f32", "v_rcp_iflag_f32")

class Ins:
    def __init__(self, text):
        self.text = text
        t = text.split(";")[0].strip()
        self.is_label = t.endswith(":")
        self.is_dir = t.startswith(".")
        self.mn = ""
        self.w = set(); self.r = set()
        self.kind = "other"
        self.passes = 0
        self.srcc = set(); self.srcab = set()
        self.dpp = False
        self.target = None
        self.nop = 0
        if self.is_label:
            self.label = t[:-1]; return
        if self.is_dir or not t:
            self.is_dir = True; return
        parts = t.split(None, 1)
        mn = parts[0]; self.mn = mn
        rest = parts[1] if len(parts) > 1 else ""
        ops = []; cur = ""; depth = 0
        for ch in rest:
            if ch in "[(": depth += 1
            if ch in "])": depth -= 1
            if ch == "," and depth == 0:
                ops.append(cur.strip()); cur = ""
            else:
                cur += ch
        if cur.strip(): ops.append(cur.strip())
        mods = []
        if ops:
            last = ops[-1]; depth = 0; cut = None
            for i, ch in enumerate(last):
                if ch in "[(": depth += 1
                if ch in "])": depth -= 1
                if ch == " " and depth == 0:
                    cut = i; break
            if cut is not None:
                mods = last[cut:].split(); ops[-1] = last[:cut]
        self.ops = ops; self.mods = mods
        R = lambda i: parse_reg(ops[i]) if i < len(ops) else []
        base = re.sub(r'_(e32|e64|dpp|sdwa)$', '', mn)
        self.base = base
        if mn.startswith("v_mfma"):
            self.kind = "mfma"
            self.w = set(R(0)); self.srcab = set(R(1)) | set(R(2)); self.srcc = set(R(3))
            self.r = self.srcab | self.srcc
            self.passes = 8 if "32x32" in mn else 4
            self.dfirst = R(0)[0]; self.dn = len(R(0))
        elif mn.startswith("v_"):
            self.kind = "valu"
            self.dpp = mn.endswith("_dpp") or any(m.startswith(("quad_perm", "row_", "wave_")) for m in mods)
            if base.startswith("v_cmp"):
                self.w = set(R(0)); self.r = set(sum((R(i) for i in range(1, len(ops))), []))
                if base.startswith("v_cmpx"): self.w |= {("exec", 0), ("exec", 1)}
            elif base in ("v_add_co_u32", "v_sub_co_u32", "v_subrev_co_u32", "v_addc_co_u32", "v_subb_co_u32", "v_mad_u64_u32"):
                self.w = set(R(0)) | set(R(1)); self.r = set(sum((R(i) for i in range(2, len(ops))), []))
            elif base in ("v_permlane16_swap_b32", "v_permlane32_swap_b32", "v_swap_b32"):
                self.w = set(R(0)) | set(R(1)); self.r = set(self.w)
            else:
                self.w = set(R(0)); self.r = set(sum((R(i) for i in range(1, len(ops))), []))
                if base in ("v_fmac_f32", "v_pk_fmac_f16", "v_writelane_b32", "v_dot2c_f32_bf16") or self.dpp or "sdwa" in mn:
                    self.r |= set(R(0))
                if base == "v_cndmask_b32" and len(ops) == 3:
                    self.r |= {("vcc", 0), ("vcc", 1)}
            self.trans = base in TRANS
        elif mn.startswith(("buffer_", "global_", "flat_", "scratch_")):
            self.kind = "vmem"
            allr = set(sum((R(i) for i in range(len(ops))), []))
            self.lds = ("lds" in mods) or ("_lds_" in mn)
            if mn in ("buffer_wbl2", "buffer_inv"):
                pass
            elif "load" in mn and not self.lds:
                self.w = set(R(0)); self.r = set(sum((R(i) for i in range(1, len(ops))), []))
            elif "atomic" in mn and "sc0" in mods:
                self.w = set(R(0)); self.r = allr
            else:
                self.r = allr
                if self.lds: self.r |= {("m0", 0)}
            self.wide_store = ("store" in mn) and (mn.endswith("x4") or mn.endswith("x3"))
            if self.wide_store:
                self.sdata = set(R(0)) if mn.startswith("buffer_") else set(R(1))
        elif mn.startswith("ds_"):
            self.kind = "ds"
            if "read" in mn or "permute" in mn or "swizzle" in mn or "_rtn" in mn:
                self.w = set(R(0)); self.r = set(sum((R(i) for i in range(1, len(ops))), []))
            else:
                self.r = set(sum((R(i) for i in range(len(ops))), []))
        elif mn.startswith("s_"):
            self.kind = "salu"
            if mn == "s_nop":
                self.kind = "nop"; self.nop = int(ops[0], 0) + 1
            elif mn in ("s_branch",) or mn.startswith("s_cbranch"):
                self.kind = "branch"; self.target = ops[0]
            elif mn.startswith(("s_load", "s_buffer_load", "s_memtime", "s_memrealtime")):
                self.kind = "smem"; self.w = set(R(0)); self.r = set(sum((R(i) for i in range(1, len(ops))), []))
            elif mn.startswith("s_cmp") or mn in ("s_waitcnt", "s_barrier", "s_endpgm", "s_sleep", "s_setprio", "s_bitcmp0_b32", "s_bitcmp1_b32"):
                self.r = set(sum((R(i) for i in range(len(ops))), []))
            else:
                self.w = set(R(0)); self.r = set(sum((R(i) for i in range(1, len(ops))), []))
                if "saveexec" in mn: self.w |= {("exec", 0), ("exec", 1)}
    def real(self):
        return not (self.is_label or self.is_dir)

def isv(rs): return {x for x in rs if x[0] in "va" and x[0] not in ("vcc",)}
def vregs(rs): return {x for x in rs if x[0] in ("v", "a")}
def sregs(rs): return {x for x in rs if x[0] in ("s", "vcc")}

def need(p, c):
    n = 0
    if p.kind == "valu":
        pw = vregs(p.w); ps = sregs(p.w)
        if c.kind == "mfma" and pw & c.r: n = max(n, 2)
        if c.kind == "valu":
            if c.dpp and pw & c.r: n = max(n, 2)
            if c.base in ("v_readlane_b32", "v_readfirstlane_b32") and pw & c.r: n = max(n, 1)
            if c.base.startswith("v_permlane") and pw & c.r: n = max(n, 2)
            if ps & c.r: n = max(n, 4 if c.base in ("v_readlane_b32", "v_writelane_b32") else 2)
            if p.trans and not c.trans and pw & c.r: n = max(n, 1)
            if p.trans and c.trans and pw & c.r: n = max(n, 1)
            if ("sdwa" in p.mn or any(m.startswith("op_sel") for m in p.mods) and not p.mn.startswith("v_pk")) and pw & (c.r | c.w): n = max(n, 1)
            if ("exec", 0) in p.w:
                n = max(n, 5 if c.dpp else (4 if c.base.startswith(("v_readlane", "v_readfirstlane", "v_writelane", "v_permlane")) else 0))
        if c.kind == "mfma" and ("exec", 0) in p.w: n = max(n, 4)
        if c.kind == "vmem" and ps & c.r: n = max(n, 5)
        if c.kind in ("salu", "smem", "branch") and ps & c.r: n = max(n, 1)
        if p.trans and c.kind in ("vmem", "ds", "mfma") and pw & c.r: n = max(n, 2 if c.kind == "mfma" else 1)
    if p.kind == "mfma":
        big = 12 if p.passes == 8 else 8
        if c.kind == "mfma":
            if p.w & c.srcab: n = max(n, big)
            if p.w & c.srcc:
                if not (c.srcc == p.w and c.passes == p.passes): n = max(n, big - 2)
            elif p.w & c.w: n = max(n, big)
        elif c.kind in ("valu", "vmem", "ds"):
            if p.w & (c.r | c.w): n = max(n, big)
            if c.kind == "valu" and p.srcc & c.w: n = max(n, 7 if p.passes == 8 else 3)
    if p.kind == "salu" and ("m0", 0) in p.w:
        if (c.kind == "vmem" and c.lds) or (c.kind == "ds" and "addtid" in c.mn): n = max(n, 1)
    if p.kind == "vmem" and getattr(p, "wide_store", False):
        if c.kind in ("valu", "mfma") and p.sdata & c.w: n = max(n, 2)
        elif c.kind in ("vmem", "ds") and p.sdata & c.w: n = max(n, 1)
    return n

MAXD = 13

def fix_hazards(lines):
    ins = [Ins(l) for l in lines]
    total = 0
    changed = True
    while changed:
        changed = False
        labels = {x.label: i for i, x in enumerate(ins) if x.is_label}
        srcs = {}
        for i, x in enumerate(ins):
            if x.kind == "branch" and x.target in labels:
                srcs.setdefault(labels[x.target], []).append(i)
        i = 0
        out = []
        inserted = False
        for ci, c in enumerate(ins):
            if c.real() and c.kind in ("valu", "mfma", "vmem", "ds", "salu", "smem", "branch") and not inserted:
                worst = 0
                stack = [(ci - 1, 0)]
                seen = set()
                while stack:
                    j, dist = stack.pop()
                    while j >= 0 and dist < MAXD:
                        if (j, dist) in seen: break
                        seen.add((j, dist))
                        p = ins[j]
                        if p.is_label:
                            for sidx in srcs.get(j, []):
                                stack.append((sidx, dist))
                            j -= 1; continue
                        if p.is_dir:
                            j -= 1; continue
                        if p.mn in ("s_endpgm",) or (p.mn == "s_branch" and j != ci and (j + 1 <= ci) and not any(True for _ in [])):
                            if p.mn == "s_endpgm" or (j, dist) not in [(q, d) for q, d in []]:
                                pass
                        nreq = need(p, c)
                        if nreq > dist: worst = max(worst, nreq - dist)
                        dist += p.nop if p.kind == "nop" else 1
                        if p.mn == "s_endpgm": break
                        j -= 1
                if worst > 0:
                    out.append(Ins("    s_nop %d" % (worst - 1)))
                    total += 1
                    inserted = True
            out.append(c)
        if inserted:
            ins = out; changed = True
    return [x.text for x in ins], total

def fix_hazards_fast(lines):
    ins = []
    total = 0
    for l in lines:
        c = Ins(l)
        if c.real() and c.kind != "nop":
            worst = 0; dist = 0; j = len(ins) - 1
            while j >= 0 and dist < MAXD:
                p = ins[j]
                if p.real():
                    if p.mn == "s_endpgm": break
                    nreq = need(p, c)
                    if nreq > dist: worst = max(worst, nreq - dist)
                    dist += p.nop if p.kind == "nop" else 1
                j -= 1
            if worst > 0:
                ins.append(Ins("    s_nop %d" % (worst - 1))); total += 1
        ins.append(c)
    again = True
    while again:
        again = False
        labels = {x.label: i for i, x in enumerate(ins) if x.is_label}
        for bi, b in enumerate(ins):
            if b.kind == "branch" and b.target in labels:
                li = labels[b.target]
                d0 = 0; ci = li + 1
                while ci < len(ins) and d0 < MAXD:
                    c = ins[ci]
                    if c.real():
                        if c.kind != "nop":
                            dist = d0; j = bi; worst = 0
                            while j >= 0 and dist < MAXD:
                                p = ins[j]
                                if p.real():
                                    nreq = need(p, c)
                                    if nreq > dist: worst = max(worst, nreq - dist)
                                    dist += p.nop if p.kind == "nop" else 1
                                j -= 1
                            if worst > 0:
                                ins.insert(ci, Ins("    s_nop %d" % (worst - 1))); total += 1
                                again = True; break
                        d0 += c.nop if c.kind == "nop" else 1
                        if c.mn in ("s_branch", "s_endpgm"): break
                    ci += 1
                if again: break
    return [x.text for x in ins], total

def lint_waits(lines):
    vm = []; lg = []; probs = []
    for n, l in enumerate(lines):
        c = Ins(l)
        if not c.real(): continue
        if c.mn == "s_endpgm":
            vm = []; lg = []; continue
        if c.mn == "s_waitcnt":
            t = " ".join(c.ops + c.mods)
            m = re.search(r'vmcnt\((\d+)\)', t)
            if m:
                k = int(m.group(1)); vm = vm[len(vm) - k:] if k < len(vm) and k > 0 else ([] if k == 0 else vm)
            m = re.search(r'lgkmcnt\((\d+)\)', t)
            if m:
                k = int(m.group(1))
                if any(x[1] == "smem" for x in lg) and k > 0:
                    probs.append((n, l, "counted lgkmcnt with smem outstanding"))
                lg = lg[len(lg) - k:] if k < len(lg) and k > 0 else ([] if k == 0 else lg)
            continue
        touched = c.r | c.w
        for (w, kind, ln) in vm + lg:
            if w & touched:
                if c.kind == kind and not (w & c.r) and kind in ("vmem", "ds"):
                    continue
                probs.append((n, l, "touches pending %s result from line %d" % (kind, ln)))
        if c.kind == "vmem": vm.append((set(c.w), "vmem", n))
        elif c.kind == "ds": lg.append((set(c.w), "ds", n))
        elif c.kind == "smem": lg.append((set(c.w), "smem", n))
        if len(vm) > 63: probs.append((n, l, "vmcnt overflow >63"))
    return probs

class Asm:
    def __init__(self):
        self.lines = []
        self.uid = 0
    def __call__(self, t):
        for x in t.split("\n"):
            x = x.strip()
            if x: self.lines.append("    " + x if not x.endswith(":") else x)
    def label(self, l):
        self.lines.append(l + ":")
    def newlabel(self, p="L"):
        self.uid += 1
        return "%s_%d" % (p, self.uid)
    def c(self, t):
        self.lines.append("    ; " + t)
```

```python
import math, struct, sys
from asmlib import *

NAME = "interleave_layers__spectral_gfnet__mixer_token_mlp__prompt"
S, D, F = 2048, 448, 1792
ZT, TT, WT, X1, X2, X3, HF, UF = [0x200000 * i for i in range(8)]

def fbits(x):
    return "0x%08x" % struct.unpack("<I", struct.pack("<f", x))[0]

C7 = [math.cos(2 * math.pi * r / 7) for r in range(4)]
S7 = [math.sin(2 * math.pi * r / 7) for r in range(4)]

def ws_base(A, dst, off, ws=6):
    A("s_add_u32 %s, %s, 0x%x" % (s(dst), s(ws), off))
    A("s_addc_u32 %s, %s, 0" % (s(dst + 1), s(ws + 1)))

def red32(A, x, t):
    for m in ("quad_perm:[1,0,3,2]", "quad_perm:[2,3,0,1]", "row_half_mirror", "row_mirror"):
        A("v_add_f32_dpp %s, %s, %s %s row_mask:0xf bank_mask:0xf" % (v(x), v(x), v(x), m))
    A("v_mov_b32 %s, %s" % (v(t), v(x)))
    A("v_permlane16_swap_b32 %s, %s" % (v(x), v(t)))
    A("v_add_f32 %s, %s, %s" % (v(x), v(x), v(t)))

def load_dft7_consts(A, sb):
    for i in range(3):
        A("s_mov_b32 %s, %s" % (s(sb + 2 * i), fbits(C7[i + 1])))
        A("s_mov_b32 %s, %s" % (s(sb + 2 * i + 1), fbits(C7[i + 1])))
        A("s_mov_b32 %s, %s" % (s(sb + 6 + 2 * i), fbits(S7[i + 1])))
        A("s_mov_b32 %s, %s" % (s(sb + 6 + 2 * i + 1), fbits(S7[i + 1])))
def c7(sb, r):
    r %= 7; r = min(r, 7 - r); return s(sb + 2 * (r - 1), 2)
def s7(sb, r):
    r %= 7
    return (s(sb + 6 + 2 * (r - 1), 2), 1) if r <= 3 else (s(sb + 6 + 2 * (7 - r - 1), 2), -1)

def gen_frags(A, nidx, qreg, ksteps, denom, dre, dim, tmp, cvt, inverse=False):
    nf, ang, n13, cs, sn = tmp, tmp + 1, tmp + 2, tmp + 3, tmp + 4
    A("v_cvt_f32_u32 %s, %s" % (v(nf), v(nidx)))
    A("v_mul_f32 %s, %s, %s" % (v(nf), fbits(1.0 / denom), v(nf)))
    A("v_cvt_f32_u32 %s, %s" % (v(ang), v(qreg)))
    A("v_mul_f32 %s, 4.0, %s" % (v(ang), v(ang)))
    A("v_mul_f32 %s, %s, %s" % (v(ang), v(ang), v(nf)))
    A("v_mul_f32 %s, %s, %s" % (v(n13), fbits(13.0), v(nf)))
    for t in range(ksteps):
        for j in range(4):
            A("v_cos_f32 %s, %s" % (v(cs), v(ang)))
            A("v_sin_f32 %s, %s" % (v(sn), v(ang)))
            if not (t == ksteps - 1 and j == 3):
                A("v_add_f32 %s, %s, %s" % (v(ang), v(ang), v(nf if j < 3 else n13)))
            if not inverse:
                A("%s %s, %s, %s" % (cvt, v(dre + 4 * t + j), v(cs), v(sn)))
                A("%s %s, -%s, %s" % (cvt, v(dim + 4 * t + j), v(sn), v(cs)))
            else:
                A("%s %s, %s, -%s" % (cvt, v(dre + 4 * t + j), v(cs), v(sn)))
                A("%s %s, %s, %s" % (cvt, v(dim + 4 * t + j), v(sn), v(cs)))

CVF = "v_cvt_pk_f16_f32"; MF = "v_mfma_f32_16x16x32_f16"
CVI = "v_cvt_pk_bf16_f32"; MI = "v_mfma_f32_16x16x32_bf16"

def wg_remap(A, dst, tmp):
    A("s_and_b32 %s, s2, 7" % s(dst))
    A("s_lshl_b32 %s, %s, 5" % (s(dst), s(dst)))
    A("s_lshr_b32 %s, s2, 3" % s(tmp))
    A("s_add_u32 %s, %s, %s" % (s(dst), s(dst), s(tmp)))

def row_offset(A, w, vo, vl, st):
    A("s_lshr_b32 %s, %s, 3" % (s(st), s(w)))
    A("s_and_b32 %s, %s, 7" % (s(st + 1), s(w)))
    A("s_lshl_b32 %s, %s, 3" % (s(st + 1), s(st + 1)))
    A("v_lshrrev_b32 %s, 5, v0" % v(vo))
    A("v_add_u32 %s, %s, %s" % (v(vo), s(st + 1), v(vo)))
    A("v_lshlrev_b32 %s, 5, %s" % (v(vo), v(vo)))
    A("v_add_u32 %s, %s, %s" % (v(vo), s(st), v(vo)))
    A("v_mul_u32_u24 %s, 896, %s" % (v(vo), v(vo)))
    A("v_and_b32 %s, 31, v0" % v(vl))
    A("v_lshl_add_u32 %s, %s, 2, %s" % (v(vo), v(vl), v(vo)))

def unpack7(A, src, dst):
    for t in range(7):
        A("v_lshlrev_b32 %s, 16, %s" % (v(dst + 2 * t), v(src + t)))
        A("v_and_b32 %s, 0xffff0000, %s" % (v(dst + 2 * t + 1), v(src + t)))

def ln_center(A, z, acc, t):
    A("v_pk_add_f32 %s, %s, %s" % (v(acc, 2), v(z, 2), v(z + 2, 2)))
    for k in range(2, 7):
        A("v_pk_add_f32 %s, %s, %s" % (v(acc, 2), v(acc, 2), v(z + 2 * k, 2)))
    A("v_add_f32 %s, %s, %s" % (v(acc), v(acc), v(acc + 1)))
    red32(A, acc, t)
    A("v_mul_f32 %s, %s, %s" % (v(acc), fbits(-1.0 / D), v(acc)))
    A("v_mov_b32 %s, %s" % (v(acc + 1), v(acc)))
    for k in range(7):
        A("v_pk_add_f32 %s, %s, %s" % (v(z + 2 * k, 2), v(z + 2 * k, 2), v(acc, 2)))
    A("v_pk_mul_f32 %s, %s, %s" % (v(acc, 2), v(z, 2), v(z, 2)))
    for k in range(1, 7):
        A("v_pk_fma_f32 %s, %s, %s, %s" % (v(acc, 2), v(z + 2 * k, 2), v(z + 2 * k, 2), v(acc, 2)))
    A("v_add_f32 %s, %s, %s" % (v(acc), v(acc), v(acc + 1)))
    red32(A, acc, t)
    A("v_mul_f32 %s, %s, %s" % (v(acc), fbits(1.0 / D), v(acc)))

LSTR = 272

def gen_a1(A):
    A.label("a1_body")
    A("s_load_dwordx2 s[6:7], s[0:1], 80")
    A("s_cmp_ge_u32 s2, 256")
    A("s_cbranch_scc1 wprep")
    A("s_load_dwordx2 s[4:5], s[0:1], 0")
    wg_remap(A, 8, 9)
    row_offset(A, 8, 1, 2, 10)
    A("s_waitcnt lgkmcnt(0)")
    ws_base(A, 12, X2)
    A("s_cmp_eq_u32 s3, 0")
    A("s_cselect_b32 s4, s4, s12")
    A("s_cselect_b32 s5, s5, s13")
    XR = 4
    for t in range(7):
        A("global_load_dword %s, v1, s[4:5] offset:%d" % (v(XR + t), 128 * t))
    SB = 16
    load_dft7_consts(A, SB)
    BRE, BIM = 64, 80
    A("v_lshrrev_b32 v11, 6, v0")
    A("v_and_b32 v12, 15, v0")
    A("v_lshl_add_u32 v12, v11, 4, v12")
    A("v_bfe_u32 v13, v0, 4, 2")
    gen_frags(A, 12, 13, 4, 64, BRE, BIM, 14, CVF)
    TC, TS = 20, 26
    A("v_cvt_f32_u32 v14, v2")
    A("v_mul_f32 v14, %s, v14" % fbits(2.0 / 448))
    A("v_add_f32 v15, %s, v14" % fbits(1.0 / 448))
    for k in range(1, 4):
        if k == 1: a0, a1_ = 14, 15
        else:
            a0, a1_ = 16, 17
            A("v_mul_f32 v16, %s, v14" % fbits(float(k)))
            A("v_mul_f32 v17, %s, v15" % fbits(float(k)))
        A("v_cos_f32 %s, %s" % (v(TC + 2 * (k - 1)), v(a0)))
        A("v_cos_f32 %s, %s" % (v(TC + 2 * (k - 1) + 1), v(a1_)))
        A("v_sin_f32 %s, %s" % (v(TS + 2 * (k - 1)), v(a0)))
        A("v_sin_f32 %s, %s" % (v(TS + 2 * (k - 1) + 1), v(a1_)))
    A("v_lshrrev_b32 v3, 5, v0")
    A("v_mul_u32_u24 v3, %d, v3" % LSTR)
    A("v_lshl_add_u32 v3, v2, 3, v3")
    A("v_and_b32 v18, 15, v0")
    A("v_mul_u32_u24 v18, %d, v18" % LSTR)
    A("v_lshl_add_u32 v18, v13, 4, v18")
    A("v_lshrrev_b32 v19, 1, v13")
    A("v_lshl_add_u32 v19, v19, 6, v12")
    A("v_lshlrev_b32 v19, 13, v19")
    A("v_and_b32 v14, 1, v13")
    A("v_lshl_add_u32 v19, v14, 4, v19")
    A("s_lshl_b32 s9, s8, 5")
    A("v_add_u32 v19, s9, v19")
    Z = 32
    A("s_waitcnt vmcnt(0)")
    unpack7(A, XR, Z)
    ACC = 46
    ln_center(A, Z, ACC, 48)
    A("v_add_f32 v46, %s, v46" % fbits(1e-5))
    A("v_rsq_f32 v46, v46")
    A("v_mul_f32 v46, %s, v46" % fbits(1.0 / (8 * math.sqrt(7))))
    A("v_mov_b32 v47, v46")
    P, Q = 48, 54
    for t in range(1, 4):
        A("v_pk_add_f32 %s, %s, %s" % (v(P + 2 * (t - 1), 2), v(Z + 2 * t, 2), v(Z + 2 * (7 - t), 2)))
        A("v_pk_add_f32 %s, %s, %s neg_lo:[0,1] neg_hi:[0,1]" % (v(Q + 2 * (t - 1), 2), v(Z + 2 * t, 2), v(Z + 2 * (7 - t), 2)))
    for k in range(6):
        A("v_pk_mul_f32 %s, %s, v[46:47]" % (v(TC + 2 * k, 2), v(TC + 2 * k, 2)))
    A("v_pk_add_f32 v[4:5], %s, %s" % (v(Z, 2), v(P, 2)))
    A("v_pk_add_f32 v[6:7], %s, %s" % (v(P + 2, 2), v(P + 4, 2)))
    A("v_pk_add_f32 v[4:5], v[4:5], v[6:7]")
    A("v_pk_mul_f32 v[4:5], v[4:5], v[46:47]")
    A("%s v60, v4, 0" % CVF)
    A("%s v61, v5, 0" % CVF)
    A("ds_write_b64 v3, v[60:61]")
    for k in range(1, 4):
        R, N, T1, T2 = 34, 36, 38, 40
        for t in range(1, 4):
            A("v_pk_fma_f32 %s, %s, %s, %s" % (v(R, 2), v(P + 2 * (t - 1), 2), c7(SB, t * k), v(Z, 2) if t == 1 else v(R, 2)))
        for t in range(1, 4):
            cs, sg = s7(SB, t * k)
            if t == 1:
                assert sg == 1
                A("v_pk_mul_f32 %s, %s, %s" % (v(N, 2), v(Q, 2), cs))
            else:
                neg = "" if sg == 1 else " neg_lo:[1,0,0] neg_hi:[1,0,0]"
                A("v_pk_fma_f32 %s, %s, %s, %s%s" % (v(N, 2), v(Q + 2 * (t - 1), 2), cs, v(N, 2), neg))
        tc, ts = v(TC + 2 * (k - 1), 2), v(TS + 2 * (k - 1), 2)
        A("v_pk_mul_f32 %s, %s, %s" % (v(T1, 2), v(N, 2), ts))
        A("v_pk_mul_f32 %s, %s, %s" % (v(T2, 2), v(N, 2), tc))
        A("v_pk_fma_f32 %s, %s, %s, %s neg_lo:[0,0,1] neg_hi:[0,0,1]" % (v(T1, 2), v(R, 2), tc, v(T1, 2)))
        A("v_pk_fma_f32 %s, %s, %s, %s" % (v(T2, 2), v(R, 2), ts, v(T2, 2)))
        o = 60 + 2 * (k % 2)
        A("%s %s, %s, -%s" % (CVF, v(o), v(T1), v(T2)))
        A("%s %s, %s, -%s" % (CVF, v(o + 1), v(T1 + 1), v(T2 + 1)))
        A("ds_write_b64 v3, %s offset:%d" % (v(o, 2), k * 8 * LSTR))
    A("s_waitcnt lgkmcnt(0)")
    A("s_barrier")
    AF = 96
    for mt in range(2):
        for t in range(4):
            A("ds_read_b128 %s, v18 offset:%d" % (v(AF + 16 * mt + 4 * t, 4), mt * 16 * LSTR + 64 * t))
    ws_base(A, 12, ZT)
    DR, DI = 32, 40
    for mt in range(2):
        for t in range(4):
            A("s_waitcnt lgkmcnt(%d)" % (7 - 4 * mt - t))
            A("%s %s, %s, %s, %s" % (MF, v(DR + 4 * mt, 4), v(AF + 16 * mt + 4 * t, 4), v(BRE + 4 * t, 4), "0" if t == 0 else v(DR + 4 * mt, 4)))
            A("%s %s, %s, %s, %s" % (MF, v(DI + 4 * mt, 4), v(AF + 16 * mt + 4 * t, 4), v(BIM + 4 * t, 4), "0" if t == 0 else v(DI + 4 * mt, 4)))
    A("v_add_u32 v20, 0x100000, v19")
    for mt in range(2):
        for r in range(4):
            A("%s %s, %s, %s" % (CVF, v(48 + 4 * mt + r), v(DR + 4 * mt + r), v(DI + 4 * mt + r)))
        A("global_store_dwordx4 %s, %s, s[12:13]" % (v(19 + mt), v(48 + 4 * mt, 4)))
    A("s_endpgm")
    A.label("wprep")
    A("s_cmp_ge_u32 s2, s14")
    A("s_cbranch_scc1 a1_exit")
    A("s_load_dwordx4 s[8:11], s[0:1], 8")
    A("s_and_b32 s12, s2, 63")
    A("s_bfe_u32 s13, s2, 0x20006")
    A("v_and_b32 v1, 63, v0")
    A("v_lshrrev_b32 v2, 6, v0")
    A("v_readfirstlane_b32 s15, v2")
    A("v_mul_u32_u24 v3, 7, v1")
    A("v_add_u32 v3, s13, v3")
    A("v_sub_u32 v4, 0x1c0, v3")
    A("v_cmp_lt_u32 vcc, 224, v3")
    A("v_cndmask_b32 v3, v3, v4, vcc")
    A("v_lshlrev_b32 v3, 1, v3")
    A("v_mov_b32 v5, 1")
    A("v_cndmask_b32 v4, v5, -1, vcc")
    A("v_mov_b32 v6, 0x8000")
    A("v_cndmask_b32 v5, 0, v6, vcc")
    A("s_lshl_b32 s16, s15, 9")
    A("s_add_u32 s16, s16, s12")
    A("s_movk_i32 s17, 450")
    A("s_waitcnt lgkmcnt(0)")
    for i in range(8):
        A("v_mul_i32_i24 v6, s16, v4")
        A("v_and_b32 v6, 0x7ff, v6")
        A("v_mad_u32_u24 v6, v6, s17, v3")
        A("global_load_ushort %s, v6, s[8:9]" % v(8 + i))
        A("global_load_ushort %s, v6, s[10:11]" % v(16 + i))
        if i < 7: A("s_add_u32 s16, s16, 64")
    A("s_lshl_b32 s13, s13, 19")
    A("s_lshl_b32 s12, s12, 7")
    A("s_add_u32 s13, s13, s12")
    A("s_lshl_b32 s15, s15, 5")
    A("s_add_u32 s13, s13, s15")
    A("v_lshlrev_b32 v7, 13, v1")
    A("v_add_u32 v7, s13, v7")
    ws_base(A, 18, WT)
    A("s_waitcnt vmcnt(0)")
    for i in range(8):
        A("v_xor_b32 %s, %s, v5" % (v(16 + i), v(16 + i)))
        A("v_lshl_or_b32 %s, %s, 16, %s" % (v(8 + i), v(16 + i), v(8 + i)))
    A("global_store_dwordx4 v7, v[8:11], s[18:19]")
    A("global_store_dwordx4 v7, v[12:15], s[18:19] offset:16")
    A.label("a1_exit")
    A("s_endpgm")

def cmul(A, dr, di, ar, ai, br, bi, t):
    A("v_mul_f32 %s, %s, %s" % (v(t), v(ai), v(bi)))
    A("v_mul_f32 %s, %s, %s" % (v(t + 1), v(ai), v(br)))
    A("v_fma_f32 %s, %s, %s, %s" % (v(di), v(ar), v(bi), v(t + 1)))
    A("v_fma_f32 %s, %s, %s, -%s" % (v(dr), v(ar), v(br), v(t)))

def gen_a2(A):
    A.label("a2_kernel")
    A("s_cmp_ge_u32 s2, 256")
    A("s_cbranch_scc1 a2_exit")
    A("s_load_dwordx2 s[6:7], s[0:1], 80")
    A("v_and_b32 v1, 15, v0")
    A("v_bfe_u32 v2, v0, 4, 2")
    A("v_lshrrev_b32 v3, 6, v0")
    A("v_lshl_add_u32 v4, v3, 4, v1")
    A("s_lshl_b32 s8, s2, 13")
    A("v_lshlrev_b32 v5, 8, v1")
    A("v_lshl_add_u32 v5, v2, 4, v5")
    A("v_add_u32 v5, s8, v5")
    A("v_add_u32 v6, 4096, v5")
    A("v_lshlrev_b32 v7, 7, v4")
    A("v_lshl_add_u32 v7, v2, 4, v7")
    A("v_add_u32 v7, s8, v7")
    A("s_waitcnt lgkmcnt(0)")
    ws_base(A, 10, ZT); ws_base(A, 12, WT); ws_base(A, 14, TT)
    DA = 96
    for mt in range(2):
        for t in range(4):
            A("global_load_dwordx4 %s, %s, s[10:11] offset:%d" % (v(DA + 16 * mt + 4 * t, 4), v(5 + mt), 64 * t))
    WV = 128
    for mt in range(2):
        A("global_load_dwordx4 %s, v7, s[12:13] offset:%d" % (v(WV + 4 * mt, 4), 64 * mt))
    F64R, F64I = 64, 80
    gen_frags(A, 4, 2, 4, 64, F64R, F64I, 8, CVF)
    T1C, T1S = 16, 24
    A("v_cvt_f32_u32 v8, v4")
    A("v_mul_f32 v8, %s, v8" % fbits(1.0 / 2048))
    A("v_cvt_f32_u32 v9, v2")
    A("v_mul_f32 v9, 4.0, v9")
    A("v_mul_f32 v9, v9, v8")
    A("v_mul_f32 v10, %s, v8" % fbits(13.0))
    for i in range(8):
        A("v_cos_f32 %s, v9" % v(T1C + i))
        A("v_sin_f32 %s, v9" % v(T1S + i))
        if i < 7: A("v_add_f32 v9, v9, %s" % v(8 if i != 3 else 10))
        A("v_mul_f32 %s, %s, %s" % (v(T1C + i), fbits(1.0 / 256), v(T1C + i)))
        A("v_mul_f32 %s, %s, %s" % (v(T1S + i), fbits(-1.0 / 256), v(T1S + i)))
    GR, GI = 32, 40
    for mt in range(2):
        for t in range(4):
            A("s_waitcnt vmcnt(%d)" % (9 - 4 * mt - t))
            A("%s %s, %s, %s, %s" % (MF, v(GR + 4 * mt, 4), v(DA + 16 * mt + 4 * t, 4), v(F64R + 4 * t, 4), "0" if t == 0 else v(GR + 4 * mt, 4)))
            A("%s %s, %s, %s, %s" % (MF, v(GI + 4 * mt, 4), v(DA + 16 * mt + 4 * t, 4), v(F64I + 4 * t, 4), "0" if t == 0 else v(GI + 4 * mt, 4)))
    F32R, F32I = 136, 152
    G32R, G32I = 168, 184
    A("v_add_u32 v14, 16, v1")
    for mt in range(2):
        gen_frags(A, 1 if mt == 0 else 14, 2, 2, 32, F32R + 8 * mt, F32I + 8 * mt, 8, CVF)
    P1 = 48
    for i in range(8):
        cmul(A, GR + i, GI + i, GR + i, GI + i, T1C + i, T1S + i, 8)
        A("%s %s, %s, %s" % (CVF, v(P1 + i), v(GR + i), v(GI + i)))
    XR, XI = 96, 104
    for mt in range(2):
        for ks in range(2):
            A("%s %s, %s, %s, %s" % (MF, v(XR + 4 * mt, 4), v(F32R + 8 * mt + 4 * ks, 4), v(P1 + 4 * ks, 4), "0" if ks == 0 else v(XR + 4 * mt, 4)))
            A("%s %s, %s, %s, %s" % (MF, v(XI + 4 * mt, 4), v(F32I + 8 * mt + 4 * ks, 4), v(P1 + 4 * ks, 4), "0" if ks == 0 else v(XI + 4 * mt, 4)))
    for mt in range(2):
        gen_frags(A, 1 if mt == 0 else 14, 2, 2, 32, G32R + 8 * mt, G32I + 8 * mt, 8, CVI, inverse=True)
    A("s_waitcnt vmcnt(0)")
    P2 = 56
    for i in range(8):
        A("v_lshlrev_b32 v10, 16, %s" % v(WV + i))
        A("v_and_b32 v11, 0xffff0000, %s" % v(WV + i))
        cmul(A, XR + i, XI + i, XR + i, XI + i, 10, 11, 8)
        A("%s %s, %s, %s" % (CVI, v(P2 + i), v(XR + i), v(XI + i)))
    HR, HI = 32, 40
    for nt in range(2):
        for ks in range(2):
            A("%s %s, %s, %s, %s" % (MI, v(HR + 4 * nt, 4), v(P2 + 4 * ks, 4), v(G32R + 8 * nt + 4 * ks, 4), "0" if ks == 0 else v(HR + 4 * nt, 4)))
            A("%s %s, %s, %s, %s" % (MI, v(HI + 4 * nt, 4), v(P2 + 4 * ks, 4), v(G32I + 8 * nt + 4 * ks, 4), "0" if ks == 0 else v(HI + 4 * nt, 4)))
    A("v_lshlrev_b32 v8, 4, v3")
    A("v_lshl_add_u32 v8, v2, 2, v8")
    A("v_cvt_f32_u32 v8, v8")
    for nt in range(2):
        A("v_cvt_f32_u32 v9, %s" % v(1 if nt == 0 else 14))
        A("v_mul_f32 v9, %s, v9" % fbits(1.0 / 2048))
        A("v_mul_f32 v10, v8, v9")
        for r in range(4):
            i = 4 * nt + r
            A("v_cos_f32 %s, v10" % v(T1C + i))
            A("v_sin_f32 %s, v10" % v(T1S + i))
            if r < 3: A("v_add_f32 v10, v10, v9")
            A("v_mul_f32 %s, %s, %s" % (v(T1C + i), fbits(0.125), v(T1C + i)))
            A("v_mul_f32 %s, %s, %s" % (v(T1S + i), fbits(0.125), v(T1S + i)))
    P3 = 48
    for i in range(8):
        cmul(A, HR + i, HI + i, HR + i, HI + i, T1C + i, T1S + i, 8)
        A("%s %s, %s, %s" % (CVI, v(P3 + i), v(HR + i), v(HI + i)))
    A("v_lshlrev_b32 v8, 4, v0")
    A("ds_write_b128 v8, %s" % v(P3, 4))
    A("ds_write_b128 v8, %s offset:4096" % v(P3 + 4, 4))
    gen_frags(A, 4, 2, 4, 64, F64R, F64I, 9, CVI, inverse=True)
    A("v_and_b32 v8, 63, v0")
    A("v_lshlrev_b32 v8, 4, v8")
    A("s_waitcnt lgkmcnt(0)")
    A("s_barrier")
    for nt in range(2):
        for t in range(4):
            A("ds_read_b128 %s, v8 offset:%d" % (v(DA + 16 * nt + 4 * t, 4), nt * 4096 + t * 1024))
    A("v_lshl_add_u32 v5, v3, 6, v5")
    A("v_add_u32 v6, 4096, v5")
    TR, TI = 32, 40
    for nt in range(2):
        for t in range(4):
            A("s_waitcnt lgkmcnt(%d)" % (7 - 4 * nt - t))
            A("%s %s, %s, %s, %s" % (MI, v(TR + 4 * nt, 4), v(F64R + 4 * t, 4), v(DA + 16 * nt + 4 * t, 4), "0" if t == 0 else v(TR + 4 * nt, 4)))
            A("%s %s, %s, %s, %s" % (MI, v(TI + 4 * nt, 4), v(F64I + 4 * t, 4), v(DA + 16 * nt + 4 * t, 4), "0" if t == 0 else v(TI + 4 * nt, 4)))
    for nt in range(2):
        for r in range(4):
            A("%s %s, %s, %s" % (CVI, v(48 + 4 * nt + r), v(TR + 4 * nt + r), v(TI + 4 * nt + r)))
        A("global_store_dwordx4 %s, %s, s[14:15]" % (v(5 + nt), v(48 + 4 * nt, 4)))
    A.label("a2_exit")
    A("s_endpgm")

YSTR = 448 * 4 + 64
HSTR = 896 + 32
A3_Y = 32 * LSTR
A3_H = A3_Y + 8 * YSTR
A3_LDS = A3_H + 8 * HSTR
def gen_a3(A):
    A.label("a3_body")
    A("s_cmp_ge_u32 s2, 256")
    A("s_cbranch_scc1 a3_exit")
    A("s_load_dwordx2 s[6:7], s[0:1], 80")
    A("s_load_dwordx2 s[4:5], s[0:1], 0")
    wg_remap(A, 8, 9)
    row_offset(A, 8, 1, 2, 10)
    A("v_lshlrev_b32 v3, 13, v0")
    A("s_lshl_b32 s9, s8, 5")
    A("v_add_u32 v3, s9, v3")
    A("s_waitcnt lgkmcnt(0)")
    ws_base(A, 12, TT)
    TV = 16
    A("global_load_dwordx4 v[16:19], v3, s[12:13]")
    A("global_load_dwordx4 v[20:23], v3, s[12:13] offset:16")
    ws_base(A, 12, X2)
    A("s_cmp_eq_u32 s3, 0")
    A("s_cselect_b32 s4, s4, s12")
    A("s_cselect_b32 s5, s5, s13")
    A("s_cselect_b32 s14, 0x%x, 0x%x" % (X1, X3) if False else "s_mov_b32 s14, 0x%x" % X3)
    A("s_cselect_b32 s14, 0x%x, s14" % X1)
    XR = 4
    for t in range(7):
        A("global_load_dword %s, v1, s[4:5] offset:%d" % (v(XR + t), 128 * t))
    A("s_add_u32 s14, s6, s14")
    A("s_addc_u32 s15, s7, 0")
    SB = 16
    load_dft7_consts(A, SB)
    BRE, BIM = 64, 80
    A("v_lshrrev_b32 v11, 6, v0")
    A("v_and_b32 v12, 15, v0")
    A("v_lshl_add_u32 v12, v11, 4, v12")
    A("v_bfe_u32 v13, v0, 4, 2")
    A("v_lshrrev_b32 v14, 1, v11")
    A("v_lshlrev_b32 v14, 4, v14")
    A("v_and_b32 v15, 1, v11")
    A("v_lshl_add_u32 v14, v15, 1, v14")
    A("v_mul_u32_u24 v14, %d, v14" % LSTR)
    A("v_and_b32 v15, 63, v0")
    A("v_lshl_add_u32 v14, v15, 2, v14")
    gen_frags(A, 12, 13, 4, 64, BRE, BIM, 24, CVI, inverse=True)
    A("s_waitcnt vmcnt(7)")
    for row in range(8):
        A("ds_write_b32 v14, %s offset:%d" % (v(TV + row), (4 * (row // 2) + (row & 1)) * LSTR))
    TW = 24
    sc = 1.0 / (8 * math.sqrt(7))
    A("v_cvt_f32_u32 v30, v12")
    for k in range(1, 4):
        A("v_mul_f32 v31, %s, v30" % fbits(k / 448.0))
        A("v_cos_f32 %s, v31" % v(TW + 2 * (k - 1)))
        A("v_sin_f32 %s, v31" % v(TW + 2 * (k - 1) + 1))
        A("v_mul_f32 %s, %s, %s" % (v(TW + 2 * (k - 1)), fbits(2 * sc), v(TW + 2 * (k - 1))))
        A("v_mul_f32 %s, %s, %s" % (v(TW + 2 * (k - 1) + 1), fbits(2 * sc), v(TW + 2 * (k - 1) + 1)))
    A("v_and_b32 v15, 15, v0")
    A("v_mul_u32_u24 v15, %d, v15" % LSTR)
    A("v_lshl_add_u32 v15, v13, 4, v15")
    A("s_waitcnt lgkmcnt(0)")
    A("s_barrier")
    AF = 96
    for mt in range(2):
        for t in range(4):
            A("ds_read_b128 %s, v15 offset:%d" % (v(AF + 16 * mt + 4 * t, 4), mt * 16 * LSTR + 64 * t))
    A("v_mul_u32_u24 v14, %d, v13" % (2 * YSTR))
    A("v_lshl_add_u32 v14, v12, 2, v14")
    DR, DI = 32, 40
    for mt in range(2):
        for t in range(4):
            A("s_waitcnt lgkmcnt(%d)" % (7 - 4 * mt - t))
            A("%s %s, %s, %s, %s" % (MI, v(DR + 4 * mt, 4), v(AF + 16 * mt + 4 * t, 4), v(BRE + 4 * t, 4), "0" if t == 0 else v(DR + 4 * mt, 4)))
            A("%s %s, %s, %s, %s" % (MI, v(DI + 4 * mt, 4), v(AF + 16 * mt + 4 * t, 4), v(BIM + 4 * t, 4), "0" if t == 0 else v(DI + 4 * mt, 4)))
    A("s_mov_b32 s28, %s" % fbits(sc)); A("s_mov_b32 s29, %s" % fbits(sc))
    UR, UI = 48, 54
    U0 = 60
    A("v_pk_mul_f32 %s, %s, s[28:29]" % (v(U0, 2), v(DR, 2)))
    for k in range(1, 4):
        tw = v(TW + 2 * (k - 1), 2)
        vr, vi = v(DR + 2 * k, 2), v(DI + 2 * k, 2)
        ur, ui = v(UR + 2 * (k - 1), 2), v(UI + 2 * (k - 1), 2)
        A("v_pk_mul_f32 %s, %s, %s op_sel:[0,1] op_sel_hi:[1,1]" % (ur, vi, tw))
        A("v_pk_mul_f32 %s, %s, %s op_sel:[0,0] op_sel_hi:[1,0]" % (ui, vi, tw))
        A("v_pk_fma_f32 %s, %s, %s, %s op_sel:[0,0,0] op_sel_hi:[1,0,1] neg_lo:[0,0,1] neg_hi:[0,0,1]" % (ur, vr, tw, ur))
        A("v_pk_fma_f32 %s, %s, %s, %s op_sel:[0,1,0] op_sel_hi:[1,1,1]" % (ui, vr, tw, ui))
    def ywrite(pair, t):
        A("ds_write_b32 v14, %s offset:%d" % (v(pair), A3_Y + 256 * t))
        A("ds_write_b32 v14, %s offset:%d" % (v(pair + 1), A3_Y + YSTR + 256 * t))
    A("v_pk_add_f32 v[32:33], %s, %s" % (v(U0, 2), v(UR, 2)))
    A("v_pk_add_f32 v[34:35], %s, %s" % (v(UR + 2, 2), v(UR + 4, 2)))
    A("v_pk_add_f32 v[32:33], v[32:33], v[34:35]")
    ywrite(32, 0)
    for t in range(1, 4):
        aa, bb, y1, y2 = 36, 38, 40 + 4 * (t % 2), 42 + 4 * (t % 2)
        for k in range(1, 4):
            A("v_pk_fma_f32 %s, %s, %s, %s" % (v(aa, 2), v(UR + 2 * (k - 1), 2), c7(SB, t * k), v(U0, 2) if k == 1 else v(aa, 2)))
        for k in range(1, 4):
            cs, sg = s7(SB, t * k)
            if k == 1:
                A("v_pk_mul_f32 %s, %s, %s" % (v(bb, 2), v(UI, 2), cs))
            else:
                neg = "" if sg == 1 else " neg_lo:[1,0,0] neg_hi:[1,0,0]"
                A("v_pk_fma_f32 %s, %s, %s, %s%s" % (v(bb, 2), v(UI + 2 * (k - 1), 2), cs, v(bb, 2), neg))
        A("v_pk_add_f32 %s, %s, %s neg_lo:[0,1] neg_hi:[0,1]" % (v(y1, 2), v(aa, 2), v(bb, 2)))
        A("v_pk_add_f32 %s, %s, %s" % (v(y2, 2), v(aa, 2), v(bb, 2)))
        ywrite(y1, t); ywrite(y2, 7 - t)
    A("v_lshrrev_b32 v14, 5, v0")
    A("v_mul_u32_u24 v15, %d, v14" % HSTR)
    A("v_lshl_add_u32 v15, v2, 2, v15")
    A("v_mul_u32_u24 v14, %d, v14" % YSTR)
    A("v_lshl_add_u32 v14, v2, 3, v14")
    A("s_waitcnt lgkmcnt(0)")
    A("s_barrier")
    Y = 64
    for t in range(7):
        A("ds_read_b64 %s, v14 offset:%d" % (v(Y + 2 * t, 2), A3_Y + 256 * t))
    Z = 32
    A("s_waitcnt vmcnt(0)")
    unpack7(A, XR, Z)
    A("s_waitcnt lgkmcnt(0)")
    for t in range(7):
        A("v_cvt_pk_bf16_f32 %s, %s, %s" % (v(XR + t), v(Y + 2 * t), v(Y + 2 * t + 1)))
    unpack7(A, XR, Y)
    for t in range(7):
        A("v_pk_add_f32 %s, %s, %s" % (v(Z + 2 * t, 2), v(Z + 2 * t, 2), v(Y + 2 * t, 2)))
        A("v_cvt_pk_bf16_f32 %s, %s, %s" % (v(XR + t), v(Z + 2 * t), v(Z + 2 * t + 1)))
        A("global_store_dword v1, %s, s[14:15] offset:%d" % (v(XR + t), 128 * t))
    unpack7(A, XR, Z)
    ln_center(A, Z, 46, 48)
    A("v_add_f32 v47, %s, v46" % fbits(1e-5))
    A("v_rsq_f32 v47, v47")
    A("v_mul_f32 v46, v46, v47")
    A("v_mov_b32 v48, %s" % fbits(1e-5))
    A("v_fma_f32 v46, v46, v47, v48")
    A("v_rsq_f32 v46, v46")
    A("v_mul_f32 v46, v46, v47")
    A("v_mov_b32 v47, v46")
    for t in range(7):
        A("v_pk_mul_f32 %s, %s, v[46:47]" % (v(Z + 2 * t, 2), v(Z + 2 * t, 2)))
        A("v_cvt_pk_bf16_f32 %s, %s, %s" % (v(64 + t), v(Z + 2 * t), v(Z + 2 * t + 1)))
        A("ds_write_b32 v15, %s offset:%d" % (v(64 + t), A3_H + 128 * t))
    A("v_bfe_u32 v14, v0, 2, 2")
    A("v_mul_u32_u24 v14, %d, v14" % HSTR)
    A("v_and_b32 v16, 3, v0")
    A("v_lshl_add_u32 v14, v16, 3, v14")
    A("v_lshl_add_u32 v14, v13, 5, v14")
    A("v_lshl_add_u32 v14, v11, 7, v14")
    A("s_mul_i32 s9, s8, 7168")
    A("v_lshlrev_b32 v16, 4, v0")
    A("v_add_u32 v16, s9, v16")
    ws_base(A, 12, HF)
    A("v_readfirstlane_b32 s9, v11")
    A("s_waitcnt lgkmcnt(0)")
    A("s_barrier")
    A("ds_read_b64_tr_b16 v[20:21], v14 offset:%d" % (A3_H))
    A("ds_read_b64_tr_b16 v[22:23], v14 offset:%d" % (A3_H + 4 * HSTR))
    A("s_cmp_eq_u32 s9, 3")
    A("s_cbranch_scc1 a3_last")
    A("ds_read_b64_tr_b16 v[24:25], v14 offset:%d" % (A3_H + 512))
    A("ds_read_b64_tr_b16 v[26:27], v14 offset:%d" % (A3_H + 4 * HSTR + 512))
    A("v_add_u32 v17, 4096, v16")
    A("s_waitcnt lgkmcnt(0)")
    A("global_store_dwordx4 v17, v[24:27], s[12:13]")
    A.label("a3_last")
    A("s_waitcnt lgkmcnt(0)")
    A("global_store_dwordx4 v16, v[20:23], s[12:13]")
    A.label("a3_exit")
    A("s_endpgm")

DEPTH = 6
RING = 8
RED = 4 * RING * 2048
B_LDS = RED + 12 * 4096
MB = "v_mfma_f32_32x32x16_bf16"

def gemm_core(A, nks, wsrd, frag_srd, voffW, soffW_fn, voffF, soffF_fn, w_is_A, tr_rows):
    FR = 32
    WF = 96
    def issue(ks):
        slot = ks % RING
        if ks % 2 == 0:
            A("s_add_u32 m0, s40, %d" % (slot * 2048))
        sW = soffW_fn(ks)
        for h in range(2):
            vr = voffW(ks, h)
            A("buffer_load_dwordx4 %s, %s, %s offen offset:%d lds" % (v(vr), wsrd, sW, ((ks % 2) * 2 + h) * 1024))
        sF = soffF_fn(ks)
        for h in range(2):
            vr, imm = voffF(h)
            A("buffer_load_dwordx4 %s, %s, %s, %s offen offset:%d" % (v(FR + 8 * slot + 4 * h, 4), v(vr), frag_srd, sF, imm))
    def trread(ks):
        slot = ks % RING
        b = WF + 8 * (ks % 2)
        for tl in range(2):
            for rd in range(2):
                A("ds_read_b64_tr_b16 %s, %s offset:%d" % (v(b + 4 * tl + 2 * rd, 2), v(20 + tl), slot * 2048 + tr_rows[rd] * 128))
    def mfmas(ks):
        slot = ks % RING
        b = WF + 8 * (ks % 2)
        for wt in range(2):
            for ft in range(2):
                wreg = v(b + 4 * wt, 4); freg = v(FR + 8 * slot + 4 * ft, 4)
                if w_is_A:
                    acc = a(16 * (2 * wt + ft), 16); AA, BB = wreg, freg
                else:
                    acc = a(16 * (2 * ft + wt), 16); AA, BB = freg, wreg
                A("%s %s, %s, %s, %s" % (MB, acc, AA, BB, "0" if ks == 0 else acc))
    for ks in range(min(DEPTH, nks)):
        issue(ks)
    return issue, trread, mfmas

def gemm_loop(A, nks, issue, trread, mfmas, extra_vm):
    for ks in range(nks):
        later = min(DEPTH - 1, nks - 1 - ks)
        A("s_waitcnt vmcnt(%d)" % (4 * later + (extra_vm if ks < DEPTH else 0)))
        trread(ks)
        if ks > 0:
            A("s_waitcnt lgkmcnt(4)")
            mfmas(ks - 1)
        if ks + DEPTH < nks:
            issue(ks + DEPTH)
    A("s_waitcnt lgkmcnt(0)")
    mfmas(nks - 1)

def ksplit_reduce(A, wave_s, R):
    lab_end = A.newlabel("red_done")
    labs = [A.newlabel("red_w") for _ in range(4)]
    for w in range(1, 4):
        A("s_cmp_eq_u32 %s, %d" % (wave_s, w))
        A("s_cbranch_scc1 %s" % labs[w])
    for w in range(4):
        A.label(labs[w])
        for i in range(4):
            if i == w: continue
            sl = (w - i - 1) % 4
            for g in range(4):
                A("ds_write_b128 v22, %s offset:%d" % (a(16 * i + 4 * g, 4), (i * 3 + sl) * 4096 + g * 1024))
        for k in range(16):
            A("v_accvgpr_read_b32 %s, %s" % (v(R + k), a(16 * w + k)))
        if w < 3: A("s_branch %s" % lab_end)
    A.label(lab_end)
    A("s_mul_i32 s41, %s, %d" % (wave_s, 3 * 4096))
    A("v_add_u32 v22, s41, v22")
    A("s_waitcnt lgkmcnt(0)")
    A("s_barrier")
    T = 48
    for sl in range(3):
        for g in range(4):
            A("ds_read_b128 %s, v22 offset:%d" % (v(T + 16 * sl + 4 * g, 4), sl * 4096 + g * 1024))
    for sl in range(3):
        A("s_waitcnt lgkmcnt(%d)" % (8 - 4 * sl))
        for k in range(0, 16, 2):
            A("v_pk_add_f32 %s, %s, %s" % (v(R + k, 2), v(R + k, 2), v(T + 16 * sl + k, 2)))

def srd(A, d, base, nbytes):
    A("s_mov_b32 %s, %s" % (s(d), s(base)))
    A("s_and_b32 %s, %s, 0xffff" % (s(d + 1), s(base + 1)))
    A("s_mov_b32 %s, 0x%x" % (s(d + 2), nbytes))
    A("s_mov_b32 %s, 0x20000" % s(d + 3))

def tr_addr(A, rowsel_hi):
    A("v_bfe_u32 v23, v0, 2, 2")
    A("v_bfe_u32 v24, v0, 5, 1")
    A("v_mul_u32_u24 v24, %d, v24" % rowsel_hi)
    A("v_add_u32 v24, v24, v23")
    A("v_lshlrev_b32 v20, 7, v24")
    A("v_bfe_u32 v24, v0, 3, 1")
    A("v_lshl_add_u32 v20, v24, 6, v20")
    A("v_bfe_u32 v24, v0, 4, 1")
    A("v_lshl_add_u32 v20, v24, 5, v20")
    A("v_and_b32 v24, 3, v0")
    A("v_lshl_add_u32 v20, v24, 3, v20")
    A("v_add_u32 v20, s40, v20")
    A("v_xor_b32 v21, 64, v20")

def dma_lane(A, dst, rowstride):
    A("v_bfe_u32 v23, v0, 3, 3")
    A("s_mov_b32 s42, %d" % rowstride)
    A("v_mul_lo_u32 %s, v23, s42" % v(dst))
    A("v_bfe_u32 v23, v0, 4, 1")
    A("v_lshlrev_b32 v23, 2, v23")
    A("v_and_b32 v24, 7, v0")
    A("v_xor_b32 v23, v23, v24")
    A("v_lshl_add_u32 %s, v23, 4, %s" % (v(dst), v(dst)))

def gen_b1(A):
    A.label("b1_kernel")
    A("s_cmp_ge_u32 s2, 196")
    A("s_cbranch_scc1 b1_exit")
    A("s_load_dwordx4 s[8:11], s[0:1], 32")
    A("s_load_dwordx2 s[6:7], s[0:1], 80")
    A("s_and_b32 s12, s2, 7")
    A("s_lshr_b32 s13, s2, 3")
    A("s_mul_i32 s14, s12, 24")
    A("s_min_u32 s12, s12, 4")
    A("s_add_u32 s13, s13, s14")
    A("s_add_u32 s13, s13, s12")
    A("s_mul_i32 s14, s13, 9363")
    A("s_lshr_b32 s14, s14, 16")
    A("s_mul_i32 s15, s14, 7")
    A("s_sub_u32 s15, s13, s15")
    A("v_lshrrev_b32 v1, 6, v0")
    A("v_readfirstlane_b32 s16, v1")
    A("s_lshl_b32 s40, s16, 14")
    assert RING * 2048 == 16384
    tr_addr(A, 8)
    dma_lane(A, 4, 32 * 3584)
    A("s_lshl_b32 s17, s14, 7")
    A("v_add_u32 v4, s17, v4")
    for i in range(1, 8):
        qd, h = i // 2, i % 2
        A("v_add_u32 %s, 0x%x, v4" % (v(4 + i), (512 * qd + 256 * h) * 3584 - ((qd % 2) * 2 + h) * 1024))
    A("v_bfe_u32 v12, v0, 5, 1")
    A("v_mul_u32_u24 v12, 448, v12")
    A("v_and_b32 v13, 31, v0")
    A("v_add_u32 v12, v12, v13")
    A("s_lshl_b32 s17, s15, 6")
    A("v_add_u32 v12, s17, v12")
    A("v_lshlrev_b32 v12, 4, v12")
    A("s_mul_i32 s44, s16, %d" % (8 * 3584))
    A("s_mul_i32 s45, s16, %d" % (32 * 14336))
    A("v_and_b32 v22, 63, v0")
    A("v_lshlrev_b32 v22, 4, v22")
    A("v_add_u32 v22, %d, v22" % RED)
    A("s_waitcnt lgkmcnt(0)")
    srd(A, 24, 8, S * F * 2)
    ws_base(A, 18, HF)
    srd(A, 28, 18, S * D * 2)
    def soffW(ks):
        if ks % 4 == 0 and ks > 0: A("s_add_u32 s44, s44, 3584")
        return "s44"
    def soffF(ks):
        if ks > 0: A("s_add_u32 s45, s45, 14336")
        return "s45"
    issue, trread, mfmas = gemm_core(A, 32, "s[24:27]", "s[28:31]", lambda ks, h: 4 + (ks % 4) * 2 + h, soffW, lambda h: (12, 512 * h), soffF, True, (0, 4))
    A("s_lshr_b32 s17, s16, 1")
    A("s_lshl_b32 s17, s17, 6")
    A("s_lshl_b32 s18, s14, 7")
    A("s_add_u32 s17, s17, s18")
    A("v_bfe_u32 v13, v0, 5, 1")
    A("v_lshlrev_b32 v13, 3, v13")
    A("v_add_u32 v13, s17, v13")
    for g in range(4):
        A("global_load_dwordx2 %s, v13, s[10:11] offset:%d" % (v(112 + 2 * g, 2), 16 * g))
    gemm_loop(A, 32, issue, trread, mfmas, 4)
    R = 32
    ksplit_reduce(A, "s16", R)
    c0 = -2.0 * math.sqrt(2.0 / math.pi) * math.log2(math.e)
    c1 = c0 * 0.044715
    A("s_mov_b32 s20, %s" % fbits(c1))
    A("v_mov_b32 v14, %s" % fbits(c0))
    for k in range(16):
        bsrc = 112 + k // 2
        if k % 2 == 0: A("v_lshlrev_b32 v15, 16, %s" % v(bsrc))
        else: A("v_and_b32 v15, 0xffff0000, %s" % v(bsrc))
        x = R + k
        A("v_add_f32 %s, %s, v15" % (v(x), v(x)))
        t = 48 + k
        A("v_mul_f32 %s, %s, %s" % (v(t), v(x), v(x)))
        A("v_fma_f32 %s, %s, s20, v14" % (v(t), v(t)))
        A("v_mul_f32 %s, %s, %s" % (v(t), v(t), v(x)))
        A("v_exp_f32 %s, %s" % (v(t), v(t)))
    for k in range(16):
        A("v_add_f32 %s, 1.0, %s" % (v(48 + k), v(48 + k)))
        A("v_rcp_f32 %s, %s" % (v(48 + k), v(48 + k)))
    for k in range(16):
        A("v_mul_f32 %s, %s, %s" % (v(R + k), v(R + k), v(48 + k)))
    for k in range(8):
        A("v_cvt_pk_bf16_f32 %s, %s, %s" % (v(64 + k), v(R + 2 * k), v(R + 2 * k + 1)))
    A("s_and_b32 s17, s16, 1")
    A("s_lshl_b32 s18, s15, 1")
    A("s_add_u32 s17, s17, s18")
    A("s_mul_i32 s17, s17, 112")
    A("s_lshl_b32 s18, s14, 2")
    A("s_add_u32 s17, s17, s18")
    A("s_and_b32 s18, s16, 2")
    A("s_add_u32 s17, s17, s18")
    A("s_lshl_b32 s17, s17, 10")
    A("v_and_b32 v13, 63, v0")
    A("v_lshlrev_b32 v13, 4, v13")
    A("v_add_u32 v13, s17, v13")
    ws_base(A, 18, UF)
    A("global_store_dwordx4 v13, v[64:67], s[18:19]")
    A("global_store_dwordx4 v13, v[68:71], s[18:19] offset:1024")
    A.label("b1_exit")
    A("s_endpgm")

def gen_b2(A):
    A.label("b2_body")
    A("s_cmp_ge_u32 s2, 224")
    A("s_cbranch_scc1 b2_exit")
    A("s_load_dwordx4 s[8:11], s[0:1], 48")
    A("s_load_dwordx2 s[6:7], s[0:1], 80")
    A("s_load_dwordx2 s[4:5], s[0:1], 64")
    A("s_and_b32 s12, s2, 7")
    A("s_lshr_b32 s13, s2, 3")
    A("s_mul_i32 s14, s12, 28")
    A("s_add_u32 s13, s13, s14")
    A("s_mul_i32 s14, s13, 9363")
    A("s_lshr_b32 s14, s14, 16")
    A("s_mul_i32 s15, s14, 7")
    A("s_sub_u32 s15, s13, s15")
    A("v_lshrrev_b32 v1, 6, v0")
    A("v_readfirstlane_b32 s16, v1")
    A("s_lshl_b32 s40, s16, 14")
    tr_addr(A, 4)
    dma_lane(A, 4, 4096)
    A("s_lshl_b32 s17, s14, 7")
    A("v_add_u32 v4, s17, v4")
    for i in range(1, 4):
        p, h = i // 2, i % 2
        A("v_add_u32 %s, 0x%x, v4" % (v(4 + i), p * 65536 + h * 32768 - (p * 2 + h) * 1024))
    A("v_and_b32 v12, 63, v0")
    A("v_lshlrev_b32 v12, 4, v12")
    A("v_add_u32 v22, %d, v12" % RED)
    A("s_mul_i32 s17, s15, %d" % (2 * 112 * 1024))
    A("v_add_u32 v12, s17, v12")
    A("v_add_u32 v13, %d, v12" % (112 * 1024))
    A("s_mul_i32 s44, s16, %d" % (28 * 65536))
    A("s_mul_i32 s45, s16, %d" % (28 * 1024))
    A("s_waitcnt lgkmcnt(0)")
    srd(A, 24, 8, S * F * 2)
    ws_base(A, 18, UF)
    srd(A, 28, 18, D * F * 2)
    def soffW(ks):
        if ks % 2 == 0 and ks > 0: A("s_add_u32 s44, s44, 131072")
        return "s44"
    def soffF(ks):
        if ks > 0: A("s_add_u32 s45, s45, 1024")
        return "s45"
    issue, trread, mfmas = gemm_core(A, 28, "s[24:27]", "s[28:31]", lambda ks, h: 4 + (ks % 2) * 2 + h, soffW, lambda h: (12 + h, 0), soffF, False, (0, 8))
    A("s_and_b32 s17, s16, 1")
    A("s_lshl_b32 s17, s17, 5")
    A("s_lshl_b32 s18, s14, 6")
    A("s_add_u32 s17, s17, s18")
    A("v_and_b32 v14, 31, v0")
    A("v_add_u32 v14, s17, v14")
    A("v_lshlrev_b32 v15, 1, v14")
    A("global_load_ushort v120, v15, s[10:11]")
    A("v_mul_u32_u24 v14, 896, v14")
    A("s_lshr_b32 s17, s16, 1")
    A("s_lshl_b32 s17, s17, 6")
    A("s_lshl_b32 s18, s15, 7")
    A("s_add_u32 s17, s17, s18")
    A("v_add_u32 v14, s17, v14")
    A("v_bfe_u32 v15, v0, 5, 1")
    A("v_lshl_add_u32 v14, v15, 3, v14")
    A("s_cmp_eq_u32 s3, 0")
    A("s_mov_b32 s20, 0x%x" % X3)
    A("s_cselect_b32 s20, 0x%x, s20" % X1)
    A("s_add_u32 s20, s6, s20")
    A("s_addc_u32 s21, s7, 0")
    ws_base(A, 18, X2)
    A("s_cmp_eq_u32 s3, 0")
    A("s_cselect_b32 s4, s18, s4")
    A("s_cselect_b32 s5, s19, s5")
    for g in range(4):
        A("global_load_dwordx2 %s, v14, s[20:21] offset:%d" % (v(112 + 2 * g, 2), 16 * g))
    gemm_loop(A, 28, issue, trread, mfmas, 5)
    R = 32
    ksplit_reduce(A, "s16", R)
    A("v_lshlrev_b32 v120, 16, v120")
    for k in range(16):
        A("v_add_f32 %s, %s, v120" % (v(R + k), v(R + k)))
    for k in range(8):
        A("v_cvt_pk_bf16_f32 %s, %s, %s" % (v(48 + k), v(R + 2 * k), v(R + 2 * k + 1)))
    for k in range(8):
        A("v_lshlrev_b32 %s, 16, %s" % (v(R + 2 * k), v(48 + k)))
        A("v_and_b32 %s, 0xffff0000, %s" % (v(R + 2 * k + 1), v(48 + k)))
        A("v_lshlrev_b32 %s, 16, %s" % (v(64 + 2 * k), v(112 + k)))
        A("v_and_b32 %s, 0xffff0000, %s" % (v(64 + 2 * k + 1), v(112 + k)))
        A("v_pk_add_f32 %s, %s, %s" % (v(R + 2 * k, 2), v(R + 2 * k, 2), v(64 + 2 * k, 2)))
        A("v_cvt_pk_bf16_f32 %s, %s, %s" % (v(48 + k), v(R + 2 * k), v(R + 2 * k + 1)))
    for g in range(4):
        A("global_store_dwordx2 v14, %s, s[4:5] offset:%d" % (v(48 + 2 * g, 2), 16 * g))
    A.label("b2_exit")
    A("s_endpgm")

def kd(name, vg, ag, sg=56):
    acc = (vg + 3) // 4 * 4
    return """.p2align 6
.amdhsa_kernel %s
  .amdhsa_next_free_vgpr %d
  .amdhsa_next_free_sgpr %d
  .amdhsa_accum_offset %d
  .amdhsa_group_segment_fixed_size 0
  .amdhsa_kernarg_size 88
  .amdhsa_user_sgpr_count 2
  .amdhsa_user_sgpr_kernarg_segment_ptr 1
  .amdhsa_system_sgpr_workgroup_id_x 1
.end_amdhsa_kernel
""" % (name, acc + ag if ag else vg, sg, acc)

def build(launches):
    A = Asm()
    def entry(name, flag, body, extra=None):
        A.lines.append(".p2align 8"); A.lines.append(".globl %s" % name); A.lines.append(".type %s,@function" % name)
        A.label(name)
        A("s_mov_b32 s3, %d" % flag)
        if extra: A(extra)
        if body: A("s_branch %s" % body)
    def plain(name):
        A.lines.append(".p2align 8"); A.lines.append(".globl %s" % name); A.lines.append(".type %s,@function" % name)
    entry("a1b_kernel", 1, "a1_body", "s_movk_i32 s14, 256")
    entry("a1a_kernel", 0, None, "s_movk_i32 s14, 512")
    gen_a1(A)
    plain("a2_kernel"); gen_a2(A)
    entry("a3b_kernel", 1, "a3_body"); entry("a3a_kernel", 0, None); gen_a3(A)
    plain("b1_kernel"); gen_b1(A)
    entry("b2b_kernel", 1, "b2_body"); entry("b2a_kernel", 0, None); gen_b2(A)
    plain("nop_kernel"); A.label("nop_kernel"); A("s_endpgm")
    lines, n = fix_hazards_fast(A.lines)
    probs = lint_waits(lines)
    for p in probs: print("LINT", p, file=sys.stderr)
    geo = {"a1a_kernel": (512, 32 * LSTR), "a1b_kernel": (256, 32 * LSTR), "a2_kernel": (256, 8192), "a3a_kernel": (256, A3_LDS), "a3b_kernel": (256, A3_LDS),
           "b1_kernel": (196, B_LDS), "b2a_kernel": (224, B_LDS), "b2b_kernel": (224, B_LDS), "nop_kernel": (256, 0)}
    hdr = open("cdna_kernels/%s.s.ref" % NAME).read().split("; Override launch")[0]
    out = hdr
    for k in launches:
        out += "; @launch kernel=%s grid=(%d,1,1) block=(256,1,1) lds=%d\n" % (k, geo[k][0], geo[k][1])
    out += '.amdgcn_target "amdgcn-amd-amdhsa--gfx950"\n.text\n'
    out += "\n".join(lines) + "\n"
    out += '.section .rodata,"a"\n'
    for k, vg, ag in [("a1a_kernel", 128, 0), ("a1b_kernel", 128, 0), ("a2_kernel", 200, 0), ("a3a_kernel", 128, 0), ("a3b_kernel", 128, 0),
                      ("b1_kernel", 124, 64), ("b2a_kernel", 124, 64), ("b2b_kernel", 124, 64), ("nop_kernel", 8, 0)]:
        out += kd(k, vg, ag)
    print("nops inserted:", n, "lines:", len(lines), file=sys.stderr)
    return out

FULL = ["a1a_kernel", "a2_kernel", "a3a_kernel", "b1_kernel", "b2a_kernel", "a1b_kernel", "a2_kernel", "a3b_kernel", "b1_kernel", "b2b_kernel"]
if __name__ == "__main__":
    outp = sys.argv[1] if len(sys.argv) > 1 else "cdna_kernels/%s.s" % NAME
    nn = int(sys.argv[2]) if len(sys.argv) > 2 else 0
    open(outp, "w").write(build(["nop_kernel"] * nn + FULL))
```

```python
import math, struct, sys
from asmlib import *

NAME = "interleave_layers__spectral_gfnet__mixer_token_mlp__prompt"
S, D, F = 2048, 448, 1792
ZT, TT, WT, X1, X2, X3, HF, UF = [0x200000 * i for i in range(8)]

def fbits(x):
    return "0x%08x" % struct.unpack("<I", struct.pack("<f", x))[0]

C7 = [math.cos(2 * math.pi * r / 7) for r in range(4)]
S7 = [math.sin(2 * math.pi * r / 7) for r in range(4)]

PROF = False
PROFOFF = 0x1000000
def stamp(A, i):
    if not PROF: return
    A("s_memrealtime %s" % s(60 + 2 * i, 2))
    A("s_waitcnt lgkmcnt(0)")
def stampc(A, i):
    if not PROF: return
    A("s_memtime %s" % s(60 + 2 * i, 2))
    A("s_waitcnt lgkmcnt(0)")
def prof_end(A, n):
    if not PROF: return
    A("s_waitcnt vmcnt(0)")
    stamp(A, n); n += 1
    A("s_load_dwordx2 s[56:57], s[0:1], 72")
    A("s_load_dwordx2 s[58:59], s[0:1], 80")
    A("s_waitcnt lgkmcnt(0)")
    A("s_bfe_u32 s56, s56, 0x50009")
    A("s_lshl_b32 s56, s56, 9")
    A("s_add_u32 s56, s56, s2")
    A("s_lshl_b32 s56, s56, 8")
    A("s_add_u32 s56, s56, 0x%x" % PROFOFF)
    A("v_lshrrev_b32 v1, 6, v0")
    A("v_lshlrev_b32 v1, 6, v1")
    A("v_add_u32 v1, s56, v1")
    A("s_getreg_b32 s57, hwreg(HW_REG_XCC_ID)")
    A("v_mov_b32 v2, s57")
    A("global_store_dword v1, v2, s[58:59] offset:60")
    for i in range(n):
        A("v_mov_b32 v2, %s" % s(60 + 2 * i))
        A("global_store_dword v1, v2, s[58:59] offset:%d" % (4 * i))

def ws_base(A, dst, off, ws=6):
    A("s_add_u32 %s, %s, 0x%x" % (s(dst), s(ws), off))
    A("s_addc_u32 %s, %s, 0" % (s(dst + 1), s(ws + 1)))

def red32(A, x, t):
    for m in ("quad_perm:[1,0,3,2]", "quad_perm:[2,3,0,1]", "row_half_mirror", "row_mirror"):
        A("v_add_f32_dpp %s, %s, %s %s row_mask:0xf bank_mask:0xf" % (v(x), v(x), v(x), m))
    A("v_mov_b32 %s, %s" % (v(t), v(x)))
    A("v_permlane16_swap_b32 %s, %s" % (v(x), v(t)))
    A("v_add_f32 %s, %s, %s" % (v(x), v(x), v(t)))

def load_dft7_consts(A, sb):
    for i in range(3):
        A("s_mov_b32 %s, %s" % (s(sb + 2 * i), fbits(C7[i + 1])))
        A("s_mov_b32 %s, %s" % (s(sb + 2 * i + 1), fbits(C7[i + 1])))
        A("s_mov_b32 %s, %s" % (s(sb + 6 + 2 * i), fbits(S7[i + 1])))
        A("s_mov_b32 %s, %s" % (s(sb + 6 + 2 * i + 1), fbits(S7[i + 1])))
def c7(sb, r):
    r %= 7; r = min(r, 7 - r); return s(sb + 2 * (r - 1), 2)
def s7(sb, r):
    r %= 7
    return (s(sb + 6 + 2 * (r - 1), 2), 1) if r <= 3 else (s(sb + 6 + 2 * (7 - r - 1), 2), -1)

def gen_frags(A, nidx, qreg, ksteps, denom, dre, dim, tmp, cvt, inverse=False):
    nf, ang, n13, cs, sn = tmp, tmp + 1, tmp + 2, tmp + 3, tmp + 4
    A("v_cvt_f32_u32 %s, %s" % (v(nf), v(nidx)))
    A("v_mul_f32 %s, %s, %s" % (v(nf), fbits(1.0 / denom), v(nf)))
    A("v_cvt_f32_u32 %s, %s" % (v(ang), v(qreg)))
    A("v_mul_f32 %s, 4.0, %s" % (v(ang), v(ang)))
    A("v_mul_f32 %s, %s, %s" % (v(ang), v(ang), v(nf)))
    A("v_mul_f32 %s, %s, %s" % (v(n13), fbits(13.0), v(nf)))
    for t in range(ksteps):
        for j in range(4):
            A("v_cos_f32 %s, %s" % (v(cs), v(ang)))
            A("v_sin_f32 %s, %s" % (v(sn), v(ang)))
            if not (t == ksteps - 1 and j == 3):
                A("v_add_f32 %s, %s, %s" % (v(ang), v(ang), v(nf if j < 3 else n13)))
            if not inverse:
                A("%s %s, %s, %s" % (cvt, v(dre + 4 * t + j), v(cs), v(sn)))
                A("%s %s, -%s, %s" % (cvt, v(dim + 4 * t + j), v(sn), v(cs)))
            else:
                A("%s %s, %s, -%s" % (cvt, v(dre + 4 * t + j), v(cs), v(sn)))
                A("%s %s, %s, %s" % (cvt, v(dim + 4 * t + j), v(sn), v(cs)))

CVF = "v_cvt_pk_f16_f32"; MF = "v_mfma_f32_16x16x32_f16"
CVI = "v_cvt_pk_bf16_f32"; MI = "v_mfma_f32_16x16x32_bf16"

def wg_remap(A, dst, tmp):
    A("s_and_b32 %s, s2, 7" % s(dst))
    A("s_lshl_b32 %s, %s, 5" % (s(dst), s(dst)))
    A("s_lshr_b32 %s, s2, 3" % s(tmp))
    A("s_add_u32 %s, %s, %s" % (s(dst), s(dst), s(tmp)))

def row_offset(A, w, vo, vl, st):
    A("s_lshr_b32 %s, %s, 3" % (s(st), s(w)))
    A("s_and_b32 %s, %s, 7" % (s(st + 1), s(w)))
    A("s_lshl_b32 %s, %s, 3" % (s(st + 1), s(st + 1)))
    A("v_lshrrev_b32 %s, 5, v0" % v(vo))
    A("v_add_u32 %s, %s, %s" % (v(vo), s(st + 1), v(vo)))
    A("v_lshlrev_b32 %s, 5, %s" % (v(vo), v(vo)))
    A("v_add_u32 %s, %s, %s" % (v(vo), s(st), v(vo)))
    A("v_mul_u32_u24 %s, 896, %s" % (v(vo), v(vo)))
    A("v_and_b32 %s, 31, v0" % v(vl))
    A("v_lshl_add_u32 %s, %s, 2, %s" % (v(vo), v(vl), v(vo)))

def unpack7(A, src, dst):
    for t in range(7):
        A("v_lshlrev_b32 %s, 16, %s" % (v(dst + 2 * t), v(src + t)))
        A("v_and_b32 %s, 0xffff0000, %s" % (v(dst + 2 * t + 1), v(src + t)))

def ln_center(A, z, acc, t):
    A("v_pk_add_f32 %s, %s, %s" % (v(acc, 2), v(z, 2), v(z + 2, 2)))
    for k in range(2, 7):
        A("v_pk_add_f32 %s, %s, %s" % (v(acc, 2), v(acc, 2), v(z + 2 * k, 2)))
    A("v_add_f32 %s, %s, %s" % (v(acc), v(acc), v(acc + 1)))
    red32(A, acc, t)
    A("v_mul_f32 %s, %s, %s" % (v(acc), fbits(-1.0 / D), v(acc)))
    A("v_mov_b32 %s, %s" % (v(acc + 1), v(acc)))
    for k in range(7):
        A("v_pk_add_f32 %s, %s, %s" % (v(z + 2 * k, 2), v(z + 2 * k, 2), v(acc, 2)))
    A("v_pk_mul_f32 %s, %s, %s" % (v(acc, 2), v(z, 2), v(z, 2)))
    for k in range(1, 7):
        A("v_pk_fma_f32 %s, %s, %s, %s" % (v(acc, 2), v(z + 2 * k, 2), v(z + 2 * k, 2), v(acc, 2)))
    A("v_add_f32 %s, %s, %s" % (v(acc), v(acc), v(acc + 1)))
    red32(A, acc, t)
    A("v_mul_f32 %s, %s, %s" % (v(acc), fbits(1.0 / D), v(acc)))

LSTR = 272

def gen_a1(A):
    A.label("a1_body")
    stamp(A, 0)
    A("s_load_dwordx2 s[6:7], s[0:1], 80")
    A("s_cmp_ge_u32 s2, 256")
    A("s_cbranch_scc1 wprep")
    A("s_load_dwordx2 s[4:5], s[0:1], 0")
    wg_remap(A, 8, 9)
    row_offset(A, 8, 1, 2, 10)
    A("s_waitcnt lgkmcnt(0)")
    ws_base(A, 12, X2)
    A("s_cmp_eq_u32 s3, 0")
    A("s_cselect_b32 s4, s4, s12")
    A("s_cselect_b32 s5, s5, s13")
    XR = 4
    for t in range(7):
        A("global_load_dword %s, v1, s[4:5] offset:%d" % (v(XR + t), 128 * t))
    SB = 16
    load_dft7_consts(A, SB)
    BRE, BIM = 64, 80
    A("v_lshrrev_b32 v11, 6, v0")
    A("v_and_b32 v12, 15, v0")
    A("v_lshl_add_u32 v12, v11, 4, v12")
    A("v_bfe_u32 v13, v0, 4, 2")
    gen_frags(A, 12, 13, 4, 64, BRE, BIM, 14, CVF)
    TC, TS = 20, 26
    A("v_cvt_f32_u32 v14, v2")
    A("v_mul_f32 v14, %s, v14" % fbits(2.0 / 448))
    A("v_add_f32 v15, %s, v14" % fbits(1.0 / 448))
    for k in range(1, 4):
        if k == 1: a0, a1_ = 14, 15
        else:
            a0, a1_ = 16, 17
            A("v_mul_f32 v16, %s, v14" % fbits(float(k)))
            A("v_mul_f32 v17, %s, v15" % fbits(float(k)))
        A("v_cos_f32 %s, %s" % (v(TC + 2 * (k - 1)), v(a0)))
        A("v_cos_f32 %s, %s" % (v(TC + 2 * (k - 1) + 1), v(a1_)))
        A("v_sin_f32 %s, %s" % (v(TS + 2 * (k - 1)), v(a0)))
        A("v_sin_f32 %s, %s" % (v(TS + 2 * (k - 1) + 1), v(a1_)))
    A("v_lshrrev_b32 v3, 5, v0")
    A("v_mul_u32_u24 v3, %d, v3" % LSTR)
    A("v_lshl_add_u32 v3, v2, 3, v3")
    A("v_and_b32 v18, 15, v0")
    A("v_mul_u32_u24 v18, %d, v18" % LSTR)
    A("v_lshl_add_u32 v18, v13, 4, v18")
    A("v_lshrrev_b32 v19, 1, v13")
    A("v_lshl_add_u32 v19, v19, 6, v12")
    A("v_lshlrev_b32 v19, 13, v19")
    A("v_and_b32 v14, 1, v13")
    A("v_lshl_add_u32 v19, v14, 4, v19")
    A("s_lshl_b32 s9, s8, 5")
    A("v_add_u32 v19, s9, v19")
    Z = 32
    stamp(A, 1)
    A("s_waitcnt vmcnt(0)")
    stamp(A, 2)
    unpack7(A, XR, Z)
    ACC = 46
    ln_center(A, Z, ACC, 48)
    A("v_add_f32 v46, %s, v46" % fbits(1e-5))
    A("v_rsq_f32 v46, v46")
    A("v_mul_f32 v46, %s, v46" % fbits(1.0 / (8 * math.sqrt(7))))
    A("v_mov_b32 v47, v46")
    P, Q = 48, 54
    for t in range(1, 4):
        A("v_pk_add_f32 %s, %s, %s" % (v(P + 2 * (t - 1), 2), v(Z + 2 * t, 2), v(Z + 2 * (7 - t), 2)))
        A("v_pk_add_f32 %s, %s, %s neg_lo:[0,1] neg_hi:[0,1]" % (v(Q + 2 * (t - 1), 2), v(Z + 2 * t, 2), v(Z + 2 * (7 - t), 2)))
    for k in range(6):
        A("v_pk_mul_f32 %s, %s, v[46:47]" % (v(TC + 2 * k, 2), v(TC + 2 * k, 2)))
    A("v_pk_add_f32 v[4:5], %s, %s" % (v(Z, 2), v(P, 2)))
    A("v_pk_add_f32 v[6:7], %s, %s" % (v(P + 2, 2), v(P + 4, 2)))
    A("v_pk_add_f32 v[4:5], v[4:5], v[6:7]")
    A("v_pk_mul_f32 v[4:5], v[4:5], v[46:47]")
    A("%s v60, v4, 0" % CVF)
    A("%s v61, v5, 0" % CVF)
    A("ds_write_b64 v3, v[60:61]")
    for k in range(1, 4):
        R, N, T1, T2 = 34, 36, 38, 40
        for t in range(1, 4):
            A("v_pk_fma_f32 %s, %s, %s, %s" % (v(R, 2), v(P + 2 * (t - 1), 2), c7(SB, t * k), v(Z, 2) if t == 1 else v(R, 2)))
        for t in range(1, 4):
            cs, sg = s7(SB, t * k)
            if t == 1:
                assert sg == 1
                A("v_pk_mul_f32 %s, %s, %s" % (v(N, 2), v(Q, 2), cs))
            else:
                neg = "" if sg == 1 else " neg_lo:[1,0,0] neg_hi:[1,0,0]"
                A("v_pk_fma_f32 %s, %s, %s, %s%s" % (v(N, 2), v(Q + 2 * (t - 1), 2), cs, v(N, 2), neg))
        tc, ts = v(TC + 2 * (k - 1), 2), v(TS + 2 * (k - 1), 2)
        A("v_pk_mul_f32 %s, %s, %s" % (v(T1, 2), v(N, 2), ts))
        A("v_pk_mul_f32 %s, %s, %s" % (v(T2, 2), v(N, 2), tc))
        A("v_pk_fma_f32 %s, %s, %s, %s neg_lo:[0,0,1] neg_hi:[0,0,1]" % (v(T1, 2), v(R, 2), tc, v(T1, 2)))
        A("v_pk_fma_f32 %s, %s, %s, %s" % (v(T2, 2), v(R, 2), ts, v(T2, 2)))
        o = 60 + 2 * (k % 2)
        A("%s %s, %s, -%s" % (CVF, v(o), v(T1), v(T2)))
        A("%s %s, %s, -%s" % (CVF, v(o + 1), v(T1 + 1), v(T2 + 1)))
        A("ds_write_b64 v3, %s offset:%d" % (v(o, 2), k * 8 * LSTR))
    A("s_waitcnt lgkmcnt(0)")
    A("s_barrier")
    stamp(A, 3)
    AF = 96
    for mt in range(2):
        for t in range(4):
            A("ds_read_b128 %s, v18 offset:%d" % (v(AF + 16 * mt + 4 * t, 4), mt * 16 * LSTR + 64 * t))
    ws_base(A, 12, ZT)
    DR, DI = 32, 40
    for mt in range(2):
        for t in range(4):
            A("s_waitcnt lgkmcnt(%d)" % (7 - 4 * mt - t))
            A("%s %s, %s, %s, %s" % (MF, v(DR + 4 * mt, 4), v(AF + 16 * mt + 4 * t, 4), v(BRE + 4 * t, 4), "0" if t == 0 else v(DR + 4 * mt, 4)))
            A("%s %s, %s, %s, %s" % (MF, v(DI + 4 * mt, 4), v(AF + 16 * mt + 4 * t, 4), v(BIM + 4 * t, 4), "0" if t == 0 else v(DI + 4 * mt, 4)))
    A("v_add_u32 v20, 0x100000, v19")
    for mt in range(2):
        for r in range(4):
            A("%s %s, %s, %s" % (CVF, v(48 + 4 * mt + r), v(DR + 4 * mt + r), v(DI + 4 * mt + r)))
        A("global_store_dwordx4 %s, %s, s[12:13]" % (v(19 + mt), v(48 + 4 * mt, 4)))
    stamp(A, 4)
    prof_end(A, 5)
    A("s_endpgm")
    A.label("wprep")
    A("s_cmp_ge_u32 s2, s14")
    A("s_cbranch_scc1 a1_exit")
    A("s_load_dwordx4 s[8:11], s[0:1], 8")
    A("s_and_b32 s12, s2, 63")
    A("s_bfe_u32 s13, s2, 0x20006")
    A("v_and_b32 v1, 63, v0")
    A("v_lshrrev_b32 v2, 6, v0")
    A("v_readfirstlane_b32 s15, v2")
    A("v_mul_u32_u24 v3, 7, v1")
    A("v_add_u32 v3, s13, v3")
    A("v_sub_u32 v4, 0x1c0, v3")
    A("v_cmp_lt_u32 vcc, 224, v3")
    A("v_cndmask_b32 v3, v3, v4, vcc")
    A("v_lshlrev_b32 v3, 1, v3")
    A("v_mov_b32 v5, 1")
    A("v_cndmask_b32 v4, v5, -1, vcc")
    A("v_mov_b32 v6, 0x8000")
    A("v_cndmask_b32 v5, 0, v6, vcc")
    A("s_lshl_b32 s16, s15, 9")
    A("s_add_u32 s16, s16, s12")
    A("s_movk_i32 s17, 450")
    A("s_waitcnt lgkmcnt(0)")
    for i in range(8):
        A("v_mul_i32_i24 v6, s16, v4")
        A("v_and_b32 v6, 0x7ff, v6")
        A("v_mad_u32_u24 v6, v6, s17, v3")
        A("global_load_ushort %s, v6, s[8:9]" % v(8 + i))
        A("global_load_ushort %s, v6, s[10:11]" % v(16 + i))
        if i < 7: A("s_add_u32 s16, s16, 64")
    A("s_lshl_b32 s13, s13, 19")
    A("s_lshl_b32 s12, s12, 7")
    A("s_add_u32 s13, s13, s12")
    A("s_lshl_b32 s15, s15, 5")
    A("s_add_u32 s13, s13, s15")
    A("v_lshlrev_b32 v7, 13, v1")
    A("v_add_u32 v7, s13, v7")
    ws_base(A, 18, WT)
    A("s_waitcnt vmcnt(0)")
    for i in range(8):
        A("v_xor_b32 %s, %s, v5" % (v(16 + i), v(16 + i)))
        A("v_lshl_or_b32 %s, %s, 16, %s" % (v(8 + i), v(16 + i), v(8 + i)))
    A("global_store_dwordx4 v7, v[8:11], s[18:19]")
    A("global_store_dwordx4 v7, v[12:15], s[18:19] offset:16")
    prof_end(A, 1)
    A.label("a1_exit")
    A("s_endpgm")

def cmul(A, dr, di, ar, ai, br, bi, t):
    A("v_mul_f32 %s, %s, %s" % (v(t), v(ai), v(bi)))
    A("v_mul_f32 %s, %s, %s" % (v(t + 1), v(ai), v(br)))
    A("v_fma_f32 %s, %s, %s, %s" % (v(di), v(ar), v(bi), v(t + 1)))
    A("v_fma_f32 %s, %s, %s, -%s" % (v(dr), v(ar), v(br), v(t)))

def gen_a2(A):
    A.label("a2_kernel")
    A("s_cmp_ge_u32 s2, 256")
    A("s_cbranch_scc1 a2_exit")
    stamp(A, 0)
    A("s_load_dwordx2 s[6:7], s[0:1], 80")
    A("v_and_b32 v1, 15, v0")
    A("v_bfe_u32 v2, v0, 4, 2")
    A("v_lshrrev_b32 v3, 6, v0")
    A("v_lshl_add_u32 v4, v3, 4, v1")
    A("s_lshl_b32 s8, s2, 13")
    A("v_lshlrev_b32 v5, 8, v1")
    A("v_lshl_add_u32 v5, v2, 4, v5")
    A("v_add_u32 v5, s8, v5")
    A("v_add_u32 v6, 4096, v5")
    A("v_lshlrev_b32 v7, 7, v4")
    A("v_lshl_add_u32 v7, v2, 4, v7")
    A("v_add_u32 v7, s8, v7")
    A("s_waitcnt lgkmcnt(0)")
    ws_base(A, 10, ZT); ws_base(A, 12, WT); ws_base(A, 14, TT)
    DA = 96
    for mt in range(2):
        for t in range(4):
            A("global_load_dwordx4 %s, %s, s[10:11] offset:%d" % (v(DA + 16 * mt + 4 * t, 4), v(5 + mt), 64 * t))
    WV = 128
    for mt in range(2):
        A("global_load_dwordx4 %s, v7, s[12:13] offset:%d" % (v(WV + 4 * mt, 4), 64 * mt))
    F64R, F64I = 64, 80
    gen_frags(A, 4, 2, 4, 64, F64R, F64I, 8, CVF)
    T1C, T1S = 16, 24
    A("v_cvt_f32_u32 v8, v4")
    A("v_mul_f32 v8, %s, v8" % fbits(1.0 / 2048))
    A("v_cvt_f32_u32 v9, v2")
    A("v_mul_f32 v9, 4.0, v9")
    A("v_mul_f32 v9, v9, v8")
    A("v_mul_f32 v10, %s, v8" % fbits(13.0))
    for i in range(8):
        A("v_cos_f32 %s, v9" % v(T1C + i))
        A("v_sin_f32 %s, v9" % v(T1S + i))
        if i < 7: A("v_add_f32 v9, v9, %s" % v(8 if i != 3 else 10))
        A("v_mul_f32 %s, %s, %s" % (v(T1C + i), fbits(1.0 / 256), v(T1C + i)))
        A("v_mul_f32 %s, %s, %s" % (v(T1S + i), fbits(-1.0 / 256), v(T1S + i)))
    stamp(A, 1)
    if PROF: A("s_waitcnt vmcnt(0)")
    stamp(A, 2)
    GR, GI = 32, 40
    for mt in range(2):
        for t in range(4):
            A("s_waitcnt vmcnt(%d)" % (9 - 4 * mt - t))
            A("%s %s, %s, %s, %s" % (MF, v(GR + 4 * mt, 4), v(DA + 16 * mt + 4 * t, 4), v(F64R + 4 * t, 4), "0" if t == 0 else v(GR + 4 * mt, 4)))
            A("%s %s, %s, %s, %s" % (MF, v(GI + 4 * mt, 4), v(DA + 16 * mt + 4 * t, 4), v(F64I + 4 * t, 4), "0" if t == 0 else v(GI + 4 * mt, 4)))
    F32R, F32I = 136, 152
    G32R, G32I = 168, 184
    A("v_add_u32 v14, 16, v1")
    for mt in range(2):
        gen_frags(A, 1 if mt == 0 else 14, 2, 2, 32, F32R + 8 * mt, F32I + 8 * mt, 8, CVF)
    P1 = 48
    for i in range(8):
        cmul(A, GR + i, GI + i, GR + i, GI + i, T1C + i, T1S + i, 8)
        A("%s %s, %s, %s" % (CVF, v(P1 + i), v(GR + i), v(GI + i)))
    XR, XI = 96, 104
    for mt in range(2):
        for ks in range(2):
            A("%s %s, %s, %s, %s" % (MF, v(XR + 4 * mt, 4), v(F32R + 8 * mt + 4 * ks, 4), v(P1 + 4 * ks, 4), "0" if ks == 0 else v(XR + 4 * mt, 4)))
            A("%s %s, %s, %s, %s" % (MF, v(XI + 4 * mt, 4), v(F32I + 8 * mt + 4 * ks, 4), v(P1 + 4 * ks, 4), "0" if ks == 0 else v(XI + 4 * mt, 4)))
    for mt in range(2):
        gen_frags(A, 1 if mt == 0 else 14, 2, 2, 32, G32R + 8 * mt, G32I + 8 * mt, 8, CVI, inverse=True)
    A("s_waitcnt vmcnt(0)")
    P2 = 56
    for i in range(8):
        A("v_lshlrev_b32 v10, 16, %s" % v(WV + i))
        A("v_and_b32 v11, 0xffff0000, %s" % v(WV + i))
        cmul(A, XR + i, XI + i, XR + i, XI + i, 10, 11, 8)
        A("%s %s, %s, %s" % (CVI, v(P2 + i), v(XR + i), v(XI + i)))
    HR, HI = 32, 40
    for nt in range(2):
        for ks in range(2):
            A("%s %s, %s, %s, %s" % (MI, v(HR + 4 * nt, 4), v(P2 + 4 * ks, 4), v(G32R + 8 * nt + 4 * ks, 4), "0" if ks == 0 else v(HR + 4 * nt, 4)))
            A("%s %s, %s, %s, %s" % (MI, v(HI + 4 * nt, 4), v(P2 + 4 * ks, 4), v(G32I + 8 * nt + 4 * ks, 4), "0" if ks == 0 else v(HI + 4 * nt, 4)))
    A("v_lshlrev_b32 v8, 4, v3")
    A("v_lshl_add_u32 v8, v2, 2, v8")
    A("v_cvt_f32_u32 v8, v8")
    for nt in range(2):
        A("v_cvt_f32_u32 v9, %s" % v(1 if nt == 0 else 14))
        A("v_mul_f32 v9, %s, v9" % fbits(1.0 / 2048))
        A("v_mul_f32 v10, v8, v9")
        for r in range(4):
            i = 4 * nt + r
            A("v_cos_f32 %s, v10" % v(T1C + i))
            A("v_sin_f32 %s, v10" % v(T1S + i))
            if r < 3: A("v_add_f32 v10, v10, v9")
            A("v_mul_f32 %s, %s, %s" % (v(T1C + i), fbits(0.125), v(T1C + i)))
            A("v_mul_f32 %s, %s, %s" % (v(T1S + i), fbits(0.125), v(T1S + i)))
    P3 = 48
    for i in range(8):
        cmul(A, HR + i, HI + i, HR + i, HI + i, T1C + i, T1S + i, 8)
        A("%s %s, %s, %s" % (CVI, v(P3 + i), v(HR + i), v(HI + i)))
    A("v_lshlrev_b32 v8, 4, v0")
    A("ds_write_b128 v8, %s" % v(P3, 4))
    A("ds_write_b128 v8, %s offset:4096" % v(P3 + 4, 4))
    gen_frags(A, 4, 2, 4, 64, F64R, F64I, 9, CVI, inverse=True)
    A("v_and_b32 v8, 63, v0")
    A("v_lshlrev_b32 v8, 4, v8")
    A("s_waitcnt lgkmcnt(0)")
    stamp(A, 3)
    A("s_barrier")
    for nt in range(2):
        for t in range(4):
            A("ds_read_b128 %s, v8 offset:%d" % (v(DA + 16 * nt + 4 * t, 4), nt * 4096 + t * 1024))
    A("v_lshl_add_u32 v5, v3, 6, v5")
    A("v_add_u32 v6, 4096, v5")
    TR, TI = 32, 40
    for nt in range(2):
        for t in range(4):
            A("s_waitcnt lgkmcnt(%d)" % (7 - 4 * nt - t))
            A("%s %s, %s, %s, %s" % (MI, v(TR + 4 * nt, 4), v(F64R + 4 * t, 4), v(DA + 16 * nt + 4 * t, 4), "0" if t == 0 else v(TR + 4 * nt, 4)))
            A("%s %s, %s, %s, %s" % (MI, v(TI + 4 * nt, 4), v(F64I + 4 * t, 4), v(DA + 16 * nt + 4 * t, 4), "0" if t == 0 else v(TI + 4 * nt, 4)))
    for nt in range(2):
        for r in range(4):
            A("%s %s, %s, %s" % (CVI, v(48 + 4 * nt + r), v(TR + 4 * nt + r), v(TI + 4 * nt + r)))
        A("global_store_dwordx4 %s, %s, s[14:15]" % (v(5 + nt), v(48 + 4 * nt, 4)))
    stamp(A, 4)
    prof_end(A, 5)
    A.label("a2_exit")
    A("s_endpgm")

YSTR = 448 * 4 + 64
HSTR = 896 + 32
A3_Y = 32 * LSTR
A3_H = A3_Y + 8 * YSTR
A3_LDS = A3_H + 8 * HSTR
def gen_a3(A):
    A.label("a3_body")
    A("s_cmp_ge_u32 s2, 256")
    A("s_cbranch_scc1 a3_exit")
    stamp(A, 0)
    A("s_load_dwordx2 s[6:7], s[0:1], 80")
    A("s_load_dwordx2 s[4:5], s[0:1], 0")
    wg_remap(A, 8, 9)
    row_offset(A, 8, 1, 2, 10)
    A("v_lshlrev_b32 v3, 13, v0")
    A("s_lshl_b32 s9, s8, 5")
    A("v_add_u32 v3, s9, v3")
    A("s_waitcnt lgkmcnt(0)")
    ws_base(A, 12, TT)
    TV = 16
    A("global_load_dwordx4 v[16:19], v3, s[12:13]")
    A("global_load_dwordx4 v[20:23], v3, s[12:13] offset:16")
    ws_base(A, 12, X2)
    A("s_cmp_eq_u32 s3, 0")
    A("s_cselect_b32 s4, s4, s12")
    A("s_cselect_b32 s5, s5, s13")
    A("s_cselect_b32 s14, 0x%x, 0x%x" % (X1, X3) if False else "s_mov_b32 s14, 0x%x" % X3)
    A("s_cselect_b32 s14, 0x%x, s14" % X1)
    XR = 4
    for t in range(7):
        A("global_load_dword %s, v1, s[4:5] offset:%d" % (v(XR + t), 128 * t))
    A("s_add_u32 s14, s6, s14")
    A("s_addc_u32 s15, s7, 0")
    SB = 16
    load_dft7_consts(A, SB)
    BRE, BIM = 64, 80
    A("v_lshrrev_b32 v11, 6, v0")
    A("v_and_b32 v12, 15, v0")
    A("v_lshl_add_u32 v12, v11, 4, v12")
    A("v_bfe_u32 v13, v0, 4, 2")
    A("v_lshrrev_b32 v14, 1, v11")
    A("v_lshlrev_b32 v14, 4, v14")
    A("v_and_b32 v15, 1, v11")
    A("v_lshl_add_u32 v14, v15, 1, v14")
    A("v_mul_u32_u24 v14, %d, v14" % LSTR)
    A("v_and_b32 v15, 63, v0")
    A("v_lshl_add_u32 v14, v15, 2, v14")
    gen_frags(A, 12, 13, 4, 64, BRE, BIM, 24, CVI, inverse=True)
    stamp(A, 1)
    A("s_waitcnt vmcnt(7)")
    stamp(A, 2)
    for row in range(8):
        A("ds_write_b32 v14, %s offset:%d" % (v(TV + row), (4 * (row // 2) + (row & 1)) * LSTR))
    TW = 24
    sc = 1.0 / (8 * math.sqrt(7))
    A("v_cvt_f32_u32 v30, v12")
    for k in range(1, 4):
        A("v_mul_f32 v31, %s, v30" % fbits(k / 448.0))
        A("v_cos_f32 %s, v31" % v(TW + 2 * (k - 1)))
        A("v_sin_f32 %s, v31" % v(TW + 2 * (k - 1) + 1))
        A("v_mul_f32 %s, %s, %s" % (v(TW + 2 * (k - 1)), fbits(2 * sc), v(TW + 2 * (k - 1))))
        A("v_mul_f32 %s, %s, %s" % (v(TW + 2 * (k - 1) + 1), fbits(2 * sc), v(TW + 2 * (k - 1) + 1)))
    A("v_and_b32 v15, 15, v0")
    A("v_mul_u32_u24 v15, %d, v15" % LSTR)
    A("v_lshl_add_u32 v15, v13, 4, v15")
    A("s_waitcnt lgkmcnt(0)")
    A("s_barrier")
    AF = 96
    for mt in range(2):
        for t in range(4):
            A("ds_read_b128 %s, v15 offset:%d" % (v(AF + 16 * mt + 4 * t, 4), mt * 16 * LSTR + 64 * t))
    A("v_mul_u32_u24 v14, %d, v13" % (2 * YSTR))
    A("v_lshl_add_u32 v14, v12, 2, v14")
    DR, DI = 32, 40
    for mt in range(2):
        for t in range(4):
            A("s_waitcnt lgkmcnt(%d)" % (7 - 4 * mt - t))
            A("%s %s, %s, %s, %s" % (MI, v(DR + 4 * mt, 4), v(AF + 16 * mt + 4 * t, 4), v(BRE + 4 * t, 4), "0" if t == 0 else v(DR + 4 * mt, 4)))
            A("%s %s, %s, %s, %s" % (MI, v(DI + 4 * mt, 4), v(AF + 16 * mt + 4 * t, 4), v(BIM + 4 * t, 4), "0" if t == 0 else v(DI + 4 * mt, 4)))
    A("s_mov_b32 s28, %s" % fbits(sc)); A("s_mov_b32 s29, %s" % fbits(sc))
    UR, UI = 48, 54
    U0 = 60
    A("v_pk_mul_f32 %s, %s, s[28:29]" % (v(U0, 2), v(DR, 2)))
    for k in range(1, 4):
        tw = v(TW + 2 * (k - 1), 2)
        vr, vi = v(DR + 2 * k, 2), v(DI + 2 * k, 2)
        ur, ui = v(UR + 2 * (k - 1), 2), v(UI + 2 * (k - 1), 2)
        A("v_pk_mul_f32 %s, %s, %s op_sel:[0,1] op_sel_hi:[1,1]" % (ur, vi, tw))
        A("v_pk_mul_f32 %s, %s, %s op_sel:[0,0] op_sel_hi:[1,0]" % (ui, vi, tw))
        A("v_pk_fma_f32 %s, %s, %s, %s op_sel:[0,0,0] op_sel_hi:[1,0,1] neg_lo:[0,0,1] neg_hi:[0,0,1]" % (ur, vr, tw, ur))
        A("v_pk_fma_f32 %s, %s, %s, %s op_sel:[0,1,0] op_sel_hi:[1,1,1]" % (ui, vr, tw, ui))
    def ywrite(pair, t):
        A("ds_write_b32 v14, %s offset:%d" % (v(pair), A3_Y + 256 * t))
        A("ds_write_b32 v14, %s offset:%d" % (v(pair + 1), A3_Y + YSTR + 256 * t))
    A("v_pk_add_f32 v[32:33], %s, %s" % (v(U0, 2), v(UR, 2)))
    A("v_pk_add_f32 v[34:35], %s, %s" % (v(UR + 2, 2), v(UR + 4, 2)))
    A("v_pk_add_f32 v[32:33], v[32:33], v[34:35]")
    ywrite(32, 0)
    for t in range(1, 4):
        aa, bb, y1, y2 = 36, 38, 40 + 4 * (t % 2), 42 + 4 * (t % 2)
        for k in range(1, 4):
            A("v_pk_fma_f32 %s, %s, %s, %s" % (v(aa, 2), v(UR + 2 * (k - 1), 2), c7(SB, t * k), v(U0, 2) if k == 1 else v(aa, 2)))
        for k in range(1, 4):
            cs, sg = s7(SB, t * k)
            if k == 1:
                A("v_pk_mul_f32 %s, %s, %s" % (v(bb, 2), v(UI, 2), cs))
            else:
                neg = "" if sg == 1 else " neg_lo:[1,0,0] neg_hi:[1,0,0]"
                A("v_pk_fma_f32 %s, %s, %s, %s%s" % (v(bb, 2), v(UI + 2 * (k - 1), 2), cs, v(bb, 2), neg))
        A("v_pk_add_f32 %s, %s, %s neg_lo:[0,1] neg_hi:[0,1]" % (v(y1, 2), v(aa, 2), v(bb, 2)))
        A("v_pk_add_f32 %s, %s, %s" % (v(y2, 2), v(aa, 2), v(bb, 2)))
        ywrite(y1, t); ywrite(y2, 7 - t)
    A("v_lshrrev_b32 v14, 5, v0")
    A("v_mul_u32_u24 v15, %d, v14" % HSTR)
    A("v_lshl_add_u32 v15, v2, 2, v15")
    A("v_mul_u32_u24 v14, %d, v14" % YSTR)
    A("v_lshl_add_u32 v14, v2, 3, v14")
    A("s_waitcnt lgkmcnt(0)")
    A("s_barrier")
    stamp(A, 3)
    Y = 64
    for t in range(7):
        A("ds_read_b64 %s, v14 offset:%d" % (v(Y + 2 * t, 2), A3_Y + 256 * t))
    Z = 32
    A("s_waitcnt vmcnt(0)")
    unpack7(A, XR, Z)
    A("s_waitcnt lgkmcnt(0)")
    for t in range(7):
        A("v_cvt_pk_bf16_f32 %s, %s, %s" % (v(XR + t), v(Y + 2 * t), v(Y + 2 * t + 1)))
    unpack7(A, XR, Y)
    for t in range(7):
        A("v_pk_add_f32 %s, %s, %s" % (v(Z + 2 * t, 2), v(Z + 2 * t, 2), v(Y + 2 * t, 2)))
        A("v_cvt_pk_bf16_f32 %s, %s, %s" % (v(XR + t), v(Z + 2 * t), v(Z + 2 * t + 1)))
        A("global_store_dword v1, %s, s[14:15] offset:%d" % (v(XR + t), 128 * t))
    unpack7(A, XR, Z)
    ln_center(A, Z, 46, 48)
    A("v_add_f32 v47, %s, v46" % fbits(1e-5))
    A("v_rsq_f32 v47, v47")
    A("v_mul_f32 v46, v46, v47")
    A("v_mov_b32 v48, %s" % fbits(1e-5))
    A("v_fma_f32 v46, v46, v47, v48")
    A("v_rsq_f32 v46, v46")
    A("v_mul_f32 v46, v46, v47")
    A("v_mov_b32 v47, v46")
    for t in range(7):
        A("v_pk_mul_f32 %s, %s, v[46:47]" % (v(Z + 2 * t, 2), v(Z + 2 * t, 2)))
        A("v_cvt_pk_bf16_f32 %s, %s, %s" % (v(64 + t), v(Z + 2 * t), v(Z + 2 * t + 1)))
        A("ds_write_b32 v15, %s offset:%d" % (v(64 + t), A3_H + 128 * t))
    A("v_bfe_u32 v14, v0, 2, 2")
    A("v_mul_u32_u24 v14, %d, v14" % HSTR)
    A("v_and_b32 v16, 3, v0")
    A("v_lshl_add_u32 v14, v16, 3, v14")
    A("v_lshl_add_u32 v14, v13, 5, v14")
    A("v_lshl_add_u32 v14, v11, 7, v14")
    A("s_mul_i32 s9, s8, 7168")
    A("v_lshlrev_b32 v16, 4, v0")
    A("v_add_u32 v16, s9, v16")
    ws_base(A, 12, HF)
    A("v_readfirstlane_b32 s9, v11")
    A("s_waitcnt lgkmcnt(0)")
    A("s_barrier")
    stamp(A, 4)
    A("ds_read_b64_tr_b16 v[20:21], v14 offset:%d" % (A3_H))
    A("ds_read_b64_tr_b16 v[22:23], v14 offset:%d" % (A3_H + 4 * HSTR))
    A("s_cmp_eq_u32 s9, 3")
    A("s_cbranch_scc1 a3_last")
    A("ds_read_b64_tr_b16 v[24:25], v14 offset:%d" % (A3_H + 512))
    A("ds_read_b64_tr_b16 v[26:27], v14 offset:%d" % (A3_H + 4 * HSTR + 512))
    A("v_add_u32 v17, 4096, v16")
    A("s_waitcnt lgkmcnt(0)")
    A("global_store_dwordx4 v17, v[24:27], s[12:13]")
    A.label("a3_last")
    A("s_waitcnt lgkmcnt(0)")
    A("global_store_dwordx4 v16, v[20:23], s[12:13]")
    prof_end(A, 5)
    A.label("a3_exit")
    A("s_endpgm")

import os
DEPTH = int(os.environ.get("DEPTH", 6))
NO_W = int(os.environ.get("NO_W", 0)); NO_F = int(os.environ.get("NO_F", 0)); NO_C = int(os.environ.get("NO_C", 0))
OPS = 4 - 2 * NO_W - 2 * NO_F
RING = 8
RED = 4 * RING * 2048
B_LDS = RED + 12 * 4096
MB = "v_mfma_f32_32x32x16_bf16"

def gemm_core(A, nks, wsrd, frag_srd, voffW, soffW_fn, voffF, soffF_fn, w_is_A, tr_rows):
    FR = 32
    WF = 96
    def issue(ks):
        slot = ks % RING
        if ks % 2 == 0:
            A("s_add_u32 m0, s40, %d" % (slot * 2048))
        sW = soffW_fn(ks)
        for h in range(0 if NO_W else 2):
            vr = voffW(ks, h)
            A("buffer_load_dwordx4 %s, %s, %s offen offset:%d lds" % (v(vr), wsrd, sW, ((ks % 2) * 2 + h) * 1024))
        sF = soffF_fn(ks)
        for h in range(0 if NO_F else 2):
            vr, imm = voffF(h)
            A("buffer_load_dwordx4 %s, %s, %s, %s offen offset:%d" % (v(FR + 8 * slot + 4 * h, 4), v(vr), frag_srd, sF, imm))
    def trread(ks):
        slot = ks % RING
        b = WF + 8 * (ks % 2)
        for tl in range(2):
            for rd in range(2):
                A("ds_read_b64_tr_b16 %s, %s offset:%d" % (v(b + 4 * tl + 2 * rd, 2), v(20 + tl), slot * 2048 + tr_rows[rd] * 128))
    def mfmas(ks):
        slot = ks % RING
        b = WF + 8 * (ks % 2)
        for wt in range(2):
            for ft in range(2):
                wreg = v(b + 4 * wt, 4); freg = v(FR + 8 * slot + 4 * ft, 4)
                if w_is_A:
                    acc = a(16 * (2 * wt + ft), 16); AA, BB = wreg, freg
                else:
                    acc = a(16 * (2 * ft + wt), 16); AA, BB = freg, wreg
                A("%s %s, %s, %s, %s" % (MB, acc, AA, BB, "0" if ks == 0 else acc))
    for ks in range(min(DEPTH, nks)):
        issue(ks)
    return issue, trread, mfmas

def gemm_loop(A, nks, issue, trread, mfmas, extra_vm):
    stamp(A, 1)
    for ks in range(nks):
        later = min(DEPTH - 1, nks - 1 - ks)
        A("s_waitcnt vmcnt(%d)" % (OPS * later + (extra_vm if ks < DEPTH else 0)))
        if ks == 0: stamp(A, 2)
        if not NO_C or ks == nks - 1: trread(ks)
        if ks > 0 and (not NO_C or ks == 1):
            A("s_waitcnt lgkmcnt(4)")
            mfmas(ks - 1)
        if ks + DEPTH < nks:
            issue(ks + DEPTH)
    A("s_waitcnt lgkmcnt(0)")
    mfmas(nks - 1)
    stamp(A, 3)

def ksplit_reduce(A, wave_s, R):
    lab_end = A.newlabel("red_done")
    labs = [A.newlabel("red_w") for _ in range(4)]
    for w in range(1, 4):
        A("s_cmp_eq_u32 %s, %d" % (wave_s, w))
        A("s_cbranch_scc1 %s" % labs[w])
    for w in range(4):
        A.label(labs[w])
        for i in range(4):
            if i == w: continue
            sl = (w - i - 1) % 4
            for g in range(4):
                A("ds_write_b128 v22, %s offset:%d" % (a(16 * i + 4 * g, 4), (i * 3 + sl) * 4096 + g * 1024))
        for k in range(16):
            A("v_accvgpr_read_b32 %s, %s" % (v(R + k), a(16 * w + k)))
        if w < 3: A("s_branch %s" % lab_end)
    A.label(lab_end)
    A("s_mul_i32 s41, %s, %d" % (wave_s, 3 * 4096))
    A("v_add_u32 v22, s41, v22")
    A("s_waitcnt lgkmcnt(0)")
    A("s_barrier")
    T = 48
    for sl in range(3):
        for g in range(4):
            A("ds_read_b128 %s, v22 offset:%d" % (v(T + 16 * sl + 4 * g, 4), sl * 4096 + g * 1024))
    for sl in range(3):
        A("s_waitcnt lgkmcnt(%d)" % (8 - 4 * sl))
        for k in range(0, 16, 2):
            A("v_pk_add_f32 %s, %s, %s" % (v(R + k, 2), v(R + k, 2), v(T + 16 * sl + k, 2)))

def srd(A, d, base, nbytes):
    A("s_mov_b32 %s, %s" % (s(d), s(base)))
    A("s_and_b32 %s, %s, 0xffff" % (s(d + 1), s(base + 1)))
    A("s_mov_b32 %s, 0x%x" % (s(d + 2), nbytes))
    A("s_mov_b32 %s, 0x20000" % s(d + 3))

def tr_addr(A, rowsel_hi):
    A("v_bfe_u32 v23, v0, 2, 2")
    A("v_bfe_u32 v24, v0, 5, 1")
    A("v_mul_u32_u24 v24, %d, v24" % rowsel_hi)
    A("v_add_u32 v24, v24, v23")
    A("v_lshlrev_b32 v20, 7, v24")
    A("v_bfe_u32 v24, v0, 3, 1")
    A("v_lshl_add_u32 v20, v24, 6, v20")
    A("v_bfe_u32 v24, v0, 4, 1")
    A("v_lshl_add_u32 v20, v24, 5, v20")
    A("v_and_b32 v24, 3, v0")
    A("v_lshl_add_u32 v20, v24, 3, v20")
    A("v_add_u32 v20, s40, v20")
    A("v_xor_b32 v21, 64, v20")

def dma_lane(A, dst, rowstride):
    A("v_bfe_u32 v23, v0, 3, 3")
    A("s_mov_b32 s42, %d" % rowstride)
    A("v_mul_lo_u32 %s, v23, s42" % v(dst))
    A("v_bfe_u32 v23, v0, 4, 1")
    A("v_lshlrev_b32 v23, 2, v23")
    A("v_and_b32 v24, 7, v0")
    A("v_xor_b32 v23, v23, v24")
    A("v_lshl_add_u32 %s, v23, 4, %s" % (v(dst), v(dst)))

def gen_b1(A):
    A.label("b1_kernel")
    A("s_cmp_ge_u32 s2, 196")
    A("s_cbranch_scc1 b1_exit")
    stamp(A, 0)
    A("s_load_dwordx4 s[8:11], s[0:1], 32")
    A("s_load_dwordx2 s[6:7], s[0:1], 80")
    A("s_and_b32 s12, s2, 7")
    A("s_lshr_b32 s13, s2, 3")
    A("s_mul_i32 s14, s12, 24")
    A("s_min_u32 s12, s12, 4")
    A("s_add_u32 s13, s13, s14")
    A("s_add_u32 s13, s13, s12")
    A("s_mul_i32 s14, s13, 9363")
    A("s_lshr_b32 s14, s14, 16")
    A("s_mul_i32 s15, s14, 7")
    A("s_sub_u32 s15, s13, s15")
    A("v_lshrrev_b32 v1, 6, v0")
    A("v_readfirstlane_b32 s16, v1")
    A("s_lshl_b32 s40, s16, 14")
    assert RING * 2048 == 16384
    tr_addr(A, 8)
    dma_lane(A, 4, 32 * 3584)
    A("s_lshl_b32 s17, s14, 7")
    A("v_add_u32 v4, s17, v4")
    for i in range(1, 8):
        qd, h = i // 2, i % 2
        A("v_add_u32 %s, 0x%x, v4" % (v(4 + i), (512 * qd + 256 * h) * 3584 - ((qd % 2) * 2 + h) * 1024))
    A("v_bfe_u32 v12, v0, 5, 1")
    A("v_mul_u32_u24 v12, 448, v12")
    A("v_and_b32 v13, 31, v0")
    A("v_add_u32 v12, v12, v13")
    A("s_lshl_b32 s17, s15, 6")
    A("v_add_u32 v12, s17, v12")
    A("v_lshlrev_b32 v12, 4, v12")
    A("s_mul_i32 s44, s16, %d" % (8 * 3584))
    A("s_mul_i32 s45, s16, %d" % (32 * 14336))
    A("v_and_b32 v22, 63, v0")
    A("v_lshlrev_b32 v22, 4, v22")
    A("v_add_u32 v22, %d, v22" % RED)
    A("s_waitcnt lgkmcnt(0)")
    srd(A, 24, 8, S * F * 2)
    ws_base(A, 18, HF)
    srd(A, 28, 18, S * D * 2)
    def soffW(ks):
        if ks % 4 == 0 and ks > 0: A("s_add_u32 s44, s44, 3584")
        return "s44"
    def soffF(ks):
        if ks > 0: A("s_add_u32 s45, s45, 14336")
        return "s45"
    issue, trread, mfmas = gemm_core(A, 32, "s[24:27]", "s[28:31]", lambda ks, h: 4 + (ks % 4) * 2 + h, soffW, lambda h: (12, 512 * h), soffF, True, (0, 4))
    A("s_lshr_b32 s17, s16, 1")
    A("s_lshl_b32 s17, s17, 6")
    A("s_lshl_b32 s18, s14, 7")
    A("s_add_u32 s17, s17, s18")
    A("v_bfe_u32 v13, v0, 5, 1")
    A("v_lshlrev_b32 v13, 3, v13")
    A("v_add_u32 v13, s17, v13")
    for g in range(4):
        A("global_load_dwordx2 %s, v13, s[10:11] offset:%d" % (v(112 + 2 * g, 2), 16 * g))
    gemm_loop(A, 32, issue, trread, mfmas, 4)
    R = 32
    ksplit_reduce(A, "s16", R)
    stamp(A, 4)
    c0 = -2.0 * math.sqrt(2.0 / math.pi) * math.log2(math.e)
    c1 = c0 * 0.044715
    A("s_mov_b32 s20, %s" % fbits(c1))
    A("v_mov_b32 v14, %s" % fbits(c0))
    for k in range(16):
        bsrc = 112 + k // 2
        if k % 2 == 0: A("v_lshlrev_b32 v15, 16, %s" % v(bsrc))
        else: A("v_and_b32 v15, 0xffff0000, %s" % v(bsrc))
        x = R + k
        A("v_add_f32 %s, %s, v15" % (v(x), v(x)))
        t = 48 + k
        A("v_mul_f32 %s, %s, %s" % (v(t), v(x), v(x)))
        A("v_fma_f32 %s, %s, s20, v14" % (v(t), v(t)))
        A("v_mul_f32 %s, %s, %s" % (v(t), v(t), v(x)))
        A("v_exp_f32 %s, %s" % (v(t), v(t)))
    for k in range(16):
        A("v_add_f32 %s, 1.0, %s" % (v(48 + k), v(48 + k)))
        A("v_rcp_f32 %s, %s" % (v(48 + k), v(48 + k)))
    for k in range(16):
        A("v_mul_f32 %s, %s, %s" % (v(R + k), v(R + k), v(48 + k)))
    for k in range(8):
        A("v_cvt_pk_bf16_f32 %s, %s, %s" % (v(64 + k), v(R + 2 * k), v(R + 2 * k + 1)))
    A("s_and_b32 s17, s16, 1")
    A("s_lshl_b32 s18, s15, 1")
    A("s_add_u32 s17, s17, s18")
    A("s_mul_i32 s17, s17, 112")
    A("s_lshl_b32 s18, s14, 2")
    A("s_add_u32 s17, s17, s18")
    A("s_and_b32 s18, s16, 2")
    A("s_add_u32 s17, s17, s18")
    A("s_lshl_b32 s17, s17, 10")
    A("v_and_b32 v13, 63, v0")
    A("v_lshlrev_b32 v13, 4, v13")
    A("v_add_u32 v13, s17, v13")
    ws_base(A, 18, UF)
    A("global_store_dwordx4 v13, v[64:67], s[18:19]")
    A("global_store_dwordx4 v13, v[68:71], s[18:19] offset:1024")
    prof_end(A, 5)
    A.label("b1_exit")
    A("s_endpgm")

def gen_b2(A):
    A.label("b2_body")
    A("s_cmp_ge_u32 s2, 224")
    A("s_cbranch_scc1 b2_exit")
    stamp(A, 0)
    A("s_load_dwordx4 s[8:11], s[0:1], 48")
    A("s_load_dwordx2 s[6:7], s[0:1], 80")
    A("s_load_dwordx2 s[4:5], s[0:1], 64")
    A("s_and_b32 s12, s2, 7")
    A("s_lshr_b32 s13, s2, 3")
    A("s_mul_i32 s14, s12, 28")
    A("s_add_u32 s13, s13, s14")
    A("s_mul_i32 s14, s13, 9363")
    A("s_lshr_b32 s14, s14, 16")
    A("s_mul_i32 s15, s14, 7")
    A("s_sub_u32 s15, s13, s15")
    A("v_lshrrev_b32 v1, 6, v0")
    A("v_readfirstlane_b32 s16, v1")
    A("s_lshl_b32 s40, s16, 14")
    tr_addr(A, 4)
    dma_lane(A, 4, 4096)
    A("s_lshl_b32 s17, s14, 7")
    A("v_add_u32 v4, s17, v4")
    for i in range(1, 4):
        p, h = i // 2, i % 2
        A("v_add_u32 %s, 0x%x, v4" % (v(4 + i), p * 65536 + h * 32768 - (p * 2 + h) * 1024))
    A("v_and_b32 v12, 63, v0")
    A("v_lshlrev_b32 v12, 4, v12")
    A("v_add_u32 v22, %d, v12" % RED)
    A("s_mul_i32 s17, s15, %d" % (2 * 112 * 1024))
    A("v_add_u32 v12, s17, v12")
    A("v_add_u32 v13, %d, v12" % (112 * 1024))
    A("s_mul_i32 s44, s16, %d" % (28 * 65536))
    A("s_mul_i32 s45, s16, %d" % (28 * 1024))
    A("s_waitcnt lgkmcnt(0)")
    srd(A, 24, 8, S * F * 2)
    ws_base(A, 18, UF)
    srd(A, 28, 18, D * F * 2)
    def soffW(ks):
        if ks % 2 == 0 and ks > 0: A("s_add_u32 s44, s44, 131072")
        return "s44"
    def soffF(ks):
        if ks > 0: A("s_add_u32 s45, s45, 1024")
        return "s45"
    issue, trread, mfmas = gemm_core(A, 28, "s[24:27]", "s[28:31]", lambda ks, h: 4 + (ks % 2) * 2 + h, soffW, lambda h: (12 + h, 0), soffF, False, (0, 8))
    A("s_and_b32 s17, s16, 1")
    A("s_lshl_b32 s17, s17, 5")
    A("s_lshl_b32 s18, s14, 6")
    A("s_add_u32 s17, s17, s18")
    A("v_and_b32 v14, 31, v0")
    A("v_add_u32 v14, s17, v14")
    A("v_lshlrev_b32 v15, 1, v14")
    A("global_load_ushort v120, v15, s[10:11]")
    A("v_mul_u32_u24 v14, 896, v14")
    A("s_lshr_b32 s17, s16, 1")
    A("s_lshl_b32 s17, s17, 6")
    A("s_lshl_b32 s18, s15, 7")
    A("s_add_u32 s17, s17, s18")
    A("v_add_u32 v14, s17, v14")
    A("v_bfe_u32 v15, v0, 5, 1")
    A("v_lshl_add_u32 v14, v15, 3, v14")
    A("s_cmp_eq_u32 s3, 0")
    A("s_mov_b32 s20, 0x%x" % X3)
    A("s_cselect_b32 s20, 0x%x, s20" % X1)
    A("s_add_u32 s20, s6, s20")
    A("s_addc_u32 s21, s7, 0")
    ws_base(A, 18, X2)
    A("s_cmp_eq_u32 s3, 0")
    A("s_cselect_b32 s4, s18, s4")
    A("s_cselect_b32 s5, s19, s5")
    for g in range(4):
        A("global_load_dwordx2 %s, v14, s[20:21] offset:%d" % (v(112 + 2 * g, 2), 16 * g))
    gemm_loop(A, 28, issue, trread, mfmas, 5)
    R = 32
    ksplit_reduce(A, "s16", R)
    stamp(A, 4)
    A("v_lshlrev_b32 v120, 16, v120")
    for k in range(16):
        A("v_add_f32 %s, %s, v120" % (v(R + k), v(R + k)))
    for k in range(8):
        A("v_cvt_pk_bf16_f32 %s, %s, %s" % (v(48 + k), v(R + 2 * k), v(R + 2 * k + 1)))
    for k in range(8):
        A("v_lshlrev_b32 %s, 16, %s" % (v(R + 2 * k), v(48 + k)))
        A("v_and_b32 %s, 0xffff0000, %s" % (v(R + 2 * k + 1), v(48 + k)))
        A("v_lshlrev_b32 %s, 16, %s" % (v(64 + 2 * k), v(112 + k)))
        A("v_and_b32 %s, 0xffff0000, %s" % (v(64 + 2 * k + 1), v(112 + k)))
        A("v_pk_add_f32 %s, %s, %s" % (v(R + 2 * k, 2), v(R + 2 * k, 2), v(64 + 2 * k, 2)))
        A("v_cvt_pk_bf16_f32 %s, %s, %s" % (v(48 + k), v(R + 2 * k), v(R + 2 * k + 1)))
    if os.environ.get("DELTA"):
        A("s_lshl_b32 s30, s2, 1")
        A("s_add_u32 s30, s30, 1")
        A("s_sub_u32 s30, s30, s3")
        A("v_or_b32 v15, s30, v0")
        A("v_cmp_eq_u32 vcc, 0, v15")
        A("v_add_f32 v16, %s, %s" % (fbits(float(os.environ["DELTA"])), v(R)))
        A("v_cndmask_b32 %s, %s, v16, vcc" % (v(R), v(R)))
        A("v_cvt_pk_bf16_f32 %s, %s, %s" % (v(48), v(R), v(R + 1)))
    for g in range(4):
        A("global_store_dwordx2 v14, %s, s[4:5] offset:%d" % (v(48 + 2 * g, 2), 16 * g))
    prof_end(A, 5)
    A.label("b2_exit")
    A("s_endpgm")

def kd(name, vg, ag, sg=80):
    acc = (vg + 3) // 4 * 4
    return """.p2align 6
.amdhsa_kernel %s
  .amdhsa_next_free_vgpr %d
  .amdhsa_next_free_sgpr %d
  .amdhsa_accum_offset %d
  .amdhsa_group_segment_fixed_size 0
  .amdhsa_kernarg_size 88
  .amdhsa_user_sgpr_count 2
  .amdhsa_user_sgpr_kernarg_segment_ptr 1
  .amdhsa_system_sgpr_workgroup_id_x 1
.end_amdhsa_kernel
""" % (name, acc + ag if ag else vg, sg, acc)

def build(launches):
    A = Asm()
    def entry(name, flag, body, extra=None):
        A.lines.append(".p2align 8"); A.lines.append(".globl %s" % name); A.lines.append(".type %s,@function" % name)
        A.label(name)
        A("s_mov_b32 s3, %d" % flag)
        if extra: A(extra)
        if body: A("s_branch %s" % body)
    def plain(name):
        A.lines.append(".p2align 8"); A.lines.append(".globl %s" % name); A.lines.append(".type %s,@function" % name)
    entry("a1b_kernel", 1, "a1_body", "s_movk_i32 s14, 256")
    entry("a1a_kernel", 0, None, "s_movk_i32 s14, 512")
    gen_a1(A)
    plain("a2_kernel"); gen_a2(A)
    entry("a3b_kernel", 1, "a3_body"); entry("a3a_kernel", 0, None); gen_a3(A)
    plain("b1_kernel"); gen_b1(A)
    entry("b2b_kernel", 1, "b2_body"); entry("b2a_kernel", 0, None); gen_b2(A)
    plain("nop_kernel"); A.label("nop_kernel"); A("s_endpgm")
    lines, n = fix_hazards_fast(A.lines)
    probs = lint_waits(lines)
    for p in probs: print("LINT", p, file=sys.stderr)
    geo = {"a1a_kernel": (512, 32 * LSTR), "a1b_kernel": (256, 32 * LSTR), "a2_kernel": (256, 8192), "a3a_kernel": (256, A3_LDS), "a3b_kernel": (256, A3_LDS),
           "b1_kernel": (196, B_LDS), "b2a_kernel": (224, B_LDS), "b2b_kernel": (224, B_LDS), "nop_kernel": (256, 0)}
    hdr = open("cdna_kernels/%s.s.ref" % NAME).read().split("; Override launch")[0]
    out = hdr
    for k in launches:
        out += "; @launch kernel=%s grid=(%d,1,1) block=(256,1,1) lds=%d\n" % (k, geo[k][0], geo[k][1])
    out += '.amdgcn_target "amdgcn-amd-amdhsa--gfx950"\n.text\n'
    out += "\n".join(lines) + "\n"
    out += '.section .rodata,"a"\n'
    for k, vg, ag in [("a1a_kernel", 128, 0), ("a1b_kernel", 128, 0), ("a2_kernel", 200, 0), ("a3a_kernel", 128, 0), ("a3b_kernel", 128, 0),
                      ("b1_kernel", 124, 64), ("b2a_kernel", 124, 64), ("b2b_kernel", 124, 64), ("nop_kernel", 8, 0)]:
        out += kd(k, vg, ag)
    print("nops inserted:", n, "lines:", len(lines), file=sys.stderr)
    return out

FULL = ["a1a_kernel", "a2_kernel", "a3a_kernel", "b1_kernel", "b2a_kernel", "a1b_kernel", "a2_kernel", "a3b_kernel", "b1_kernel", "b2b_kernel"]
if __name__ == "__main__":
    outp = sys.argv[1] if len(sys.argv) > 1 else "cdna_kernels/%s.s" % NAME
    nn = int(sys.argv[2]) if len(sys.argv) > 2 else 0
    PROF = len(sys.argv) > 3 and sys.argv[3] == "prof"
    open(outp, "w").write(build(["nop_kernel"] * nn + FULL))
```

```python
import re

def v(i, n=1):
    return "v%d" % i if n == 1 else "v[%d:%d]" % (i, i + n - 1)
def a(i, n=1):
    return "a%d" % i if n == 1 else "a[%d:%d]" % (i, i + n - 1)
def s(i, n=1):
    return "s%d" % i if n == 1 else "s[%d:%d]" % (i, i + n - 1)

_reg_re = re.compile(r'^(-|\|)?(?:abs\()?([vas])(?:(\d+)|\[(\d+):(\d+)\])\)?\|?$')

def parse_reg(tok):
    tok = tok.strip()
    if tok in ("vcc", "exec"):
        return [(tok, 0), (tok, 1)]
    if tok in ("vcc_lo", "exec_lo"):
        return [(tok[:-3], 0)]
    if tok in ("vcc_hi", "exec_hi"):
        return [(tok[:-3], 1)]
    if tok == "m0":
        return [("m0", 0)]
    m = _reg_re.match(tok)
    if not m:
        return []
    k = m.group(2)
    if m.group(3) is not None:
        return [(k, int(m.group(3)))]
    return [(k, i) for i in range(int(m.group(4)), int(m.group(5)) + 1)]

TRANS = ("v_exp_f32", "v_log_f32", "v_rcp_f32", "v_rsq_f32", "v_sqrt_f32", "v_sin_f32", "v_cos_f32", "v_rcp_iflag_f32")

class Ins:
    def __init__(self, text):
        self.text = text
        t = text.split(";")[0].strip()
        self.is_label = t.endswith(":")
        self.is_dir = t.startswith(".")
        self.mn = ""
        self.w = set(); self.r = set()
        self.kind = "other"
        self.passes = 0
        self.srcc = set(); self.srcab = set()
        self.dpp = False
        self.target = None
        self.nop = 0
        if self.is_label:
            self.label = t[:-1]; return
        if self.is_dir or not t:
            self.is_dir = True; return
        parts = t.split(None, 1)
        mn = parts[0]; self.mn = mn
        rest = parts[1] if len(parts) > 1 else ""
        ops = []; cur = ""; depth = 0
        for ch in rest:
            if ch in "[(": depth += 1
            if ch in "])": depth -= 1
            if ch == "," and depth == 0:
                ops.append(cur.strip()); cur = ""
            else:
                cur += ch
        if cur.strip(): ops.append(cur.strip())
        mods = []
        if ops:
            last = ops[-1]; depth = 0; cut = None
            for i, ch in enumerate(last):
                if ch in "[(": depth += 1
                if ch in "])": depth -= 1
                if ch == " " and depth == 0:
                    cut = i; break
            if cut is not None:
                mods = last[cut:].split(); ops[-1] = last[:cut]
        self.ops = ops; self.mods = mods
        R = lambda i: parse_reg(ops[i]) if i < len(ops) else []
        base = re.sub(r'_(e32|e64|dpp|sdwa)$', '', mn)
        self.base = base
        if mn.startswith("v_mfma"):
            self.kind = "mfma"
            self.w = set(R(0)); self.srcab = set(R(1)) | set(R(2)); self.srcc = set(R(3))
            self.r = self.srcab | self.srcc
            self.passes = 8 if "32x32" in mn else 4
            self.dfirst = R(0)[0]; self.dn = len(R(0))
        elif mn.startswith("v_"):
            self.kind = "valu"
            self.dpp = mn.endswith("_dpp") or any(m.startswith(("quad_perm", "row_", "wave_")) for m in mods)
            if base.startswith("v_cmp"):
                self.w = set(R(0)); self.r = set(sum((R(i) for i in range(1, len(ops))), []))
                if base.startswith("v_cmpx"): self.w |= {("exec", 0), ("exec", 1)}
            elif base in ("v_add_co_u32", "v_sub_co_u32", "v_subrev_co_u32", "v_addc_co_u32", "v_subb_co_u32", "v_mad_u64_u32"):
                self.w = set(R(0)) | set(R(1)); self.r = set(sum((R(i) for i in range(2, len(ops))), []))
            elif base in ("v_permlane16_swap_b32", "v_permlane32_swap_b32", "v_swap_b32"):
                self.w = set(R(0)) | set(R(1)); self.r = set(self.w)
            else:
                self.w = set(R(0)); self.r = set(sum((R(i) for i in range(1, len(ops))), []))
                if base in ("v_fmac_f32", "v_pk_fmac_f16", "v_writelane_b32", "v_dot2c_f32_bf16") or self.dpp or "sdwa" in mn:
                    self.r |= set(R(0))
                if base == "v_cndmask_b32" and len(ops) == 3:
                    self.r |= {("vcc", 0), ("vcc", 1)}
            self.trans = base in TRANS
        elif mn.startswith(("buffer_", "global_", "flat_", "scratch_")):
            self.kind = "vmem"
            allr = set(sum((R(i) for i in range(len(ops))), []))
            self.lds = ("lds" in mods) or ("_lds_" in mn)
            if mn in ("buffer_wbl2", "buffer_inv"):
                pass
            elif "load" in mn and not self.lds:
                self.w = set(R(0)); self.r = set(sum((R(i) for i in range(1, len(ops))), []))
            elif "atomic" in mn and "sc0" in mods:
                self.w = set(R(0)); self.r = allr
            else:
                self.r = allr
                if self.lds: self.r |= {("m0", 0)}
            self.wide_store = ("store" in mn) and (mn.endswith("x4") or mn.endswith("x3"))
            if self.wide_store:
                self.sdata = set(R(0)) if mn.startswith("buffer_") else set(R(1))
        elif mn.startswith("ds_"):
            self.kind = "ds"
            if "read" in mn or "permute" in mn or "swizzle" in mn or "_rtn" in mn:
                self.w = set(R(0)); self.r = set(sum((R(i) for i in range(1, len(ops))), []))
            else:
                self.r = set(sum((R(i) for i in range(len(ops))), []))
        elif mn.startswith("s_"):
            self.kind = "salu"
            if mn == "s_nop":
                self.kind = "nop"; self.nop = int(ops[0], 0) + 1
            elif mn in ("s_branch",) or mn.startswith("s_cbranch"):
                self.kind = "branch"; self.target = ops[0]
            elif mn.startswith(("s_load", "s_buffer_load", "s_memtime", "s_memrealtime")):
                self.kind = "smem"; self.w = set(R(0)); self.r = set(sum((R(i) for i in range(1, len(ops))), []))
            elif mn.startswith("s_cmp") or mn in ("s_waitcnt", "s_barrier", "s_endpgm", "s_sleep", "s_setprio", "s_bitcmp0_b32", "s_bitcmp1_b32"):
                self.r = set(sum((R(i) for i in range(len(ops))), []))
            else:
                self.w = set(R(0)); self.r = set(sum((R(i) for i in range(1, len(ops))), []))
                if "saveexec" in mn: self.w |= {("exec", 0), ("exec", 1)}
    def real(self):
        return not (self.is_label or self.is_dir)

def isv(rs): return {x for x in rs if x[0] in "va" and x[0] not in ("vcc",)}
def vregs(rs): return {x for x in rs if x[0] in ("v", "a")}
def sregs(rs): return {x for x in rs if x[0] in ("s", "vcc")}

def need(p, c):
    n = 0
    if p.kind == "valu":
        pw = vregs(p.w); ps = sregs(p.w)
        if c.kind == "mfma" and pw & c.r: n = max(n, 2)
        if c.kind == "valu":
            if c.dpp and pw & c.r: n = max(n, 2)
            if c.base in ("v_readlane_b32", "v_readfirstlane_b32") and pw & c.r: n = max(n, 1)
            if c.base.startswith("v_permlane") and pw & c.r: n = max(n, 2)
            if ps & c.r: n = max(n, 4 if c.base in ("v_readlane_b32", "v_writelane_b32") else 2)
            if p.trans and not c.trans and pw & c.r: n = max(n, 1)
            if p.trans and c.trans and pw & c.r: n = max(n, 1)
            if ("sdwa" in p.mn or any(m.startswith("op_sel") for m in p.mods) and not p.mn.startswith("v_pk")) and pw & (c.r | c.w): n = max(n, 1)
            if ("exec", 0) in p.w:
                n = max(n, 5 if c.dpp else (4 if c.base.startswith(("v_readlane", "v_readfirstlane", "v_writelane", "v_permlane")) else 0))
        if c.kind == "mfma" and ("exec", 0) in p.w: n = max(n, 4)
        if c.kind == "vmem" and ps & c.r: n = max(n, 5)
        if c.kind in ("salu", "smem", "branch") and ps & c.r: n = max(n, 1)
        if p.trans and c.kind in ("vmem", "ds", "mfma") and pw & c.r: n = max(n, 2 if c.kind == "mfma" else 1)
    if p.kind == "mfma":
        big = 12 if p.passes == 8 else 8
        if c.kind == "mfma":
            if p.w & c.srcab: n = max(n, big)
            if p.w & c.srcc:
                if not (c.srcc == p.w and c.passes == p.passes): n = max(n, big - 2)
            elif p.w & c.w: n = max(n, big)
        elif c.kind in ("valu", "vmem", "ds"):
            if p.w & (c.r | c.w): n = max(n, big)
            if c.kind == "valu" and p.srcc & c.w: n = max(n, 7 if p.passes == 8 else 3)
    if p.kind == "salu" and ("m0", 0) in p.w:
        if (c.kind == "vmem" and c.lds) or (c.kind == "ds" and "addtid" in c.mn): n = max(n, 1)
    if p.kind == "vmem" and getattr(p, "wide_store", False):
        if c.kind in ("valu", "mfma") and p.sdata & c.w: n = max(n, 2)
        elif c.kind in ("vmem", "ds") and p.sdata & c.w: n = max(n, 1)
    return n

MAXD = 13

def fix_hazards(lines):
    ins = [Ins(l) for l in lines]
    total = 0
    changed = True
    while changed:
        changed = False
        labels = {x.label: i for i, x in enumerate(ins) if x.is_label}
        srcs = {}
        for i, x in enumerate(ins):
            if x.kind == "branch" and x.target in labels:
                srcs.setdefault(labels[x.target], []).append(i)
        i = 0
        out = []
        inserted = False
        for ci, c in enumerate(ins):
            if c.real() and c.kind in ("valu", "mfma", "vmem", "ds", "salu", "smem", "branch") and not inserted:
                worst = 0
                stack = [(ci - 1, 0)]
                seen = set()
                while stack:
                    j, dist = stack.pop()
                    while j >= 0 and dist < MAXD:
                        if (j, dist) in seen: break
                        seen.add((j, dist))
                        p = ins[j]
                        if p.is_label:
                            for sidx in srcs.get(j, []):
                                stack.append((sidx, dist))
                            j -= 1; continue
                        if p.is_dir:
                            j -= 1; continue
                        if p.mn in ("s_endpgm",) or (p.mn == "s_branch" and j != ci and (j + 1 <= ci) and not any(True for _ in [])):
                            if p.mn == "s_endpgm" or (j, dist) not in [(q, d) for q, d in []]:
                                pass
                        nreq = need(p, c)
                        if nreq > dist: worst = max(worst, nreq - dist)
                        dist += p.nop if p.kind == "nop" else 1
                        if p.mn == "s_endpgm": break
                        j -= 1
                if worst > 0:
                    out.append(Ins("    s_nop %d" % (worst - 1)))
                    total += 1
                    inserted = True
            out.append(c)
        if inserted:
            ins = out; changed = True
    return [x.text for x in ins], total

def fix_hazards_fast(lines):
    ins = []
    total = 0
    for l in lines:
        c = Ins(l)
        if c.real() and c.kind != "nop":
            worst = 0; dist = 0; j = len(ins) - 1
            while j >= 0 and dist < MAXD:
                p = ins[j]
                if p.real():
                    if p.mn == "s_endpgm": break
                    nreq = need(p, c)
                    if nreq > dist: worst = max(worst, nreq - dist)
                    dist += p.nop if p.kind == "nop" else 1
                j -= 1
            if worst > 0:
                ins.append(Ins("    s_nop %d" % (worst - 1))); total += 1
        ins.append(c)
    again = True
    while again:
        again = False
        labels = {x.label: i for i, x in enumerate(ins) if x.is_label}
        for bi, b in enumerate(ins):
            if b.kind == "branch" and b.target in labels:
                li = labels[b.target]
                d0 = 0; ci = li + 1
                while ci < len(ins) and d0 < MAXD:
                    c = ins[ci]
                    if c.real():
                        if c.kind != "nop":
                            dist = d0; j = bi; worst = 0
                            while j >= 0 and dist < MAXD:
                                p = ins[j]
                                if p.real():
                                    nreq = need(p, c)
                                    if nreq > dist: worst = max(worst, nreq - dist)
                                    dist += p.nop if p.kind == "nop" else 1
                                j -= 1
                            if worst > 0:
                                ins.insert(ci, Ins("    s_nop %d" % (worst - 1))); total += 1
                                again = True; break
                        d0 += c.nop if c.kind == "nop" else 1
                        if c.mn in ("s_branch", "s_endpgm"): break
                    ci += 1
                if again: break
    return [x.text for x in ins], total

def lint_waits(lines):
    vm = []; lg = []; probs = []
    for n, l in enumerate(lines):
        c = Ins(l)
        if not c.real(): continue
        if c.mn == "s_endpgm":
            vm = []; lg = []; continue
        if c.mn == "s_waitcnt":
            t = " ".join(c.ops + c.mods)
            m = re.search(r'vmcnt\((\d+)\)', t)
            if m:
                k = int(m.group(1)); vm = vm[len(vm) - k:] if k < len(vm) and k > 0 else ([] if k == 0 else vm)
            m = re.search(r'lgkmcnt\((\d+)\)', t)
            if m:
                k = int(m.group(1))
                if any(x[1] == "smem" for x in lg) and k > 0:
                    probs.append((n, l, "counted lgkmcnt with smem outstanding"))
                lg = lg[len(lg) - k:] if k < len(lg) and k > 0 else ([] if k == 0 else lg)
            continue
        touched = c.r | c.w
        for (w, kind, ln) in vm + lg:
            if w & touched:
                if c.kind == kind and not (w & c.r) and kind in ("vmem", "ds"):
                    continue
                probs.append((n, l, "touches pending %s result from line %d" % (kind, ln)))
        if c.kind == "vmem": vm.append((set(c.w), "vmem", n))
        elif c.kind == "ds": lg.append((set(c.w), "ds", n))
        elif c.kind == "smem": lg.append((set(c.w), "smem", n))
        if len(vm) > 63: probs.append((n, l, "vmcnt overflow >63"))
    return probs

class Asm:
    def __init__(self):
        self.lines = []
        self.uid = 0
    def __call__(self, t):
        for x in t.split("\n"):
            x = x.strip()
            if x: self.lines.append("    " + x if not x.endswith(":") else x)
    def label(self, l):
        self.lines.append(l + ":")
    def newlabel(self, p="L"):
        self.uid += 1
        return "%s_%d" % (p, self.uid)
    def c(self, t):
        self.lines.append("    ; " + t)


class Asm2(Asm):
    def __init__(self):
        super().__init__()
        self.vmn = 0; self.dsn = 0
        self.bgq = []
    def vm(self, t):
        self(t); self.vmn += 1; return self.vmn - 1
    def ds(self, t):
        self(t); self.dsn += 1; return self.dsn - 1
    def wvm(self, tok):
        n = self.vmn - tok - 1
        if n <= 63: self("s_waitcnt vmcnt(%d)" % n)
    def wds(self, tok):
        n = self.dsn - tok - 1
        self("s_waitcnt lgkmcnt(%d)" % min(n, 15))
    def bg(self, n=1):
        for _ in range(n):
            if self.bgq: self.bgq.pop(0)()
    def bg_flush(self):
        while self.bgq: self.bgq.pop(0)()
    def mix(self, fg, every):
        for i, l in enumerate(fg):
            self(l)
            if (i + 1) % every == 0: self.bg()

class Rec:
    def __init__(self): self.l = []
    def __call__(self, t):
        for x in t.split("\n"):
            if x.strip(): self.l.append(x.strip())

def zipmix(*streams):
    out = []; n = max(len(s) for s in streams); pos = [0] * len(streams)
    for i in range(1, n + 1):
        for k, s in enumerate(streams):
            tgt = (len(s) * i + n - 1) // n
            while pos[k] < tgt:
                out.append(s[pos[k]]); pos[k] += 1
    return out
```

```python
import math, struct, sys, os
from asmlib import *

NAME = "interleave_layers__spectral_gfnet__mixer_token_mlp__prompt"
S, D, F = 2048, 448, 1792
MB2 = 0x200000
Z0, Z1, T0, T1, WT, X1, X2, X3, H0, H1, U0, U1, CNT = [MB2 * i for i in range(13)]
WS_BYTES = 0x2000000
PROFOFF = 0x1C00000
PROF = int(os.environ.get("PROF", 0))
STOP = int(os.environ.get("STOP", 99))
SLEEP = int(os.environ.get("SLEEP", 2))

def fbits(x): return "0x%08x" % struct.unpack("<I", struct.pack("<f", x))[0]
C7 = [math.cos(2 * math.pi * r / 7) for r in range(4)]
S7 = [math.sin(2 * math.pi * r / 7) for r in range(4)]
CV = "v_cvt_pk_bf16_f32"; M16 = "v_mfma_f32_16x16x32_bf16"; M32 = "v_mfma_f32_32x32x16_bf16"

sX, sWS, sWR, sWI, sW1, sB1, sW2, sB2, sOUT, sDBG = 4, 6, 8, 10, 12, 14, 16, 18, 20, 22
SW1, SW2, SWS = "s[24:27]", "s[28:31]", "s[32:35]"
SB = 36
sW, sWAVE, sDT, sFT, sST, sA1, sA2, sBUD = 48, 49, 50, 51, 52, 53, 54, 55
sT0, sT1, sT2, sT3 = 56, 57, 58, 59
sRING, sT4, sT5, sT6 = 60, 61, 62, 63
SCR = 131072
LDS_TOTAL = 163840
LSTR = 272
YSTR = 448 * 4 + 64
HSTR = 896 + 32
A3_Y = 32 * LSTR
A3_H = A3_Y + 8 * YSTR
F64R, F64I = 96, 112
W2V = 160

nstamp = [0]
def stamp(A):
    if not PROF: return
    i = nstamp[0]; nstamp[0] += 1
    assert i < 32
    A("s_memrealtime s[64:65]")
    A("s_waitcnt lgkmcnt(0)")
    A("s_mov_b32 %s, s64" % s(66 + i))

def prof_end(A):
    if not PROF: return
    A("s_waitcnt vmcnt(0)")
    stamp(A)
    n = nstamp[0]
    A("s_lshl_b32 s56, s2, 9")
    A("s_add_u32 s56, s56, 0x%x" % PROFOFF)
    A("v_lshrrev_b32 v1, 6, v0")
    A("v_lshlrev_b32 v1, 7, v1")
    for i in range(n):
        A("v_mov_b32 v2, %s" % s(66 + i))
        A("buffer_store_dword v2, v1, %s, s56 offen offset:%d" % (SWS, 4 * i))

def c7(r):
    r %= 7; r = min(r, 7 - r); return s(SB + 2 * (r - 1), 2)
def s7(r):
    r %= 7
    return (s(SB + 6 + 2 * (r - 1), 2), 1) if r <= 3 else (s(SB + 6 + 2 * (7 - r - 1), 2), -1)

def red32(R, x, t):
    for m in ("quad_perm:[1,0,3,2]", "quad_perm:[2,3,0,1]", "row_half_mirror", "row_mirror"):
        R("v_add_f32_dpp %s, %s, %s %s row_mask:0xf bank_mask:0xf" % (v(x), v(x), v(x), m))
    R("v_mov_b32 %s, %s" % (v(t), v(x)))
    R("v_permlane16_swap_b32 %s, %s" % (v(x), v(t)))
    R("v_add_f32 %s, %s, %s" % (v(x), v(x), v(t)))

def gen_frags(R, nidx, qreg, ksteps, denom, dre, dim, tmp):
    nf, ang, n13 = tmp, tmp + 1, tmp + 2
    R("v_cvt_f32_u32 %s, %s" % (v(nf), v(nidx)))
    R("v_cvt_f32_u32 %s, %s" % (v(ang), v(qreg)))
    R("v_mul_f32 %s, %s, %s" % (v(nf), fbits(1.0 / denom), v(nf)))
    R("v_mul_f32 %s, 4.0, %s" % (v(ang), v(ang)))
    R("v_mul_f32 %s, %s, %s" % (v(n13), fbits(13.0), v(nf)))
    R("v_mul_f32 %s, %s, %s" % (v(ang), v(ang), v(nf)))
    n = 4 * ksteps
    def sc(i): return tmp + 3 + 2 * (i % 2), tmp + 4 + 2 * (i % 2)
    for i in range(n + 1):
        if i < n:
            cs, sn = sc(i)
            R("v_cos_f32 %s, %s" % (v(cs), v(ang)))
            R("v_sin_f32 %s, %s" % (v(sn), v(ang)))
            if i < n - 1: R("v_add_f32 %s, %s, %s" % (v(ang), v(ang), v(nf if i % 4 < 3 else n13)))
        if i > 0:
            cs, sn = sc(i - 1)
            R("%s %s, %s, %s" % (CV, v(dre + i - 1), v(cs), v(sn)))
            R("%s %s, -%s, %s" % (CV, v(dim + i - 1), v(sn), v(cs)))

def gen_f64(R, tmp):
    R("v_lshrrev_b32 %s, 6, v0" % v(tmp + 7))
    R("v_and_b32 %s, 15, v0" % v(tmp + 8))
    R("v_lshl_add_u32 %s, %s, 4, %s" % (v(tmp + 7), v(tmp + 7), v(tmp + 8)))
    R("v_bfe_u32 %s, v0, 4, 2" % v(tmp + 8))
    gen_frags(R, tmp + 7, tmp + 8, 4, 64, F64R, F64I, tmp)

def unpack7(R, src, dst):
    for t in range(7):
        R("v_lshlrev_b32 %s, 16, %s" % (v(dst + 2 * t), v(src + t)))
        R("v_and_b32 %s, 0xffff0000, %s" % (v(dst + 2 * t + 1), v(src + t)))

def stats_streams(z, a1, a2, t1, t2):
    R1 = Rec(); R2 = Rec()
    R1("v_pk_add_f32 %s, %s, %s" % (v(a1, 2), v(z, 2), v(z + 2, 2)))
    for k in range(2, 7): R1("v_pk_add_f32 %s, %s, %s" % (v(a1, 2), v(a1, 2), v(z + 2 * k, 2)))
    R1("v_add_f32 %s, %s, %s" % (v(a1), v(a1), v(a1 + 1)))
    red32(R1, a1, t1)
    R2("v_pk_mul_f32 %s, %s, %s" % (v(a2, 2), v(z, 2), v(z, 2)))
    for k in range(1, 7): R2("v_pk_fma_f32 %s, %s, %s, %s" % (v(a2, 2), v(z + 2 * k, 2), v(z + 2 * k, 2), v(a2, 2)))
    R2("v_add_f32 %s, %s, %s" % (v(a2), v(a2), v(a2 + 1)))
    red32(R2, a2, t2)
    return R1.l, R2.l

def mean_var(A, a1, a2):
    A("v_mul_f32 %s, %s, %s" % (v(a1), fbits(1.0 / D), v(a1)))
    A("v_mul_f32 %s, %s, %s" % (v(a2), fbits(1.0 / D), v(a2)))
    A("v_fma_f32 %s, -%s, %s, %s" % (v(a2), v(a1), v(a1), v(a2)))
    A("v_max_f32 %s, 0, %s" % (v(a2), v(a2)))

def poison(A, region, vtid16, vm1):
    A("s_lshl_b32 %s, s2, 13" % s(sT3))
    A("s_add_u32 %s, %s, 0x%x" % (s(sT3), s(sT3), region))
    A.vm("buffer_store_dwordx4 %s, %s, %s, %s offen sc1" % (v(vm1, 4), v(vtid16), SWS, s(sT3)))
    A("s_add_u32 %s, %s, 4096" % (s(sT3), s(sT3)))
    A.ptok = A.vm("buffer_store_dwordx4 %s, %s, %s, %s offen sc1" % (v(vm1, 4), v(vtid16), SWS, s(sT3)))

def poison_list(A, regions, t):
    A("v_lshlrev_b32 %s, 4, v0" % v(t))
    for k in range(4): A("v_mov_b32 %s, -1" % v(t + 2 + k))
    for r in regions: poison(A, r, t, t + 2)

def maxchain(A, regs, t):
    regs = list(regs)
    A("v_max3_u32 %s, %s, %s, %s" % (v(t), v(regs[0]), v(regs[1]), v(regs[2])))
    regs = regs[3:]
    while len(regs) >= 2:
        A("v_max3_u32 %s, %s, %s, %s" % (v(t), v(t), v(regs[0]), v(regs[1]))); regs = regs[2:]
    if regs: A("v_max_u32 %s, %s, %s" % (v(t), v(t), v(regs[0])))

def poll_loads(A, issue, regs, t):
    lt, lo = A.newlabel("poll"), A.newlabel("pollok")
    A.label(lt)
    issue()
    A("s_waitcnt vmcnt(0)")
    maxchain(A, regs, t)
    A("v_cmp_eq_u32 vcc, -1, %s" % v(t))
    A("s_cbranch_vccz %s" % lo)
    A("s_cmp_eq_u32 %s, 0" % s(sBUD))
    A("s_cbranch_scc1 %s" % lo)
    A("s_sub_u32 %s, %s, 1" % (s(sBUD), s(sBUD)))
    if SLEEP: A("s_sleep %d" % SLEEP)
    A("s_branch %s" % lt)
    A.label(lo)

def dma_lane(R, dst, rowstride, t):
    R("v_bfe_u32 %s, v0, 3, 3" % v(t))
    R("s_mov_b32 %s, %d" % (s(sT4), rowstride))
    R("v_mul_lo_u32 %s, %s, %s" % (v(dst), v(t), s(sT4)))
    R("v_bfe_u32 %s, v0, 4, 1" % v(t))
    R("v_lshlrev_b32 %s, 2, %s" % (v(t), v(t)))
    R("v_and_b32 %s, 7, v0" % v(t + 1))
    R("v_xor_b32 %s, %s, %s" % (v(t), v(t), v(t + 1)))
    R("v_lshl_add_u32 %s, %s, 4, %s" % (v(dst), v(t), v(dst)))

def w1_voffs(R, dst, t):
    dma_lane(R, dst, 32 * 3584, t)
    R("s_lshl_b32 %s, %s, 7" % (s(sT4), s(sFT)))
    R("v_add_u32 %s, %s, %s" % (v(dst), s(sT4), v(dst)))
    for i in range(1, 8):
        qd, h = i // 2, i % 2
        R("v_add_u32 %s, 0x%x, %s" % (v(dst + i), (512 * qd + 256 * h) * 3584 - ((qd % 2) * 2 + h) * 1024, v(dst)))

def w2_voffs(R, dst, t):
    dma_lane(R, dst, 4096, t)
    R("s_lshl_b32 %s, %s, 7" % (s(sT4), s(sST)))
    R("v_add_u32 %s, %s, %s" % (v(dst), s(sT4), v(dst)))
    for i in range(1, 4):
        p, h = i // 2, i % 2
        R("v_add_u32 %s, 0x%x, %s" % (v(dst + i), p * 65536 + h * 32768 - (p * 2 + h) * 1024, v(dst)))

def tr_addr(R, dst, rowsel_hi, t):
    R("v_bfe_u32 %s, v0, 2, 2" % v(t))
    R("v_bfe_u32 %s, v0, 5, 1" % v(t + 1))
    R("v_mul_u32_u24 %s, %d, %s" % (v(t + 1), rowsel_hi, v(t + 1)))
    R("v_add_u32 %s, %s, %s" % (v(t + 1), v(t + 1), v(t)))
    R("v_lshlrev_b32 %s, 7, %s" % (v(dst), v(t + 1)))
    R("v_lshrrev_b32 %s, 4, v0" % v(t))
    R("v_xor_b32 %s, %s, v0" % (v(t), v(t)))
    R("v_bfe_u32 %s, %s, 3, 1" % (v(t), v(t)))
    R("v_lshl_add_u32 %s, %s, 6, %s" % (v(dst), v(t), v(dst)))
    R("v_bfe_u32 %s, v0, 4, 1" % v(t))
    R("v_lshl_add_u32 %s, %s, 5, %s" % (v(dst), v(t), v(dst)))
    R("v_and_b32 %s, 3, v0" % v(t))
    R("v_lshl_add_u32 %s, %s, 3, %s" % (v(dst), v(t), v(dst)))
    R("v_add_u32 %s, %s, %s" % (v(dst), s(sRING), v(dst)))
    R("v_xor_b32 %s, 64, %s" % (v(dst + 1), v(dst)))

def dma_chunk(A, which, ks0, n, voff):
    ops = []
    for i in range(n):
        ks = ks0 + i
        for h in range(2):
            def op(ks=ks, h=h, i=i):
                if h == 0 and i % 2 == 0:
                    A("s_add_u32 m0, %s, %d" % (s(sRING), i * 2048))
                if which == 1:
                    if h == 0 and (i == 0 or ks % 4 == 0):
                        A("s_mul_i32 %s, %s, %d" % (s(sT5), s(sWAVE), 8 * 3584))
                        A("s_add_u32 %s, %s, %d" % (s(sT5), s(sT5), (ks // 4) * 3584))
                    vr = voff + (ks % 4) * 2 + h; srd = SW1
                else:
                    if h == 0 and i % 2 == 0:
                        A("s_mul_i32 %s, %s, %d" % (s(sT5), s(sWAVE), 28 * 65536))
                        A("s_add_u32 %s, %s, %d" % (s(sT5), s(sT5), ks * 65536))
                    vr = voff + (i % 2) * 2 + h; srd = SW2
                assert ks0 % 2 == 0
                A.last_dma = A.vm("buffer_load_dwordx4 %s, %s, %s offen offset:%d lds" % (v(vr), srd, s(sT5), ((i % 2) * 2 + h) * 1024))
            ops.append(op)
    return ops

def tr_chunk(A, n, addr, rows, dstfn):
    for i in range(n):
        for tl in range(2):
            for rd in range(2):
                A.ds("ds_read_b64_tr_b16 %s, %s offset:%d" % (dstfn(8 * i + 4 * tl + 2 * rd), v(addr + tl), i * 2048 + rows[rd] * 128))

PW1, PTR1, PW2 = 240, 248, 250

def a1_consts(R):
    R("s_lshr_b32 %s, %s, 3" % (s(sT0), s(sW)))
    R("s_and_b32 %s, %s, 7" % (s(sT1), s(sW)))
    R("s_lshl_b32 %s, %s, 3" % (s(sT1), s(sT1)))
    R("v_lshrrev_b32 v1, 5, v0")
    R("v_add_u32 v1, %s, v1" % s(sT1))
    R("v_lshlrev_b32 v1, 5, v1")
    R("v_add_u32 v1, %s, v1" % s(sT0))
    R("v_mul_u32_u24 v1, 896, v1")
    R("v_and_b32 v2, 31, v0")
    R("v_lshl_add_u32 v1, v2, 2, v1")

def a1_consts2(R):
    TC, TS = 20, 26
    R("v_cvt_f32_u32 v14, v2")
    R("v_mul_f32 v14, %s, v14" % fbits(2.0 / 448))
    R("v_add_f32 v15, %s, v14" % fbits(1.0 / 448))
    for k in range(1, 4):
        if k == 1: a0, a1_ = 14, 15
        else:
            a0, a1_ = 16, 17
            R("v_mul_f32 v16, %s, v14" % fbits(float(k)))
            R("v_mul_f32 v17, %s, v15" % fbits(float(k)))
        R("v_cos_f32 %s, %s" % (v(TC + 2 * (k - 1)), v(a0)))
        R("v_cos_f32 %s, %s" % (v(TC + 2 * (k - 1) + 1), v(a1_)))
        R("v_sin_f32 %s, %s" % (v(TS + 2 * (k - 1)), v(a0)))
        R("v_sin_f32 %s, %s" % (v(TS + 2 * (k - 1) + 1), v(a1_)))
    R("v_lshrrev_b32 v3, 5, v0")
    R("v_mul_u32_u24 v3, %d, v3" % LSTR)
    R("v_lshl_add_u32 v3, v2, 3, v3")
    R("v_add_u32 v3, 0x%x, v3" % SCR)
    R("v_bfe_u32 v13, v0, 4, 2")
    R("v_and_b32 v12, 15, v0")
    R("v_mul_u32_u24 v18, %d, v12" % LSTR)
    R("v_lshl_add_u32 v18, v13, 4, v18")
    R("v_add_u32 v18, 0x%x, v18" % SCR)
    R("v_lshrrev_b32 v19, 1, v13")
    R("v_lshl_add_u32 v19, v19, 6, v12")
    R("v_lshrrev_b32 v14, 6, v0")
    R("v_lshl_add_u32 v19, v14, 4, v19")
    R("v_lshlrev_b32 v19, 5, v19")
    R("v_and_b32 v14, 1, v13")
    R("v_lshl_add_u32 v19, v14, 4, v19")

def a1_compute(A, zout):
    XR, TC, TS, Z = 4, 20, 26, 32
    unpack7(A, XR, Z)
    s1, s2 = stats_streams(Z, 46, 60, 4, 5)
    Dq = Rec()
    P, Q = 48, 54
    for t in range(1, 4):
        Dq("v_pk_add_f32 %s, %s, %s" % (v(P + 2 * (t - 1), 2), v(Z + 2 * t, 2), v(Z + 2 * (7 - t), 2)))
        Dq("v_pk_add_f32 %s, %s, %s neg_lo:[0,1] neg_hi:[0,1]" % (v(Q + 2 * (t - 1), 2), v(Z + 2 * t, 2), v(Z + 2 * (7 - t), 2)))
    RE, IM = 64, 70
    for k in range(1, 4):
        Rr, N = 76 + 4 * (k % 2), 78 + 4 * (k % 2)
        for t in range(1, 4):
            Dq("v_pk_fma_f32 %s, %s, %s, %s" % (v(Rr, 2), v(P + 2 * (t - 1), 2), c7(t * k), v(Z, 2) if t == 1 else v(Rr, 2)))
        for t in range(1, 4):
            cs, sg = s7(t * k)
            if t == 1: Dq("v_pk_mul_f32 %s, %s, %s" % (v(N, 2), v(Q, 2), cs))
            else:
                neg = "" if sg == 1 else " neg_lo:[1,0,0] neg_hi:[1,0,0]"
                Dq("v_pk_fma_f32 %s, %s, %s, %s%s" % (v(N, 2), v(Q + 2 * (t - 1), 2), cs, v(N, 2), neg))
        tc, ts = v(TC + 2 * (k - 1), 2), v(TS + 2 * (k - 1), 2)
        re, im = v(RE + 2 * (k - 1), 2), v(IM + 2 * (k - 1), 2)
        Dq("v_pk_mul_f32 %s, %s, %s" % (re, v(N, 2), ts))
        Dq("v_pk_mul_f32 %s, %s, %s" % (im, v(N, 2), tc))
        Dq("v_pk_fma_f32 %s, %s, %s, %s neg_lo:[0,0,1] neg_hi:[0,0,1]" % (re, v(Rr, 2), tc, re))
        Dq("v_pk_fma_f32 %s, %s, %s, %s" % (im, v(Rr, 2), ts, im))
    Dq("v_pk_add_f32 v[6:7], %s, %s" % (v(Z, 2), v(P, 2)))
    Dq("v_pk_add_f32 v[8:9], %s, %s" % (v(P + 2, 2), v(P + 4, 2)))
    Dq("v_pk_add_f32 v[6:7], v[6:7], v[8:9]")
    for l in zipmix(Dq.l, s1, s2): A(l)
    mean_var(A, 46, 60)
    A("v_add_f32 v60, %s, v60" % fbits(1e-5))
    A("v_rsq_f32 v60, v60")
    A("v_mul_f32 v46, %s, v46" % fbits(-7.0))
    A("v_mul_f32 v60, %s, v60" % fbits(1.0 / (448.0 * 2048.0)))
    A("v_pk_add_f32 v[6:7], v[6:7], v[46:47] op_sel_hi:[1,0]")
    for k in range(6):
        A("v_pk_mul_f32 %s, %s, v[60:61] op_sel_hi:[1,0]" % (v(RE + 2 * k, 2), v(RE + 2 * k, 2)))
    A("v_pk_mul_f32 v[6:7], v[6:7], v[60:61] op_sel_hi:[1,0]")
    for k in range(1, 4):
        o = 32 + 2 * k
        A("%s %s, %s, -%s" % (CV, v(o), v(RE + 2 * (k - 1)), v(IM + 2 * (k - 1))))
        A("%s %s, %s, -%s" % (CV, v(o + 1), v(RE + 2 * (k - 1) + 1), v(IM + 2 * (k - 1) + 1)))
        A.ds("ds_write_b64 v3, %s offset:%d" % (v(o, 2), k * 8 * LSTR))
    A("%s v32, v6, 0" % CV)
    A("%s v33, v7, 0" % CV)
    A.ds("ds_write_b64 v3, v[32:33]")
    A("s_lshl_b32 %s, %s, 13" % (s(sT0), s(sW)))
    A("s_add_u32 %s, %s, 0x%x" % (s(sT0), s(sT0), zout))
    A("s_add_u32 %s, %s, 4096" % (s(sT1), s(sT0)))
    A("s_waitcnt lgkmcnt(0)")
    A("s_barrier")
    AF = 64
    tk = []
    for mt in range(2):
        for t in range(4):
            tk.append(A.ds("ds_read_b128 %s, v18 offset:%d" % (v(AF + 16 * mt + 4 * t, 4), mt * 16 * LSTR + 64 * t)))
    DR, DI = 32, 40
    for mt in range(2):
        for t in range(4):
            A.wds(tk[4 * mt + t])
            A("%s %s, %s, %s, %s" % (M16, v(DR + 4 * mt, 4), v(AF + 16 * mt + 4 * t, 4), v(F64R + 4 * t, 4), "0" if t == 0 else v(DR + 4 * mt, 4)))
            A("%s %s, %s, %s, %s" % (M16, v(DI + 4 * mt, 4), v(AF + 16 * mt + 4 * t, 4), v(F64I + 4 * t, 4), "0" if t == 0 else v(DI + 4 * mt, 4)))
    for mt in range(2):
        for r in range(4):
            A("%s %s, %s, %s" % (CV, v(48 + 4 * mt + r), v(DR + 4 * mt + r), v(DI + 4 * mt + r)))
        A.vm("buffer_store_dwordx4 %s, v19, %s, %s offen sc1" % (v(48 + 4 * mt, 4), SWS, s(sT0 + mt)))

F32R, F32I = 128, 144
TW1, TW2, WV = 16, 24, 8
def a2_consts(R):
    R("v_and_b32 v2, 15, v0")
    R("v_bfe_u32 v3, v0, 4, 2")
    R("v_lshrrev_b32 v4, 6, v0")
    R("v_lshrrev_b32 v5, 1, v4")
    R("v_lshl_add_u32 v5, v5, 4, v2")
    R("v_lshlrev_b32 v5, 3, v5")
    R("v_and_b32 v6, 1, v4")
    R("v_lshl_add_u32 v5, v6, 2, v5")
    R("v_lshrrev_b32 v6, 1, v3")
    R("v_add_u32 v5, v5, v6")
    R("v_lshlrev_b32 v5, 13, v5")
    R("v_and_b32 v7, 1, v3")
    R("v_lshl_add_u32 v5, v7, 4, v5")
    R("v_lshl_add_u32 v56, v4, 4, v2")
    R("v_lshl_add_u32 v6, v56, 4, v6")
    R("v_lshlrev_b32 v6, 11, v6")
    R("v_lshl_add_u32 v7, v7, 4, v6")
    R("v_lshlrev_b32 v6, 8, v2")
    R("v_lshl_add_u32 v6, v4, 6, v6")
    R("v_lshl_add_u32 v6, v3, 4, v6")
    R("v_cvt_f32_u32 v57, v56")
    R("v_cvt_f32_u32 v58, v3")
    R("v_mul_f32 v57, %s, v57" % fbits(1.0 / 2048))
    R("v_mul_f32 v58, 4.0, v58")
    R("v_mul_f32 v59, %s, v57" % fbits(13.0))
    R("v_mul_f32 v58, v58, v57")
    for i in range(8):
        R("v_cos_f32 v60, v58"); R("v_sin_f32 v61, v58")
        if i < 7: R("v_add_f32 v58, v58, %s" % v(57 if i != 3 else 59))
        R("v_cvt_pk_f16_f32 %s, v60, -v61" % v(TW1 + i))
    R("v_lshlrev_b32 v56, 4, v4")
    R("v_lshl_add_u32 v56, v3, 2, v56")
    R("v_cvt_f32_u32 v56, v56")
    R("v_add_u32 v63, 16, v2")
    for nt in range(2):
        R("v_cvt_f32_u32 v57, %s" % v(2 if nt == 0 else 63))
        R("v_mul_f32 v57, %s, v57" % fbits(1.0 / 2048))
        R("v_mul_f32 v58, v56, v57")
        for r in range(4):
            R("v_cos_f32 v60, v58"); R("v_sin_f32 v61, v58")
            if r < 3: R("v_add_f32 v58, v58, v57")
            R("v_cvt_pk_f16_f32 %s, v60, v61" % v(TW2 + 4 * nt + r))
    for mt in range(2):
        gen_frags(R, 2 if mt == 0 else 63, 3, 2, 32, F32R + 8 * mt, F32I + 8 * mt, 48)

def cmul_mix(A, ar, ai, tw, t):
    A("v_fma_mix_f32 %s, %s, %s, 0 op_sel:[0,1,0] op_sel_hi:[0,1,0]" % (v(t), v(ai), v(tw)))
    A("v_fma_mix_f32 %s, %s, %s, 0 op_sel:[0,0,0] op_sel_hi:[0,1,0]" % (v(t + 1), v(ai), v(tw)))
    A("v_fma_mix_f32 %s, %s, %s, %s op_sel:[0,1,0] op_sel_hi:[0,1,0]" % (v(ai), v(ar), v(tw), v(t + 1)))
    A("v_fma_mix_f32 %s, %s, %s, -%s op_sel:[0,0,0] op_sel_hi:[0,1,0]" % (v(ar), v(ar), v(tw), v(t)))

def a2_phase(A, zin, tout, poll, after_loads):
    A("s_lshl_b32 %s, %s, 5" % (s(sT0), s(sW)))
    A("s_add_u32 %s, %s, 0x%x" % (s(sT0), s(sT0), zin))
    A("s_add_u32 %s, %s, 16384" % (s(sT1), s(sT0)))
    A("s_lshr_b32 %s, %s, 6" % (s(sT2), s(sW)))
    A("s_lshl_b32 %s, %s, 13" % (s(sT2), s(sT2)))
    A("s_and_b32 %s, %s, 63" % (s(sT3), s(sW)))
    A("s_lshl_b32 %s, %s, 5" % (s(sT3), s(sT3)))
    A("s_add_u32 %s, %s, %s" % (s(sT2), s(sT2), s(sT3)))
    A("s_add_u32 %s, %s, 0x%x" % (s(sT2), s(sT2), WT))
    A("s_add_u32 %s, %s, 4096" % (s(sT3), s(sT2)))
    G = 32
    def issue():
        A.vm("buffer_load_dwordx4 %s, v5, %s, %s offen sc1" % (v(G, 4), SWS, s(sT0)))
        return A.vm("buffer_load_dwordx4 %s, v5, %s, %s offen sc1" % (v(G + 4, 4), SWS, s(sT1)))
    def wload():
        A.vm("buffer_load_dwordx4 %s, v7, %s, %s offen sc1" % (v(WV, 4), SWS, s(sT2)))
        return A.vm("buffer_load_dwordx4 %s, v7, %s, %s offen sc1" % (v(WV + 4, 4), SWS, s(sT3)))
    A("v_lshlrev_b32 v62, 4, v0")
    A("v_lshl_add_u32 v62, v4, 10, v62")
    A("v_add_u32 v62, 0x%x, v62" % SCR)
    A("v_and_b32 v63, 63, v0")
    A("v_lshlrev_b32 v63, 4, v63")
    A("v_add_u32 v63, 0x%x, v63" % SCR)
    if poll:
        tw = wload()
        poll_loads(A, issue, range(G, G + 8), 56)
    else:
        tz = issue(); tw = wload(); A.wvm(tz)
    stamp(A)
    A.ds("ds_write_b128 v62, %s" % v(G, 4))
    A.ds("ds_write_b128 v62, %s offset:1024" % v(G + 4, 4))
    after_loads()
    A("s_waitcnt lgkmcnt(0)")
    A("s_barrier")
    DA = 64
    tk = [A.ds("ds_read_b128 %s, v63 offset:%d" % (v(DA + 4 * f, 4), 1024 * f)) for f in range(8)]
    GR, GI = 32, 40
    for mt in range(2):
        for t in range(4):
            A.wds(tk[4 * mt + t])
            A("%s %s, %s, %s, %s" % (M16, v(GR + 4 * mt, 4), v(DA + 16 * mt + 4 * t, 4), v(F64R + 4 * t, 4), "0" if t == 0 else v(GR + 4 * mt, 4)))
            A("%s %s, %s, %s, %s" % (M16, v(GI + 4 * mt, 4), v(DA + 16 * mt + 4 * t, 4), v(F64I + 4 * t, 4), "0" if t == 0 else v(GI + 4 * mt, 4)))
            A.bg()
    P1 = 48
    for i in range(8):
        cmul_mix(A, GR + i, GI + i, TW1 + i, 56 + 2 * (i % 2))
        A("%s %s, %s, %s" % (CV, v(P1 + i), v(GR + i), v(GI + i)))
        A.bg()
    XR, XI = 64, 72
    for mt in range(2):
        for ks in range(2):
            A("%s %s, %s, %s, %s" % (M16, v(XR + 4 * mt, 4), v(F32R + 8 * mt + 4 * ks, 4), v(P1 + 4 * ks, 4), "0" if ks == 0 else v(XR + 4 * mt, 4)))
            A("%s %s, %s, %s, %s" % (M16, v(XI + 4 * mt, 4), v(F32I + 8 * mt + 4 * ks, 4), v(P1 + 4 * ks, 4), "0" if ks == 0 else v(XI + 4 * mt, 4)))
    A.wvm(tw)
    WR_, WI_ = 80, 88
    for i in range(8):
        A("v_lshlrev_b32 %s, 16, %s" % (v(WR_ + i), v(WV + i)))
        A("v_and_b32 %s, 0xffff0000, %s" % (v(WI_ + i), v(WV + i)))
    P2 = 48
    for i in range(0, 8, 2):
        xr, xi, wr, wi = v(XR + i, 2), v(XI + i, 2), v(WR_ + i, 2), v(WI_ + i, 2)
        A("v_pk_mul_f32 v[32:33], %s, %s" % (xi, wi))
        A("v_pk_mul_f32 v[34:35], %s, %s" % (xi, wr))
        A("v_pk_fma_f32 v[32:33], %s, %s, v[32:33] neg_lo:[0,0,1] neg_hi:[0,0,1]" % (xr, wr))
        A("v_pk_fma_f32 v[34:35], %s, %s, v[34:35]" % (xr, wi))
        A("%s %s, v34, v32" % (CV, v(P2 + i)))
        A("%s %s, v35, v33" % (CV, v(P2 + i + 1)))
        A.bg()
    HR, HI = 32, 40
    for nt in range(2):
        for ks in range(2):
            A("%s %s, %s, %s, %s" % (M16, v(HI + 4 * nt, 4), v(P2 + 4 * ks, 4), v(F32R + 8 * nt + 4 * ks, 4), "0" if ks == 0 else v(HI + 4 * nt, 4)))
            A("%s %s, %s, %s, %s" % (M16, v(HR + 4 * nt, 4), v(P2 + 4 * ks, 4), v(F32I + 8 * nt + 4 * ks, 4), "0" if ks == 0 else v(HR + 4 * nt, 4)))
    A.bg(2)
    P3 = 48
    A("v_lshlrev_b32 v62, 4, v0")
    A("v_add_u32 v62, 0x%x, v62" % (SCR + 8192))
    for i in range(8):
        cmul_mix(A, HR + i, HI + i, TW2 + i, 64 + 2 * (i % 2))
        A("%s %s, %s, %s" % (CV, v(P3 + i), v(HI + i), v(HR + i)))
        if i == 3: A.ds("ds_write_b128 v62, %s" % v(P3, 4))
        A.bg()
    A.ds("ds_write_b128 v62, %s offset:4096" % v(P3 + 4, 4))
    A("s_lshl_b32 %s, %s, 13" % (s(sT0), s(sW)))
    A("s_add_u32 %s, %s, 0x%x" % (s(sT0), s(sT0), tout))
    A("s_add_u32 %s, %s, 4096" % (s(sT1), s(sT0)))
    A("s_waitcnt lgkmcnt(0)")
    A("s_barrier")
    tk = [A.ds("ds_read_b128 %s, v63 offset:%d" % (v(DA + 4 * f, 4), 8192 + 1024 * f)) for f in range(8)]
    TR, TI = 32, 40
    for nt in range(2):
        for t in range(4):
            A.wds(tk[4 * nt + t])
            A("%s %s, %s, %s, %s" % (M16, v(TI + 4 * nt, 4), v(F64R + 4 * t, 4), v(DA + 16 * nt + 4 * t, 4), "0" if t == 0 else v(TI + 4 * nt, 4)))
            A("%s %s, %s, %s, %s" % (M16, v(TR + 4 * nt, 4), v(F64I + 4 * t, 4), v(DA + 16 * nt + 4 * t, 4), "0" if t == 0 else v(TR + 4 * nt, 4)))
    for nt in range(2):
        for r in range(4):
            A("%s %s, %s, %s" % (CV, v(48 + 4 * nt + r), v(TI + 4 * nt + r), v(TR + 4 * nt + r)))
        A.vm("buffer_store_dwordx4 %s, v6, %s, %s offen sc1" % (v(48 + 4 * nt, 4), SWS, s(sT0 + nt)))
    A.bg_flush()

def a3_consts(R):
    a1_consts(R)
    R("v_lshlrev_b32 v3, 13, v0")
    R("v_lshrrev_b32 v11, 6, v0")
    R("v_and_b32 v12, 15, v0")
    R("v_mul_u32_u24 v15, %d, v12" % LSTR)
    R("v_lshl_add_u32 v12, v11, 4, v12")
    R("v_bfe_u32 v13, v0, 4, 2")
    R("v_lshl_add_u32 v15, v13, 4, v15")
    R("v_add_u32 v15, 0x%x, v15" % SCR)
    R("v_lshrrev_b32 v14, 1, v11")
    R("v_lshlrev_b32 v14, 4, v14")
    R("v_and_b32 v30, 1, v11")
    R("v_lshl_add_u32 v14, v30, 1, v14")
    R("v_mul_u32_u24 v14, %d, v14" % LSTR)
    R("v_and_b32 v30, 63, v0")
    R("v_lshl_add_u32 v14, v30, 2, v14")
    R("v_add_u32 v14, 0x%x, v14" % SCR)
    TW = 24
    R("v_cvt_f32_u32 v30, v12")
    for k in range(1, 4):
        R("v_mul_f32 v31, %s, v30" % fbits(k / 448.0))
        R("v_cos_f32 %s, v31" % v(TW + 2 * (k - 1)))
        R("v_sin_f32 %s, v31" % v(TW + 2 * (k - 1) + 1))
    for k in range(6): R("v_add_f32 %s, %s, %s" % (v(TW + k), v(TW + k), v(TW + k)))
    R("v_mul_u32_u24 v62, %d, v13" % (2 * YSTR))
    R("v_lshl_add_u32 v62, v12, 2, v62")
    R("v_add_u32 v62, 0x%x, v62" % (SCR + A3_Y))
    R("v_lshrrev_b32 v31, 5, v0")
    R("v_mul_u32_u24 v30, %d, v31" % HSTR)
    R("v_lshl_add_u32 v30, v2, 2, v30")
    R("v_add_u32 v30, 0x%x, v30" % (SCR + A3_H))
    R("v_mul_u32_u24 v63, %d, v31" % YSTR)
    R("v_lshl_add_u32 v63, v2, 3, v63")
    R("v_add_u32 v63, 0x%x, v63" % (SCR + A3_Y))
    R("v_bfe_u32 v31, v0, 2, 2")
    R("v_mul_u32_u24 v31, %d, v31" % HSTR)
    R("v_and_b32 v12, 3, v0")
    R("v_lshl_add_u32 v31, v12, 3, v31")
    R("v_lshl_add_u32 v31, v13, 5, v31")
    R("v_lshl_add_u32 v31, v11, 7, v31")
    R("v_add_u32 v31, 0x%x, v31" % (SCR + A3_H))
    R("v_lshlrev_b32 v12, 4, v0")

def a3_phase(A, l, tin, xout, hout, after_loads):
    XR, TV, TW = 4, 16, 24
    if l == 0:
        for t in range(7): A.vm("global_load_dword %s, v1, %s offset:%d" % (v(XR + t), s(sX, 2), 128 * t))
    else:
        A("s_mov_b32 %s, 0x%x" % (s(sT1), X2))
        for t in range(7): A.vm("buffer_load_dword %s, v1, %s, %s offen offset:%d sc1" % (v(XR + t), SWS, s(sT1), 128 * t))
    A("s_lshl_b32 %s, %s, 5" % (s(sT0), s(sW)))
    A("s_add_u32 %s, %s, 0x%x" % (s(sT0), s(sT0), tin))
    def issue():
        A.vm("buffer_load_dwordx4 %s, v3, %s, %s offen sc1" % (v(TV, 4), SWS, s(sT0)))
        A.vm("buffer_load_dwordx4 %s, v3, %s, %s offen offset:16 sc1" % (v(TV + 4, 4), SWS, s(sT0)))
    poll_loads(A, issue, range(TV, TV + 8), 32)
    stamp(A)
    for row in range(8):
        A.ds("ds_write_b32 v14, %s offset:%d" % (v(TV + row), (4 * (row // 2) + (row & 1)) * LSTR))
    after_loads()
    A("s_waitcnt lgkmcnt(0)")
    A("s_barrier")
    AF = 64
    tk = []
    for mt in range(2):
        for t in range(4):
            tk.append(A.ds("ds_read_b128 %s, v15 offset:%d" % (v(AF + 16 * mt + 4 * t, 4), mt * 16 * LSTR + 64 * t)))
    DR, DI = 32, 40
    for mt in range(2):
        for t in range(4):
            A.wds(tk[4 * mt + t])
            A("%s %s, %s, %s, %s" % (M16, v(DI + 4 * mt, 4), v(AF + 16 * mt + 4 * t, 4), v(F64R + 4 * t, 4), "0" if t == 0 else v(DI + 4 * mt, 4)))
            A("%s %s, %s, %s, %s" % (M16, v(DR + 4 * mt, 4), v(AF + 16 * mt + 4 * t, 4), v(F64I + 4 * t, 4), "0" if t == 0 else v(DR + 4 * mt, 4)))
            A.bg()
    Z = 80
    unpack7(A, XR, Z)
    UR, UI, U0 = 48, 54, DR
    for k in range(1, 4):
        tw = v(TW + 2 * (k - 1), 2)
        vr, vi = v(DR + 2 * k, 2), v(DI + 2 * k, 2)
        ur, ui = v(UR + 2 * (k - 1), 2), v(UI + 2 * (k - 1), 2)
        A("v_pk_mul_f32 %s, %s, %s op_sel:[0,1] op_sel_hi:[1,1]" % (ur, vi, tw))
        A("v_pk_mul_f32 %s, %s, %s op_sel:[0,0] op_sel_hi:[1,0]" % (ui, vi, tw))
        A("v_pk_fma_f32 %s, %s, %s, %s op_sel:[0,0,0] op_sel_hi:[1,0,1] neg_lo:[0,0,1] neg_hi:[0,0,1]" % (ur, vr, tw, ur))
        A("v_pk_fma_f32 %s, %s, %s, %s op_sel:[0,1,0] op_sel_hi:[1,1,1]" % (ui, vr, tw, ui))
        A.bg()
    def ywrite(pair, t):
        A.ds("ds_write_b32 v62, %s offset:%d" % (v(pair), 256 * t))
        A.ds("ds_write_b32 v62, %s offset:%d" % (v(pair + 1), YSTR + 256 * t))
    A("v_pk_add_f32 v[64:65], %s, %s" % (v(U0, 2), v(UR, 2)))
    A("v_pk_add_f32 v[66:67], %s, %s" % (v(UR + 2, 2), v(UR + 4, 2)))
    A("v_pk_add_f32 v[64:65], v[64:65], v[66:67]")
    ywrite(64, 0)
    for t in range(1, 4):
        aa, bb, y1, y2 = 36, 38, 40 + 4 * (t % 2), 42 + 4 * (t % 2)
        for k in range(1, 4):
            A("v_pk_fma_f32 %s, %s, %s, %s" % (v(aa, 2), v(UR + 2 * (k - 1), 2), c7(t * k), v(U0, 2) if k == 1 else v(aa, 2)))
        for k in range(1, 4):
            cs, sg = s7(t * k)
            if k == 1: A("v_pk_mul_f32 %s, %s, %s" % (v(bb, 2), v(UI, 2), cs))
            else:
                neg = "" if sg == 1 else " neg_lo:[1,0,0] neg_hi:[1,0,0]"
                A("v_pk_fma_f32 %s, %s, %s, %s%s" % (v(bb, 2), v(UI + 2 * (k - 1), 2), cs, v(bb, 2), neg))
        A("v_pk_add_f32 %s, %s, %s neg_lo:[0,1] neg_hi:[0,1]" % (v(y1, 2), v(aa, 2), v(bb, 2)))
        A("v_pk_add_f32 %s, %s, %s" % (v(y2, 2), v(aa, 2), v(bb, 2)))
        ywrite(y1, t); ywrite(y2, 7 - t)
        A.bg(2)
    A("s_mov_b32 %s, 0x%x" % (s(sT1), xout))
    A("s_waitcnt lgkmcnt(0)")
    A("s_barrier")
    Y = 64
    tk = [A.ds("ds_read_b64 %s, v63 offset:%d" % (v(Y + 2 * t, 2), 256 * t)) for t in range(7)]
    A.bg(3)
    for t in range(7):
        A.wds(tk[t])
        A("%s %s, %s, %s" % (CV, v(XR + t), v(Y + 2 * t), v(Y + 2 * t + 1)))
    unpack7(A, XR, Y)
    for t in range(7):
        A("v_pk_add_f32 %s, %s, %s" % (v(Z + 2 * t, 2), v(Z + 2 * t, 2), v(Y + 2 * t, 2)))
    for t in range(7):
        A("%s %s, %s, %s" % (CV, v(XR + t), v(Z + 2 * t), v(Z + 2 * t + 1)))
    unpack7(A, XR, Z)
    s1, s2 = stats_streams(Z, 46, 48, 50, 51)
    St = ["buffer_store_dword %s, v1, %s, %s offen offset:%d sc1" % (v(XR + t), SWS, s(sT1), 128 * t) for t in range(7)]
    for ln in zipmix(s1, s2, St):
        if ln.startswith("buffer"): A.vm(ln)
        else: A(ln)
    mean_var(A, 46, 48)
    A("v_add_f32 v49, %s, v48" % fbits(1e-5))
    A("v_rsq_f32 v49, v49")
    A("v_mov_b32 v50, %s" % fbits(1e-5))
    A("v_mul_f32 v48, v48, v49")
    A("v_fma_f32 v48, v48, v49, v50")
    A("v_rsq_f32 v48, v48")
    A("s_mul_i32 %s, %s, 7168" % (s(sT0), s(sW)))
    A("s_add_u32 %s, %s, 0x%x" % (s(sT0), s(sT0), hout))
    A("v_mul_f32 v48, v48, v49")
    A("v_mul_f32 v46, -v46, v48" if False else "v_mul_f32 v46, v46, v48")
    for t in range(7):
        A("v_pk_fma_f32 %s, %s, v[48:49], v[46:47] op_sel_hi:[1,0,0] neg_lo:[0,0,1] neg_hi:[0,0,1]" % (v(Z + 2 * t, 2), v(Z + 2 * t, 2)))
    for t in range(7):
        A("%s %s, %s, %s" % (CV, v(64 + t), v(Z + 2 * t), v(Z + 2 * t + 1)))
        A.ds("ds_write_b32 v30, %s offset:%d" % (v(64 + t), 128 * t))
    A("s_add_u32 %s, %s, 4096" % (s(sT1), s(sT0)))
    if l == 0: A.wvm(A.ptok)
    A("s_waitcnt lgkmcnt(0)")
    A("s_barrier")
    A.ds("ds_read_b64_tr_b16 v[20:21], v31")
    A.ds("ds_read_b64_tr_b16 v[22:23], v31 offset:%d" % (4 * HSTR))
    A.ds("ds_read_b64_tr_b16 v[24:25], v31 offset:512")
    A.ds("ds_read_b64_tr_b16 v[26:27], v31 offset:%d" % (4 * HSTR + 512))
    A("v_cmp_gt_u32 vcc, 192, v0")
    A("v_mov_b32 v13, 0x80000000")
    A("v_cndmask_b32 v13, v13, v12, vcc")
    A("s_waitcnt lgkmcnt(2)")
    A.vm("buffer_store_dwordx4 v[20:23], v12, %s, %s offen sc1" % (SWS, s(sT0)))
    A("s_waitcnt lgkmcnt(0)")
    A.vm("buffer_store_dwordx4 v[24:27], v13, %s, %s offen sc1" % (SWS, s(sT1)))
    A.bg_flush()

ACC, RINGV, WF = 96, 32, 16
DEPTH = int(os.environ.get("DEPTH", 8))
vF0, vF1, vTR, vRW, vRR = 2, 3, 4, 6, 7

def b_consts(R):
    R("v_bfe_u32 v8, v0, 5, 1")
    R("v_mul_u32_u24 v8, 448, v8")
    R("v_and_b32 v9, 31, v0")
    R("v_add_u32 v8, v8, v9")
    R("s_lshl_b32 %s, %s, 6" % (s(sT4), s(sDT)))
    R("v_add_u32 v8, %s, v8" % s(sT4))
    R("v_lshlrev_b32 v8, 4, v8")
    R("v_bfe_u32 v9, v0, 6, 1")
    R("v_lshl_add_u32 %s, v9, 9, v8" % v(vF0))
    R("v_xor_b32 %s, 512, %s" % (v(vF1), v(vF0)))
    R("v_and_b32 v8, 63, v0")
    R("v_lshlrev_b32 v8, 4, v8")
    R("v_lshrrev_b32 v9, 6, v0")
    R("v_lshl_add_u32 %s, v9, 13, v8" % v(vRR))
    R("v_add_u32 %s, 0x%x, %s" % (v(vRR), SCR, v(vRR)))

def b_stream(A, nks, fbase, wop, w_is_A, pre_step, tail):
    cold = []
    A("s_mul_i32 %s, %s, %d" % (s(sT0), s(sWAVE), nks * 14336))
    A("s_add_u32 %s, %s, 0x%x" % (s(sT0), s(sT0), fbase))
    A("s_mov_b32 %s, %s" % (s(sT1), s(sT0)))
    tok = {}
    def ld(ks, so):
        r = RINGV + 8 * (ks % 8)
        A.vm("buffer_load_dwordx4 %s, %s, %s, %s offen sc1" % (v(r, 4), v(vF0), SWS, so))
        return A.vm("buffer_load_dwordx4 %s, %s, %s, %s offen sc1" % (v(r + 4, 4), v(vF1), SWS, so))
    def issue(ks):
        if ks > 0: A("s_add_u32 %s, %s, 14336" % (s(sT1), s(sT1)))
        tok[ks] = ld(ks, s(sT1))
    poll_loads(A, lambda: ld(0, s(sT0)), range(RINGV, RINGV + 8), 8)
    stamp(A)
    for ks in range(1, min(DEPTH, nks)): issue(ks)
    for ks in range(nks):
        r = RINGV + 8 * (ks % 8)
        pre_step(ks)
        if ks > 0:
            lc, lr = A.newlabel("chk"), A.newlabel("rty")
            A.wvm(tok[ks])
            A.label(lc)
            maxchain(A, range(r, r + 8), 8)
            A("v_cmp_eq_u32 vcc, -1, v8")
            A("s_cbranch_vccnz %s" % lr)
            lb = A.newlabel("bk")
            A.label(lb)
            cold.append((lr, lc, lb, ks))
        for j in range(4):
            wt, ft = j >> 1, j & 1
            acc = v(ACC + 16 * j, 16)
            wreg = wop(ks, wt); freg = v(r + 4 * ft, 4)
            AA, BB = (wreg, freg) if w_is_A else (freg, wreg)
            A("%s %s, %s, %s, %s" % (M32, acc, AA, BB, "0" if ks == 0 else acc))
        if ks + DEPTH < nks: issue(ks + DEPTH)
        if ks + DEPTH == nks: tail()
        A.bg(2)
    def emit_cold():
        for lr, lc, lb, ks in cold:
            A.label(lr)
            A("s_cmp_eq_u32 %s, 0" % s(sBUD))
            A("s_cbranch_scc1 %s" % lb)
            A("s_sub_u32 %s, %s, 1" % (s(sBUD), s(sBUD)))
            A("s_add_u32 %s, %s, %d" % (s(sT2), s(sT0), ks * 14336))
            r = RINGV + 8 * (ks % 8)
            A("buffer_load_dwordx4 %s, %s, %s, %s offen sc1" % (v(r, 4), v(vF0), SWS, s(sT2)))
            A("buffer_load_dwordx4 %s, %s, %s, %s offen sc1" % (v(r + 4, 4), v(vF1), SWS, s(sT2)))
            A("s_waitcnt vmcnt(0)")
            A("s_branch %s" % lc)
    return emit_cold

def b_reduce(A):
    A("v_xor_b32 %s, 8192, %s" % (v(vRW), v(vRR)))
    for k, j in enumerate((1, 3)):
        for g in range(4):
            A.ds("ds_write_b128 %s, %s offset:%d" % (v(vRW), v(ACC + 16 * j + 4 * g, 4), k * 4096 + g * 1024))
    A.bg(4)
    A("s_waitcnt lgkmcnt(0)")
    A("s_barrier")
    T = 32
    tk = []
    for k in (1, 0):
        for g in range(4):
            tk.append(A.ds("ds_read_b128 %s, %s offset:%d" % (v(T + 16 * k + 4 * g, 4), v(vRR), k * 4096 + g * 1024)))
    A.wds(tk[3])
    for k in range(0, 16, 2):
        A("v_pk_add_f32 %s, %s, %s" % (v(ACC + 32 + k, 2), v(ACC + 32 + k, 2), v(T + 16 + k, 2)))
    A("s_waitcnt lgkmcnt(0)")
    for g in range(4):
        A.ds("ds_write_b128 %s, %s offset:%d" % (v(vRR), v(ACC + 32 + 4 * g, 4), g * 1024))
    for k in range(0, 16, 2):
        A("v_pk_add_f32 %s, %s, %s" % (v(ACC + k, 2), v(ACC + k, 2), v(T + k, 2)))
    A("v_xor_b32 %s, 16384, %s" % (v(vRW), v(vRR)))
    A.bg(4)
    A("s_waitcnt lgkmcnt(0)")
    A("s_barrier")
    tk = [A.ds("ds_read_b128 %s, %s offset:%d" % (v(T + 4 * g, 4), v(vRW), g * 1024)) for g in range(4)]
    for g in range(4):
        A.wds(tk[g])
        for k in range(4 * g, 4 * g + 4, 2):
            A("v_pk_add_f32 %s, %s, %s" % (v(ACC + k, 2), v(ACC + k, 2), v(T + k, 2)))

def b1_phase(A, l, hin, uout, tail_extra):
    skip = A.newlabel("b1skip")
    A("s_cmp_eq_u32 %s, 0" % s(sA1))
    A("s_cbranch_scc1 %s" % skip)
    BV = 16
    def tail():
        A("s_lshr_b32 %s, %s, 1" % (s(sT2), s(sWAVE)))
        A("s_lshl_b32 %s, %s, 6" % (s(sT2), s(sT2)))
        A("s_lshl_b32 %s, %s, 7" % (s(sT3), s(sFT)))
        A("s_add_u32 %s, %s, %s" % (s(sT2), s(sT2), s(sT3)))
        A("v_bfe_u32 v9, v0, 5, 1")
        A("v_lshlrev_b32 v9, 3, v9")
        A("v_add_u32 v9, %s, v9" % s(sT2))
        for g in range(4):
            A.btok = A.vm("global_load_dwordx2 %s, v9, %s offset:%d" % (v(BV + 2 * g, 2), s(sB1, 2), 16 * g))
        tail_extra()
    cold = b_stream(A, 32, hin, lambda ks, wt: a(8 * ks + 4 * wt, 4), True, lambda ks: None, tail)
    stamp(A)
    b_reduce(A)
    R = ACC
    c0 = -2.0 * math.sqrt(2.0 / math.pi) * math.log2(math.e)
    A("s_mov_b32 %s, %s" % (s(sT2), fbits(c0 * 0.044715)))
    A("v_mov_b32 v14, %s" % fbits(c0))
    A.wvm(A.btok)
    for k in range(8):
        A("v_lshlrev_b32 %s, 16, %s" % (v(64 + 2 * k), v(BV + k)))
        A("v_and_b32 %s, 0xffff0000, %s" % (v(64 + 2 * k + 1), v(BV + k)))
    for k in range(0, 16, 2):
        A("v_pk_add_f32 %s, %s, %s" % (v(R + k, 2), v(R + k, 2), v(64 + k, 2)))
    for k in range(0, 16, 2):
        A("v_pk_mul_f32 %s, %s, %s" % (v(48 + k, 2), v(R + k, 2), v(R + k, 2)))
    for k in range(16):
        A("v_fma_f32 %s, %s, %s, v14" % (v(48 + k), v(48 + k), s(sT2)))
    for k in range(0, 16, 2):
        A("v_pk_mul_f32 %s, %s, %s" % (v(48 + k, 2), v(48 + k, 2), v(R + k, 2)))
    for k in range(16):
        A("v_exp_f32 %s, %s" % (v(48 + k), v(48 + k)))
        if k % 4 == 3: A.bg()
    for k in range(0, 16, 2):
        A("v_pk_add_f32 %s, %s, 1.0 op_sel_hi:[1,0]" % (v(48 + k, 2), v(48 + k, 2)))
    for k in range(16):
        A("v_rcp_f32 %s, %s" % (v(48 + k), v(48 + k)))
        if k % 4 == 3: A.bg()
    A("s_lshl_b32 %s, %s, 2" % (s(sT2), s(sFT)))
    A("s_and_b32 %s, %s, 2" % (s(sT3), s(sWAVE)))
    A("s_add_u32 %s, %s, %s" % (s(sT2), s(sT2), s(sT3)))
    A("s_mul_i32 %s, %s, 14336" % (s(sT2), s(sT2)))
    A("s_add_u32 %s, %s, 0x%x" % (s(sT2), s(sT2), uout))
    A("s_add_u32 %s, %s, 14336" % (s(sT3), s(sT2)))
    for k in range(0, 16, 2):
        A("v_pk_mul_f32 %s, %s, %s" % (v(R + k, 2), v(R + k, 2), v(48 + k, 2)))
    for j in range(2):
        for k in range(4):
            A("%s %s, %s, %s" % (CV, v(64 + 4 * j + k), v(R + 8 * j + 2 * k), v(R + 8 * j + 2 * k + 1)))
        A.vm("buffer_store_dwordx4 %s, %s, %s, %s offen sc1" % (v(64 + 4 * j, 4), v(vF0), SWS, s(sT2 + j)))
    A.bg_flush()
    return skip, cold

def b2_phase(A, l, uin, xin, tail_extra):
    skip = A.newlabel("b2skip")
    A("s_cmp_eq_u32 %s, 0" % s(sA2))
    A("s_cbranch_scc1 %s" % skip)
    tr_addr(A, vTR, 4, 8)
    NV = 12
    trtok = {}
    def trread(ks):
        b = WF + 8 * (ks % 2)
        for tl in range(2):
            for rd in range(2):
                trtok[ks] = A.ds("ds_read_b64_tr_b16 %s, %s offset:%d" % (v(b + 4 * tl + 2 * rd, 2), v(vTR + tl), (ks - NV) * 2048 + (0, 8)[rd] * 128))
    def pre(ks):
        if NV <= ks + 1 < 28: trread(ks + 1)
        if ks >= NV: A.wds(trtok[ks])
    def wop(ks, wt):
        return v(W2V + 8 * ks + 4 * wt, 4) if ks < NV else v(WF + 8 * (ks % 2) + 4 * wt, 4)
    def tail():
        A("s_lshr_b32 %s, %s, 1" % (s(sT2), s(sWAVE)))
        A("s_lshl_b32 %s, %s, 5" % (s(sT2), s(sT2)))
        A("s_lshl_b32 %s, %s, 6" % (s(sT3), s(sST)))
        A("s_add_u32 %s, %s, %s" % (s(sT2), s(sT2), s(sT3)))
        A("v_and_b32 v9, 31, v0")
        A("v_add_lshl_u32 v9, v9, %s, 1" % s(sT2))
        A.btok = A.vm("global_load_ushort v10, v9, %s" % s(sB2, 2))
        A("v_lshrrev_b32 v11, 6, v0")
        A("v_bfe_u32 v9, v0, 3, 3")
        A("v_lshl_add_u32 v12, v11, 4, v9")
        A("v_add_u32 v11, %s, v12" % s(sT3))
        A("v_mul_u32_u24 v11, 896, v11")
        A("v_and_b32 v9, 7, v0")
        A("v_lshl_add_u32 v11, v9, 4, v11")
        A("s_lshl_b32 %s, %s, 7" % (s(sT3), s(sDT)))
        A("v_add_u32 v11, %s, v11" % s(sT3))
        A("v_add_u32 v13, %d, v11" % (8 * 896))
        tail_extra()
    cold = b_stream(A, 28, uin, wop, False, pre, tail)
    stamp(A)
    A("s_mov_b32 %s, 0x%x" % (s(sT2), xin))
    XV = 64
    def xissue():
        A.vm("buffer_load_dwordx4 %s, v11, %s, %s offen sc1" % (v(XV, 4), SWS, s(sT2)))
        return A.vm("buffer_load_dwordx4 %s, v13, %s, %s offen sc1" % (v(XV + 4, 4), SWS, s(sT2)))
    xt = xissue()
    b_reduce(A)
    R = ACC
    A.wvm(A.btok)
    A("v_lshlrev_b32 v10, 16, v10")
    A("v_bfe_u32 v8, v0, 4, 1")
    A("v_bfe_u32 v9, v0, 7, 1")
    A("v_lshl_add_u32 v8, v9, 1, v8")
    A("v_lshlrev_b32 v8, 13, v8")
    A("v_and_b32 v9, 15, v0")
    A("v_mul_u32_u24 v9, 144, v9")
    A("v_add_u32 v8, v8, v9")
    A("v_bfe_u32 v9, v0, 5, 2")
    A("v_and_b32 v14, 1, v9")
    A("v_lshl_add_u32 v8, v14, 3, v8")
    A("v_lshrrev_b32 v9, 1, v9")
    A("v_lshl_add_u32 v8, v9, 6, v8")
    A("v_add_u32 v8, 0x%x, v8" % (SCR + 4096))
    for k in range(0, 16, 2):
        A("v_pk_add_f32 %s, %s, v[10:11] op_sel_hi:[1,0]" % (v(R + k, 2), v(R + k, 2)))
    for g in range(4):
        for k in range(2):
            A("%s %s, %s, %s" % (CV, v(48 + 2 * g + k), v(R + 4 * g + 2 * k), v(R + 4 * g + 2 * k + 1)))
        A.ds("ds_write_b64 v8, %s offset:%d" % (v(48 + 2 * g, 2), 16 * g))
    A("v_lshrrev_b32 v8, 6, v0")
    A("v_lshlrev_b32 v8, 13, v8")
    A("v_bfe_u32 v9, v0, 3, 3")
    A("v_mul_u32_u24 v9, 144, v9")
    A("v_add_u32 v8, v8, v9")
    A("v_and_b32 v9, 7, v0")
    A("v_lshl_add_u32 v8, v9, 4, v8")
    A("v_add_u32 v8, 0x%x, v8" % (SCR + 4096))
    lo, lt = A.newlabel("xok"), A.newlabel("xrty")
    A.wvm(xt)
    A.label(lt)
    maxchain(A, range(XV, XV + 8), 9)
    A("v_cmp_eq_u32 vcc, -1, v9")
    A("s_cbranch_vccz %s" % lo)
    A("s_cmp_eq_u32 %s, 0" % s(sBUD))
    A("s_cbranch_scc1 %s" % lo)
    A("s_sub_u32 %s, %s, 1" % (s(sBUD), s(sBUD)))
    xissue()
    A("s_waitcnt vmcnt(0)")
    A("s_branch %s" % lt)
    A.label(lo)
    for k in range(8):
        A("v_lshlrev_b32 %s, 16, %s" % (v(R + 2 * k), v(XV + k)))
        A("v_and_b32 %s, 0xffff0000, %s" % (v(R + 2 * k + 1), v(XV + k)))
    A("s_waitcnt lgkmcnt(0)")
    A("s_barrier")
    t0 = A.ds("ds_read_b128 v[48:51], v8")
    t1 = A.ds("ds_read_b128 v[52:55], v8 offset:%d" % (8 * 144))
    A("s_mov_b32 %s, 0x%x" % (s(sT2), X2))
    for j in range(2):
        A.wds((t0, t1)[j])
        for k in range(4 * j, 4 * j + 4):
            A("v_lshlrev_b32 %s, 16, %s" % (v(32 + 2 * k), v(48 + k)))
            A("v_and_b32 %s, 0xffff0000, %s" % (v(32 + 2 * k + 1), v(48 + k)))
        for k in range(4 * j, 4 * j + 4):
            A("v_pk_add_f32 %s, %s, %s" % (v(R + 2 * k, 2), v(R + 2 * k, 2), v(32 + 2 * k, 2)))
        for k in range(4 * j, 4 * j + 4):
            A("%s %s, %s, %s" % (CV, v(56 + k), v(R + 2 * k), v(R + 2 * k + 1)))
        if l == 0: A.vm("buffer_store_dwordx4 %s, %s, %s, %s offen sc1" % (v(56 + 4 * j, 4), v(11 + 2 * j), SWS, s(sT2)))
        else: A.vm("global_store_dwordx4 %s, %s, %s" % (v(11 + 2 * j), v(56 + 4 * j, 4), s(sOUT, 2)))
    A.bg_flush()
    return skip, cold

def srd(A, d, base, nbytes):
    A("s_mov_b32 %s, %s" % (s(d), s(base)))
    A("s_and_b32 %s, %s, 0xffff" % (s(d + 1), s(base + 1)))
    if isinstance(nbytes, int): A("s_mov_b32 %s, 0x%x" % (s(d + 2), nbytes))
    else: A("s_mov_b32 %s, %s" % (s(d + 2), nbytes))
    A("s_mov_b32 %s, 0x20000" % s(d + 3))

def build():
    A = Asm2()
    KN = NAME + "_kernel"
    A.label(KN)
    A("s_cmp_ge_u32 s2, 256")
    A("s_cbranch_scc1 L_exit")
    A("s_load_dwordx2 %s, s[0:1], 0" % s(sX, 2))
    A("s_load_dwordx4 %s, s[0:1], 8" % s(sWR, 4))
    A("s_load_dwordx8 %s, s[0:1], 32" % s(sW1, 8))
    A("s_load_dwordx4 %s, s[0:1], 64" % s(sOUT, 4))
    A("s_load_dwordx2 %s, s[0:1], 80" % s(sWS, 2))
    if PROF:
        for i in range(32): A("s_mov_b32 %s, 0" % s(66 + i))
    stamp(A)
    A("s_and_b32 %s, s2, 7" % s(sT0))
    A("s_lshr_b32 %s, s2, 3" % s(sT1))
    A("s_lshl_b32 %s, %s, 5" % (s(sW), s(sT0)))
    A("s_add_u32 %s, %s, %s" % (s(sW), s(sW), s(sT1)))
    A("v_lshrrev_b32 v1, 6, v0")
    A("v_readfirstlane_b32 %s, v1" % s(sWAVE))
    A("s_and_b32 %s, %s, 1" % (s(sDT), s(sT0)))
    A("s_lshl_b32 %s, %s, 2" % (s(sDT), s(sDT)))
    A("s_and_b32 %s, %s, 3" % (s(sT2), s(sT1)))
    A("s_add_u32 %s, %s, %s" % (s(sDT), s(sDT), s(sT2)))
    A("s_lshr_b32 %s, %s, 1" % (s(sT0), s(sT0)))
    A("s_lshr_b32 %s, %s, 2" % (s(sT1), s(sT1)))
    A("s_mul_i32 %s, %s, 7" % (s(sFT), s(sT0)))
    A("s_add_u32 %s, %s, %s" % (s(sFT), s(sFT), s(sT1)))
    A("s_lshl_b32 %s, %s, 3" % (s(sST), s(sT0)))
    A("s_add_u32 %s, %s, %s" % (s(sST), s(sST), s(sT1)))
    A("s_cmp_lt_u32 %s, 7" % s(sDT))
    A("s_cselect_b32 %s, 0x%x, 0" % (s(sA2), S * F * 2))
    A("s_cmp_lt_u32 %s, 7" % s(sT1))
    A("s_cselect_b32 %s, %s, 0" % (s(sA1), s(sA2)))
    A("s_mov_b32 %s, 200000" % s(sBUD))
    A("s_lshl_b32 %s, %s, 15" % (s(sRING), s(sWAVE)))
    a1_consts(A)
    A("s_and_b32 s56, s2, 63")
    A("s_lshr_b32 s57, s2, 6")
    A("v_and_b32 v146, 63, v0")
    A("v_mul_u32_u24 v147, 7, v146")
    A("v_add_u32 v147, s57, v147")
    A("v_sub_u32 v148, 0x1c0, v147")
    A("v_cmp_lt_u32 vcc, 224, v147")
    A("v_cndmask_b32 v147, v147, v148, vcc")
    A("v_lshlrev_b32 v147, 1, v147")
    A("v_mov_b32 v149, 1")
    A("v_cndmask_b32 v148, v149, -1, vcc")
    A("v_mov_b32 v149, 0x8000")
    A("v_cndmask_b32 v144, 0, v149, vcc")
    A("s_lshl_b32 s58, %s, 9" % s(sWAVE))
    A("s_add_u32 s58, s58, s56")
    A("s_movk_i32 s59, 450")
    A("s_waitcnt lgkmcnt(0)")
    srd(A, 32, sWS, WS_BYTES)
    lz = A.newlabel("nz")
    A("s_cmp_lg_u32 s2, 0")
    A("s_cbranch_scc1 %s" % lz)
    A("v_lshlrev_b32 v4, 7, v0")
    A("v_mov_b32 v5, 0")
    A("s_mov_b32 %s, 0x%x" % (s(sT5), CNT))
    A("buffer_store_dword v5, v4, %s, %s offen sc1" % (SWS, s(sT5)))
    A.label(lz)
    for t in range(7): tx = A.vm("global_load_dword %s, v1, %s offset:%d" % (v(4 + t), s(sX, 2), 128 * t))
    for i in range(8):
        A("v_mul_i32_i24 v149, s58, v148")
        A("v_and_b32 v149, 0x7ff, v149")
        A("v_mad_u32_u24 v149, v149, s59, v147")
        A.vm("global_load_ushort %s, v149, %s" % (v(128 + i), s(sWR, 2)))
        twp = A.vm("global_load_ushort %s, v149, %s" % (v(136 + i), s(sWI, 2)))
        if i < 7: A("s_add_u32 s58, s58, 64")
    A("s_lshl_b32 s56, s56, 2")
    A("s_add_u32 s56, s56, s57")
    A("s_lshl_b32 s56, s56, 2")
    A("s_add_u32 s56, s56, %s" % s(sWAVE))
    A("s_lshl_b32 s56, s56, 11")
    A("s_add_u32 s3, s56, 0x%x" % WT)
    A("v_lshlrev_b32 v145, 5, v146")
    A("s_getpc_b64 s[56:57]")
    A.label("L_pc")
    A("s_mov_b32 s8, s56")
    A("s_and_b32 s9, s57, 0xffff")
    A("s_mov_b32 s10, L_code_end-L_pc")
    A("s_mov_b32 s11, 0x20000")
    A("s_lshr_b32 s58, s2, 3")
    A("s_lshl_b32 s58, s58, 12")
    A("v_lshlrev_b32 v150, 4, v0")
    A.vm("buffer_load_dword v151, v150, s[8:11], s58 offen")
    srd(A, 24, sW1, s(sA1))
    srd(A, 28, sW2, s(sA2))
    for i in range(3):
        A("s_mov_b32 %s, %s" % (s(SB + 2 * i), fbits(C7[i + 1])))
        A("s_mov_b32 %s, %s" % (s(SB + 2 * i + 1), fbits(C7[i + 1])))
        A("s_mov_b32 %s, %s" % (s(SB + 6 + 2 * i), fbits(S7[i + 1])))
        A("s_mov_b32 %s, %s" % (s(SB + 6 + 2 * i + 1), fbits(S7[i + 1])))
    w1_voffs(A, PW1, 152)
    A.bgq = dma_chunk(A, 1, 0, 16, PW1)
    R = Rec(); gen_f64(R, 48); a1_consts2(R); tr_addr(R, PTR1, 8, 152); w2_voffs(R, PW2, 152)
    A.mix(R.l, 5)
    A.bg_flush()
    poison_list(A, [T0], 152)
    A.wvm(tx)
    stamp(A)
    lz = A.newlabel("nz")
    A("s_cmp_lg_u32 s2, 0")
    A("s_cbranch_scc1 %s" % lz)
    A("v_mov_b32 v11, 0")
    A("v_mov_b32 v12, 1")
    A("s_cmp_lg_u32 %s, 0" % s(sWAVE))
    A("s_cbranch_scc1 %s" % lz)
    A("global_store_dword v11, v12, %s sc1" % s(sDBG, 2))
    A.label(lz)
    a1_compute(A, Z0)
    A.wvm(twp)
    for i in range(8):
        A("v_xor_b32 %s, %s, v144" % (v(136 + i), v(136 + i)))
        A("v_lshl_or_b32 %s, %s, 16, %s" % (v(128 + i), v(136 + i), v(128 + i)))
    A.vm("buffer_store_dwordx4 v[128:131], v145, %s, s3 offen sc1" % SWS)
    A.vm("buffer_store_dwordx4 v[132:135], v145, %s, s3 offen offset:16 sc1" % SWS)
    A("v_mov_b32 v11, 0")
    A.vm("global_load_dword v12, v11, %s sc1" % s(sDBG, 2))
    stamp(A)
    A("s_waitcnt vmcnt(0)")
    A("s_barrier")
    lw = A.newlabel("nb")
    A("s_cmp_lg_u32 %s, 0" % s(sWAVE))
    A("s_cbranch_scc1 %s" % lw)
    lt, lo = A.newlabel("rdy"), A.newlabel("rdyok")
    A.label(lt)
    A("v_cmp_ne_u32 vcc, 0, v12")
    A("s_cbranch_vccnz %s" % lo)
    A("s_cmp_eq_u32 %s, 0" % s(sBUD))
    A("s_cbranch_scc1 %s" % lo)
    A("s_sub_u32 %s, %s, 1" % (s(sBUD), s(sBUD)))
    A("global_load_dword v12, v11, %s sc1" % s(sDBG, 2))
    A("s_waitcnt vmcnt(0)")
    A("s_branch %s" % lt)
    A.label(lo)
    A("s_and_b32 %s, s2, 31" % s(sT0))
    A("s_lshl_b32 %s, %s, 7" % (s(sT0), s(sT0)))
    A("s_add_u32 %s, %s, 0x%x" % (s(sT0), s(sT0), CNT))
    A("v_mov_b32 v12, 1")
    A("s_mov_b64 exec, 1")
    A("buffer_atomic_add v12, v11, %s, %s offen sc1" % (SWS, s(sT0)))
    A("s_mov_b64 exec, -1")
    A.label(lw)
    stamp(A)
    poison_list(A, [H0, U0, X2, X1], 152)
    tr_chunk(A, 16, PTR1, (0, 4), lambda r: a(r, 2))
    R = Rec(); a2_consts(R)
    for l_ in R.l: A(l_)
    A("s_waitcnt lgkmcnt(0)")
    lw = A.newlabel("nb")
    A("s_cmp_lg_u32 %s, 0" % s(sWAVE))
    A("s_cbranch_scc1 %s" % lw)
    A("v_and_b32 v56, 31, v0")
    A("v_lshlrev_b32 v56, 7, v56")
    A("s_mov_b32 %s, 0x%x" % (s(sT0), CNT))
    lt, lo = A.newlabel("bar"), A.newlabel("barok")
    A.label(lt)
    A("buffer_load_dword v57, v56, %s, %s offen sc1" % (SWS, s(sT0)))
    A("s_waitcnt vmcnt(0)")
    A("v_cmp_ne_u32 vcc, 8, v57")
    A("s_cbranch_vccz %s" % lo)
    A("s_cmp_eq_u32 %s, 0" % s(sBUD))
    A("s_cbranch_scc1 %s" % lo)
    A("s_sub_u32 %s, %s, 1" % (s(sBUD), s(sBUD)))
    if SLEEP: A("s_sleep %d" % SLEEP)
    A("s_branch %s" % lt)
    A.label(lo)
    A.label(lw)
    A("s_barrier")
    colds = []
    def fin():
        prof_end(A)
        A("s_endpgm")
    for l in range(2):
        zb, tb, hb, ub, xo = ((Z0, T0, H0, U0, X1), (Z1, T1, H1, U1, X3))[l]
        if l == 1:
            R = Rec(); a1_consts(R); gen_f64(R, 48); a1_consts2(R)
            for l_ in R.l: A(l_)
            A("s_barrier")
            A("s_mov_b32 %s, 0x%x" % (s(sT1), X2))
            def xi():
                for t in range(7): A.vm("buffer_load_dword %s, v1, %s, %s offen offset:%d sc1" % (v(4 + t), SWS, s(sT1), 128 * t))
            poll_loads(A, xi, range(4, 11), 11)
            stamp(A)
            a1_compute(A, Z1)
            stamp(A)
            R = Rec(); a2_consts(R)
            for l_ in R.l: A(l_)
            A("s_barrier")
        def a2_after():
            if l == 0: A.bgq = dma_chunk(A, 1, 16, 16, PW1); A.bg(4)
        a2_phase(A, zb, tb, l == 1, a2_after)
        stamp(A)
        if STOP == 2 + 5 * l: fin(); break
        if l == 0:
            A.wvm(A.last_dma)
            tr_chunk(A, 16, PTR1, (0, 4), lambda r: a(128 + r, 2))
        R = Rec(); a3_consts(R)
        for l_ in R.l: A(l_)
        A("s_waitcnt lgkmcnt(0)")
        A("s_barrier")
        def a3_after():
            if l == 0:
                poison_list(A, [Z1], 152)
                A.bgq = dma_chunk(A, 2, 0, 12, PW2)
        a3_phase(A, l, tb, xo, hb, a3_after)
        stamp(A)
        if STOP == 3 + 5 * l: fin(); break
        b_consts(A)
        if l == 0:
            tr_addr(A, vTR, 4, 8)
            w2_voffs(A, 10, 8)
            A.wvm(A.last_dma)
            tr_chunk(A, 12, vTR, (0, 8), lambda r: v(W2V + r, 2))
            A("s_waitcnt lgkmcnt(0)")
        A("s_barrier")
        def b1_tail():
            if l == 0: A.bgq = dma_chunk(A, 2, 12, 16, 10)
        skip, cold = b1_phase(A, l, hb, ub, b1_tail)
        colds.append(cold)
        if l == 0:
            dn = A.newlabel("b1done")
            A("s_branch %s" % dn)
            A.label(skip)
            for op in dma_chunk(A, 2, 12, 16, 10): op()
            stamp(A) if False else None
            A.label(dn)
        else:
            A.label(skip)
        stamp(A)
        if STOP == 4 + 5 * l: fin(); break
        A("s_barrier")
        def b2_tail():
            pass
        skip, cold = b2_phase(A, l, ub, xo, b2_tail)
        colds.append(cold)
        A.label(skip)
        if l == 0:
            poison_list(A, [T1, H1, U1, X3], 32)
        stamp(A)
        if STOP == 5 + 5 * l: fin(); break
    else:
        fin()
    for c in colds: c()
    A.label("L_exit")
    A("s_endpgm")
    A.label("L_code_end")
    lines, n = fix_hazards_fast(A.lines)
    for p in lint_waits(lines): print("LINT", p, file=sys.stderr)
    hdr = open("cdna_kernels/%s.s.ref" % NAME).read().split("; Override launch")[0]
    out = hdr + "; @launch grid=(256,1,1) block=(256,1,1) lds=%d\n" % LDS_TOTAL
    out += '.amdgcn_target "amdgcn-amd-amdhsa--gfx950"\n.text\n.globl %s\n.p2align 8\n.type %s,@function\n' % (KN, KN)
    out += "\n".join(lines) + "\n"
    out += """.section .rodata,"a"
.p2align 6
.amdhsa_kernel %s
  .amdhsa_next_free_vgpr 512
  .amdhsa_next_free_sgpr 102
  .amdhsa_accum_offset 256
  .amdhsa_group_segment_fixed_size 0
  .amdhsa_kernarg_size 88
  .amdhsa_user_sgpr_count 2
  .amdhsa_user_sgpr_kernarg_segment_ptr 1
  .amdhsa_system_sgpr_workgroup_id_x 1
.end_amdhsa_kernel
""" % KN
    print("nops inserted:", n, "lines:", len(lines), "stamps:", nstamp[0], file=sys.stderr)
    return out

if __name__ == "__main__":
    outp = sys.argv[1] if len(sys.argv) > 1 else "p1.s"
    open(outp, "w").write(build())
```

```python
import math, struct, sys, os
from asmlib import *

NAME = "interleave_layers__spectral_gfnet__mixer_token_mlp__prompt"
S, D, F = 2048, 448, 1792
MB2 = 0x200000
Z0, Z1, T0, T1, WT, X1, X2, X3, H0, H1, U0, U1, CNT = [MB2 * i for i in range(13)]
WS_BYTES = 0x2000000
PROFOFF = 0x1C00000
PROF = int(os.environ.get("PROF", 0))
STOP = int(os.environ.get("STOP", 99))
SLEEP = int(os.environ.get("SLEEP", 2))
WUPRE = int(os.environ.get("WUPRE", 4))
XP = int(os.environ.get("XP", 0)); WU2_AT = os.environ.get("WU2_AT", "none"); WU2FL = os.environ.get("WU2FL", " nt"); DMAFL = os.environ.get("DMAFL", "")
NT = os.environ.get("NT", "")
SCHED = os.environ.get("SCHED", "win")
ROT = int(os.environ.get("ROT", 1)); WU1 = int(os.environ.get("WU1", 0))

def fbits(x): return "0x%08x" % struct.unpack("<I", struct.pack("<f", x))[0]
C7 = [math.cos(2 * math.pi * r / 7) for r in range(4)]
S7 = [math.sin(2 * math.pi * r / 7) for r in range(4)]
CV = "v_cvt_pk_bf16_f32"; M16 = "v_mfma_f32_16x16x32_bf16"; M32 = "v_mfma_f32_32x32x16_bf16"

sX, sWS, sWR, sWI, sW1, sB1, sW2, sB2, sOUT, sDBG = 4, 6, 8, 10, 12, 14, 16, 18, 20, 22
SW1, SW2, SWS = "s[24:27]", "s[28:31]", "s[32:35]"
SB = 36
sW, sWAVE, sDT, sFT, sST, sA1, sA2, sBUD = 48, 49, 50, 51, 52, 53, 54, 55
sT0, sT1, sT2, sT3 = 56, 57, 58, 59
sRING, sT4, sT5, sT6 = 60, 61, 62, 63
sC = 98
SCR = 131072
LDS_TOTAL = 163840
LSTR = 272
YSTR = 448 * 4 + 64
HSTR = 896 + 32
A3_Y = 32 * LSTR
A3_H = A3_Y + 8 * YSTR
XL = 0
F64R, F64I = 96, 112
W2V = 160

nstamp = [0]
DIAG = int(os.environ.get("DIAG", -1))
ndiag = [1]
def stamp(A):
    if DIAG >= 0:
        if ndiag[0] == DIAG:
            A("s_memrealtime s[96:97]")
            A("s_waitcnt lgkmcnt(0)")
        ndiag[0] += 1
    if not PROF: return
    i = nstamp[0]; nstamp[0] += 1
    assert i < 32
    A("s_memrealtime s[64:65]")
    A("s_waitcnt lgkmcnt(0)")
    A("s_mov_b32 %s, s64" % s(66 + i))

def prof_end(A):
    if DIAG >= 0:
        stamp(A)
        l1, l2 = A.newlabel("dg"), A.newlabel("dg")
        A("s_cmp_lg_u32 s2, 75")
        A("s_cbranch_scc1 %s" % l2)
        A("s_memrealtime s[92:93]")
        A("s_waitcnt lgkmcnt(0)")
        A("s_sub_u32 s96, s96, s94")
        A("s_min_u32 s96, s96, 20000")
        A.label(l1)
        A("s_memrealtime s[90:91]")
        A("s_waitcnt lgkmcnt(0)")
        A("s_sub_u32 s90, s90, s92")
        A("s_cmp_lt_u32 s90, s96")
        A("s_cbranch_scc1 %s" % l1)
        A.label(l2)
    if not PROF: return
    A("s_waitcnt vmcnt(0)")
    stamp(A)
    n = nstamp[0]
    A("s_lshl_b32 s56, s2, 9")
    A("s_add_u32 s56, s56, 0x%x" % PROFOFF)
    A("v_lshrrev_b32 v1, 6, v0")
    A("v_lshlrev_b32 v1, 7, v1")
    for i in range(n):
        A("v_mov_b32 v2, %s" % s(66 + i))
        A("buffer_store_dword v2, v1, %s, s56 offen offset:%d" % (SWS, 4 * i))

def c7(r):
    r %= 7; r = min(r, 7 - r); return s(SB + 2 * (r - 1), 2)
def s7(r):
    r %= 7
    return (s(SB + 6 + 2 * (r - 1), 2), 1) if r <= 3 else (s(SB + 6 + 2 * (7 - r - 1), 2), -1)

def red32(R, x, t):
    for m in ("quad_perm:[1,0,3,2]", "quad_perm:[2,3,0,1]", "row_half_mirror", "row_mirror"):
        R("v_add_f32_dpp %s, %s, %s %s row_mask:0xf bank_mask:0xf" % (v(x), v(x), v(x), m))
    R("v_mov_b32 %s, %s" % (v(t), v(x)))
    R("v_permlane16_swap_b32 %s, %s" % (v(x), v(t)))
    R("v_add_f32 %s, %s, %s" % (v(x), v(x), v(t)))

def gen_frags(R, nidx, qreg, ksteps, denom, dre, dim, tmp):
    nf, ang, n13 = tmp, tmp + 1, tmp + 2
    R("v_cvt_f32_u32 %s, %s" % (v(nf), v(nidx)))
    R("v_cvt_f32_u32 %s, %s" % (v(ang), v(qreg)))
    R("v_mul_f32 %s, %s, %s" % (v(nf), fbits(1.0 / denom), v(nf)))
    R("v_mul_f32 %s, 4.0, %s" % (v(ang), v(ang)))
    R("v_mul_f32 %s, %s, %s" % (v(n13), fbits(13.0), v(nf)))
    R("v_mul_f32 %s, %s, %s" % (v(ang), v(ang), v(nf)))
    n = 4 * ksteps
    def sc(i): return tmp + 3 + 2 * (i % 2), tmp + 4 + 2 * (i % 2)
    for i in range(n + 1):
        if i < n:
            cs, sn = sc(i)
            R("v_cos_f32 %s, %s" % (v(cs), v(ang)))
            R("v_sin_f32 %s, %s" % (v(sn), v(ang)))
            if i < n - 1: R("v_add_f32 %s, %s, %s" % (v(ang), v(ang), v(nf if i % 4 < 3 else n13)))
        if i > 0:
            cs, sn = sc(i - 1)
            R("%s %s, %s, %s" % (CV, v(dre + i - 1), v(cs), v(sn)))
            R("%s %s, -%s, %s" % (CV, v(dim + i - 1), v(sn), v(cs)))

def gen_f64(R, tmp):
    R("v_lshrrev_b32 %s, 6, v0" % v(tmp + 7))
    R("v_and_b32 %s, 15, v0" % v(tmp + 8))
    R("v_lshl_add_u32 %s, %s, 4, %s" % (v(tmp + 7), v(tmp + 7), v(tmp + 8)))
    R("v_bfe_u32 %s, v0, 4, 2" % v(tmp + 8))
    gen_frags(R, tmp + 7, tmp + 8, 4, 64, F64R, F64I, tmp)

def unpack7(R, src, dst):
    for t in range(7):
        R("v_lshlrev_b32 %s, 16, %s" % (v(dst + 2 * t), v(src + t)))
        R("v_and_b32 %s, 0xffff0000, %s" % (v(dst + 2 * t + 1), v(src + t)))

def stats_streams(z, a1, a2, t1, t2):
    R1 = Rec(); R2 = Rec()
    R1("v_pk_add_f32 %s, %s, %s" % (v(a1, 2), v(z, 2), v(z + 2, 2)))
    for k in range(2, 7): R1("v_pk_add_f32 %s, %s, %s" % (v(a1, 2), v(a1, 2), v(z + 2 * k, 2)))
    R1("v_add_f32 %s, %s, %s" % (v(a1), v(a1), v(a1 + 1)))
    red32(R1, a1, t1)
    R2("v_pk_mul_f32 %s, %s, %s" % (v(a2, 2), v(z, 2), v(z, 2)))
    for k in range(1, 7): R2("v_pk_fma_f32 %s, %s, %s, %s" % (v(a2, 2), v(z + 2 * k, 2), v(z + 2 * k, 2), v(a2, 2)))
    R2("v_add_f32 %s, %s, %s" % (v(a2), v(a2), v(a2 + 1)))
    red32(R2, a2, t2)
    return R1.l, R2.l

def mean_var(A, a1, a2):
    A("v_mul_f32 %s, %s, %s" % (v(a1), fbits(1.0 / D), v(a1)))
    A("v_mul_f32 %s, %s, %s" % (v(a2), fbits(1.0 / D), v(a2)))
    A("v_fma_f32 %s, -%s, %s, %s" % (v(a2), v(a1), v(a1), v(a2)))
    A("v_max_f32 %s, 0, %s" % (v(a2), v(a2)))

def poison(A, region, vtid16, vm1):
    A("s_lshl_b32 %s, s2, 13" % s(sT3))
    A("s_add_u32 %s, %s, 0x%x" % (s(sT3), s(sT3), region))
    A.vm("buffer_store_dwordx4 %s, %s, %s, %s offen sc1" % (v(vm1, 4), v(vtid16), SWS, s(sT3)))
    A("s_add_u32 %s, %s, 4096" % (s(sT3), s(sT3)))
    A.ptok = A.vm("buffer_store_dwordx4 %s, %s, %s, %s offen sc1" % (v(vm1, 4), v(vtid16), SWS, s(sT3)))

def poison_list(A, regions, t):
    A("v_lshlrev_b32 %s, 4, v0" % v(t))
    for k in range(4): A("v_mov_b32 %s, -1" % v(t + 2 + k))
    for r in regions: poison(A, r, t, t + 2)

def maxchain(A, regs, t):
    regs = list(regs)
    A("v_max3_u32 %s, %s, %s, %s" % (v(t), v(regs[0]), v(regs[1]), v(regs[2])))
    regs = regs[3:]
    while len(regs) >= 2:
        A("v_max3_u32 %s, %s, %s, %s" % (v(t), v(t), v(regs[0]), v(regs[1]))); regs = regs[2:]
    if regs: A("v_max_u32 %s, %s, %s" % (v(t), v(t), v(regs[0])))

def poll_loads(A, issue, regs, t):
    lt, lo = A.newlabel("poll"), A.newlabel("pollok")
    A.label(lt)
    issue()
    A("s_waitcnt vmcnt(0)")
    maxchain(A, regs, t)
    A("v_cmp_eq_u32 vcc, -1, %s" % v(t))
    A("s_cbranch_vccz %s" % lo)
    A("s_cmp_eq_u32 %s, 0" % s(sBUD))
    A("s_cbranch_scc1 %s" % lo)
    A("s_sub_u32 %s, %s, 1" % (s(sBUD), s(sBUD)))
    if SLEEP: A("s_sleep %d" % SLEEP)
    A("s_branch %s" % lt)
    A.label(lo)

def dma_lane(R, dst, rowstride, t):
    R("v_bfe_u32 %s, v0, 3, 3" % v(t))
    R("s_mov_b32 %s, %d" % (s(sC), rowstride))
    R("v_mul_lo_u32 %s, %s, %s" % (v(dst), v(t), s(sC)))
    R("v_bfe_u32 %s, v0, 4, 1" % v(t))
    R("v_lshlrev_b32 %s, 2, %s" % (v(t), v(t)))
    R("v_and_b32 %s, 7, v0" % v(t + 1))
    R("v_xor_b32 %s, %s, %s" % (v(t), v(t), v(t + 1)))
    R("v_lshl_add_u32 %s, %s, 4, %s" % (v(dst), v(t), v(dst)))

def w1_voffs(R, dst, t):
    dma_lane(R, dst, 32 * 3584, t)
    R("s_lshl_b32 %s, %s, 7" % (s(sC), s(sFT)))
    R("s_or_b32 %s, %s, %s" % (s(sC), s(sC), s(sA1)))
    R("v_add_u32 %s, %s, %s" % (v(dst), s(sC), v(dst)))
    for i in range(1, 4):
        qd, h = i // 2, i % 2
        R("v_add_u32 %s, 0x%x, %s" % (v(dst + i), (512 * qd + 256 * h) * 3584 - ((qd % 2) * 2 + h) * 1024, v(dst)))

def w2_voffs(R, dst, t):
    dma_lane(R, dst, 4096, t)
    R("s_lshl_b32 %s, %s, 7" % (s(sC), s(sST)))
    R("s_or_b32 %s, %s, %s" % (s(sC), s(sC), s(sA2)))
    R("v_add_u32 %s, %s, %s" % (v(dst), s(sC), v(dst)))
    for i in range(1, 4):
        p, h = i // 2, i % 2
        R("v_add_u32 %s, 0x%x, %s" % (v(dst + i), p * 65536 + h * 32768 - (p * 2 + h) * 1024, v(dst)))

def tr_addr(R, dst, rowsel_hi, t):
    R("v_bfe_u32 %s, v0, 2, 2" % v(t))
    R("v_bfe_u32 %s, v0, 5, 1" % v(t + 1))
    R("v_mul_u32_u24 %s, %d, %s" % (v(t + 1), rowsel_hi, v(t + 1)))
    R("v_add_u32 %s, %s, %s" % (v(t + 1), v(t + 1), v(t)))
    R("v_lshlrev_b32 %s, 7, %s" % (v(dst), v(t + 1)))
    R("v_lshrrev_b32 %s, 4, v0" % v(t))
    R("v_xor_b32 %s, %s, v0" % (v(t), v(t)))
    R("v_bfe_u32 %s, %s, 3, 1" % (v(t), v(t)))
    R("v_lshl_add_u32 %s, %s, 6, %s" % (v(dst), v(t), v(dst)))
    R("v_bfe_u32 %s, v0, 4, 1" % v(t))
    R("v_lshl_add_u32 %s, %s, 5, %s" % (v(dst), v(t), v(dst)))
    R("v_and_b32 %s, 3, v0" % v(t))
    R("v_lshl_add_u32 %s, %s, 3, %s" % (v(dst), v(t), v(dst)))
    R("v_add_u32 %s, %s, %s" % (v(dst), s(sRING), v(dst)))
    R("v_xor_b32 %s, 64, %s" % (v(dst + 1), v(dst)))

def dma_chunk(A, which, ks0, n, voff, slot0=0):
    ops = []
    npair = n // 2
    assert ks0 % 4 == 0 and n % 2 == 0
    for p in range(npair):
        for k in range(4):
            def op(p=p, k=k):
                if k == 0:
                    if ROT:
                        if p == 0:
                            A("s_mov_b32 %s, %s" % (s(sT6), s(sDT)))
                            for _ in range((6 // npair)):
                                A("s_cmp_ge_u32 %s, %d" % (s(sT6), npair))
                                A("s_cselect_b32 %s, %d, 0" % (s(sT4), npair))
                                A("s_sub_u32 %s, %s, %s" % (s(sT6), s(sT6), s(sT4)))
                        else:
                            A("s_add_u32 %s, %s, 1" % (s(sT6), s(sT6)))
                            A("s_cmp_eq_u32 %s, %d" % (s(sT6), npair))
                            A("s_cselect_b32 %s, 0, %s" % (s(sT6), s(sT6)))
                    else:
                        A("s_mov_b32 %s, %d" % (s(sT6), p))
                    A("s_lshl_b32 %s, %s, 12" % (s(sT4), s(sT6)))
                    A("s_add_u32 %s, %s, %s" % (s(sT4), s(sT4), s(sRING)))
                    A("s_add_u32 m0, %s, %d" % (s(sT4), slot0 * 2048))
                    if which == 1:
                        A("s_lshl_b32 %s, %s, 3" % (s(sT5), s(sWAVE)))
                        A("s_lshr_b32 %s, %s, 1" % (s(sT4), s(sT6)))
                        A("s_add_u32 %s, %s, %s" % (s(sT5), s(sT5), s(sT4)))
                        A("s_and_b32 %s, %s, 1" % (s(sT4), s(sT6)))
                        A("s_lshl_b32 %s, %s, 10" % (s(sT4), s(sT4)))
                        A("s_add_u32 %s, %s, %s" % (s(sT5), s(sT5), s(sT4)))
                        A("s_add_u32 %s, %s, %d" % (s(sT5), s(sT5), ks0 // 4))
                        A("s_mul_i32 %s, %s, 3584" % (s(sT5), s(sT5)))
                    else:
                        A("s_mul_i32 %s, %s, 14" % (s(sT5), s(sWAVE)))
                        A("s_add_u32 %s, %s, %s" % (s(sT5), s(sT5), s(sT6)))
                        A("s_add_u32 %s, %s, %d" % (s(sT5), s(sT5), ks0 // 2))
                        A("s_lshl_b32 %s, %s, 17" % (s(sT5), s(sT5)))
                A.last_dma = A.vm("buffer_load_dwordx4 %s, %s, %s offen offset:%d%s lds" % (v(voff + k), SW1 if which == 1 else SW2, s(sT5), k * 1024, DMAFL))
            ops.append(op)
    return ops

def tr_chunk(A, n, addr, rows, dstfn):
    for i in range(n):
        for tl in range(2):
            for rd in range(2):
                A.ds("ds_read_b64_tr_b16 %s, %s offset:%d" % (dstfn(8 * i + 4 * tl + 2 * rd), v(addr + tl), i * 2048 + rows[rd] * 128))

PW1, PTR1, PW2 = 240, 248, 250

def a1_consts(R):
    R("s_lshr_b32 %s, %s, 3" % (s(sT0), s(sW)))
    R("s_and_b32 %s, %s, 7" % (s(sT1), s(sW)))
    R("s_lshl_b32 %s, %s, 3" % (s(sT1), s(sT1)))
    R("v_lshrrev_b32 v1, 5, v0")
    R("v_add_u32 v1, %s, v1" % s(sT1))
    R("v_lshlrev_b32 v1, 5, v1")
    R("v_add_u32 v1, %s, v1" % s(sT0))
    R("v_mul_u32_u24 v1, 896, v1")
    R("v_and_b32 v2, 31, v0")
    R("v_lshl_add_u32 v1, v2, 2, v1")

def a1_consts2(R):
    TC, TS = 20, 26
    R("v_cvt_f32_u32 v14, v2")
    R("v_mul_f32 v14, %s, v14" % fbits(2.0 / 448))
    R("v_add_f32 v15, %s, v14" % fbits(1.0 / 448))
    for k in range(1, 4):
        if k == 1: a0, a1_ = 14, 15
        else:
            a0, a1_ = 16, 17
            R("v_mul_f32 v16, %s, v14" % fbits(float(k)))
            R("v_mul_f32 v17, %s, v15" % fbits(float(k)))
        R("v_cos_f32 %s, %s" % (v(TC + 2 * (k - 1)), v(a0)))
        R("v_cos_f32 %s, %s" % (v(TC + 2 * (k - 1) + 1), v(a1_)))
        R("v_sin_f32 %s, %s" % (v(TS + 2 * (k - 1)), v(a0)))
        R("v_sin_f32 %s, %s" % (v(TS + 2 * (k - 1) + 1), v(a1_)))
    R("v_lshrrev_b32 v3, 5, v0")
    R("v_mul_u32_u24 v3, %d, v3" % LSTR)
    R("v_lshl_add_u32 v3, v2, 3, v3")
    R("v_add_u32 v3, 0x%x, v3" % SCR)
    R("v_bfe_u32 v13, v0, 4, 2")
    R("v_and_b32 v12, 15, v0")
    R("v_mul_u32_u24 v18, %d, v12" % LSTR)
    R("v_lshl_add_u32 v18, v13, 4, v18")
    R("v_add_u32 v18, 0x%x, v18" % SCR)
    R("v_lshrrev_b32 v19, 1, v13")
    R("v_lshl_add_u32 v19, v19, 6, v12")
    R("v_lshrrev_b32 v14, 6, v0")
    R("v_lshl_add_u32 v19, v14, 4, v19")
    R("v_lshlrev_b32 v19, 5, v19")
    R("v_and_b32 v14, 1, v13")
    R("v_lshl_add_u32 v19, v14, 4, v19")

def a1_compute(A, zout):
    XR, TC, TS, Z = 4, 20, 26, 32
    unpack7(A, XR, Z)
    s1, s2 = stats_streams(Z, 46, 60, 4, 5)
    Dq = Rec()
    P, Q = 48, 54
    for t in range(1, 4):
        Dq("v_pk_add_f32 %s, %s, %s" % (v(P + 2 * (t - 1), 2), v(Z + 2 * t, 2), v(Z + 2 * (7 - t), 2)))
        Dq("v_pk_add_f32 %s, %s, %s neg_lo:[0,1] neg_hi:[0,1]" % (v(Q + 2 * (t - 1), 2), v(Z + 2 * t, 2), v(Z + 2 * (7 - t), 2)))
    RE, IM = 64, 70
    for k in range(1, 4):
        Rr, N = 76 + 4 * (k % 2), 78 + 4 * (k % 2)
        for t in range(1, 4):
            Dq("v_pk_fma_f32 %s, %s, %s, %s" % (v(Rr, 2), v(P + 2 * (t - 1), 2), c7(t * k), v(Z, 2) if t == 1 else v(Rr, 2)))
        for t in range(1, 4):
            cs, sg = s7(t * k)
            if t == 1: Dq("v_pk_mul_f32 %s, %s, %s" % (v(N, 2), v(Q, 2), cs))
            else:
                neg = "" if sg == 1 else " neg_lo:[1,0,0] neg_hi:[1,0,0]"
                Dq("v_pk_fma_f32 %s, %s, %s, %s%s" % (v(N, 2), v(Q + 2 * (t - 1), 2), cs, v(N, 2), neg))
        tc, ts = v(TC + 2 * (k - 1), 2), v(TS + 2 * (k - 1), 2)
        re, im = v(RE + 2 * (k - 1), 2), v(IM + 2 * (k - 1), 2)
        Dq("v_pk_mul_f32 %s, %s, %s" % (re, v(N, 2), ts))
        Dq("v_pk_mul_f32 %s, %s, %s" % (im, v(N, 2), tc))
        Dq("v_pk_fma_f32 %s, %s, %s, %s neg_lo:[0,0,1] neg_hi:[0,0,1]" % (re, v(Rr, 2), tc, re))
        Dq("v_pk_fma_f32 %s, %s, %s, %s" % (im, v(Rr, 2), ts, im))
    Dq("v_pk_add_f32 v[6:7], %s, %s" % (v(Z, 2), v(P, 2)))
    Dq("v_pk_add_f32 v[8:9], %s, %s" % (v(P + 2, 2), v(P + 4, 2)))
    Dq("v_pk_add_f32 v[6:7], v[6:7], v[8:9]")
    for l in zipmix(Dq.l, s1, s2): A(l)
    mean_var(A, 46, 60)
    A("v_add_f32 v60, %s, v60" % fbits(1e-5))
    A("v_rsq_f32 v60, v60")
    A("v_mul_f32 v46, %s, v46" % fbits(-7.0))
    A("v_mul_f32 v60, %s, v60" % fbits(1.0 / (448.0 * 2048.0)))
    A("v_pk_add_f32 v[6:7], v[6:7], v[46:47] op_sel_hi:[1,0]")
    for k in range(6):
        A("v_pk_mul_f32 %s, %s, v[60:61] op_sel_hi:[1,0]" % (v(RE + 2 * k, 2), v(RE + 2 * k, 2)))
    A("v_pk_mul_f32 v[6:7], v[6:7], v[60:61] op_sel_hi:[1,0]")
    for k in range(1, 4):
        o = 32 + 2 * k
        A("%s %s, %s, -%s" % (CV, v(o), v(RE + 2 * (k - 1)), v(IM + 2 * (k - 1))))
        A("%s %s, %s, -%s" % (CV, v(o + 1), v(RE + 2 * (k - 1) + 1), v(IM + 2 * (k - 1) + 1)))
        A.ds("ds_write_b64 v3, %s offset:%d" % (v(o, 2), k * 8 * LSTR))
    A("%s v32, v6, 0" % CV)
    A("%s v33, v7, 0" % CV)
    A.ds("ds_write_b64 v3, v[32:33]")
    A("s_lshl_b32 %s, %s, 13" % (s(sT0), s(sW)))
    A("s_add_u32 %s, %s, 0x%x" % (s(sT0), s(sT0), zout))
    A("s_add_u32 %s, %s, 4096" % (s(sT1), s(sT0)))
    A("s_waitcnt lgkmcnt(0)")
    A("s_barrier")
    AF = 64
    tk = []
    for mt in range(2):
        for t in range(4):
            tk.append(A.ds("ds_read_b128 %s, v18 offset:%d" % (v(AF + 16 * mt + 4 * t, 4), mt * 16 * LSTR + 64 * t)))
    DR, DI = 32, 40
    for mt in range(2):
        for t in range(4):
            A.wds(tk[4 * mt + t])
            A("%s %s, %s, %s, %s" % (M16, v(DR + 4 * mt, 4), v(AF + 16 * mt + 4 * t, 4), v(F64R + 4 * t, 4), "0" if t == 0 else v(DR + 4 * mt, 4)))
            A("%s %s, %s, %s, %s" % (M16, v(DI + 4 * mt, 4), v(AF + 16 * mt + 4 * t, 4), v(F64I + 4 * t, 4), "0" if t == 0 else v(DI + 4 * mt, 4)))
    for mt in range(2):
        for r in range(4):
            A("%s %s, %s, %s" % (CV, v(48 + 4 * mt + r), v(DR + 4 * mt + r), v(DI + 4 * mt + r)))
        A.vm("buffer_store_dwordx4 %s, v19, %s, %s offen sc1" % (v(48 + 4 * mt, 4), SWS, s(sT0 + mt)))

F32R, F32I = 128, 144
TW1, TW2, WV = 16, 24, 8
def a2_consts(R):
    R("v_and_b32 v2, 15, v0")
    R("v_bfe_u32 v3, v0, 4, 2")
    R("v_lshrrev_b32 v4, 6, v0")
    R("v_lshrrev_b32 v5, 1, v4")
    R("v_lshl_add_u32 v5, v5, 4, v2")
    R("v_lshlrev_b32 v5, 3, v5")
    R("v_and_b32 v6, 1, v4")
    R("v_lshl_add_u32 v5, v6, 2, v5")
    R("v_lshrrev_b32 v6, 1, v3")
    R("v_add_u32 v5, v5, v6")
    R("v_lshlrev_b32 v5, 13, v5")
    R("v_and_b32 v7, 1, v3")
    R("v_lshl_add_u32 v5, v7, 4, v5")
    R("v_lshl_add_u32 v56, v4, 4, v2")
    R("v_lshl_add_u32 v6, v56, 2, v6")
    R("v_lshlrev_b32 v6, 13, v6")
    R("v_lshl_add_u32 v7, v7, 12, v6")
    R("v_lshlrev_b32 v6, 8, v2")
    R("v_lshl_add_u32 v6, v4, 6, v6")
    R("v_lshl_add_u32 v6, v3, 4, v6")
    R("v_cvt_f32_u32 v57, v56")
    R("v_cvt_f32_u32 v58, v3")
    R("v_mul_f32 v57, %s, v57" % fbits(1.0 / 2048))
    R("v_mul_f32 v58, 4.0, v58")
    R("v_mul_f32 v59, %s, v57" % fbits(13.0))
    R("v_mul_f32 v58, v58, v57")
    for i in range(8):
        R("v_cos_f32 v60, v58"); R("v_sin_f32 v61, v58")
        if i < 7: R("v_add_f32 v58, v58, %s" % v(57 if i != 3 else 59))
        R("v_cvt_pk_f16_f32 %s, v60, -v61" % v(TW1 + i))
    R("v_lshlrev_b32 v56, 4, v4")
    R("v_lshl_add_u32 v56, v3, 2, v56")
    R("v_cvt_f32_u32 v56, v56")
    R("v_add_u32 v63, 16, v2")
    for nt in range(2):
        R("v_cvt_f32_u32 v57, %s" % v(2 if nt == 0 else 63))
        R("v_mul_f32 v57, %s, v57" % fbits(1.0 / 2048))
        R("v_mul_f32 v58, v56, v57")
        for r in range(4):
            R("v_cos_f32 v60, v58"); R("v_sin_f32 v61, v58")
            if r < 3: R("v_add_f32 v58, v58, v57")
            R("v_cvt_pk_f16_f32 %s, v60, v61" % v(TW2 + 4 * nt + r))
    for mt in range(2):
        gen_frags(R, 2 if mt == 0 else 63, 3, 2, 32, F32R + 8 * mt, F32I + 8 * mt, 48)

def cmul_mix(A, ar, ai, tw, t):
    A("v_fma_mix_f32 %s, %s, %s, 0 op_sel:[0,1,0] op_sel_hi:[0,1,0]" % (v(t), v(ai), v(tw)))
    A("v_fma_mix_f32 %s, %s, %s, 0 op_sel:[0,0,0] op_sel_hi:[0,1,0]" % (v(t + 1), v(ai), v(tw)))
    A("v_fma_mix_f32 %s, %s, %s, %s op_sel:[0,1,0] op_sel_hi:[0,1,0]" % (v(ai), v(ar), v(tw), v(t + 1)))
    A("v_fma_mix_f32 %s, %s, %s, -%s op_sel:[0,0,0] op_sel_hi:[0,1,0]" % (v(ar), v(ar), v(tw), v(t)))

def a2_phase(A, zin, tout, poll, after_loads):
    A("s_lshl_b32 %s, %s, 5" % (s(sT0), s(sW)))
    A("s_add_u32 %s, %s, 0x%x" % (s(sT0), s(sT0), zin))
    A("s_add_u32 %s, %s, 16384" % (s(sT1), s(sT0)))
    A("s_lshr_b32 %s, %s, 7" % (s(sT2), s(sW)))
    A("s_lshl_b32 %s, %s, 10" % (s(sT2), s(sT2)))
    A("s_bfe_u32 %s, %s, 0x10006" % (s(sT3), s(sW)))
    A("s_lshl_b32 %s, %s, 3" % (s(sT3), s(sT3)))
    A("s_add_u32 %s, %s, %s" % (s(sT2), s(sT2), s(sT3)))
    A("s_and_b32 %s, %s, 63" % (s(sT3), s(sW)))
    A("s_lshl_b32 %s, %s, 4" % (s(sT3), s(sT3)))
    A("s_add_u32 %s, %s, %s" % (s(sT2), s(sT2), s(sT3)))
    A("s_add_u32 %s, %s, 0x%x" % (s(sT2), s(sT2), WT))
    A("s_add_u32 %s, %s, 16384" % (s(sT3), s(sT2)))
    G = 32
    def issue():
        A.vm("buffer_load_dwordx4 %s, v5, %s, %s offen sc1" % (v(G, 4), SWS, s(sT0)))
        return A.vm("buffer_load_dwordx4 %s, v5, %s, %s offen sc1" % (v(G + 4, 4), SWS, s(sT1)))
    def wload():
        for mt in range(2):
            for h in range(2):
                t_ = A.vm("buffer_load_dwordx2 %s, v7, %s, %s offen offset:%d sc1" % (v(WV + 4 * mt + 2 * h, 2), SWS, s(sT2 + mt), 2048 * h))
        return t_
    A("v_lshlrev_b32 v62, 4, v0")
    A("v_lshl_add_u32 v62, v4, 10, v62")
    A("v_add_u32 v62, 0x%x, v62" % SCR)
    A("v_and_b32 v63, 63, v0")
    A("v_lshlrev_b32 v63, 4, v63")
    A("v_add_u32 v63, 0x%x, v63" % SCR)
    if poll:
        poll_loads(A, issue, range(G, G + 8), 56)
        tw = wload()
    else:
        tz = issue(); tw = wload(); A.wvm(tz)
    stamp(A)
    A.ds("ds_write_b128 v62, %s" % v(G, 4))
    A.ds("ds_write_b128 v62, %s offset:1024" % v(G + 4, 4))
    after_loads()
    A("s_waitcnt lgkmcnt(0)")
    A("s_barrier")
    DA = 64
    tk = [A.ds("ds_read_b128 %s, v63 offset:%d" % (v(DA + 4 * f, 4), 1024 * f)) for f in range(8)]
    GR, GI = 32, 40
    for mt in range(2):
        for t in range(4):
            A.wds(tk[4 * mt + t])
            A("%s %s, %s, %s, %s" % (M16, v(GR + 4 * mt, 4), v(DA + 16 * mt + 4 * t, 4), v(F64R + 4 * t, 4), "0" if t == 0 else v(GR + 4 * mt, 4)))
            A("%s %s, %s, %s, %s" % (M16, v(GI + 4 * mt, 4), v(DA + 16 * mt + 4 * t, 4), v(F64I + 4 * t, 4), "0" if t == 0 else v(GI + 4 * mt, 4)))
            A.bg()
    P1 = 48
    for i in range(8):
        cmul_mix(A, GR + i, GI + i, TW1 + i, 56 + 2 * (i % 2))
        A("%s %s, %s, %s" % (CV, v(P1 + i), v(GR + i), v(GI + i)))
        A.bg()
    XR, XI = 64, 72
    for mt in range(2):
        for ks in range(2):
            A("%s %s, %s, %s, %s" % (M16, v(XR + 4 * mt, 4), v(F32R + 8 * mt + 4 * ks, 4), v(P1 + 4 * ks, 4), "0" if ks == 0 else v(XR + 4 * mt, 4)))
            A("%s %s, %s, %s, %s" % (M16, v(XI + 4 * mt, 4), v(F32I + 8 * mt + 4 * ks, 4), v(P1 + 4 * ks, 4), "0" if ks == 0 else v(XI + 4 * mt, 4)))
    A.wvm(tw)
    WR_, WI_ = 80, 88
    for i in range(8):
        A("v_lshlrev_b32 %s, 16, %s" % (v(WR_ + i), v(WV + i)))
        A("v_and_b32 %s, 0xffff0000, %s" % (v(WI_ + i), v(WV + i)))
    P2 = 48
    for i in range(0, 8, 2):
        xr, xi, wr, wi = v(XR + i, 2), v(XI + i, 2), v(WR_ + i, 2), v(WI_ + i, 2)
        A("v_pk_mul_f32 v[32:33], %s, %s" % (xi, wi))
        A("v_pk_mul_f32 v[34:35], %s, %s" % (xi, wr))
        A("v_pk_fma_f32 v[32:33], %s, %s, v[32:33] neg_lo:[0,0,1] neg_hi:[0,0,1]" % (xr, wr))
        A("v_pk_fma_f32 v[34:35], %s, %s, v[34:35]" % (xr, wi))
        A("%s %s, v34, v32" % (CV, v(P2 + i)))
        A("%s %s, v35, v33" % (CV, v(P2 + i + 1)))
        A.bg()
    HR, HI = 32, 40
    for nt in range(2):
        for ks in range(2):
            A("%s %s, %s, %s, %s" % (M16, v(HI + 4 * nt, 4), v(P2 + 4 * ks, 4), v(F32R + 8 * nt + 4 * ks, 4), "0" if ks == 0 else v(HI + 4 * nt, 4)))
            A("%s %s, %s, %s, %s" % (M16, v(HR + 4 * nt, 4), v(P2 + 4 * ks, 4), v(F32I + 8 * nt + 4 * ks, 4), "0" if ks == 0 else v(HR + 4 * nt, 4)))
    A.bg(2)
    P3 = 48
    A("v_lshlrev_b32 v62, 4, v0")
    A("v_add_u32 v62, 0x%x, v62" % (SCR + 8192))
    for i in range(8):
        cmul_mix(A, HR + i, HI + i, TW2 + i, 64 + 2 * (i % 2))
        A("%s %s, %s, %s" % (CV, v(P3 + i), v(HI + i), v(HR + i)))
        if i == 3: A.ds("ds_write_b128 v62, %s" % v(P3, 4))
        A.bg()
    A.ds("ds_write_b128 v62, %s offset:4096" % v(P3 + 4, 4))
    A("s_lshl_b32 %s, %s, 13" % (s(sT0), s(sW)))
    A("s_add_u32 %s, %s, 0x%x" % (s(sT0), s(sT0), tout))
    A("s_add_u32 %s, %s, 4096" % (s(sT1), s(sT0)))
    A("s_waitcnt lgkmcnt(0)")
    A("s_barrier")
    tk = [A.ds("ds_read_b128 %s, v63 offset:%d" % (v(DA + 4 * f, 4), 8192 + 1024 * f)) for f in range(8)]
    TR, TI = 32, 40
    for nt in range(2):
        for t in range(4):
            A.wds(tk[4 * nt + t])
            A("%s %s, %s, %s, %s" % (M16, v(TI + 4 * nt, 4), v(F64R + 4 * t, 4), v(DA + 16 * nt + 4 * t, 4), "0" if t == 0 else v(TI + 4 * nt, 4)))
            A("%s %s, %s, %s, %s" % (M16, v(TR + 4 * nt, 4), v(F64I + 4 * t, 4), v(DA + 16 * nt + 4 * t, 4), "0" if t == 0 else v(TR + 4 * nt, 4)))
    for nt in range(2):
        for r in range(4):
            A("%s %s, %s, %s" % (CV, v(48 + 4 * nt + r), v(TI + 4 * nt + r), v(TR + 4 * nt + r)))
        A.vm("buffer_store_dwordx4 %s, v6, %s, %s offen sc1" % (v(48 + 4 * nt, 4), SWS, s(sT0 + nt)))
    A.bg_flush()

def a3_consts(R):
    a1_consts(R)
    R("v_lshlrev_b32 v3, 13, v0")
    R("v_lshrrev_b32 v11, 6, v0")
    R("v_and_b32 v12, 15, v0")
    R("v_mul_u32_u24 v15, %d, v12" % LSTR)
    R("v_lshl_add_u32 v12, v11, 4, v12")
    R("v_bfe_u32 v13, v0, 4, 2")
    R("v_lshl_add_u32 v15, v13, 4, v15")
    R("v_add_u32 v15, 0x%x, v15" % SCR)
    R("v_lshrrev_b32 v14, 1, v11")
    R("v_lshlrev_b32 v14, 4, v14")
    R("v_and_b32 v30, 1, v11")
    R("v_lshl_add_u32 v14, v30, 1, v14")
    R("v_mul_u32_u24 v14, %d, v14" % LSTR)
    R("v_and_b32 v30, 63, v0")
    R("v_lshl_add_u32 v14, v30, 2, v14")
    R("v_add_u32 v14, 0x%x, v14" % SCR)
    TW = 24
    R("v_cvt_f32_u32 v30, v12")
    for k in range(1, 4):
        R("v_mul_f32 v31, %s, v30" % fbits(k / 448.0))
        R("v_cos_f32 %s, v31" % v(TW + 2 * (k - 1)))
        R("v_sin_f32 %s, v31" % v(TW + 2 * (k - 1) + 1))
    for k in range(6): R("v_add_f32 %s, %s, %s" % (v(TW + k), v(TW + k), v(TW + k)))
    R("v_mul_u32_u24 v62, %d, v13" % (2 * YSTR))
    R("v_lshl_add_u32 v62, v12, 2, v62")
    R("v_add_u32 v62, 0x%x, v62" % (SCR + A3_Y))
    R("v_lshrrev_b32 v31, 5, v0")
    R("v_mul_u32_u24 v30, %d, v31" % HSTR)
    R("v_lshl_add_u32 v30, v2, 2, v30")
    R("v_add_u32 v30, 0x%x, v30" % (SCR + A3_H))
    R("v_mul_u32_u24 v63, %d, v31" % YSTR)
    R("v_lshl_add_u32 v63, v2, 3, v63")
    R("v_add_u32 v63, 0x%x, v63" % (SCR + A3_Y))
    R("v_bfe_u32 v31, v0, 2, 2")
    R("v_mul_u32_u24 v31, %d, v31" % HSTR)
    R("v_and_b32 v12, 3, v0")
    R("v_lshl_add_u32 v31, v12, 3, v31")
    R("v_lshl_add_u32 v31, v13, 5, v31")
    R("v_lshl_add_u32 v31, v11, 7, v31")
    R("v_add_u32 v31, 0x%x, v31" % (SCR + A3_H))
    R("v_lshlrev_b32 v12, 4, v0")

def a3_phase(A, l, tin, xout, hout, after_loads):
    XR, TV, TW = 4, 16, 24
    if l == 0:
        for t in range(7): A.vm("global_load_dword %s, v1, %s offset:%d" % (v(XR + t), s(sX, 2), 128 * t))
    else:
        A("s_mov_b32 %s, 0x%x" % (s(sT1), X2))
        for t in range(7): A.vm("buffer_load_dword %s, v1, %s, %s offen offset:%d sc1" % (v(XR + t), SWS, s(sT1), 128 * t))
    A("s_lshl_b32 %s, %s, 5" % (s(sT0), s(sW)))
    A("s_add_u32 %s, %s, 0x%x" % (s(sT0), s(sT0), tin))
    def issue():
        A.vm("buffer_load_dwordx4 %s, v3, %s, %s offen sc1" % (v(TV, 4), SWS, s(sT0)))
        A.vm("buffer_load_dwordx4 %s, v3, %s, %s offen offset:16 sc1" % (v(TV + 4, 4), SWS, s(sT0)))
    poll_loads(A, issue, range(TV, TV + 8), 32)
    stamp(A)
    for row in range(8):
        A.ds("ds_write_b32 v14, %s offset:%d" % (v(TV + row), (4 * (row // 2) + (row & 1)) * LSTR))
    after_loads()
    A("s_waitcnt lgkmcnt(0)")
    A("s_barrier")
    AF = 64
    tk = []
    for mt in range(2):
        for t in range(4):
            tk.append(A.ds("ds_read_b128 %s, v15 offset:%d" % (v(AF + 16 * mt + 4 * t, 4), mt * 16 * LSTR + 64 * t)))
    DR, DI = 32, 40
    for mt in range(2):
        for t in range(4):
            A.wds(tk[4 * mt + t])
            A("%s %s, %s, %s, %s" % (M16, v(DI + 4 * mt, 4), v(AF + 16 * mt + 4 * t, 4), v(F64R + 4 * t, 4), "0" if t == 0 else v(DI + 4 * mt, 4)))
            A("%s %s, %s, %s, %s" % (M16, v(DR + 4 * mt, 4), v(AF + 16 * mt + 4 * t, 4), v(F64I + 4 * t, 4), "0" if t == 0 else v(DR + 4 * mt, 4)))
            A.bg()
    Z = 80
    unpack7(A, XR, Z)
    UR, UI, U0 = 48, 54, DR
    for k in range(1, 4):
        tw = v(TW + 2 * (k - 1), 2)
        vr, vi = v(DR + 2 * k, 2), v(DI + 2 * k, 2)
        ur, ui = v(UR + 2 * (k - 1), 2), v(UI + 2 * (k - 1), 2)
        A("v_pk_mul_f32 %s, %s, %s op_sel:[0,1] op_sel_hi:[1,1]" % (ur, vi, tw))
        A("v_pk_mul_f32 %s, %s, %s op_sel:[0,0] op_sel_hi:[1,0]" % (ui, vi, tw))
        A("v_pk_fma_f32 %s, %s, %s, %s op_sel:[0,0,0] op_sel_hi:[1,0,1] neg_lo:[0,0,1] neg_hi:[0,0,1]" % (ur, vr, tw, ur))
        A("v_pk_fma_f32 %s, %s, %s, %s op_sel:[0,1,0] op_sel_hi:[1,1,1]" % (ui, vr, tw, ui))
        A.bg()
    def ywrite(pair, t):
        A.ds("ds_write_b32 v62, %s offset:%d" % (v(pair), 256 * t))
        A.ds("ds_write_b32 v62, %s offset:%d" % (v(pair + 1), YSTR + 256 * t))
    A("v_pk_add_f32 v[64:65], %s, %s" % (v(U0, 2), v(UR, 2)))
    A("v_pk_add_f32 v[66:67], %s, %s" % (v(UR + 2, 2), v(UR + 4, 2)))
    A("v_pk_add_f32 v[64:65], v[64:65], v[66:67]")
    ywrite(64, 0)
    for t in range(1, 4):
        aa, bb, y1, y2 = 36, 38, 40 + 4 * (t % 2), 42 + 4 * (t % 2)
        for k in range(1, 4):
            A("v_pk_fma_f32 %s, %s, %s, %s" % (v(aa, 2), v(UR + 2 * (k - 1), 2), c7(t * k), v(U0, 2) if k == 1 else v(aa, 2)))
        for k in range(1, 4):
            cs, sg = s7(t * k)
            if k == 1: A("v_pk_mul_f32 %s, %s, %s" % (v(bb, 2), v(UI, 2), cs))
            else:
                neg = "" if sg == 1 else " neg_lo:[1,0,0] neg_hi:[1,0,0]"
                A("v_pk_fma_f32 %s, %s, %s, %s%s" % (v(bb, 2), v(UI + 2 * (k - 1), 2), cs, v(bb, 2), neg))
        A("v_pk_add_f32 %s, %s, %s neg_lo:[0,1] neg_hi:[0,1]" % (v(y1, 2), v(aa, 2), v(bb, 2)))
        A("v_pk_add_f32 %s, %s, %s" % (v(y2, 2), v(aa, 2), v(bb, 2)))
        ywrite(y1, t); ywrite(y2, 7 - t)
        A.bg(2)
    A("s_waitcnt lgkmcnt(0)")
    A("s_barrier")
    Y = 64
    tk = [A.ds("ds_read_b64 %s, v63 offset:%d" % (v(Y + 2 * t, 2), 256 * t)) for t in range(7)]
    A.bg(3)
    for t in range(7):
        A.wds(tk[t])
        A("%s %s, %s, %s" % (CV, v(XR + t), v(Y + 2 * t), v(Y + 2 * t + 1)))
    unpack7(A, XR, Y)
    for t in range(7):
        A("v_pk_add_f32 %s, %s, %s" % (v(Z + 2 * t, 2), v(Z + 2 * t, 2), v(Y + 2 * t, 2)))
    for t in range(7):
        A("%s %s, %s, %s" % (CV, v(XR + t), v(Z + 2 * t), v(Z + 2 * t + 1)))
    unpack7(A, XR, Z)
    s1, s2 = stats_streams(Z, 46, 48, 50, 51)
    St = ["ds_write_b32 v30, %s offset:%d" % (v(XR + t), 128 * t + XL - A3_H + 65536 if False else 0) for t in range(0)]
    A("v_subrev_u32 v52, %d, v30" % (A3_H - XL))
    St = ["ds_write_b32 v52, %s offset:%d" % (v(XR + t), 128 * t) for t in range(7)]
    for ln in zipmix(s1, s2, St):
        if ln.startswith("ds_"): A.ds(ln)
        else: A(ln)
    mean_var(A, 46, 48)
    A("v_add_f32 v49, %s, v48" % fbits(1e-5))
    A("v_rsq_f32 v49, v49")
    A("v_mov_b32 v50, %s" % fbits(1e-5))
    A("v_mul_f32 v48, v48, v49")
    A("v_fma_f32 v48, v48, v49, v50")
    A("v_rsq_f32 v48, v48")
    A("s_mul_i32 %s, %s, 7168" % (s(sT0), s(sW)))
    A("s_add_u32 %s, %s, 0x%x" % (s(sT0), s(sT0), hout))
    A("v_mul_f32 v48, v48, v49")
    A("v_mul_f32 v46, -v46, v48" if False else "v_mul_f32 v46, v46, v48")
    for t in range(7):
        A("v_pk_fma_f32 %s, %s, v[48:49], v[46:47] op_sel_hi:[1,0,0] neg_lo:[0,0,1] neg_hi:[0,0,1]" % (v(Z + 2 * t, 2), v(Z + 2 * t, 2)))
    for t in range(7):
        A("%s %s, %s, %s" % (CV, v(64 + t), v(Z + 2 * t), v(Z + 2 * t + 1)))
        A.ds("ds_write_b32 v30, %s offset:%d" % (v(64 + t), 128 * t))
    A("s_add_u32 %s, %s, 4096" % (s(sT1), s(sT0)))
    A("s_waitcnt lgkmcnt(0)")
    A("s_barrier")
    A.ds("ds_read_b64_tr_b16 v[20:21], v31")
    A.ds("ds_read_b64_tr_b16 v[22:23], v31 offset:%d" % (4 * HSTR))
    A.ds("ds_read_b64_tr_b16 v[24:25], v31 offset:512")
    A.ds("ds_read_b64_tr_b16 v[26:27], v31 offset:%d" % (4 * HSTR + 512))
    A("v_cmp_gt_u32 vcc, 192, v0")
    A("v_mov_b32 v13, 0x80000000")
    A("v_cndmask_b32 v13, v13, v12, vcc")
    A("v_and_b32 v14, 63, v0")
    A("v_lshlrev_b32 v15, 4, v14")
    A("s_mul_i32 %s, %s, %d" % (s(sT2), s(sWAVE), 2 * HSTR))
    A("s_add_u32 %s, %s, 0x%x" % (s(sT2), s(sT2), SCR + XL))
    A("v_add_u32 v16, %s, v15" % s(sT2))
    A.ds("ds_read_b128 v[32:35], v16")
    A.ds("ds_read_b128 v[36:39], v16 offset:%d" % HSTR)
    A("v_readfirstlane_b32 %s, v1" % s(sT2))
    A("v_mov_b32 v17, 0x80000000")
    A("s_waitcnt lgkmcnt(4)")
    A.vm("buffer_store_dwordx4 v[20:23], v12, %s, %s offen sc1" % (SWS, s(sT0)))
    A("v_cmp_gt_u32 vcc, 56, v14")
    A("s_add_u32 %s, %s, 0x%x" % (s(sT2), s(sT2), xout))
    A("s_add_u32 %s, %s, %d" % (s(sT3), s(sT2), 32 * 896))
    A("v_cndmask_b32 v15, v17, v15, vcc")
    A("s_waitcnt lgkmcnt(2)")
    A.vm("buffer_store_dwordx4 v[24:27], v13, %s, %s offen sc1" % (SWS, s(sT1)))
    A("s_waitcnt lgkmcnt(0)")
    A.vm("buffer_store_dwordx4 v[32:35], v15, %s, %s offen sc1" % (SWS, s(sT2)))
    A.vm("buffer_store_dwordx4 v[36:39], v15, %s, %s offen sc1" % (SWS, s(sT3)))
    A.bg_flush()

ACC, RINGV, WF = 96, 32, 16
DEPTH = int(os.environ.get("DEPTH", 8))
vF0, vF1, vTR, vRW, vRR = 2, 3, 4, 6, 7

def b_consts(R):
    R("v_bfe_u32 v8, v0, 5, 1")
    R("v_mul_u32_u24 v8, 448, v8")
    R("v_and_b32 v9, 31, v0")
    R("v_add_u32 v8, v8, v9")
    R("s_lshl_b32 %s, %s, 6" % (s(sC), s(sDT)))
    R("v_add_u32 v8, %s, v8" % s(sC))
    R("v_lshlrev_b32 v8, 4, v8")
    R("v_bfe_u32 v9, v0, 6, 1")
    R("v_lshl_add_u32 %s, v9, 9, v8" % v(vF0))
    R("v_xor_b32 %s, 512, %s" % (v(vF1), v(vF0)))
    R("v_and_b32 v8, 63, v0")
    R("v_lshlrev_b32 v8, 4, v8")
    R("v_lshrrev_b32 v9, 6, v0")
    R("v_lshl_add_u32 %s, v9, 13, v8" % v(vRR))
    R("v_add_u32 %s, 0x%x, %s" % (v(vRR), SCR, v(vRR)))

def b_stream(A, nks, fbase, wop, w_is_A, pre_step, tail, first=lambda: None):
    cold = []
    A("s_mul_i32 %s, %s, %d" % (s(sT0), s(sWAVE), nks * 14336))
    A("s_add_u32 %s, %s, 0x%x" % (s(sT0), s(sT0), fbase))
    A("s_mov_b32 %s, %s" % (s(sT1), s(sT0)))
    tok = {}
    def ld(ks, so):
        r = RINGV + 8 * (ks % 8)
        A.vm("buffer_load_dwordx4 %s, %s, %s, %s offen sc1" % (v(r, 4), v(vF0), SWS, so))
        return A.vm("buffer_load_dwordx4 %s, %s, %s, %s offen sc1" % (v(r + 4, 4), v(vF1), SWS, so))
    def issue(ks):
        if ks > 0: A("s_add_u32 %s, %s, 14336" % (s(sT1), s(sT1)))
        tok[ks] = ld(ks, s(sT1))
    poll_loads(A, lambda: ld(0, s(sT0)), range(RINGV, RINGV + 8), 8)
    stamp(A)
    for ks in range(1, min(DEPTH, nks)): issue(ks)
    first()
    for ks in range(nks):
        r = RINGV + 8 * (ks % 8)
        pre_step(ks)
        if ks > 0:
            lc, lr = A.newlabel("chk"), A.newlabel("rty")
            A.wvm(tok[ks])
            A.label(lc)
            maxchain(A, range(r, r + 8), 8)
            A("v_cmp_eq_u32 vcc, -1, v8")
            A("s_cbranch_vccnz %s" % lr)
            lb = A.newlabel("bk")
            A.label(lb)
            cold.append((lr, lc, lb, ks))
        for j in range(4):
            wt, ft = j >> 1, j & 1
            acc = v(ACC + 16 * j, 16)
            wreg = wop(ks, wt); freg = v(r + 4 * ft, 4)
            AA, BB = (wreg, freg) if w_is_A else (freg, wreg)
            A("%s %s, %s, %s, %s" % (M32, acc, AA, BB, "0" if ks == 0 else acc))
        if ks + DEPTH < nks: issue(ks + DEPTH)
        if ks + DEPTH == nks: tail()
        A.bg(2 if ks + DEPTH >= nks else 1)
    def emit_cold():
        for lr, lc, lb, ks in cold:
            A.label(lr)
            A("s_cmp_eq_u32 %s, 0" % s(sBUD))
            A("s_cbranch_scc1 %s" % lb)
            A("s_sub_u32 %s, %s, 1" % (s(sBUD), s(sBUD)))
            A("s_add_u32 %s, %s, %d" % (s(sT2), s(sT0), ks * 14336))
            r = RINGV + 8 * (ks % 8)
            A("buffer_load_dwordx4 %s, %s, %s, %s offen sc1" % (v(r, 4), v(vF0), SWS, s(sT2)))
            A("buffer_load_dwordx4 %s, %s, %s, %s offen sc1" % (v(r + 4, 4), v(vF1), SWS, s(sT2)))
            A("s_waitcnt vmcnt(0)")
            A("s_branch %s" % lc)
    return emit_cold

def b_reduce(A):
    A("v_xor_b32 %s, 8192, %s" % (v(vRW), v(vRR)))
    for k, j in enumerate((1, 3)):
        for g in range(4):
            A.ds("ds_write_b128 %s, %s offset:%d" % (v(vRW), v(ACC + 16 * j + 4 * g, 4), k * 4096 + g * 1024))
    A.bg(4)
    A("s_waitcnt lgkmcnt(0)")
    A("s_barrier")
    T = 32
    tk = []
    for k in (1, 0):
        for g in range(4):
            tk.append(A.ds("ds_read_b128 %s, %s offset:%d" % (v(T + 16 * k + 4 * g, 4), v(vRR), k * 4096 + g * 1024)))
    A.wds(tk[3])
    for k in range(0, 16, 2):
        A("v_pk_add_f32 %s, %s, %s" % (v(ACC + 32 + k, 2), v(ACC + 32 + k, 2), v(T + 16 + k, 2)))
    A("s_waitcnt lgkmcnt(0)")
    for g in range(4):
        A.ds("ds_write_b128 %s, %s offset:%d" % (v(vRR), v(ACC + 32 + 4 * g, 4), g * 1024))
    for k in range(0, 16, 2):
        A("v_pk_add_f32 %s, %s, %s" % (v(ACC + k, 2), v(ACC + k, 2), v(T + k, 2)))
    A("v_xor_b32 %s, 16384, %s" % (v(vRW), v(vRR)))
    A.bg(4)
    A("s_waitcnt lgkmcnt(0)")
    A("s_barrier")
    tk = [A.ds("ds_read_b128 %s, %s offset:%d" % (v(T + 4 * g, 4), v(vRW), g * 1024)) for g in range(4)]
    for g in range(4):
        A.wds(tk[g])
        for k in range(4 * g, 4 * g + 4, 2):
            A("v_pk_add_f32 %s, %s, %s" % (v(ACC + k, 2), v(ACC + k, 2), v(T + k, 2)))

def b1_phase(A, l, hin, uout, tail_extra, first):
    skip = A.newlabel("b1skip")
    A("s_cmp_lg_u32 %s, 0" % s(sA1))
    A("s_cbranch_scc1 %s" % skip)
    BV = 16
    def tail():
        A("s_lshr_b32 %s, %s, 1" % (s(sT2), s(sWAVE)))
        A("s_lshl_b32 %s, %s, 6" % (s(sT2), s(sT2)))
        A("s_lshl_b32 %s, %s, 7" % (s(sT3), s(sFT)))
        A("s_add_u32 %s, %s, %s" % (s(sT2), s(sT2), s(sT3)))
        A("v_bfe_u32 v9, v0, 5, 1")
        A("v_lshlrev_b32 v9, 3, v9")
        A("v_add_u32 v9, %s, v9" % s(sT2))
        for g in range(4):
            A.btok = A.vm("global_load_dwordx2 %s, v9, %s offset:%d" % (v(BV + 2 * g, 2), s(sB1, 2), 16 * g))
        tail_extra()
    cold = b_stream(A, 32, hin, lambda ks, wt: a(8 * ks + 4 * wt, 4), True, lambda ks: None, tail, first)
    stamp(A)
    b_reduce(A)
    R = ACC
    c0 = -2.0 * math.sqrt(2.0 / math.pi) * math.log2(math.e)
    A("s_mov_b32 %s, %s" % (s(sT2), fbits(c0 * 0.044715)))
    A("v_mov_b32 v14, %s" % fbits(c0))
    A.wvm(A.btok)
    for k in range(8):
        A("v_lshlrev_b32 %s, 16, %s" % (v(64 + 2 * k), v(BV + k)))
        A("v_and_b32 %s, 0xffff0000, %s" % (v(64 + 2 * k + 1), v(BV + k)))
    for k in range(0, 16, 2):
        A("v_pk_add_f32 %s, %s, %s" % (v(R + k, 2), v(R + k, 2), v(64 + k, 2)))
    for k in range(0, 16, 2):
        A("v_pk_mul_f32 %s, %s, %s" % (v(48 + k, 2), v(R + k, 2), v(R + k, 2)))
    for k in range(16):
        A("v_fma_f32 %s, %s, %s, v14" % (v(48 + k), v(48 + k), s(sT2)))
    for k in range(0, 16, 2):
        A("v_pk_mul_f32 %s, %s, %s" % (v(48 + k, 2), v(48 + k, 2), v(R + k, 2)))
    for k in range(16):
        A("v_exp_f32 %s, %s" % (v(48 + k), v(48 + k)))
        if k % 4 == 3: A.bg()
    for k in range(0, 16, 2):
        A("v_pk_add_f32 %s, %s, 1.0 op_sel_hi:[1,0]" % (v(48 + k, 2), v(48 + k, 2)))
    for k in range(16):
        A("v_rcp_f32 %s, %s" % (v(48 + k), v(48 + k)))
        if k % 4 == 3: A.bg()
    A("s_lshl_b32 %s, %s, 2" % (s(sT2), s(sFT)))
    A("s_and_b32 %s, %s, 2" % (s(sT3), s(sWAVE)))
    A("s_add_u32 %s, %s, %s" % (s(sT2), s(sT2), s(sT3)))
    A("s_mul_i32 %s, %s, 14336" % (s(sT2), s(sT2)))
    A("s_add_u32 %s, %s, 0x%x" % (s(sT2), s(sT2), uout))
    A("s_add_u32 %s, %s, 14336" % (s(sT3), s(sT2)))
    for k in range(0, 16, 2):
        A("v_pk_mul_f32 %s, %s, %s" % (v(R + k, 2), v(R + k, 2), v(48 + k, 2)))
    for j in range(2):
        for k in range(4):
            A("%s %s, %s, %s" % (CV, v(64 + 4 * j + k), v(R + 8 * j + 2 * k), v(R + 8 * j + 2 * k + 1)))
        A.vm("buffer_store_dwordx4 %s, %s, %s, %s offen sc1" % (v(64 + 4 * j, 4), v(vF0), SWS, s(sT2 + j)))
    A.bg_flush()
    return skip, cold

def b2_phase(A, l, uin, xin, tail_extra):
    skip = A.newlabel("b2skip")
    A("s_cmp_lg_u32 %s, 0" % s(sA2))
    A("s_cbranch_scc1 %s" % skip)
    tr_addr(A, vTR, 4, 8)
    NV = 12
    trtok = {}
    def trread(ks):
        b = WF + 8 * (ks % 2)
        for tl in range(2):
            for rd in range(2):
                trtok[ks] = A.ds("ds_read_b64_tr_b16 %s, %s offset:%d" % (v(b + 4 * tl + 2 * rd, 2), v(vTR + tl), (ks - NV) * 2048 + (0, 8)[rd] * 128))
    def pre(ks):
        if NV <= ks + 1 < 28: trread(ks + 1)
        if ks >= NV: A.wds(trtok[ks])
    def wop(ks, wt):
        return v(W2V + 8 * ks + 4 * wt, 4) if ks < NV else v(WF + 8 * (ks % 2) + 4 * wt, 4)
    def tail():
        A("s_lshr_b32 %s, %s, 1" % (s(sT2), s(sWAVE)))
        A("s_lshl_b32 %s, %s, 5" % (s(sT2), s(sT2)))
        A("s_lshl_b32 %s, %s, 6" % (s(sT3), s(sST)))
        A("s_add_u32 %s, %s, %s" % (s(sT2), s(sT2), s(sT3)))
        A("v_and_b32 v9, 31, v0")
        A("v_add_lshl_u32 v9, v9, %s, 1" % s(sT2))
        A.btok = A.vm("global_load_ushort v10, v9, %s" % s(sB2, 2))
        A("v_lshrrev_b32 v11, 6, v0")
        A("v_bfe_u32 v9, v0, 3, 3")
        A("v_lshl_add_u32 v12, v11, 4, v9")
        A("v_add_u32 v11, %s, v12" % s(sT3))
        A("v_mul_u32_u24 v11, 896, v11")
        A("v_and_b32 v9, 7, v0")
        A("v_lshl_add_u32 v11, v9, 4, v11")
        A("s_lshl_b32 %s, %s, 7" % (s(sT3), s(sDT)))
        A("v_add_u32 v11, %s, v11" % s(sT3))
        A("v_add_u32 v13, %d, v11" % (8 * 896))
        tail_extra()
    cold = b_stream(A, 28, uin, wop, False, pre, tail)
    stamp(A)
    A("s_mov_b32 %s, 0x%x" % (s(sT2), xin))
    XV = 64
    def xissue():
        A.vm("buffer_load_dwordx4 %s, v11, %s, %s offen sc1" % (v(XV, 4), SWS, s(sT2)))
        return A.vm("buffer_load_dwordx4 %s, v13, %s, %s offen sc1" % (v(XV + 4, 4), SWS, s(sT2)))
    xt = xissue()
    b_reduce(A)
    R = ACC
    A.wvm(A.btok)
    A("v_lshlrev_b32 v10, 16, v10")
    A("v_bfe_u32 v8, v0, 4, 1")
    A("v_bfe_u32 v9, v0, 7, 1")
    A("v_lshl_add_u32 v8, v9, 1, v8")
    A("v_lshlrev_b32 v8, 13, v8")
    A("v_and_b32 v9, 15, v0")
    A("v_mul_u32_u24 v9, 144, v9")
    A("v_add_u32 v8, v8, v9")
    A("v_bfe_u32 v9, v0, 5, 2")
    A("v_and_b32 v14, 1, v9")
    A("v_lshl_add_u32 v8, v14, 3, v8")
    A("v_lshrrev_b32 v9, 1, v9")
    A("v_lshl_add_u32 v8, v9, 6, v8")
    A("v_add_u32 v8, 0x%x, v8" % (SCR + 4096))
    for k in range(0, 16, 2):
        A("v_pk_add_f32 %s, %s, v[10:11] op_sel_hi:[1,0]" % (v(R + k, 2), v(R + k, 2)))
    for g in range(4):
        for k in range(2):
            A("%s %s, %s, %s" % (CV, v(48 + 2 * g + k), v(R + 4 * g + 2 * k), v(R + 4 * g + 2 * k + 1)))
        A.ds("ds_write_b64 v8, %s offset:%d" % (v(48 + 2 * g, 2), 16 * g))
    A("v_lshrrev_b32 v8, 6, v0")
    A("v_lshlrev_b32 v8, 13, v8")
    A("v_bfe_u32 v9, v0, 3, 3")
    A("v_mul_u32_u24 v9, 144, v9")
    A("v_add_u32 v8, v8, v9")
    A("v_and_b32 v9, 7, v0")
    A("v_lshl_add_u32 v8, v9, 4, v8")
    A("v_add_u32 v8, 0x%x, v8" % (SCR + 4096))
    lo, lt = A.newlabel("xok"), A.newlabel("xrty")
    A.wvm(xt)
    A.label(lt)
    maxchain(A, range(XV, XV + 8), 9)
    A("v_cmp_eq_u32 vcc, -1, v9")
    A("s_cbranch_vccz %s" % lo)
    A("s_cmp_eq_u32 %s, 0" % s(sBUD))
    A("s_cbranch_scc1 %s" % lo)
    A("s_sub_u32 %s, %s, 1" % (s(sBUD), s(sBUD)))
    xissue()
    A("s_waitcnt vmcnt(0)")
    A("s_branch %s" % lt)
    A.label(lo)
    for k in range(8):
        A("v_lshlrev_b32 %s, 16, %s" % (v(R + 2 * k), v(XV + k)))
        A("v_and_b32 %s, 0xffff0000, %s" % (v(R + 2 * k + 1), v(XV + k)))
    A("s_waitcnt lgkmcnt(0)")
    A("s_barrier")
    t0 = A.ds("ds_read_b128 v[48:51], v8")
    t1 = A.ds("ds_read_b128 v[52:55], v8 offset:%d" % (8 * 144))
    A("s_mov_b32 %s, 0x%x" % (s(sT2), X2))
    for j in range(2):
        A.wds((t0, t1)[j])
        for k in range(4 * j, 4 * j + 4):
            A("v_lshlrev_b32 %s, 16, %s" % (v(32 + 2 * k), v(48 + k)))
            A("v_and_b32 %s, 0xffff0000, %s" % (v(32 + 2 * k + 1), v(48 + k)))
        for k in range(4 * j, 4 * j + 4):
            A("v_pk_add_f32 %s, %s, %s" % (v(R + 2 * k, 2), v(R + 2 * k, 2), v(32 + 2 * k, 2)))
        for k in range(4 * j, 4 * j + 4):
            A("%s %s, %s, %s" % (CV, v(56 + k), v(R + 2 * k), v(R + 2 * k + 1)))
        if l == 0: A.vm("buffer_store_dwordx4 %s, %s, %s, %s offen sc1" % (v(56 + 4 * j, 4), v(11 + 2 * j), SWS, s(sT2)))
        else: A.vm("global_store_dwordx4 %s, %s, %s" % (v(11 + 2 * j), v(56 + 4 * j, 4), s(sOUT, 2)))
    A.bg_flush()
    return skip, cold

def srd(A, d, base, nbytes):
    A("s_mov_b32 %s, %s" % (s(d), s(base)))
    A("s_and_b32 %s, %s, 0xffff" % (s(d + 1), s(base + 1)))
    if isinstance(nbytes, int): A("s_mov_b32 %s, 0x%x" % (s(d + 2), nbytes))
    else: A("s_mov_b32 %s, %s" % (s(d + 2), nbytes))
    A("s_mov_b32 %s, 0x20000" % s(d + 3))

def build():
    A = Asm2()
    KN = NAME + "_kernel"
    def emit(R):
        for l_ in R.l: A(l_)
    A.label(KN)
    A("s_cmp_ge_u32 s2, 256")
    A("s_cbranch_scc1 L_exit")
    A("s_load_dwordx2 %s, s[0:1], 0" % s(sX, 2))
    A("s_getpc_b64 s[36:37]")
    A.label("L_pc")
    A("v_lshlrev_b32 v150, 5, v0")
    A.vm("global_load_dword v151, v150, s[36:37]" + NT)
    A("s_load_dwordx2 %s, s[0:1], 80" % s(sWS, 2))
    A("s_load_dwordx8 %s, s[0:1], 32" % s(sW1, 8))
    A("s_load_dwordx4 %s, s[0:1], 8" % s(sWR, 4))
    A("s_load_dwordx4 %s, s[0:1], 64" % s(sOUT, 4))
    if DIAG >= 0: A("s_memrealtime s[94:95]")
    if PROF:
        for i in range(32): A("s_mov_b32 %s, 0" % s(66 + i))
        A("s_memrealtime s[64:65]")
    A("s_and_b32 %s, s2, 7" % s(sT0))
    A("s_lshr_b32 %s, s2, 3" % s(sT1))
    A("s_lshl_b32 %s, %s, 5" % (s(sW), s(sT0)))
    A("s_add_u32 %s, %s, %s" % (s(sW), s(sW), s(sT1)))
    a1_consts(A)
    A("v_lshrrev_b32 v3, 6, v0")
    A("v_readfirstlane_b32 %s, v3" % s(sWAVE))
    A("s_and_b32 s37, s37, 0xffff")
    A("s_mov_b32 s38, L_code_end-L_pc")
    A("s_mov_b32 s39, 0x20000")
    A("s_lshl_b32 s40, s2, 9")
    A("s_and_b32 s40, s40, 0x1f000")
    A("v_lshlrev_b32 v150, 4, v0")
    A("s_mov_b32 s34, 0x%x" % WS_BYTES)
    A("s_mov_b32 s35, 0x20000")
    A("s_mov_b32 s26, 0x%x" % (S * F * 2))
    A("s_mov_b32 s27, 0x20000")
    A("s_and_b32 s56, s2, 7")
    A("s_lshr_b32 s57, s2, 3")
    A("s_lshl_b32 s58, s57, 2")
    A("s_add_u32 s58, s58, %s" % s(sWAVE))
    A("v_bfe_u32 v152, v0, 5, 1")
    A("v_and_b32 v153, 31, v0")
    A("v_lshlrev_b32 v153, 4, v153")
    A("s_lshl_b32 s59, s56, 9")
    A("v_add_u32 v153, s59, v153")
    A("v_lshl_add_u32 v254, v152, 12, v153")
    A("v_mul_u32_u24 v152, 3584, v152")
    A("v_add_u32 v152, v152, v153")
    A("s_mul_i32 s41, s58, %d" % (16 * 3584))
    A("s_cmp_eq_u32 s56, 7")
    A("s_cselect_b32 s41, 0x80000000, s41")
    A("v_add_u32 v152, s41, v152")
    A("s_mul_i32 s59, s58, %d" % (14 * 4096))
    A("v_add_u32 v254, s59, v254")
    A("s_waitcnt lgkmcnt(0)")
    if PROF:
        A("s_mov_b32 s66, s64"); nstamp[0] = 1
    A("s_mov_b32 s32, %s" % s(sWS))
    A("s_and_b32 s33, %s, 0xffff" % s(sWS + 1))
    for t in range(7): tx = A.vm("global_load_dword %s, v1, %s offset:%d%s" % (v(4 + t), s(sX, 2), 128 * t, NT))
    A.vm("buffer_load_dword v151, v150, s[36:39], s40 offen" + NT)
    A("s_mov_b32 s24, %s" % s(sW1))
    A("s_and_b32 s25, %s, 0xffff" % s(sW1 + 1))
    A("s_mov_b32 s41, 0")
    for i in range(8 if WU1 else 0):
        A.vm("buffer_load_dwordx4 v[160:163], v152, %s, s41 offen nt" % SW1)
        if i < 7: A("s_add_u32 s41, s41, 7168")
    def wu2(i):
        def f():
            A.vm("global_load_dwordx4 v[160:163], v254, %s%s" % (s(sW2, 2), WU2FL))
            A("v_add_u32 v254, 8192, v254")
        return f
    if XP: stamp(A)
    A("s_and_b32 s42, s2, 63")
    A("s_lshr_b32 s43, s2, 6")
    A("v_and_b32 v146, 63, v0")
    A("v_mul_u32_u24 v140, 14, v146")
    A("v_sub_u32 v141, %d, v140" % (445 * 2))
    A("v_cmp_lt_u32 %s, 31, v146" % s(sT5, 2))
    A("s_lshl_b32 s44, s43, 2")
    A("s_add_u32 s44, s44, %s" % s(sWAVE))
    A("v_cndmask_b32 v140, v140, v141, %s" % s(sT5, 2))
    A("s_lshl_b32 s44, s44, 7")
    A("s_add_u32 s44, s44, s42")
    A("v_mov_b32 v142, 1")
    A("v_cndmask_b32 v141, v142, -1, %s" % s(sT5, 2))
    A("s_movk_i32 s45, 450")
    for e in range(2):
        A("v_mul_i32_i24 %s, s44, v141" % v(147 + e))
        A("s_mul_i32 s3, s44, 450")
        A("v_and_b32 %s, 0x7ff, %s" % (v(147 + e), v(147 + e)))
        A("s_add_u32 s3, s3, 448")
        A("v_mad_u32_u24 %s, %s, s45, v140" % (v(147 + e), v(147 + e)))
        A("v_mov_b32 %s, s3" % v(149 + e))
        if e == 0: A("s_add_u32 s44, s44, 64")
    A("v_mov_b32 v140, 0x05040100")
    A("v_mov_b32 v141, 0x07060302")
    A("v_cndmask_b32 v142, v140, v141, %s" % s(sT5, 2))
    A("v_cndmask_b32 v143, v141, v140, %s" % s(sT5, 2))
    A("v_mov_b32 v140, 0x80000000")
    A("v_cndmask_b32 v144, 0, v140, %s" % s(sT5, 2))
    A("s_lshl_b32 s42, s42, 2")
    A("s_add_u32 s42, s42, s43")
    A("s_lshl_b32 s42, s42, 2")
    A("s_add_u32 s42, s42, %s" % s(sWAVE))
    A("s_lshl_b32 s42, s42, 11")
    A("s_add_u32 s3, s42, 0x%x" % WT)
    A("v_lshlrev_b32 v145, 4, v146")
    for e in range(2):
        A.vm("global_load_dwordx2 %s, %s, %s%s" % (v(128 + 4 * e, 2), v(147 + e), s(sWR, 2), NT))
        A.vm("global_load_dwordx2 %s, %s, %s%s" % (v(130 + 4 * e, 2), v(147 + e), s(sWI, 2), NT))
        A.vm("global_load_ushort %s, %s, %s%s" % (v(136 + 2 * e), v(149 + e), s(sWR, 2), NT))
        twp = A.vm("global_load_ushort %s, %s, %s%s" % (v(137 + 2 * e), v(149 + e), s(sWI, 2), NT))
    if WU2_AT == "start":
        for i in range(7): wu2(i)()
    poison_list(A, [T0], 154)
    stamp(A)
    A("s_mul_i32 %s, s57, 37" % s(sT2))
    A("s_lshr_b32 %s, %s, 8" % (s(sT2), s(sT2)))
    A("s_mul_i32 %s, %s, 7" % (s(sDT), s(sT2)))
    A("s_sub_u32 %s, s57, %s" % (s(sDT), s(sDT)))
    A("s_lshl_b32 %s, s56, 2" % s(sFT))
    A("s_add_u32 %s, %s, %s" % (s(sFT), s(sFT), s(sT2)))
    A("s_mov_b32 %s, %s" % (s(sST), s(sFT)))
    A("s_cmp_lt_u32 s57, 28")
    A("s_cselect_b32 %s, 0, 0x80000000" % s(sA2))
    A("s_cmp_lt_u32 s56, 7")
    A("s_cselect_b32 %s, %s, 0x80000000" % (s(sA1), s(sA2)))
    A("s_mov_b32 %s, 200000" % s(sBUD))
    A("s_lshl_b32 %s, %s, 15" % (s(sRING), s(sWAVE)))
    srd(A, 28, sW2, S * F * 2)
    for i in range(3):
        A("s_mov_b32 %s, %s" % (s(SB + 2 * i), fbits(C7[i + 1])))
        A("s_mov_b32 %s, %s" % (s(SB + 2 * i + 1), fbits(C7[i + 1])))
        A("s_mov_b32 %s, %s" % (s(SB + 6 + 2 * i), fbits(S7[i + 1])))
        A("s_mov_b32 %s, %s" % (s(SB + 6 + 2 * i + 1), fbits(S7[i + 1])))
    R = Rec(); a1_consts2(R); gen_f64(R, 48); emit(R)
    stamp(A)
    A.wvm(tx)
    stamp(A)
    a1_compute(A, Z0)
    A("v_cmp_lt_u32 %s, 31, v146" % s(sT5, 2))
    A("v_cmp_eq_u32 vcc, 32, v146")
    A.wvm(twp)
    WO = 32
    for e in range(2):
        r0, i0_ = 128 + 4 * e, 130 + 4 * e
        A("v_cndmask_b32 v40, %s, %s, %s" % (v(r0), v(r0 + 1), s(sT5, 2)))
        A("v_cndmask_b32 v41, %s, %s, %s" % (v(r0 + 1), v(r0), s(sT5, 2)))
        A("v_cndmask_b32 v42, %s, %s, %s" % (v(i0_), v(i0_ + 1), s(sT5, 2)))
        A("v_cndmask_b32 v43, %s, %s, %s" % (v(i0_ + 1), v(i0_), s(sT5, 2)))
        for sl in range(4):
            A("v_perm_b32 %s, %s, %s, %s" % (v(WO + 2 * sl + e), v(42 + sl // 2), v(40 + sl // 2), v(142 + sl % 2)))
            A("v_xor_b32 %s, %s, v144" % (v(WO + 2 * sl + e), v(WO + 2 * sl + e)))
        A("v_lshl_or_b32 v44, %s, 16, %s" % (v(137 + 2 * e), v(136 + 2 * e)))
        A("v_cndmask_b32 %s, %s, v44, vcc" % (v(WO + e), v(WO + e)))
    A.vm("buffer_store_dwordx4 v[32:35], v145, %s, s3 offen sc1" % SWS)
    A.vm("buffer_store_dwordx4 v[36:39], v145, %s, s3 offen offset:1024 sc1" % SWS)
    stamp(A)
    A("s_waitcnt vmcnt(0)")
    A("s_barrier")
    lw = A.newlabel("nb")
    A("s_cmp_lg_u32 %s, 0" % s(sWAVE))
    A("s_cbranch_scc1 %s" % lw)
    A("s_and_b32 %s, s2, 1" % s(sT0))
    A("s_lshl_b32 %s, %s, 7" % (s(sT0), s(sT0)))
    A("v_mov_b32 v11, %s" % s(sT0))
    A("v_mov_b32 v12, 1")
    A("s_mov_b64 exec, 1")
    A("global_atomic_add v11, v12, %s sc1" % s(sDBG, 2))
    A("s_mov_b64 exec, -1")
    A.label(lw)
    stamp(A)
    if WU2_AT == "beta":
        for i in range(7): wu2(i)()
    poison_list(A, [H0, U0, X2, X1], 164)
    w1_voffs(A, PW1, 164)
    R = Rec(); a2_consts(R); tr_addr(R, PTR1, 8, 164); w2_voffs(R, PW2, 164)
    if SCHED == "win": A.bgq = dma_chunk(A, 1, 0, 16, PW1)
    A.mix(R.l, 5)
    A.bg_flush()
    lw = A.newlabel("nb")
    A("s_cmp_lg_u32 %s, 0" % s(sWAVE))
    A("s_cbranch_scc1 %s" % lw)
    A("v_and_b32 v56, 1, v0")
    A("v_lshlrev_b32 v56, 7, v56")
    lt, lo = A.newlabel("bar"), A.newlabel("barok")
    A.label(lt)
    A("global_load_dword v57, v56, %s sc1" % s(sDBG, 2))
    A("s_waitcnt vmcnt(0)")
    A("v_cmp_gt_u32 vcc, 0x80, v57")
    A("s_cbranch_vccz %s" % lo)
    A("s_cmp_eq_u32 %s, 0" % s(sBUD))
    A("s_cbranch_scc1 %s" % lo)
    A("s_sub_u32 %s, %s, 1" % (s(sBUD), s(sBUD)))
    if SLEEP: A("s_sleep %d" % SLEEP)
    A("s_branch %s" % lt)
    A.label(lo)
    A.label(lw)
    A("s_barrier")
    stamp(A)
    colds = []
    def fin():
        prof_end(A)
        A("s_endpgm")
    def tr_ops(n, addr, rows, dstfn, slot0=0):
        q = []
        for i in range(slot0, slot0 + n):
            def trp(i=i):
                for tl in range(2):
                    for rd in range(2):
                        A.trtok = A.ds("ds_read_b64_tr_b16 %s, %s offset:%d" % (dstfn(8 * i + 4 * tl + 2 * rd), v(addr + tl), i * 2048 + rows[rd] * 128))
            q.append(trp)
        return q
    def after_tr(ops):
        f = ops[0]
        return [lambda: (A.wds(A.trtok), f())] + ops[1:]
    def pairs(ops): return [(lambda o=ops[k:k + 2]: [x() for x in o]) for k in range(0, len(ops), 2)]
    def mark(name): return lambda: setattr(A, name, A.last_dma)
    trw1 = lambda n, base, s0: tr_ops(n, PTR1, (0, 4), lambda r: a(base + r, 2), s0)
    for l in range(2):
        zb, tb, hb, ub, xo = ((Z0, T0, H0, U0, X1), (Z1, T1, H1, U1, X3))[l]
        if l == 1:
            R = Rec(); a1_consts(R); gen_f64(R, 48); a1_consts2(R); emit(R)
            A("s_barrier")
            A("s_mov_b32 %s, 0x%x" % (s(sT1), X2))
            def xi():
                for t in range(7): A.vm("buffer_load_dword %s, v1, %s, %s offen offset:%d sc1" % (v(4 + t), SWS, s(sT1), 128 * t))
            poll_loads(A, xi, range(4, 11), 11)
            stamp(A)
            a1_compute(A, Z1)
            stamp(A)
            R = Rec(); a2_consts(R); emit(R)
            A("s_barrier")
        def a2_after():
            if l == 0:
                if SCHED == "win": A.bgq = trw1(16, 0, 0)
                else: A.bgq = dma_chunk(A, 1, 0, 8, PW1) + [mark("h1")] + dma_chunk(A, 1, 8, 8, PW1, 8)
                if WU2_AT == "a2": A.bgq += [wu2(i) for i in range(7)]
        a2_phase(A, zb, tb, l == 1, a2_after)
        stamp(A)
        if STOP == 2 + 5 * l: fin(); break
        R = Rec(); a3_consts(R)
        if l == 0:
            if WU2_AT == "w23":
                for i in range(7): wu2(i)()
            poison_list(A, [Z1], 164)
            if SCHED == "win":
                A("s_waitcnt lgkmcnt(0)")
                A.bgq = dma_chunk(A, 1, 16, 16, PW1)
            else:
                A.wvm(A.h1)
                for op in trw1(8, 0, 0): op()
                A.bgq = after_tr(dma_chunk(A, 1, 16, 8, PW1))
        A.mix(R.l, 2 if SCHED == "win" else 3)
        A.bg_flush()
        A("s_barrier")
        def a3_after():
            if l == 0:
                if SCHED == "win": A.bgq = trw1(16, 128, 0)
                else: A.bgq = pairs(trw1(8, 0, 8)) + pairs(trw1(8, 128, 0)) + after_tr(dma_chunk(A, 1, 24, 8, PW1, 8)) + [mark("h4")] + dma_chunk(A, 2, 0, 8, PW2)
        a3_phase(A, l, tb, xo, hb, a3_after)
        stamp(A)
        if STOP == 3 + 5 * l: fin(); break
        R = Rec(); b_consts(R)
        if l == 0:
            tr_addr(R, vTR, 4, 8)
            w2_voffs(R, 10, 8)
            if SCHED == "win":
                A("s_waitcnt lgkmcnt(0)")
                A.bgq = dma_chunk(A, 2, 0, 12, PW2)
            else:
                A.wvm(A.h4)
                for op in trw1(8, 128, 8): op()
                A.bgq = after_tr(dma_chunk(A, 2, 8, 4, PW2, 8))
        A.mix(R.l, 2)
        A.bg_flush()
        A("s_barrier")
        def b1_tail():
            if l == 0:
                A.bg_flush()
                A("s_waitcnt lgkmcnt(0)")
                A.bgq = dma_chunk(A, 2, 12, 16, 10)
        def b1_first():
            if l == 0: A.bgq = tr_ops(12, vTR, (0, 8), lambda r: v(W2V + r, 2))
        skip, cold = b1_phase(A, l, hb, ub, b1_tail, b1_first)
        colds.append(cold)
        if l == 0:
            dn = A.newlabel("b1done")
            A("s_branch %s" % dn)
            A.label(skip)
            A("s_waitcnt vmcnt(0)")
            for op in tr_ops(12, vTR, (0, 8), lambda r: v(W2V + r, 2)): op()
            A("s_waitcnt lgkmcnt(0)")
            for op in dma_chunk(A, 2, 12, 16, 10): op()
            A.label(dn)
        else:
            A.label(skip)
        stamp(A)
        if STOP == 4 + 5 * l: fin(); break
        A("s_barrier")
        skip, cold = b2_phase(A, l, ub, xo, lambda: None)
        colds.append(cold)
        A.label(skip)
        if l == 0:
            poison_list(A, [T1, H1, U1, X3], 32)
        stamp(A)
        if STOP == 5 + 5 * l: fin(); break
    else:
        fin()
    for c in colds: c()
    A.label("L_exit")
    A("s_endpgm")
    A.label("L_code_end")
    lines, n = fix_hazards_fast(A.lines)
    for p in lint_waits(lines): print("LINT", p, file=sys.stderr)
    hdr = open("cdna_kernels/%s.s.ref" % NAME).read().split("; Override launch")[0]
    out = hdr + "; @launch grid=(256,1,1) block=(256,1,1) lds=%d\n" % LDS_TOTAL
    out += '.amdgcn_target "amdgcn-amd-amdhsa--gfx950"\n.text\n.globl %s\n.p2align 8\n.type %s,@function\n' % (KN, KN)
    out += "\n".join(lines) + "\n"
    out += """.section .rodata,"a"
.p2align 6
.amdhsa_kernel %s
  .amdhsa_next_free_vgpr 512
  .amdhsa_next_free_sgpr 102
  .amdhsa_accum_offset 256
  .amdhsa_group_segment_fixed_size 0
  .amdhsa_kernarg_size 88
  .amdhsa_user_sgpr_count 2
  .amdhsa_user_sgpr_kernarg_segment_ptr 1
  .amdhsa_system_sgpr_workgroup_id_x 1
.end_amdhsa_kernel
""" % KN
    print("nops inserted:", n, "lines:", len(lines), "stamps:", nstamp[0], file=sys.stderr)
    return out

if __name__ == "__main__":
    outp = sys.argv[1] if len(sys.argv) > 1 else "p1.s"
    open(outp, "w").write(build())
```

```python
import re

def v(i, n=1):
    return "v%d" % i if n == 1 else "v[%d:%d]" % (i, i + n - 1)
def a(i, n=1):
    return "a%d" % i if n == 1 else "a[%d:%d]" % (i, i + n - 1)
def s(i, n=1):
    return "s%d" % i if n == 1 else "s[%d:%d]" % (i, i + n - 1)

_reg_re = re.compile(r'^(-|\|)?(?:abs\()?([vas])(?:(\d+)|\[(\d+):(\d+)\])\)?\|?$')

def parse_reg(tok):
    tok = tok.strip()
    if tok in ("vcc", "exec"):
        return [(tok, 0), (tok, 1)]
    if tok in ("vcc_lo", "exec_lo"):
        return [(tok[:-3], 0)]
    if tok in ("vcc_hi", "exec_hi"):
        return [(tok[:-3], 1)]
    if tok == "m0":
        return [("m0", 0)]
    m = _reg_re.match(tok)
    if not m:
        return []
    k = m.group(2)
    if m.group(3) is not None:
        return [(k, int(m.group(3)))]
    return [(k, i) for i in range(int(m.group(4)), int(m.group(5)) + 1)]

TRANS = ("v_exp_f32", "v_log_f32", "v_rcp_f32", "v_rsq_f32", "v_sqrt_f32", "v_sin_f32", "v_cos_f32", "v_rcp_iflag_f32")

class Ins:
    def __init__(self, text):
        self.text = text
        t = text.split(";")[0].strip()
        self.is_label = t.endswith(":")
        self.is_dir = t.startswith(".")
        self.mn = ""
        self.w = set(); self.r = set()
        self.kind = "other"
        self.passes = 0
        self.srcc = set(); self.srcab = set()
        self.dpp = False
        self.target = None
        self.nop = 0
        if self.is_label:
            self.label = t[:-1]; return
        if self.is_dir or not t:
            self.is_dir = True; return
        parts = t.split(None, 1)
        mn = parts[0]; self.mn = mn
        rest = parts[1] if len(parts) > 1 else ""
        ops = []; cur = ""; depth = 0
        for ch in rest:
            if ch in "[(": depth += 1
            if ch in "])": depth -= 1
            if ch == "," and depth == 0:
                ops.append(cur.strip()); cur = ""
            else:
                cur += ch
        if cur.strip(): ops.append(cur.strip())
        mods = []
        if ops:
            last = ops[-1]; depth = 0; cut = None
            for i, ch in enumerate(last):
                if ch in "[(": depth += 1
                if ch in "])": depth -= 1
                if ch == " " and depth == 0:
                    cut = i; break
            if cut is not None:
                mods = last[cut:].split(); ops[-1] = last[:cut]
        self.ops = ops; self.mods = mods
        R = lambda i: parse_reg(ops[i]) if i < len(ops) else []
        base = re.sub(r'_(e32|e64|dpp|sdwa)$', '', mn)
        self.base = base
        if mn.startswith("v_mfma"):
            self.kind = "mfma"
            self.w = set(R(0)); self.srcab = set(R(1)) | set(R(2)); self.srcc = set(R(3))
            self.r = self.srcab | self.srcc
            self.passes = 8 if "32x32" in mn else 4
            self.dfirst = R(0)[0]; self.dn = len(R(0))
        elif mn.startswith("v_"):
            self.kind = "valu"
            self.dpp = mn.endswith("_dpp") or any(m.startswith(("quad_perm", "row_", "wave_")) for m in mods)
            if base.startswith("v_cmp"):
                self.w = set(R(0)); self.r = set(sum((R(i) for i in range(1, len(ops))), []))
                if base.startswith("v_cmpx"): self.w |= {("exec", 0), ("exec", 1)}
            elif base in ("v_add_co_u32", "v_sub_co_u32", "v_subrev_co_u32", "v_addc_co_u32", "v_subb_co_u32", "v_mad_u64_u32"):
                self.w = set(R(0)) | set(R(1)); self.r = set(sum((R(i) for i in range(2, len(ops))), []))
            elif base in ("v_permlane16_swap_b32", "v_permlane32_swap_b32", "v_swap_b32"):
                self.w = set(R(0)) | set(R(1)); self.r = set(self.w)
            else:
                self.w = set(R(0)); self.r = set(sum((R(i) for i in range(1, len(ops))), []))
                if base in ("v_fmac_f32", "v_pk_fmac_f16", "v_writelane_b32", "v_dot2c_f32_bf16") or self.dpp or "sdwa" in mn:
                    self.r |= set(R(0))
                if base == "v_cndmask_b32" and len(ops) == 3:
                    self.r |= {("vcc", 0), ("vcc", 1)}
            self.trans = base in TRANS
        elif mn.startswith(("buffer_", "global_", "flat_", "scratch_")):
            self.kind = "vmem"
            allr = set(sum((R(i) for i in range(len(ops))), []))
            self.lds = ("lds" in mods) or ("_lds_" in mn)
            if mn in ("buffer_wbl2", "buffer_inv"):
                pass
            elif "load" in mn and not self.lds:
                self.w = set(R(0)); self.r = set(sum((R(i) for i in range(1, len(ops))), []))
            elif "atomic" in mn and "sc0" in mods:
                self.w = set(R(0)); self.r = allr
            else:
                self.r = allr
                if self.lds: self.r |= {("m0", 0)}
            self.wide_store = ("store" in mn) and (mn.endswith("x4") or mn.endswith("x3"))
            if self.wide_store:
                self.sdata = set(R(0)) if mn.startswith("buffer_") else set(R(1))
        elif mn.startswith("ds_"):
            self.kind = "ds"
            if "read" in mn or "permute" in mn or "swizzle" in mn or "_rtn" in mn:
                self.w = set(R(0)); self.r = set(sum((R(i) for i in range(1, len(ops))), []))
            else:
                self.r = set(sum((R(i) for i in range(len(ops))), []))
        elif mn.startswith("s_"):
            self.kind = "salu"
            if mn == "s_nop":
                self.kind = "nop"; self.nop = int(ops[0], 0) + 1
            elif mn in ("s_branch",) or mn.startswith("s_cbranch"):
                self.kind = "branch"; self.target = ops[0]
            elif mn.startswith(("s_load", "s_buffer_load", "s_memtime", "s_memrealtime")):
                self.kind = "smem"; self.w = set(R(0)); self.r = set(sum((R(i) for i in range(1, len(ops))), []))
            elif mn.startswith("s_cmp") or mn in ("s_waitcnt", "s_barrier", "s_endpgm", "s_sleep", "s_setprio", "s_bitcmp0_b32", "s_bitcmp1_b32"):
                self.r = set(sum((R(i) for i in range(len(ops))), []))
            else:
                self.w = set(R(0)); self.r = set(sum((R(i) for i in range(1, len(ops))), []))
                if "saveexec" in mn: self.w |= {("exec", 0), ("exec", 1)}
    def real(self):
        return not (self.is_label or self.is_dir)

def isv(rs): return {x for x in rs if x[0] in "va" and x[0] not in ("vcc",)}
def vregs(rs): return {x for x in rs if x[0] in ("v", "a")}
def sregs(rs): return {x for x in rs if x[0] in ("s", "vcc")}

def need(p, c):
    n = 0
    if p.kind == "valu":
        pw = vregs(p.w); ps = sregs(p.w)
        if c.kind == "mfma" and pw & c.r: n = max(n, 2)
        if c.kind == "valu":
            if c.dpp and pw & c.r: n = max(n, 2)
            if c.base in ("v_readlane_b32", "v_readfirstlane_b32") and pw & c.r: n = max(n, 1)
            if c.base.startswith("v_permlane") and pw & c.r: n = max(n, 2)
            if ps & c.r: n = max(n, 4 if c.base in ("v_readlane_b32", "v_writelane_b32") else 2)
            if p.trans and not c.trans and pw & c.r: n = max(n, 1)
            if p.trans and c.trans and pw & c.r: n = max(n, 1)
            if ("sdwa" in p.mn or any(m.startswith("op_sel") for m in p.mods) and not p.mn.startswith("v_pk")) and pw & (c.r | c.w): n = max(n, 1)
            if ("exec", 0) in p.w:
                n = max(n, 5 if c.dpp else (4 if c.base.startswith(("v_readlane", "v_readfirstlane", "v_writelane", "v_permlane")) else 0))
        if c.kind == "mfma" and ("exec", 0) in p.w: n = max(n, 4)
        if c.kind == "vmem" and ps & c.r: n = max(n, 5)
        if c.kind in ("salu", "smem", "branch") and ps & c.r: n = max(n, 1)
        if p.trans and c.kind in ("vmem", "ds", "mfma") and pw & c.r: n = max(n, 2 if c.kind == "mfma" else 1)
    if p.kind == "mfma":
        big = 12 if p.passes == 8 else 8
        if c.kind == "mfma":
            if p.w & c.srcab: n = max(n, big)
            if p.w & c.srcc:
                if not (c.srcc == p.w and c.passes == p.passes): n = max(n, big - 2)
            elif p.w & c.w: n = max(n, big)
        elif c.kind in ("valu", "vmem", "ds"):
            if p.w & (c.r | c.w): n = max(n, big)
            if c.kind == "valu" and p.srcc & c.w: n = max(n, 7 if p.passes == 8 else 3)
    if p.kind == "salu" and ("m0", 0) in p.w:
        if (c.kind == "vmem" and c.lds) or (c.kind == "ds" and "addtid" in c.mn): n = max(n, 1)
    if p.kind == "vmem" and getattr(p, "wide_store", False):
        if c.kind in ("valu", "mfma") and p.sdata & c.w: n = max(n, 2)
        elif c.kind in ("vmem", "ds") and p.sdata & c.w: n = max(n, 1)
    return n

MAXD = 13

def fix_hazards(lines):
    ins = [Ins(l) for l in lines]
    total = 0
    changed = True
    while changed:
        changed = False
        labels = {x.label: i for i, x in enumerate(ins) if x.is_label}
        srcs = {}
        for i, x in enumerate(ins):
            if x.kind == "branch" and x.target in labels:
                srcs.setdefault(labels[x.target], []).append(i)
        i = 0
        out = []
        inserted = False
        for ci, c in enumerate(ins):
            if c.real() and c.kind in ("valu", "mfma", "vmem", "ds", "salu", "smem", "branch") and not inserted:
                worst = 0
                stack = [(ci - 1, 0)]
                seen = set()
                while stack:
                    j, dist = stack.pop()
                    while j >= 0 and dist < MAXD:
                        if (j, dist) in seen: break
                        seen.add((j, dist))
                        p = ins[j]
                        if p.is_label:
                            for sidx in srcs.get(j, []):
                                stack.append((sidx, dist))
                            j -= 1; continue
                        if p.is_dir:
                            j -= 1; continue
                        if p.mn in ("s_endpgm",) or (p.mn == "s_branch" and j != ci and (j + 1 <= ci) and not any(True for _ in [])):
                            if p.mn == "s_endpgm" or (j, dist) not in [(q, d) for q, d in []]:
                                pass
                        nreq = need(p, c)
                        if nreq > dist: worst = max(worst, nreq - dist)
                        dist += p.nop if p.kind == "nop" else 1
                        if p.mn == "s_endpgm": break
                        j -= 1
                if worst > 0:
                    out.append(Ins("    s_nop %d" % (worst - 1)))
                    total += 1
                    inserted = True
            out.append(c)
        if inserted:
            ins = out; changed = True
    return [x.text for x in ins], total

def fix_hazards_fast(lines):
    ins = []
    total = 0
    for l in lines:
        c = Ins(l)
        if c.real() and c.kind != "nop":
            worst = 0; dist = 0; j = len(ins) - 1
            while j >= 0 and dist < MAXD:
                p = ins[j]
                if p.real():
                    if p.mn == "s_endpgm": break
                    nreq = need(p, c)
                    if nreq > dist: worst = max(worst, nreq - dist)
                    dist += p.nop if p.kind == "nop" else 1
                j -= 1
            if worst > 0:
                ins.append(Ins("    s_nop %d" % (worst - 1))); total += 1
        ins.append(c)
    again = True
    while again:
        again = False
        labels = {x.label: i for i, x in enumerate(ins) if x.is_label}
        for bi, b in enumerate(ins):
            if b.kind == "branch" and b.target in labels:
                li = labels[b.target]
                d0 = 0; ci = li + 1
                while ci < len(ins) and d0 < MAXD:
                    c = ins[ci]
                    if c.real():
                        if c.kind != "nop":
                            dist = d0; j = bi; worst = 0
                            while j >= 0 and dist < MAXD:
                                p = ins[j]
                                if p.real():
                                    nreq = need(p, c)
                                    if nreq > dist: worst = max(worst, nreq - dist)
                                    dist += p.nop if p.kind == "nop" else 1
                                j -= 1
                            if worst > 0:
                                ins.insert(ci, Ins("    s_nop %d" % (worst - 1))); total += 1
                                again = True; break
                        d0 += c.nop if c.kind == "nop" else 1
                        if c.mn in ("s_branch", "s_endpgm"): break
                    ci += 1
                if again: break
    return [x.text for x in ins], total

def lint_waits(lines):
    vm = []; lg = []; probs = []
    for n, l in enumerate(lines):
        c = Ins(l)
        if not c.real(): continue
        if c.mn == "s_endpgm":
            vm = []; lg = []; continue
        if c.mn == "s_waitcnt":
            t = " ".join(c.ops + c.mods)
            m = re.search(r'vmcnt\((\d+)\)', t)
            if m:
                k = int(m.group(1)); vm = vm[len(vm) - k:] if k < len(vm) and k > 0 else ([] if k == 0 else vm)
            m = re.search(r'lgkmcnt\((\d+)\)', t)
            if m:
                k = int(m.group(1))
                if any(x[1] == "smem" for x in lg) and k > 0:
                    probs.append((n, l, "counted lgkmcnt with smem outstanding"))
                lg = lg[len(lg) - k:] if k < len(lg) and k > 0 else ([] if k == 0 else lg)
            continue
        touched = c.r | c.w
        for (w, kind, ln) in vm + lg:
            if w & touched:
                if c.kind == kind and not (w & c.r) and kind in ("vmem", "ds"):
                    continue
                probs.append((n, l, "touches pending %s result from line %d" % (kind, ln)))
        if c.kind == "vmem": vm.append((set(c.w), "vmem", n))
        elif c.kind == "ds": lg.append((set(c.w), "ds", n))
        elif c.kind == "smem": lg.append((set(c.w), "smem", n))
        if len(vm) > 63: probs.append((n, l, "vmcnt overflow >63"))
    return probs

class Asm:
    def __init__(self):
        self.lines = []
        self.uid = 0
    def __call__(self, t):
        for x in t.split("\n"):
            x = x.strip()
            if x: self.lines.append("    " + x if not x.endswith(":") else x)
    def label(self, l):
        self.lines.append(l + ":")
    def newlabel(self, p="L"):
        self.uid += 1
        return "%s_%d" % (p, self.uid)
    def c(self, t):
        self.lines.append("    ; " + t)


class Asm2(Asm):
    def __init__(self):
        super().__init__()
        self.vmn = 0; self.dsn = 0
        self.bgq = []
        self.auto = 0; self._cnt = 0
    def __call__(self, t):
        super().__call__(t)
        if self.auto and t.lstrip().startswith("v_"):
            self._cnt += 2 if "mfma" in t or "_cos" in t or "_sin" in t or "_exp" in t or "_rcp" in t else 1
            if self._cnt >= self.auto:
                self._cnt = 0
                a = self.auto; self.auto = 0
                if self.bgq: self.bgq.pop(0)()
                self.auto = a
    def vm(self, t):
        self(t); self.vmn += 1; return self.vmn - 1
    def ds(self, t):
        self(t); self.dsn += 1; return self.dsn - 1
    def wvm(self, tok):
        n = self.vmn - tok - 1
        if n <= 63: self("s_waitcnt vmcnt(%d)" % n)
    def wds(self, tok):
        n = self.dsn - tok - 1
        self("s_waitcnt lgkmcnt(%d)" % min(n, 15))
    def bg(self, n=1):
        if self.auto: return
        for _ in range(n):
            if self.bgq: self.bgq.pop(0)()
    def bg_flush(self):
        self.auto = 0
        while self.bgq: self.bgq.pop(0)()
    def mix(self, fg, every):
        for i, l in enumerate(fg):
            self(l)
            if (i + 1) % every == 0: self.bg()

class Rec:
    def __init__(self): self.l = []
    def __call__(self, t):
        for x in t.split("\n"):
            if x.strip(): self.l.append(x.strip())

def zipmix(*streams):
    out = []; n = max(len(s) for s in streams); pos = [0] * len(streams)
    for i in range(1, n + 1):
        for k, s in enumerate(streams):
            tgt = (len(s) * i + n - 1) // n
            while pos[k] < tgt:
                out.append(s[pos[k]]); pos[k] += 1
    return out

import subprocess, os
_WIDEN_OK = ("v_add_f32", "v_sub_f32", "v_mul_f32", "v_mov_b32", "v_and_b32", "v_or_b32", "v_xor_b32", "v_lshlrev_b32", "v_lshrrev_b32",
             "v_add_u32", "v_sub_u32", "v_subrev_u32", "v_max_u32", "v_max_f32", "v_cos_f32", "v_sin_f32", "v_exp_f32", "v_rcp_f32", "v_rsq_f32",
             "v_cvt_f32_u32", "v_mul_u32_u24", "v_mul_i32_i24", "v_cndmask_b32", "v_cmp_eq_u32", "v_cmp_gt_u32", "v_cmp_lt_u32", "v_cmp_ne_u32")
def sizes_of(lines):
    txt = '.amdgcn_target "amdgcn-amd-amdhsa--gfx950"\n.text\n' + "\n".join(lines) + "\n"
    open("al.s", "w").write(txt)
    r = subprocess.run(["clang", "-x", "assembler", "-target", "amdgcn-amd-amdhsa", "-mcpu=gfx950", "-c", "al.s", "-o", "al.o"], capture_output=True, text=True)
    assert r.returncode == 0, r.stderr[:2000]
    o = subprocess.run(["llvm-objdump", "-d", "--mcpu=gfx950", "al.o"], capture_output=True, text=True).stdout
    out = []
    for l in o.splitlines():
        m = re.search(r'//\s+([0-9A-F]+):\s+((?:[0-9A-F]{8}\s*)+)', l)
        if m: out.append(4 * len(m.group(2).split()))
    return out

def align_pass(lines, B=32, usenop=False):
    idx = [i for i, l in enumerate(lines) if Ins(l).real()]
    sz = sizes_of(lines)
    assert len(sz) == len(idx), (len(sz), len(idx))
    lines = list(lines)
    off = 0; n = len(idx); fixed = 0; left = 0
    k = 0
    ins_nop = []
    while k < n:
        if sz[k] == 8 and off % 8 == 4:
            j = k; o = off; strad = False
            while j < n and sz[j] == 8:
                if o % B == B - 4: strad = True
                o += 8; j += 1
            if strad:
                p = k - 1
                mn = lines[idx[p]].split()[0] if p >= 0 else ""
                if p >= 0 and sz[p] == 4 and mn in _WIDEN_OK:
                    lines[idx[p]] = lines[idx[p]].replace(mn, mn + "_e64", 1); sz[p] = 8; off += 4; fixed += 1
                elif usenop and j - k >= usenop:
                    ins_nop.append(idx[k]); off += 4; fixed += 1
                else: left += 1
            off += 8 * (j - k); k = j
        else:
            off += sz[k]; k += 1
    for i in reversed(ins_nop): lines.insert(i, "    s_nop 0")
    return lines, fixed, left
```

```python
import math, struct, sys, os
from asmlib import *

NAME = "interleave_layers__spectral_gfnet__mixer_token_mlp__prompt"
S, D, F = 2048, 448, 1792
MB2 = 0x200000
Z0, Z1, T0, T1, WT, X1, X2, X3, H0, H1, U0, U1, CNT = [MB2 * i for i in range(13)]
WS_BYTES = 0x2000000
PROFOFF = 0x1C00000
PROF = int(os.environ.get("PROF", 0))
STOP = int(os.environ.get("STOP", 99))
SLEEP = int(os.environ.get("SLEEP", 2))
WUPRE = int(os.environ.get("WUPRE", 4))
XP = int(os.environ.get("XP", 0)); WU2_AT = os.environ.get("WU2_AT", "a3"); WU2FL = os.environ.get("WU2FL", " nt"); DMAFL = os.environ.get("DMAFL", "")
NT = os.environ.get("NT", "")
SCHED = os.environ.get("SCHED", "win")
DLY = [int(x) for x in os.environ.get("DLY", "0,0,10,12,12").split(",")]
MAP = os.environ.get("MAP", "x"); KROT = int(os.environ.get("KROT", 0))
AUTO2 = int(os.environ.get("AUTO2", 9)); AUTO3 = int(os.environ.get("AUTO3", 7))
FAKE16 = int(os.environ.get("FAKE16", 0))
STFL = os.environ.get("STFL", " sc1")
assert int(os.environ.get("FULLB", 1)) or STFL == " sc1"
PRE1 = int(os.environ.get("PRE1", 32)); PRE2 = int(os.environ.get("PRE2", 32))
DW = int(os.environ.get("DW", 64)); MAP1 = os.environ.get("MAP1", "x"); X2T = int(os.environ.get("X2T", 1))
OUTFL = os.environ.get("OUTFL", "")
EXM = int(os.environ.get("EXM", 0))
ALIGN = int(os.environ.get("ALIGN", 0)); ALNOP = int(os.environ.get("ALNOP", 0))
F32EARLY = int(os.environ.get("F32EARLY", 0))
PZ = int(os.environ.get("PZ", 1))
MASKED = int(os.environ.get("MASKED", 1)); FULLB = int(os.environ.get("FULLB", 1))
ROT = int(os.environ.get("ROT", 1)); WU1 = int(os.environ.get("WU1", 2))

def fbits(x): return "0x%08x" % struct.unpack("<I", struct.pack("<f", x))[0]
C7 = [math.cos(2 * math.pi * r / 7) for r in range(4)]
S7 = [math.sin(2 * math.pi * r / 7) for r in range(4)]
CV = "v_cvt_pk_bf16_f32"; M16 = "v_mfma_f32_16x16x32_bf16"; M32 = "v_mfma_f32_32x32x16_bf16"

sX, sWS, sWR, sWI, sW1, sB1, sW2, sB2, sOUT, sDBG = 4, 6, 8, 10, 12, 14, 16, 18, 20, 22
SW1, SW2, SWS = "s[24:27]", "s[28:31]", "s[32:35]"
SB = 36
sW, sWAVE, sDT, sFT, sST, sA1, sA2, sBUD = 48, 49, 50, 51, 52, 53, 54, 55
sT0, sT1, sT2, sT3 = 56, 57, 58, 59
sRING, sT4, sT5, sT6 = 60, 61, 62, 63
sC = 98
sWB1, sWB2 = 12, 16
sDT2, sROT1 = 64, 65
sSH1, sSH2, sEND = 99, 100, 101
SCR = 131072
LDS_TOTAL = 163840
LSTR = 272
YSTR = 448 * 4 + 64
HSTR = 896 + 32
A3_Y = 32 * LSTR
A3_H = A3_Y + 8 * YSTR
XL = 0
F64R, F64I = 96, 112
W2V = 160

nstamp = [0]
CLK = [int(x) for x in os.environ.get("CLK", "").split(",") if x]
BUDA = [int(x) for x in os.environ.get("BUDA", "22,23").split(",")]
BUDB = [int(x) for x in os.environ.get("BUDB", "23,24").split(",")]
DIAG = int(os.environ.get("DIAG", -1))
ndiag = [1]
def stamp(A):
    if DIAG >= 0:
        if ndiag[0] == DIAG:
            A("s_memrealtime s[96:97]")
            A("s_waitcnt lgkmcnt(0)")
        ndiag[0] += 1
    if not PROF: return
    i = nstamp[0]; nstamp[0] += 1
    assert i < 32
    A("s_memrealtime s[8:9]")
    A("s_waitcnt lgkmcnt(0)")
    A("s_mov_b32 %s, s8" % s(66 + i))
    if CLK and i in CLK:
        A("s_memtime s[8:9]")
        A("s_waitcnt lgkmcnt(0)")
        if i == CLK[0]: A("s_mov_b32 s97, s8")
        else: A("s_sub_u32 s97, s8, s97")
        return
    for slot, st in ((30, BUDA), (31, BUDB)) if not CLK else ():
        if i == st[0]: A("s_mov_b32 %s, %s" % (s(66 + slot), s(sBUD)))
        if i == st[1]:
            A("s_sub_u32 %s, %s, %s" % (s(66 + slot), s(66 + slot), s(sBUD)))
            A("s_add_u32 %s, %s, 1000" % (s(66 + slot), s(66 + slot)))

def prof_end(A):
    if DIAG >= 0:
        stamp(A)
        l1, l2 = A.newlabel("dg"), A.newlabel("dg")
        A("s_cmp_lg_u32 s2, 75")
        A("s_cbranch_scc1 %s" % l2)
        A("s_memrealtime s[92:93]")
        A("s_waitcnt lgkmcnt(0)")
        if DIAG == 100:
            A("s_memtime s[96:97]")
            A("s_waitcnt lgkmcnt(0)")
        A("s_sub_u32 s96, s96, s94")
        if DIAG == 100: A("s_lshr_b32 s96, s96, 5")
        A("s_min_u32 s96, s96, 20000")
        A.label(l1)
        A("s_memrealtime s[90:91]")
        A("s_waitcnt lgkmcnt(0)")
        A("s_sub_u32 s90, s90, s92")
        A("s_cmp_lt_u32 s90, s96")
        A("s_cbranch_scc1 %s" % l1)
        A.label(l2)
    if not PROF: return
    A("s_waitcnt vmcnt(0)")
    stamp(A)
    n = 32
    A("s_lshl_b32 s56, s2, 9")
    A("s_add_u32 s56, s56, 0x%x" % PROFOFF)
    A("v_lshrrev_b32 v1, 6, v0")
    A("v_lshlrev_b32 v1, 7, v1")
    for i in range(n):
        A("v_mov_b32 v2, %s" % s(66 + i))
        A("buffer_store_dword v2, v1, %s, s56 offen offset:%d" % (SWS, 4 * i))

def c7(r):
    r %= 7; r = min(r, 7 - r); return s(SB + 2 * (r - 1), 2)
def s7(r):
    r %= 7
    return (s(SB + 6 + 2 * (r - 1), 2), 1) if r <= 3 else (s(SB + 6 + 2 * (7 - r - 1), 2), -1)

def red32(R, x, t):
    for m in ("quad_perm:[1,0,3,2]", "quad_perm:[2,3,0,1]", "row_half_mirror", "row_mirror"):
        R("v_add_f32_dpp %s, %s, %s %s row_mask:0xf bank_mask:0xf" % (v(x), v(x), v(x), m))
    R("v_mov_b32 %s, %s" % (v(t), v(x)))
    R("v_permlane16_swap_b32 %s, %s" % (v(x), v(t)))
    R("v_add_f32 %s, %s, %s" % (v(x), v(x), v(t)))

def gen_frags(R, nidx, qreg, ksteps, denom, dre, dim, tmp):
    nf, ang, n13 = tmp, tmp + 1, tmp + 2
    R("v_cvt_f32_u32 %s, %s" % (v(nf), v(nidx)))
    R("v_cvt_f32_u32 %s, %s" % (v(ang), v(qreg)))
    R("v_mul_f32 %s, %s, %s" % (v(nf), fbits(1.0 / denom), v(nf)))
    R("v_mul_f32 %s, 4.0, %s" % (v(ang), v(ang)))
    R("v_mul_f32 %s, %s, %s" % (v(n13), fbits(13.0), v(nf)))
    R("v_mul_f32 %s, %s, %s" % (v(ang), v(ang), v(nf)))
    n = 4 * ksteps
    def sc(i): return tmp + 3 + 2 * (i % 2), tmp + 4 + 2 * (i % 2)
    for i in range(n + 1):
        if i < n:
            cs, sn = sc(i)
            R("v_cos_f32 %s, %s" % (v(cs), v(ang)))
            R("v_sin_f32 %s, %s" % (v(sn), v(ang)))
            if i < n - 1: R("v_add_f32 %s, %s, %s" % (v(ang), v(ang), v(nf if i % 4 < 3 else n13)))
        if i > 0:
            cs, sn = sc(i - 1)
            R("%s %s, %s, %s" % (CV, v(dre + i - 1), v(cs), v(sn)))
            R("%s %s, -%s, %s" % (CV, v(dim + i - 1), v(sn), v(cs)))

def gen_f64(R, tmp):
    R("v_lshrrev_b32 %s, 6, v0" % v(tmp + 7))
    R("v_and_b32 %s, 15, v0" % v(tmp + 8))
    R("v_lshl_add_u32 %s, %s, 4, %s" % (v(tmp + 7), v(tmp + 7), v(tmp + 8)))
    R("v_bfe_u32 %s, v0, 4, 2" % v(tmp + 8))
    gen_frags(R, tmp + 7, tmp + 8, 4, 64, F64R, F64I, tmp)

def unpack7(R, src, dst):
    for t in range(7):
        R("v_lshlrev_b32 %s, 16, %s" % (v(dst + 2 * t), v(src + t)))
        R("v_and_b32 %s, 0xffff0000, %s" % (v(dst + 2 * t + 1), v(src + t)))

def stats_streams(z, a1, a2, t1, t2):
    R1 = Rec(); R2 = Rec()
    R1("v_pk_add_f32 %s, %s, %s" % (v(a1, 2), v(z, 2), v(z + 2, 2)))
    for k in range(2, 7): R1("v_pk_add_f32 %s, %s, %s" % (v(a1, 2), v(a1, 2), v(z + 2 * k, 2)))
    R1("v_add_f32 %s, %s, %s" % (v(a1), v(a1), v(a1 + 1)))
    red32(R1, a1, t1)
    R2("v_pk_mul_f32 %s, %s, %s" % (v(a2, 2), v(z, 2), v(z, 2)))
    for k in range(1, 7): R2("v_pk_fma_f32 %s, %s, %s, %s" % (v(a2, 2), v(z + 2 * k, 2), v(z + 2 * k, 2), v(a2, 2)))
    R2("v_add_f32 %s, %s, %s" % (v(a2), v(a2), v(a2 + 1)))
    red32(R2, a2, t2)
    return R1.l, R2.l

def mean_var(A, a1, a2):
    A("v_mul_f32 %s, %s, %s" % (v(a1), fbits(1.0 / D), v(a1)))
    A("v_mul_f32 %s, %s, %s" % (v(a2), fbits(1.0 / D), v(a2)))
    A("v_fma_f32 %s, -%s, %s, %s" % (v(a2), v(a1), v(a1), v(a2)))
    A("v_max_f32 %s, 0, %s" % (v(a2), v(a2)))

def poison(A, region, vtid16, vm1):
    A("s_lshl_b32 %s, s2, 13" % s(sT3))
    A("s_add_u32 %s, %s, 0x%x" % (s(sT3), s(sT3), region))
    A.vm("buffer_store_dwordx4 %s, %s, %s, %s offen sc1" % (v(vm1, 4), v(vtid16), SWS, s(sT3)))
    A("s_add_u32 %s, %s, 4096" % (s(sT3), s(sT3)))
    A.ptok = A.vm("buffer_store_dwordx4 %s, %s, %s, %s offen sc1" % (v(vm1, 4), v(vtid16), SWS, s(sT3)))

def poison_list(A, regions, t):
    A("v_lshlrev_b32 %s, 4, v0" % v(t))
    for k in range(4): A("v_mov_b32 %s, -1" % v(t + 2 + k))
    for r in regions: poison(A, r, t, t + 2)

def poison_ops(A, regions, va, vd, setup=True):
    ops = []
    if setup:
        def st():
            A("v_lshlrev_b32 %s, 4, v0" % v(va))
            for k in range(4): A("v_mov_b32 %s, -1" % v(vd + k))
        ops.append(st)
    for r in regions:
        for h in range(2):
            def op(r=r, h=h):
                A("s_lshl_b32 %s, s2, 13" % s(sC))
                A("s_add_u32 %s, %s, 0x%x" % (s(sC), s(sC), r + 4096 * h))
                A.ptok = A.vm("buffer_store_dwordx4 %s, %s, %s, %s offen sc1" % (v(vd, 4), v(va), SWS, s(sC)))
            ops.append(op)
    return ops

def maxchain(A, regs, t):
    regs = list(regs)
    A("v_max3_u32 %s, %s, %s, %s" % (v(t), v(regs[0]), v(regs[1]), v(regs[2])))
    regs = regs[3:]
    while len(regs) >= 2:
        A("v_max3_u32 %s, %s, %s, %s" % (v(t), v(t), v(regs[0]), v(regs[1]))); regs = regs[2:]
    if regs: A("v_max_u32 %s, %s, %s" % (v(t), v(t), v(regs[0])))

def poll_loads(A, issue, regs, t, dly=0, after=None):
    lt, lo = A.newlabel("poll"), A.newlabel("pollok")
    if dly: A("s_sleep %d" % dly)
    if after:
        lc = A.newlabel("pollc")
        issue(); tk_ = A.vmn - 1
        after()
        A.wvm(tk_)
        A("s_branch %s" % lc)
        n0 = A.vmn
    A.label(lt)
    issue()
    A("s_waitcnt vmcnt(0)")
    if after:
        A.vmn = n0
        A.label(lc)
    maxchain(A, regs, t)
    A("v_cmp_eq_u32 vcc, -1, %s" % v(t))
    A("s_cbranch_vccz %s" % lo)
    A("s_cmp_eq_u32 %s, 0" % s(sBUD))
    A("s_cbranch_scc1 %s" % lo)
    A("s_sub_u32 %s, %s, 1" % (s(sBUD), s(sBUD)))
    if MASKED: A("s_mov_b64 exec, vcc")
    if SLEEP: A("s_sleep %d" % SLEEP)
    A("s_branch %s" % lt)
    A.label(lo)
    if MASKED: A("s_mov_b64 exec, -1")

def dma_lane(R, dst, rowstride, t):
    R("v_bfe_u32 %s, v0, 3, 3" % v(t))
    R("s_mov_b32 %s, %d" % (s(sC), rowstride))
    R("v_mul_lo_u32 %s, %s, %s" % (v(dst), v(t), s(sC)))
    R("v_bfe_u32 %s, v0, 4, 1" % v(t))
    R("v_lshlrev_b32 %s, 2, %s" % (v(t), v(t)))
    R("v_and_b32 %s, 7, v0" % v(t + 1))
    R("v_xor_b32 %s, %s, %s" % (v(t), v(t), v(t + 1)))
    R("v_lshl_add_u32 %s, %s, 4, %s" % (v(dst), v(t), v(dst)))

def w1_voffs(R, dst, t):
    dma_lane(R, dst, 32 * 3584, t)
    R("s_lshl_b32 %s, %s, 7" % (s(sC), s(sFT)))
    R("s_or_b32 %s, %s, %s" % (s(sC), s(sC), s(sA1)))
    R("v_add_u32 %s, %s, %s" % (v(dst), s(sC), v(dst)))
    for i in range(1, 4):
        qd, h = i // 2, i % 2
        R("v_add_u32 %s, 0x%x, %s" % (v(dst + i), (512 * qd + 256 * h) * 3584 - ((qd % 2) * 2 + h) * 1024, v(dst)))

def w2_voffs(R, dst, t):
    dma_lane(R, dst, 4096, t)
    R("s_lshl_b32 %s, %s, 7" % (s(sC), s(sST)))
    R("s_or_b32 %s, %s, %s" % (s(sC), s(sC), s(sA2)))
    R("v_add_u32 %s, %s, %s" % (v(dst), s(sC), v(dst)))
    for i in range(1, 4):
        p, h = i // 2, i % 2
        R("v_add_u32 %s, 0x%x, %s" % (v(dst + i), p * 65536 + h * 32768 - (p * 2 + h) * 1024, v(dst)))

def tr_addr(R, dst, rowsel_hi, t):
    R("v_bfe_u32 %s, v0, 2, 2" % v(t))
    R("v_bfe_u32 %s, v0, 5, 1" % v(t + 1))
    R("v_mul_u32_u24 %s, %d, %s" % (v(t + 1), rowsel_hi, v(t + 1)))
    R("v_add_u32 %s, %s, %s" % (v(t + 1), v(t + 1), v(t)))
    R("v_lshlrev_b32 %s, 7, %s" % (v(dst), v(t + 1)))
    R("v_lshrrev_b32 %s, 4, v0" % v(t))
    R("v_xor_b32 %s, %s, v0" % (v(t), v(t)))
    R("v_bfe_u32 %s, %s, 3, 1" % (v(t), v(t)))
    R("v_lshl_add_u32 %s, %s, 6, %s" % (v(dst), v(t), v(dst)))
    R("v_bfe_u32 %s, v0, 4, 1" % v(t))
    R("v_lshl_add_u32 %s, %s, 5, %s" % (v(dst), v(t), v(dst)))
    R("v_and_b32 %s, 3, v0" % v(t))
    R("v_lshl_add_u32 %s, %s, 3, %s" % (v(dst), v(t), v(dst)))
    R("v_add_u32 %s, %s, %s" % (v(dst), s(sRING), v(dst)))
    R("v_xor_b32 %s, 64, %s" % (v(dst + 1), v(dst)))

def dma_chunk(A, which, ks0, n, voff, slot0=0):
    ops = []
    assert ks0 % 2 == 0 and n % 2 == 0
    for p in range(n // 2):
        for k in range(4):
            def op(p=p, k=k):
                if k == 0:
                    npair = n // 2
                    if KROT == 1:
                        A("s_add_u32 m0, %s, %d" % (s(sRING), (slot0 + 2 * p) * 2048))
                        A("s_add_u32 %s, %s, %d" % (s(sT4), s(sSH1 if which == 1 else sSH2), ks0 // 2 + p))
                    else:
                        if p == 0:
                            A("s_mov_b32 %s, %s" % (s(sT6), s(sROT1 if which == 1 else sDT2)))
                            for _ in range((7 // npair)):
                                A("s_cmp_ge_u32 %s, %d" % (s(sT6), npair))
                                A("s_cselect_b32 %s, %d, 0" % (s(sT4), npair))
                                A("s_sub_u32 %s, %s, %s" % (s(sT6), s(sT6), s(sT4)))
                        else:
                            A("s_add_u32 %s, %s, 1" % (s(sT6), s(sT6)))
                            A("s_cmp_eq_u32 %s, %d" % (s(sT6), npair))
                            A("s_cselect_b32 %s, 0, %s" % (s(sT6), s(sT6)))
                        A("s_lshl_b32 %s, %s, 12" % (s(sT4), s(sT6)))
                        A("s_add_u32 %s, %s, %s" % (s(sT4), s(sT4), s(sRING)))
                        A("s_add_u32 m0, %s, %d" % (s(sT4), slot0 * 2048))
                        A("s_add_u32 %s, %s, %d" % (s(sT4), s(sT6), ks0 // 2))
                        if KROT == 5:
                            if which == 2 and ks0 // 2 + npair > 12:
                                A("s_cmp_ge_u32 %s, 12" % s(sT4))
                                A("s_cselect_b32 s65, 1, 3")
                            else:
                                A("s_mov_b32 s65, 3")
                            A("s_add_u32 %s, %s, %s" % (s(sT5), s(sT4), s(sSH1)))
                            A("s_and_b32 %s, %s, s65" % (s(sT5), s(sT5)))
                            A("s_andn2_b32 %s, %s, s65" % (s(sT4), s(sT4)))
                            A("s_or_b32 %s, %s, %s" % (s(sT4), s(sT4), s(sT5)))
                        elif KROT: A("s_add_u32 %s, %s, %s" % (s(sT4), s(sT4), s(sSH1 if which == 1 else sSH2)))
                    if which == 1:
                        A("s_bfe_u32 %s, %s, 0x30001" % (s(sT5), s(sT4)))
                        A("s_bitcmp1_b32 %s, 0" % s(sT4))
                        A("s_cselect_b32 %s, %s, %s" % (s(sT4), s(sWB1 + 1), s(sWB1)))
                        A("s_mul_i32 %s, %s, 3584" % (s(sT5), s(sT5)))
                        A("s_add_u32 %s, %s, %s" % (s(sT5), s(sT5), s(sT4)))
                    else:
                        A("s_cmp_ge_u32 %s, 14" % s(sT4))
                        A("s_cselect_b32 %s, %s, %s" % (s(sT5), s(sWB2 + 1), s(sWB2)))
                        A("s_add_u32 %s, %s, %s" % (s(sT5), s(sT5), s(sT4)))
                        A("s_lshl_b32 %s, %s, 17" % (s(sT5), s(sT5)))
                A.last_dma = A.vm("buffer_load_dwordx4 %s, %s, %s offen offset:%d%s lds" % (v(voff + k), SW1 if which == 1 else SW2, s(sT5), k * 1024, DMAFL))
            ops.append(op)
    return ops

def tr_chunk(A, n, addr, rows, dstfn):
    for i in range(n):
        for tl in range(2):
            for rd in range(2):
                A.ds("ds_read_b64_tr_b16 %s, %s offset:%d" % (dstfn(8 * i + 4 * tl + 2 * rd), v(addr + tl), i * 2048 + rows[rd] * 128))

PW1, PTR1, PW2 = 240, 248, 250

def a1_consts(R):
    R("s_lshr_b32 %s, %s, 3" % (s(sT0), s(sW)))
    R("s_and_b32 %s, %s, 7" % (s(sT1), s(sW)))
    R("s_lshl_b32 %s, %s, 3" % (s(sT1), s(sT1)))
    R("v_lshrrev_b32 v1, 5, v0")
    R("v_add_u32 v1, %s, v1" % s(sT1))
    R("v_lshlrev_b32 v1, 5, v1")
    R("v_add_u32 v1, %s, v1" % s(sT0))
    R("v_mul_u32_u24 v1, 896, v1")
    R("v_and_b32 v2, 31, v0")
    R("v_lshl_add_u32 v1, v2, 2, v1")

def a1_consts2(R):
    TC, TS = 20, 26
    R("v_cvt_f32_u32 v14, v2")
    R("v_mul_f32 v14, %s, v14" % fbits(2.0 / 448))
    R("v_add_f32 v15, %s, v14" % fbits(1.0 / 448))
    for k in range(1, 4):
        if k == 1: a0, a1_ = 14, 15
        else:
            a0, a1_ = 16, 17
            R("v_mul_f32 v16, %s, v14" % fbits(float(k)))
            R("v_mul_f32 v17, %s, v15" % fbits(float(k)))
        R("v_cos_f32 %s, %s" % (v(TC + 2 * (k - 1)), v(a0)))
        R("v_cos_f32 %s, %s" % (v(TC + 2 * (k - 1) + 1), v(a1_)))
        R("v_sin_f32 %s, %s" % (v(TS + 2 * (k - 1)), v(a0)))
        R("v_sin_f32 %s, %s" % (v(TS + 2 * (k - 1) + 1), v(a1_)))
    R("v_lshrrev_b32 v3, 5, v0")
    R("v_mul_u32_u24 v3, %d, v3" % LSTR)
    R("v_lshl_add_u32 v3, v2, 3, v3")
    R("v_add_u32 v3, 0x%x, v3" % SCR)
    R("v_bfe_u32 v13, v0, 4, 2")
    R("v_and_b32 v12, 15, v0")
    R("v_mul_u32_u24 v18, %d, v12" % LSTR)
    R("v_lshl_add_u32 v18, v13, 4, v18")
    R("v_add_u32 v18, 0x%x, v18" % SCR)
    R("v_lshrrev_b32 v19, 1, v13")
    R("v_lshl_add_u32 v19, v19, 6, v12")
    R("v_lshrrev_b32 v14, 6, v0")
    R("v_lshl_add_u32 v19, v14, 4, v19")
    R("v_lshlrev_b32 v19, 5, v19")
    R("v_and_b32 v14, 1, v13")
    R("v_lshl_add_u32 v19, v14, 4, v19")

def a1_compute(A, zout):
    XR, TC, TS, Z = 4, 20, 26, 32
    unpack7(A, XR, Z)
    s1, s2 = stats_streams(Z, 46, 60, 4, 5)
    Dq = Rec()
    P, Q = 48, 54
    for t in range(1, 4):
        Dq("v_pk_add_f32 %s, %s, %s" % (v(P + 2 * (t - 1), 2), v(Z + 2 * t, 2), v(Z + 2 * (7 - t), 2)))
        Dq("v_pk_add_f32 %s, %s, %s neg_lo:[0,1] neg_hi:[0,1]" % (v(Q + 2 * (t - 1), 2), v(Z + 2 * t, 2), v(Z + 2 * (7 - t), 2)))
    RE, IM = 64, 70
    for k in range(1, 4):
        Rr, N = 76 + 4 * (k % 2), 78 + 4 * (k % 2)
        for t in range(1, 4):
            Dq("v_pk_fma_f32 %s, %s, %s, %s" % (v(Rr, 2), v(P + 2 * (t - 1), 2), c7(t * k), v(Z, 2) if t == 1 else v(Rr, 2)))
        for t in range(1, 4):
            cs, sg = s7(t * k)
            if t == 1: Dq("v_pk_mul_f32 %s, %s, %s" % (v(N, 2), v(Q, 2), cs))
            else:
                neg = "" if sg == 1 else " neg_lo:[1,0,0] neg_hi:[1,0,0]"
                Dq("v_pk_fma_f32 %s, %s, %s, %s%s" % (v(N, 2), v(Q + 2 * (t - 1), 2), cs, v(N, 2), neg))
        tc, ts = v(TC + 2 * (k - 1), 2), v(TS + 2 * (k - 1), 2)
        re, im = v(RE + 2 * (k - 1), 2), v(IM + 2 * (k - 1), 2)
        Dq("v_pk_mul_f32 %s, %s, %s" % (re, v(N, 2), ts))
        Dq("v_pk_mul_f32 %s, %s, %s" % (im, v(N, 2), tc))
        Dq("v_pk_fma_f32 %s, %s, %s, %s neg_lo:[0,0,1] neg_hi:[0,0,1]" % (re, v(Rr, 2), tc, re))
        Dq("v_pk_fma_f32 %s, %s, %s, %s" % (im, v(Rr, 2), ts, im))
    Dq("v_pk_add_f32 v[6:7], %s, %s" % (v(Z, 2), v(P, 2)))
    Dq("v_pk_add_f32 v[8:9], %s, %s" % (v(P + 2, 2), v(P + 4, 2)))
    Dq("v_pk_add_f32 v[6:7], v[6:7], v[8:9]")
    for l in zipmix(Dq.l, s1, s2): A(l)
    mean_var(A, 46, 60)
    A("v_add_f32 v60, %s, v60" % fbits(1e-5))
    A("v_rsq_f32 v60, v60")
    A("v_mul_f32 v46, %s, v46" % fbits(-7.0))
    A("v_mul_f32 v60, %s, v60" % fbits(1.0 / (448.0 * 2048.0)))
    A("v_pk_add_f32 v[6:7], v[6:7], v[46:47] op_sel_hi:[1,0]")
    for k in range(6):
        A("v_pk_mul_f32 %s, %s, v[60:61] op_sel_hi:[1,0]" % (v(RE + 2 * k, 2), v(RE + 2 * k, 2)))
    A("v_pk_mul_f32 v[6:7], v[6:7], v[60:61] op_sel_hi:[1,0]")
    for k in range(1, 4):
        o = 32 + 2 * k
        A("%s %s, %s, -%s" % (CV, v(o), v(RE + 2 * (k - 1)), v(IM + 2 * (k - 1))))
        A("%s %s, %s, -%s" % (CV, v(o + 1), v(RE + 2 * (k - 1) + 1), v(IM + 2 * (k - 1) + 1)))
        A.ds("ds_write_b64 v3, %s offset:%d" % (v(o, 2), k * 8 * LSTR))
    A("%s v32, v6, 0" % CV)
    A("%s v33, v7, 0" % CV)
    A.ds("ds_write_b64 v3, v[32:33]")
    A("s_lshl_b32 %s, %s, 13" % (s(sT0), s(sW)))
    A("s_add_u32 %s, %s, 0x%x" % (s(sT0), s(sT0), zout))
    A("s_add_u32 %s, %s, 4096" % (s(sT1), s(sT0)))
    A("s_waitcnt lgkmcnt(0)")
    A("s_barrier")
    AF = 64
    tk = []
    for mt in range(2):
        for t in range(4):
            tk.append(A.ds("ds_read_b128 %s, v18 offset:%d" % (v(AF + 16 * mt + 4 * t, 4), mt * 16 * LSTR + 64 * t)))
    DR, DI = 32, 40
    for mt in range(2):
        for t in range(4):
            A.wds(tk[4 * mt + t])
            A("%s %s, %s, %s, %s" % (M16, v(DR + 4 * mt, 4), v(AF + 16 * mt + 4 * t, 4), v(F64R + 4 * t, 4), "0" if t == 0 else v(DR + 4 * mt, 4)))
            A("%s %s, %s, %s, %s" % (M16, v(DI + 4 * mt, 4), v(AF + 16 * mt + 4 * t, 4), v(F64I + 4 * t, 4), "0" if t == 0 else v(DI + 4 * mt, 4)))
    for mt in range(2):
        for r in range(4):
            A("%s %s, %s, %s" % (CV, v(48 + 4 * mt + r), v(DR + 4 * mt + r), v(DI + 4 * mt + r)))
        A.vm("buffer_store_dwordx4 %s, v19, %s, %s offen sc1" % (v(48 + 4 * mt, 4), SWS, s(sT0 + mt)))

F32R, F32I = 128, 144
TW1, TW2, WV = 16, 24, 8
def a2_consts(R):
    R("v_and_b32 v2, 15, v0")
    R("v_bfe_u32 v3, v0, 4, 2")
    R("v_lshrrev_b32 v4, 6, v0")
    R("v_lshrrev_b32 v5, 1, v4")
    R("v_lshl_add_u32 v5, v5, 4, v2")
    R("v_lshlrev_b32 v5, 3, v5")
    R("v_and_b32 v6, 1, v4")
    R("v_lshl_add_u32 v5, v6, 2, v5")
    R("v_lshrrev_b32 v6, 1, v3")
    R("v_add_u32 v5, v5, v6")
    R("v_lshlrev_b32 v5, 13, v5")
    R("v_and_b32 v7, 1, v3")
    R("v_lshl_add_u32 v5, v7, 4, v5")
    R("v_lshl_add_u32 v56, v4, 4, v2")
    R("v_lshl_add_u32 v6, v56, 2, v6")
    R("v_lshlrev_b32 v6, 13, v6")
    R("v_lshl_add_u32 v7, v7, 4, v6")
    R("v_lshlrev_b32 v6, 8, v2")
    R("v_lshl_add_u32 v6, v4, 6, v6")
    R("v_lshl_add_u32 v6, v3, 4, v6")
    R("W_HERE")
    R("v_cvt_f32_u32 v57, v56")
    R("v_cvt_f32_u32 v58, v3")
    R("v_mul_f32 v57, %s, v57" % fbits(1.0 / 2048))
    R("v_mul_f32 v58, 4.0, v58")
    R("v_mul_f32 v59, %s, v57" % fbits(13.0))
    R("v_mul_f32 v58, v58, v57")
    for i in range(8):
        R("v_cos_f32 v60, v58"); R("v_sin_f32 v61, v58")
        if i < 7: R("v_add_f32 v58, v58, %s" % v(57 if i != 3 else 59))
        R("v_cvt_pk_f16_f32 %s, v60, -v61" % v(TW1 + i))
    R("v_lshlrev_b32 v56, 4, v4")
    R("v_lshl_add_u32 v56, v3, 2, v56")
    R("v_cvt_f32_u32 v56, v56")
    R("v_add_u32 v63, 16, v2")
    for nt in range(2):
        R("v_cvt_f32_u32 v57, %s" % v(2 if nt == 0 else 63))
        R("v_mul_f32 v57, %s, v57" % fbits(1.0 / 2048))
        R("v_mul_f32 v58, v56, v57")
        for r in range(4):
            R("v_cos_f32 v60, v58"); R("v_sin_f32 v61, v58")
            if r < 3: R("v_add_f32 v58, v58, v57")
            R("v_cvt_pk_f16_f32 %s, v60, v61" % v(TW2 + 4 * nt + r))

def f32_gen(R, t):
    R("v_and_b32 %s, 15, v0" % v(t + 7))
    R("v_bfe_u32 %s, v0, 4, 2" % v(t + 8))
    R("v_add_u32 %s, 16, %s" % (v(t + 9), v(t + 7)))
    for mt in range(2):
        gen_frags(R, t + 7 + 2 * mt, t + 8, 2, 32, F32R + 8 * mt, F32I + 8 * mt, t)

def cmul_mix(A, ar, ai, tw, t):
    A("v_fma_mix_f32 %s, %s, %s, 0 op_sel:[0,1,0] op_sel_hi:[0,1,0]" % (v(t), v(ai), v(tw)))
    A("v_fma_mix_f32 %s, %s, %s, 0 op_sel:[0,0,0] op_sel_hi:[0,1,0]" % (v(t + 1), v(ai), v(tw)))
    A("v_fma_mix_f32 %s, %s, %s, %s op_sel:[0,1,0] op_sel_hi:[0,1,0]" % (v(ai), v(ar), v(tw), v(t + 1)))
    A("v_fma_mix_f32 %s, %s, %s, -%s op_sel:[0,0,0] op_sel_hi:[0,1,0]" % (v(ar), v(ar), v(tw), v(t)))

def a2_wload(A):
    A("s_lshr_b32 %s, %s, 6" % (s(sT2), s(sW)))
    A("s_lshl_b32 %s, %s, 11" % (s(sT2), s(sT2)))
    A("s_and_b32 %s, %s, 63" % (s(sT3), s(sW)))
    A("s_lshl_b32 %s, %s, 5" % (s(sT3), s(sT3)))
    A("s_add_u32 %s, %s, %s" % (s(sT2), s(sT2), s(sT3)))
    A("s_add_u32 %s, %s, 0x%x" % (s(sT2), s(sT2), WT))
    A("s_add_u32 %s, %s, 16384" % (s(sT3), s(sT2)))
    for mt in range(2):
        A.wtok = A.vm("buffer_load_dwordx4 %s, v7, %s, %s offen sc1" % (v(WV + 4 * mt, 4), SWS, s(sT2 + mt)))

def a2_phase(A, zin, tout, poll, after_loads, post=lambda: None):
    A("s_lshl_b32 %s, %s, 5" % (s(sT0), s(sW)))
    A("s_add_u32 %s, %s, 0x%x" % (s(sT0), s(sT0), zin))
    A("s_add_u32 %s, %s, 16384" % (s(sT1), s(sT0)))
    G = 32
    def issue():
        A.vm("buffer_load_dwordx4 %s, v5, %s, %s offen sc1" % (v(G, 4), SWS, s(sT0)))
        return A.vm("buffer_load_dwordx4 %s, v5, %s, %s offen sc1" % (v(G + 4, 4), SWS, s(sT1)))
    A("v_lshlrev_b32 v62, 4, v0")
    A("v_lshl_add_u32 v62, v4, 10, v62")
    A("v_add_u32 v62, 0x%x, v62" % SCR)
    A("v_and_b32 v63, 63, v0")
    A("v_lshlrev_b32 v63, 4, v63")
    A("v_add_u32 v63, 0x%x, v63" % SCR)
    if poll:
        tw = A.wtok
        poll_loads(A, issue, range(G, G + 8), 56, DLY[1])
    else:
        tz = issue(); a2_wload(A); tw = A.wtok; post(); A.wvm(tz)
    stamp(A)
    A.ds("ds_write_b128 v62, %s" % v(G, 4))
    A.ds("ds_write_b128 v62, %s offset:1024" % v(G + 4, 4))
    after_loads()
    A("s_waitcnt lgkmcnt(0)")
    A("s_barrier")
    DA = 64
    tk = [A.ds("ds_read_b128 %s, v63 offset:%d" % (v(DA + 4 * f, 4), 1024 * f)) for f in range(8)]
    GR, GI = 32, 40
    for mt in range(2):
        for t in range(4):
            A.wds(tk[4 * mt + t])
            A("%s %s, %s, %s, %s" % (M16, v(GR + 4 * mt, 4), v(DA + 16 * mt + 4 * t, 4), v(F64R + 4 * t, 4), "0" if t == 0 else v(GR + 4 * mt, 4)))
            A("%s %s, %s, %s, %s" % (M16, v(GI + 4 * mt, 4), v(DA + 16 * mt + 4 * t, 4), v(F64I + 4 * t, 4), "0" if t == 0 else v(GI + 4 * mt, 4)))
            A.bg()
    P1 = 48
    for i in range(8):
        cmul_mix(A, GR + i, GI + i, TW1 + i, 56 + 2 * (i % 2))
        A("%s %s, %s, %s" % (CV, v(P1 + i), v(GR + i), v(GI + i)))
        A.bg()
    XR, XI = 64, 72
    for mt in range(2):
        for ks in range(2):
            A("%s %s, %s, %s, %s" % (M16, v(XR + 4 * mt, 4), v(F32R + 8 * mt + 4 * ks, 4), v(P1 + 4 * ks, 4), "0" if ks == 0 else v(XR + 4 * mt, 4)))
            A("%s %s, %s, %s, %s" % (M16, v(XI + 4 * mt, 4), v(F32I + 8 * mt + 4 * ks, 4), v(P1 + 4 * ks, 4), "0" if ks == 0 else v(XI + 4 * mt, 4)))
    A.wvm(tw)
    if not poll:
        A("s_lshl_b32 %s, s2, 13" % s(sT2))
        A("s_add_u32 %s, %s, 0x%x" % (s(sT2), s(sT2), CNT))
        A("v_lshlrev_b32 v56, 4, v0")
        A("v_add_u32 v57, 4096, v56")
        A.vm("buffer_store_dwordx4 %s, v56, %s, %s offen" % (v(WV, 4), SWS, s(sT2)))
        A.vm("buffer_store_dwordx4 %s, v57, %s, %s offen" % (v(WV + 4, 4), SWS, s(sT2)))
    WR_, WI_ = 80, 88
    for i in range(8):
        A("v_lshlrev_b32 %s, 16, %s" % (v(WR_ + i), v(WV + i)))
        A("v_and_b32 %s, 0xffff0000, %s" % (v(WI_ + i), v(WV + i)))
    P2 = 48
    for i in range(0, 8, 2):
        xr, xi, wr, wi = v(XR + i, 2), v(XI + i, 2), v(WR_ + i, 2), v(WI_ + i, 2)
        A("v_pk_mul_f32 v[32:33], %s, %s" % (xi, wi))
        A("v_pk_mul_f32 v[34:35], %s, %s" % (xi, wr))
        A("v_pk_fma_f32 v[32:33], %s, %s, v[32:33] neg_lo:[0,0,1] neg_hi:[0,0,1]" % (xr, wr))
        A("v_pk_fma_f32 v[34:35], %s, %s, v[34:35]" % (xr, wi))
        A("%s %s, v34, v32" % (CV, v(P2 + i)))
        A("%s %s, v35, v33" % (CV, v(P2 + i + 1)))
        A.bg()
    HR, HI = 32, 40
    for nt in range(2):
        for ks in range(2):
            A("%s %s, %s, %s, %s" % (M16, v(HI + 4 * nt, 4), v(P2 + 4 * ks, 4), v(F32R + 8 * nt + 4 * ks, 4), "0" if ks == 0 else v(HI + 4 * nt, 4)))
            A("%s %s, %s, %s, %s" % (M16, v(HR + 4 * nt, 4), v(P2 + 4 * ks, 4), v(F32I + 8 * nt + 4 * ks, 4), "0" if ks == 0 else v(HR + 4 * nt, 4)))
    A.bg(2)
    P3 = 48
    A("v_lshlrev_b32 v62, 4, v0")
    A("v_add_u32 v62, 0x%x, v62" % (SCR + 8192))
    for i in range(8):
        cmul_mix(A, HR + i, HI + i, TW2 + i, 64 + 2 * (i % 2))
        A("%s %s, %s, %s" % (CV, v(P3 + i), v(HI + i), v(HR + i)))
        if i == 3: A.ds("ds_write_b128 v62, %s" % v(P3, 4))
        A.bg()
    A.ds("ds_write_b128 v62, %s offset:4096" % v(P3 + 4, 4))
    A("s_lshl_b32 %s, %s, 13" % (s(sT0), s(sW)))
    A("s_add_u32 %s, %s, 0x%x" % (s(sT0), s(sT0), tout))
    A("s_add_u32 %s, %s, 4096" % (s(sT1), s(sT0)))
    if not poll and PZ: A.wvm(A.p1tok)
    A("s_waitcnt lgkmcnt(0)")
    A("s_barrier")
    tk = [A.ds("ds_read_b128 %s, v63 offset:%d" % (v(DA + 4 * f, 4), 8192 + 1024 * f)) for f in range(8)]
    TR, TI = 32, 40
    for nt in range(2):
        for t in range(4):
            A.wds(tk[4 * nt + t])
            A("%s %s, %s, %s, %s" % (M16, v(TI + 4 * nt, 4), v(F64R + 4 * t, 4), v(DA + 16 * nt + 4 * t, 4), "0" if t == 0 else v(TI + 4 * nt, 4)))
            A("%s %s, %s, %s, %s" % (M16, v(TR + 4 * nt, 4), v(F64I + 4 * t, 4), v(DA + 16 * nt + 4 * t, 4), "0" if t == 0 else v(TR + 4 * nt, 4)))
    for nt in range(2):
        for r in range(4):
            A("%s %s, %s, %s" % (CV, v(48 + 4 * nt + r), v(TI + 4 * nt + r), v(TR + 4 * nt + r)))
        A.vm("buffer_store_dwordx4 %s, v6, %s, %s offen sc1" % (v(48 + 4 * nt, 4), SWS, s(sT0 + nt)))
    A.bg_flush()

def a3_consts(R):
    a1_consts(R)
    R("v_lshlrev_b32 v3, 13, v0")
    R("v_lshrrev_b32 v11, 6, v0")
    R("v_and_b32 v12, 15, v0")
    R("v_mul_u32_u24 v15, %d, v12" % LSTR)
    R("v_lshl_add_u32 v12, v11, 4, v12")
    R("v_bfe_u32 v13, v0, 4, 2")
    R("v_lshl_add_u32 v15, v13, 4, v15")
    R("v_add_u32 v15, 0x%x, v15" % SCR)
    R("v_lshrrev_b32 v14, 1, v11")
    R("v_lshlrev_b32 v14, 4, v14")
    R("v_and_b32 v30, 1, v11")
    R("v_lshl_add_u32 v14, v30, 1, v14")
    R("v_mul_u32_u24 v14, %d, v14" % LSTR)
    R("v_and_b32 v30, 63, v0")
    R("v_lshl_add_u32 v14, v30, 2, v14")
    R("v_add_u32 v14, 0x%x, v14" % SCR)
    TW = 24
    R("v_cvt_f32_u32 v30, v12")
    for k in range(1, 4):
        R("v_mul_f32 v31, %s, v30" % fbits(k / 448.0))
        R("v_cos_f32 %s, v31" % v(TW + 2 * (k - 1)))
        R("v_sin_f32 %s, v31" % v(TW + 2 * (k - 1) + 1))
    for k in range(6): R("v_add_f32 %s, %s, %s" % (v(TW + k), v(TW + k), v(TW + k)))
    R("v_mul_u32_u24 v62, %d, v13" % (2 * YSTR))
    R("v_lshl_add_u32 v62, v12, 2, v62")
    R("v_add_u32 v62, 0x%x, v62" % (SCR + A3_Y))
    R("v_lshrrev_b32 v31, 5, v0")
    R("v_mul_u32_u24 v30, %d, v31" % HSTR)
    R("v_lshl_add_u32 v30, v2, 2, v30")
    R("v_add_u32 v30, 0x%x, v30" % (SCR + A3_H))
    R("v_mul_u32_u24 v63, %d, v31" % YSTR)
    R("v_lshl_add_u32 v63, v2, 3, v63")
    R("v_add_u32 v63, 0x%x, v63" % (SCR + A3_Y))
    R("v_bfe_u32 v31, v0, 2, 2")
    R("v_mul_u32_u24 v31, %d, v31" % HSTR)
    R("v_and_b32 v12, 3, v0")
    R("v_lshl_add_u32 v31, v12, 3, v31")
    R("v_lshl_add_u32 v31, v13, 5, v31")
    R("v_lshl_add_u32 v31, v11, 7, v31")
    R("v_add_u32 v31, 0x%x, v31" % (SCR + A3_H))
    R("v_lshlrev_b32 v12, 4, v0")

def a3_phase(A, l, tin, xout, hout, after_loads, post=None):
    XR, TV, TW = 4, 16, 24
    if l == 0:
        for t in range(7): A.vm("global_load_dword %s, v1, %s offset:%d" % (v(XR + t), s(sX, 2), 128 * t))
    else:
        A("s_mov_b32 %s, 0x%x" % (s(sT1), X2))
        for t in range(7): A.vm("buffer_load_dword %s, v1, %s, %s offen offset:%d sc1" % (v(XR + t), SWS, s(sT1), 128 * t))
    A("s_lshl_b32 %s, %s, 5" % (s(sT0), s(sW)))
    A("s_add_u32 %s, %s, 0x%x" % (s(sT0), s(sT0), tin))
    def issue():
        A.vm("buffer_load_dwordx4 %s, v3, %s, %s offen sc1" % (v(TV, 4), SWS, s(sT0)))
        A.vm("buffer_load_dwordx4 %s, v3, %s, %s offen offset:16 sc1" % (v(TV + 4, 4), SWS, s(sT0)))
    poll_loads(A, issue, range(TV, TV + 8), 32, DLY[2] if post is None else 0, post)
    stamp(A)
    for row in range(8):
        A.ds("ds_write_b32 v14, %s offset:%d" % (v(TV + row), (4 * (row // 2) + (row & 1)) * LSTR))
    after_loads()
    A("s_waitcnt lgkmcnt(0)")
    A("s_barrier")
    AF = 64
    tk = []
    for mt in range(2):
        for t in range(4):
            tk.append(A.ds("ds_read_b128 %s, v15 offset:%d" % (v(AF + 16 * mt + 4 * t, 4), mt * 16 * LSTR + 64 * t)))
    DR, DI = 32, 40
    for mt in range(2):
        for t in range(4):
            A.wds(tk[4 * mt + t])
            A("%s %s, %s, %s, %s" % (M16, v(DI + 4 * mt, 4), v(AF + 16 * mt + 4 * t, 4), v(F64R + 4 * t, 4), "0" if t == 0 else v(DI + 4 * mt, 4)))
            A("%s %s, %s, %s, %s" % (M16, v(DR + 4 * mt, 4), v(AF + 16 * mt + 4 * t, 4), v(F64I + 4 * t, 4), "0" if t == 0 else v(DR + 4 * mt, 4)))
            A.bg()
    Z = 80
    unpack7(A, XR, Z)
    UR, UI, U0 = 48, 54, DR
    for k in range(1, 4):
        tw = v(TW + 2 * (k - 1), 2)
        vr, vi = v(DR + 2 * k, 2), v(DI + 2 * k, 2)
        ur, ui = v(UR + 2 * (k - 1), 2), v(UI + 2 * (k - 1), 2)
        A("v_pk_mul_f32 %s, %s, %s op_sel:[0,1] op_sel_hi:[1,1]" % (ur, vi, tw))
        A("v_pk_mul_f32 %s, %s, %s op_sel:[0,0] op_sel_hi:[1,0]" % (ui, vi, tw))
        A("v_pk_fma_f32 %s, %s, %s, %s op_sel:[0,0,0] op_sel_hi:[1,0,1] neg_lo:[0,0,1] neg_hi:[0,0,1]" % (ur, vr, tw, ur))
        A("v_pk_fma_f32 %s, %s, %s, %s op_sel:[0,1,0] op_sel_hi:[1,1,1]" % (ui, vr, tw, ui))
        A.bg()
    def ywrite(pair, t):
        A.ds("ds_write_b32 v62, %s offset:%d" % (v(pair), 256 * t))
        A.ds("ds_write_b32 v62, %s offset:%d" % (v(pair + 1), YSTR + 256 * t))
    A("v_pk_add_f32 v[64:65], %s, %s" % (v(U0, 2), v(UR, 2)))
    A("v_pk_add_f32 v[66:67], %s, %s" % (v(UR + 2, 2), v(UR + 4, 2)))
    A("v_pk_add_f32 v[64:65], v[64:65], v[66:67]")
    ywrite(64, 0)
    for t in range(1, 4):
        aa, bb, y1, y2 = 36, 38, 40 + 4 * (t % 2), 42 + 4 * (t % 2)
        for k in range(1, 4):
            A("v_pk_fma_f32 %s, %s, %s, %s" % (v(aa, 2), v(UR + 2 * (k - 1), 2), c7(t * k), v(U0, 2) if k == 1 else v(aa, 2)))
        for k in range(1, 4):
            cs, sg = s7(t * k)
            if k == 1: A("v_pk_mul_f32 %s, %s, %s" % (v(bb, 2), v(UI, 2), cs))
            else:
                neg = "" if sg == 1 else " neg_lo:[1,0,0] neg_hi:[1,0,0]"
                A("v_pk_fma_f32 %s, %s, %s, %s%s" % (v(bb, 2), v(UI + 2 * (k - 1), 2), cs, v(bb, 2), neg))
        A("v_pk_add_f32 %s, %s, %s neg_lo:[0,1] neg_hi:[0,1]" % (v(y1, 2), v(aa, 2), v(bb, 2)))
        A("v_pk_add_f32 %s, %s, %s" % (v(y2, 2), v(aa, 2), v(bb, 2)))
        ywrite(y1, t); ywrite(y2, 7 - t)
        A.bg(2)
    A("s_waitcnt lgkmcnt(0)")
    A("s_barrier")
    Y = 64
    tk = [A.ds("ds_read_b64 %s, v63 offset:%d" % (v(Y + 2 * t, 2), 256 * t)) for t in range(7)]
    A.bg(3)
    for t in range(7):
        A.wds(tk[t])
        A("v_pk_add_f32 %s, %s, %s" % (v(Z + 2 * t, 2), v(Z + 2 * t, 2), v(Y + 2 * t, 2)))
    s1, s2 = stats_streams(Z, 46, 48, 50, 51)
    St = ["ds_write_b32 v30, %s offset:%d" % (v(XR + t), 128 * t + XL - A3_H + 65536 if False else 0) for t in range(0)]
    A("v_subrev_u32 v52, %d, v30" % (A3_H - XL))
    St = []
    for t in range(7):
        St += ["%s %s, %s, %s" % (CV, v(XR + t), v(Z + 2 * t), v(Z + 2 * t + 1)), "ds_write_b32 v52, %s offset:%d" % (v(XR + t), 128 * t)]
    for ln in zipmix(s1, s2, St):
        if ln.startswith("ds_"): A.ds(ln)
        else: A(ln)
    mean_var(A, 46, 48)
    A("v_add_f32 v49, %s, v48" % fbits(1e-5))
    A("v_rsq_f32 v49, v49")
    A("v_mov_b32 v50, %s" % fbits(1e-5))
    A("v_mul_f32 v48, v48, v49")
    A("v_fma_f32 v48, v48, v49, v50")
    A("v_rsq_f32 v48, v48")
    A("s_mul_i32 %s, %s, 7168" % (s(sT0), s(sW)))
    A("s_add_u32 %s, %s, 0x%x" % (s(sT0), s(sT0), hout))
    A("v_mul_f32 v48, v48, v49")
    A("v_mul_f32 v46, -v46, v48" if False else "v_mul_f32 v46, v46, v48")
    for t in range(7):
        A("v_pk_fma_f32 %s, %s, v[48:49], v[46:47] op_sel_hi:[1,0,0] neg_lo:[0,0,1] neg_hi:[0,0,1]" % (v(Z + 2 * t, 2), v(Z + 2 * t, 2)))
    for t in range(7):
        A("%s %s, %s, %s" % (CV, v(64 + t), v(Z + 2 * t), v(Z + 2 * t + 1)))
        A.ds("ds_write_b32 v30, %s offset:%d" % (v(64 + t), 128 * t))
    A("s_add_u32 %s, %s, 4096" % (s(sT1), s(sT0)))
    A("s_waitcnt lgkmcnt(0)")
    A("s_barrier")
    A.auto = 0
    A.ds("ds_read_b64_tr_b16 v[20:21], v31")
    A.ds("ds_read_b64_tr_b16 v[22:23], v31 offset:%d" % (4 * HSTR))
    A.ds("ds_read_b64_tr_b16 v[24:25], v31 offset:512")
    A.ds("ds_read_b64_tr_b16 v[26:27], v31 offset:%d" % (4 * HSTR + 512))
    A("v_cmp_gt_u32 vcc, 192, v0")
    A("v_mov_b32 v13, 0x80000000")
    A("v_cndmask_b32 v13, v13, v12, vcc")
    A("v_and_b32 v14, 63, v0")
    A("v_lshlrev_b32 v15, 4, v14")
    A("s_mul_i32 %s, %s, %d" % (s(sT2), s(sWAVE), 2 * HSTR))
    A("s_add_u32 %s, %s, 0x%x" % (s(sT2), s(sT2), SCR + XL))
    A("v_add_u32 v16, %s, v15" % s(sT2))
    A.ds("ds_read_b128 v[32:35], v16")
    A.ds("ds_read_b128 v[36:39], v16 offset:%d" % HSTR)
    A("v_readfirstlane_b32 %s, v1" % s(sT2))
    A("v_mov_b32 v17, 0x80000000")
    A("s_waitcnt lgkmcnt(4)")
    A.vm("buffer_store_dwordx4 v[20:23], v12, %s, %s offen sc1" % (SWS, s(sT0)))
    A("v_cmp_gt_u32 vcc, 56, v14")
    A("s_add_u32 %s, %s, 0x%x" % (s(sT2), s(sT2), xout))
    A("s_add_u32 %s, %s, %d" % (s(sT3), s(sT2), 32 * 896))
    A("v_cndmask_b32 v15, v17, v15, vcc")
    A("s_waitcnt lgkmcnt(2)")
    A.vm("buffer_store_dwordx4 v[24:27], v13, %s, %s offen sc1" % (SWS, s(sT1)))
    A("s_waitcnt lgkmcnt(0)")
    A.vm("buffer_store_dwordx4 v[32:35], v15, %s, %s offen sc1" % (SWS, s(sT2)))
    A.vm("buffer_store_dwordx4 v[36:39], v15, %s, %s offen sc1" % (SWS, s(sT3)))
    A.bg_flush()

ACC, RINGV, WF = 96, 32, 16
DEPTH = int(os.environ.get("DEPTH", 6))
vF0, vF1, vTR, vRW, vRR = 2, 3, 4, 6, 7

def b_fconsts(R, sdt):
    R("v_bfe_u32 v8, v0, 5, 1")
    R("v_mul_u32_u24 v8, 448, v8")
    R("v_and_b32 v9, 31, v0")
    R("v_add_u32 v8, v8, v9")
    R("s_mul_i32 %s, %s, %d" % (s(sC), s(sdt), DW))
    R("v_add_lshl_u32 v8, v8, %s, 4" % s(sC))
    R("v_add_u32 %s, 512, v8" % v(vF1))
    if DW < 64:
        R("v_cmp_gt_u32 vcc, %d, v9" % (DW - 32))
        R("v_mov_b32 v9, 0x80000000")
        R("v_cndmask_b32 %s, v9, %s, vcc" % (v(vF1), v(vF1)))
    R("v_and_b32 v9, 64, v0")
    R("v_cmp_eq_u32 vcc, 0, v9")
    R("v_cndmask_b32 %s, %s, v8, vcc" % (v(vF0), v(vF1)))
    R("v_cndmask_b32 %s, v8, %s, vcc" % (v(vF1), v(vF1)))

def b_consts(R):
    b_fconsts(R, sDT)
    R("v_and_b32 v8, 63, v0")
    R("v_lshlrev_b32 v8, 4, v8")
    R("v_lshrrev_b32 v9, 6, v0")
    R("v_lshl_add_u32 %s, v9, 13, v8" % v(vRR))
    R("v_add_u32 %s, 0x%x, %s" % (v(vRR), SCR, v(vRR)))
    R("v_xor_b32 %s, 8192, %s" % (v(vRW), v(vRR)))

def b_stream(A, nks, fbase, wop, w_is_A, wreads, tail, first=lambda: None, dly=0, init=lambda: None):
    cold = []
    assert DEPTH <= 7
    A("s_mul_i32 %s, %s, %d" % (s(sT0), s(sWAVE), nks * 14336))
    A("s_add_u32 %s, %s, 0x%x" % (s(sT0), s(sT0), fbase))
    sSH = sSH1 if nks == 32 else sSH2
    A("s_mul_i32 %s, %s, %d" % (s(sT1), s(sSH), 2 * 14336))
    A("s_add_u32 %s, %s, %s" % (s(sT1), s(sT1), s(sT0)))
    A("s_add_u32 %s, %s, %d" % (s(sEND), s(sT0), nks * 14336))
    sO = 36
    if KROT == 5:
        for j in range(6):
            A("s_add_u32 %s, %s, %d" % (s(sO + j), s(sSH1), j & 3))
            A("s_and_b32 %s, %s, %d" % (s(sO + j), s(sO + j), 3 if j < 4 else 1))
            A("s_mul_i32 %s, %s, 28672" % (s(sO + j), s(sO + j)))
            A("s_add_u32 %s, %s, %s" % (s(sO + j), s(sO + j), s(sT0)))
    def soff5(dst, ks):
        pair = ks // 2
        j = (pair & 3) if (nks == 32 or pair < 12) else 4 + (pair & 1)
        A("s_add_u32 %s, %s, %d" % (s(dst), s(sO + j), (pair & ~3) * 28672 + (ks & 1) * 14336))
    if EXM:
        A("s_bitcmp1_b32 %s, 0" % s(sWAVE))
        A("s_cselect_b32 s36, 0xffffff, -1")
        A("s_mov_b32 s37, s36")
        A("s_cselect_b32 s38, -1, 0xffffff")
        A("s_mov_b32 s39, s38")
    tok = {}
    def ld(ks, so):
        r = RINGV + 8 * (ks % 8)
        if FAKE16 == 3 and ks >= DEPTH:
            A("s_lshl_b32 s64, %s, 13" % s(sWAVE))
            A("s_add_u32 m0, s64, %d" % (SCR + (ks % 4) * 2048))
            A.vm("buffer_load_dwordx4 %s, %s, %s offen sc1 lds" % (v(vF0), SWS, so))
            A("s_add_u32 m0, s64, %d" % (SCR + (ks % 4) * 2048 + 1024))
            return A.vm("buffer_load_dwordx4 %s, %s, %s offen sc1 lds" % (v(vF1), SWS, so))
        if EXM and ks >= 8: A("s_mov_b64 exec, s[36:37]")
        A.vm("buffer_load_dwordx4 %s, %s, %s, %s offen%s" % (v(r, 4), v(vF0), SWS, so, STFL))
        if EXM and ks >= 8: A("s_mov_b64 exec, s[38:39]")
        t_ = A.vm("buffer_load_dwordx4 %s, %s, %s, %s offen%s" % (v(r + 4, 4), v(vF1), SWS, so, STFL))
        if EXM and ks >= 8: A("s_mov_b64 exec, -1")
        return t_
    def issue(ks):
        if KROT == 5: soff5(sT1, ks)
        elif ks > 0:
            A("s_add_u32 %s, %s, 14336" % (s(sT1), s(sT1)))
            if ks % 2 == 0 and KROT:
                A("s_cmp_eq_u32 %s, %s" % (s(sT1), s(sEND)))
                A("s_cselect_b32 %s, %s, %s" % (s(sT1), s(sT0), s(sT1)))
        tok[ks] = ld(ks, s(sT1))
    def branch(ks):
        lr, lb = A.newlabel("rty"), A.newlabel("bk")
        A("s_cbranch_vccnz %s" % lr)
        A.label(lb)
        cold.append((lr, lb, ks))
    if FULLB:
        if dly: A("s_sleep %d" % dly)
        for ks in range(DEPTH): issue(ks)
        init()
        A.wvm(tok[0])
        maxchain(A, range(RINGV, RINGV + 8), 8)
        A("v_cmp_eq_u32 vcc, -1, v8")
        branch(0)
    else:
        poll_loads(A, lambda: ld(0, s(sT1)), range(RINGV, RINGV + 8), 8, dly)
        for ks in range(1, DEPTH): issue(ks)
    stamp(A)
    first()
    for ks in range(nks):
        r = RINGV + 8 * (ks % 8)
        rn = RINGV + 8 * ((ks + 1) % 8)
        more = ks + 1 < nks
        wr = wreads(ks + 1) if more else []
        def mf(j):
            wt, ft = j >> 1, j & 1
            acc = v(ACC + 16 * j, 16)
            wreg = wop(ks, wt); freg = v(r + 4 * ft, 4)
            AA, BB = (wreg, freg) if w_is_A else (freg, wreg)
            if FAKE16 == 2 and (j > 0 and ks > 0): return
            if FAKE16 == 1:
                for h_ in range(2):
                    ac = v(ACC + 16 * j + 8 * (ks % 2) + 4 * h_, 4)
                    o2 = (wop(ks, wt ^ h_), v(r + 4 * ft, 4))
                    A("%s %s, %s, %s, %s" % (M16, ac, o2[0], o2[1], "0" if ks < 2 else ac))
                return
            A("%s %s, %s, %s, %s" % (M32, acc, AA, BB, "0" if (ks == 0 and j > 0) else acc))
        mf(1)
        if ks + DEPTH < nks: issue(ks + DEPTH)
        elif ks + DEPTH == nks: tail()
        else: A.bg(1)
        mf(3)
        for t_ in wr[:2]: A.ds(t_)
        if more:
            A.wvm(tok[ks + 1])
            A("v_max3_u32 v8, %s, %s, %s" % (v(rn), v(rn + 1), v(rn + 2)))
            A("v_max3_u32 v9, %s, %s, %s" % (v(rn + 3), v(rn + 4), v(rn + 5)))
        mf(2)
        for t_ in wr[2:]: wtok = A.ds(t_)
        if more:
            A("v_max3_u32 v8, v8, %s, %s" % (v(rn + 6), v(rn + 7)))
            A("v_max_u32 v8, v8, v9")
            A("v_cmp_eq_u32 vcc, -1, v8")
        mf(0)
        if more: branch(ks + 1)
        A.bg(1)
        if wr: A.wds(wtok)
    def emit_cold():
        for lr, lb, ks in cold:
            A.label(lr)
            A("s_cmp_eq_u32 %s, 0" % s(sBUD))
            A("s_cbranch_scc1 %s" % lb)
            A("s_sub_u32 %s, %s, 1" % (s(sBUD), s(sBUD)))
            if SLEEP: A("s_sleep %d" % SLEEP)
            last = (DEPTH if ks == 0 else min(ks + DEPTH, nks)) if (FULLB and ks < DEPTH) else ks + 1
            for k2 in range(ks, last):
                if KROT == 5: soff5(sC, k2)
                elif KROT:
                    A("s_lshl_b32 %s, %s, 1" % (s(sC), s(sSH)))
                    A("s_add_u32 %s, %s, %d" % (s(sC), s(sC), k2))
                    A("s_cmp_ge_u32 %s, %d" % (s(sC), nks))
                    A("s_cselect_b32 s64, %d, 0" % nks)
                    A("s_sub_u32 %s, %s, s64" % (s(sC), s(sC)))
                    A("s_mul_i32 %s, %s, 14336" % (s(sC), s(sC)))
                    A("s_add_u32 %s, %s, %s" % (s(sC), s(sC), s(sT0)))
                else:
                    A("s_add_u32 %s, %s, %d" % (s(sC), s(sT0), k2 * 14336))
                r = RINGV + 8 * (k2 % 8)
                A("buffer_load_dwordx4 %s, %s, %s, %s offen sc1" % (v(r, 4), v(vF0), SWS, s(sC)))
                A("buffer_load_dwordx4 %s, %s, %s, %s offen sc1" % (v(r + 4, 4), v(vF1), SWS, s(sC)))
            A("s_waitcnt vmcnt(0)")
            r = RINGV + 8 * (ks % 8)
            maxchain(A, range(r, r + 8), 8)
            A("v_cmp_eq_u32 vcc, -1, v8")
            A("s_cbranch_vccnz %s" % lr)
            A("s_branch %s" % lb)
    return emit_cold

def b_reduce(A, mid=lambda: None):
    for k, j in enumerate((1, 3)):
        for g in range(4):
            A.ds("ds_write_b128 %s, %s offset:%d" % (v(vRW), v(ACC + 16 * j + 4 * g, 4), k * 4096 + g * 1024))
    A.bg(4)
    A("s_waitcnt lgkmcnt(0)")
    mid()
    A("s_barrier")
    T = 32
    tk = []
    for k in (1, 0):
        for g in range(4):
            tk.append(A.ds("ds_read_b128 %s, %s offset:%d" % (v(T + 16 * k + 4 * g, 4), v(vRR), k * 4096 + g * 1024)))
    A.wds(tk[3])
    for k in range(0, 16, 2):
        A("v_pk_add_f32 %s, %s, %s" % (v(ACC + 32 + k, 2), v(ACC + 32 + k, 2), v(T + 16 + k, 2)))
    A("s_waitcnt lgkmcnt(0)")
    for g in range(4):
        A.ds("ds_write_b128 %s, %s offset:%d" % (v(vRR), v(ACC + 32 + 4 * g, 4), g * 1024))
    for k in range(0, 16, 2):
        A("v_pk_add_f32 %s, %s, %s" % (v(ACC + k, 2), v(ACC + k, 2), v(T + k, 2)))
    A("v_xor_b32 v9, 16384, %s" % v(vRR))
    A.bg(4)
    A("s_waitcnt lgkmcnt(0)")
    A("s_barrier")
    tk = [A.ds("ds_read_b128 %s, v9 offset:%d" % (v(T + 4 * g, 4), g * 1024)) for g in range(4)]
    for g in range(4):
        A.wds(tk[g])
        for k in range(4 * g, 4 * g + 4, 2):
            A("v_pk_add_f32 %s, %s, %s" % (v(ACC + k, 2), v(ACC + k, 2), v(T + k, 2)))

def b1_phase(A, l, hin, uout, tail_extra, first):
    skip = A.newlabel("b1skip")
    A("s_cmp_lg_u32 %s, 0" % s(sA1))
    A("s_cbranch_scc1 %s" % skip)
    BV = 16
    A("s_lshr_b32 %s, %s, 1" % (s(sT2), s(sWAVE)))
    A("s_lshl_b32 %s, %s, 6" % (s(sT2), s(sT2)))
    A("s_lshl_b32 %s, %s, 7" % (s(sT3), s(sFT)))
    A("s_add_u32 %s, %s, %s" % (s(sT2), s(sT2), s(sT3)))
    A("v_bfe_u32 v9, v0, 5, 1")
    A("v_lshlrev_b32 v9, 3, v9")
    A("v_add_u32 v9, %s, v9" % s(sT2))
    for g in range(4):
        btok = A.vm("global_load_dwordx2 %s, v9, %s offset:%d" % (v(BV + 2 * g, 2), s(sB1, 2), 16 * g))
    def init():
        A.wvm(btok)
        for k in range(8):
            A("v_lshlrev_b32 %s, 16, %s" % (v(ACC + 2 * k), v(BV + k)))
            A("v_and_b32 %s, 0xffff0000, %s" % (v(ACC + 2 * k + 1), v(BV + k)))
    c0 = -2.0 * math.sqrt(2.0 / math.pi) * math.log2(math.e)
    def tail():
        A("s_lshl_b32 %s, %s, 2" % (s(sT2), s(sFT)))
        A("s_and_b32 %s, %s, 2" % (s(sT3), s(sWAVE)))
        A("s_add_u32 %s, %s, %s" % (s(sT2), s(sT2), s(sT3)))
        A("s_mul_i32 %s, %s, 14336" % (s(sT2), s(sT2)))
        A("s_add_u32 %s, %s, 0x%x" % (s(sT2), s(sT2), uout))
        A("s_add_u32 %s, %s, 14336" % (s(sT3), s(sT2)))
        A("s_mov_b32 s42, %s" % fbits(c0 * 0.044715))
        A("s_mov_b32 s43, s42")
        A("v_mov_b32 v14, %s" % fbits(c0))
        tail_extra()
    cold = b_stream(A, 32, hin, lambda ks, wt: a(8 * ks + 4 * wt, 4), True, lambda ks: [], tail, first, DLY[3], init)
    stamp(A)
    b_reduce(A)
    R = ACC
    for k in range(0, 16, 2):
        A("v_pk_mul_f32 %s, %s, %s" % (v(48 + k, 2), v(R + k, 2), v(R + k, 2)))
    for k in range(0, 16, 2):
        A("v_pk_fma_f32 %s, %s, s[42:43], v[14:15] op_sel_hi:[1,1,0]" % (v(48 + k, 2), v(48 + k, 2)))
    for k in range(0, 16, 2):
        A("v_pk_mul_f32 %s, %s, %s" % (v(48 + k, 2), v(48 + k, 2), v(R + k, 2)))
    for k in range(16):
        A("v_exp_f32 %s, %s" % (v(48 + k), v(48 + k)))
        if k % 4 == 3: A.bg()
    for k in range(0, 16, 2):
        A("v_pk_add_f32 %s, %s, 1.0 op_sel_hi:[1,0]" % (v(48 + k, 2), v(48 + k, 2)))
    for j in range(2):
        for k in range(8 * j, 8 * j + 8):
            A("v_rcp_f32 %s, %s" % (v(48 + k), v(48 + k)))
            if k % 4 == 3: A.bg()
        for k in range(8 * j, 8 * j + 8, 2):
            A("v_pk_mul_f32 %s, %s, %s" % (v(R + k, 2), v(R + k, 2), v(48 + k, 2)))
        for k in range(4):
            A("%s %s, %s, %s" % (CV, v(64 + 4 * j + k), v(R + 8 * j + 2 * k), v(R + 8 * j + 2 * k + 1)))
        A.vm("buffer_store_dwordx4 %s, %s, %s, %s offen sc1" % (v(64 + 4 * j, 4), v(vF0), SWS, s(sT2 + j)))
    A.bg_flush()
    return skip, cold

def b2_phase(A, l, uin, xin):
    skip = A.newlabel("b2skip")
    A("s_cmp_lg_u32 %s, 0" % s(sA2))
    A("s_cbranch_scc1 %s" % skip)
    A("s_lshr_b32 %s, %s, 1" % (s(sT2), s(sWAVE)))
    A("s_lshl_b32 %s, %s, 5" % (s(sT2), s(sT2)))
    A("s_lshl_b32 %s, %s, 6" % (s(sT3), s(sST)))
    A("s_add_u32 %s, %s, %s" % (s(sT2), s(sT2), s(sT3)))
    A("v_and_b32 v9, 31, v0")
    A("v_add_lshl_u32 v9, v9, %s, 1" % s(sT2))
    btok = A.vm("global_load_ushort v10, v9, %s" % s(sB2, 2))
    R_ = Rec(); tr_addr(R_, vTR, 4, 8)
    for l_ in R_.l: A(l_)
    A("s_barrier")
    def init():
        A.wvm(btok)
        for k in range(16): A("v_lshlrev_b32 %s, 16, v10" % v(ACC + k))
    NV = 12
    def pre(ks):
        if ks < NV: return []
        b = WF + 8 * (ks % 2)
        return ["ds_read_b64_tr_b16 %s, %s offset:%d" % (v(b + 4 * tl + 2 * rd, 2), v(vTR + tl), (ks - NV) * 2048 + (0, 8)[rd] * 128) for tl in range(2) for rd in range(2)]
    def wop(ks, wt):
        return v(W2V + 8 * ks + 4 * wt, 4) if ks < NV else v(WF + 8 * (ks % 2) + 4 * wt, 4)
    assert DEPTH <= 6
    XV = RINGV + 8 * ((28 - DEPTH - 1) % 8)
    def xissue():
        A.vm("buffer_load_dwordx4 %s, v10, %s, %s offen sc1" % (v(XV, 4), SWS, s(sT2)))
        return A.vm("buffer_load_dwordx4 %s, v11, %s, %s offen sc1" % (v(XV + 4, 4), SWS, s(sT2)))
    def tail():
        A("v_lshrrev_b32 v13, 6, v0")
        A("v_bfe_u32 v9, v0, 3, 3")
        A("v_lshl_add_u32 v10, v13, 4, v9")
        A("s_lshl_b32 %s, %s, 6" % (s(sT3), s(sST)))
        A("v_add_u32 v10, %s, v10" % s(sT3))
        A("v_mul_u32_u24 v10, 896, v10")
        A("v_and_b32 v14, 7, v0")
        A("v_lshl_add_u32 v10, v14, 4, v10")
        A("s_lshl_b32 %s, %s, 7" % (s(sT3), s(sDT)))
        A("v_add_u32 v10, %s, v10" % s(sT3))
        A("v_add_u32 v11, %d, v10" % (8 * 896))
        A("s_mov_b32 %s, 0x%x" % (s(sT2), xin))
        A.xt = xissue()
        Rr = Rec()
        Rr("v_lshlrev_b32 v13, 13, v13")
        Rr("v_bfe_u32 v15, v0, 3, 3")
        Rr("v_mul_u32_u24 v15, 144, v15")
        Rr("v_add_u32 v13, v13, v15")
        Rr("v_lshl_add_u32 v13, v14, 4, v13")
        Rr("v_add_u32 v13, 0x%x, v13" % (SCR + 4096))
        Rr("v_bfe_u32 v12, v0, 4, 1")
        Rr("v_bfe_u32 v15, v0, 7, 1")
        Rr("v_lshl_add_u32 v12, v15, 1, v12")
        Rr("v_lshlrev_b32 v12, 13, v12")
        Rr("v_and_b32 v15, 15, v0")
        Rr("v_mul_u32_u24 v15, 144, v15")
        Rr("v_add_u32 v12, v12, v15")
        Rr("v_bfe_u32 v15, v0, 5, 1")
        Rr("v_lshl_add_u32 v12, v15, 3, v12")
        Rr("v_and_b32 v15, 64, v0")
        Rr("v_add_u32 v12, v12, v15")
        Rr("v_add_u32 v12, 0x%x, v12" % (SCR + 4096))
        A.bgq = [(lambda o=Rr.l[k:k + 6]: [A(x) for x in o]) for k in range(0, len(Rr.l), 6)]
        if l == 0 and PZ:
            PV = RINGV + 8 * ((28 - DEPTH - 2) % 8)
            A.bgq = poison_ops(A, [T1, H1, U1, X3], PV + 4, PV) + A.bgq
    cold = b_stream(A, 28, uin, wop, False, pre, tail, lambda: None, DLY[4], init)
    stamp(A)
    if l == 1:
        srd(A, 24, sOUT, S * D * 2)
    XU = ACC + 16
    def xcheck():
        lo, lt = A.newlabel("xok"), A.newlabel("xrty")
        A.wvm(A.xt)
        A.label(lt)
        maxchain(A, range(XV, XV + 8), 8)
        A("v_cmp_eq_u32 vcc, -1, v8")
        A("s_cbranch_vccz %s" % lo)
        A("s_cmp_eq_u32 %s, 0" % s(sBUD))
        A("s_cbranch_scc1 %s" % lo)
        A("s_sub_u32 %s, %s, 1" % (s(sBUD), s(sBUD)))
        n0 = A.vmn; xissue(); A.vmn = n0
        A("s_waitcnt vmcnt(0)")
        A("s_branch %s" % lt)
        A.label(lo)
        for k in range(8):
            A("v_lshlrev_b32 %s, 16, %s" % (v(XU + 2 * k), v(XV + k)))
            A("v_and_b32 %s, 0xffff0000, %s" % (v(XU + 2 * k + 1), v(XV + k)))
    b_reduce(A, xcheck)
    R = ACC
    dst = (SWS, s(sT2), " sc1") if l == 0 else (SW1, "0", OUTFL)
    if l == 0: A("s_mov_b32 %s, 0x%x" % (s(sT2), X2))
    for g in range(4):
        for k in range(2):
            A("%s %s, %s, %s" % (CV, v(48 + 2 * g + k), v(R + 4 * g + 2 * k), v(R + 4 * g + 2 * k + 1)))
        A.ds("ds_write_b64 v12, %s offset:%d" % (v(48 + 2 * g, 2), 16 * g))
    A("s_waitcnt lgkmcnt(0)")
    A("s_barrier")
    t0 = A.ds("ds_read_b128 v[48:51], v13")
    t1 = A.ds("ds_read_b128 v[52:55], v13 offset:%d" % (8 * 144))
    for j in range(2):
        A.wds((t0, t1)[j])
        for k in range(4 * j, 4 * j + 4):
            A("v_lshlrev_b32 %s, 16, %s" % (v(32 + 2 * k), v(48 + k)))
            A("v_and_b32 %s, 0xffff0000, %s" % (v(32 + 2 * k + 1), v(48 + k)))
        for k in range(4 * j, 4 * j + 4):
            A("v_pk_add_f32 %s, %s, %s" % (v(XU + 2 * k, 2), v(XU + 2 * k, 2), v(32 + 2 * k, 2)))
        for k in range(4 * j, 4 * j + 4):
            A("%s %s, %s, %s" % (CV, v(56 + k), v(XU + 2 * k), v(XU + 2 * k + 1)))
        A.vm("buffer_store_dwordx4 %s, %s, %s, %s offen%s" % (v(56 + 4 * j, 4), v(10 + j), dst[0], dst[1], dst[2]))
    A.bg_flush()
    return skip, cold

def srd(A, d, base, nbytes):
    A("s_mov_b32 %s, %s" % (s(d), s(base)))
    A("s_and_b32 %s, %s, 0xffff" % (s(d + 1), s(base + 1)))
    if isinstance(nbytes, int): A("s_mov_b32 %s, 0x%x" % (s(d + 2), nbytes))
    else: A("s_mov_b32 %s, %s" % (s(d + 2), nbytes))
    A("s_mov_b32 %s, 0x20000" % s(d + 3))

def build():
    A = Asm2()
    KN = NAME + "_kernel"
    def emit(R):
        for l_ in R.l: A(l_)
    A.label(KN)
    A("s_cmp_ge_u32 s2, 256")
    A("s_cbranch_scc1 L_exit")
    A("s_load_dwordx2 %s, s[0:1], 0" % s(sX, 2))
    A("s_getpc_b64 s[36:37]")
    A.label("L_pc")
    A("v_lshlrev_b32 v150, 5, v0")
    A.vm("global_load_dword v151, v150, s[36:37]" + NT)
    A("s_load_dwordx2 %s, s[0:1], 80" % s(sWS, 2))
    A("s_load_dwordx8 %s, s[0:1], 32" % s(sW1, 8))
    A("s_load_dwordx4 %s, s[0:1], 8" % s(sWR, 4))
    A("s_load_dwordx4 %s, s[0:1], 64" % s(sOUT, 4))
    if DIAG >= 0: A("s_memrealtime s[94:95]" if DIAG != 100 else "s_memtime s[94:95]")
    if PROF:
        for i in range(32): A("s_mov_b32 %s, 0" % s(66 + i))
        A("s_memrealtime s[64:65]")
    A("s_and_b32 %s, s2, 7" % s(sT0))
    A("s_lshr_b32 %s, s2, 3" % s(sT1))
    A("s_lshl_b32 %s, %s, 5" % (s(sW), s(sT0)))
    A("s_add_u32 %s, %s, %s" % (s(sW), s(sW), s(sT1)))
    a1_consts(A)
    A("v_lshrrev_b32 v3, 6, v0")
    A("v_readfirstlane_b32 %s, v3" % s(sWAVE))
    A("s_and_b32 s37, s37, 0xffff")
    A("s_mov_b32 s38, L_code_end-L_pc")
    A("s_mov_b32 s39, 0x20000")
    A("s_lshl_b32 s40, s2, 9")
    A("s_and_b32 s40, s40, 0x1f000")
    A("v_lshlrev_b32 v150, 4, v0")
    A("s_mov_b32 s34, 0x%x" % WS_BYTES)
    A("s_mov_b32 s35, 0x20000")
    A("s_mov_b32 s26, 0x%x" % (S * F * 2))
    A("s_mov_b32 s27, 0x20000")
    A("s_and_b32 s56, s2, 7")
    A("s_lshr_b32 s57, s2, 3")
    A("s_lshl_b32 s58, s57, 2")
    A("s_add_u32 s58, s58, %s" % s(sWAVE))
    A("v_bfe_u32 v152, v0, 5, 1")
    A("v_and_b32 v153, 31, v0")
    A("v_lshlrev_b32 v153, 4, v153")
    A("s_lshl_b32 s59, s56, 9")
    A("v_add_u32 v153, s59, v153")
    A("v_lshl_add_u32 v254, v152, 12, v153")
    A("v_mul_u32_u24 v152, 3584, v152")
    A("v_add_u32 v152, v152, v153")
    A("s_mul_i32 s41, s58, %d" % (16 * 3584))
    A("s_cmp_eq_u32 s56, 7")
    A("s_cselect_b32 s41, 0x80000000, s41")
    A("v_add_u32 v152, s41, v152")
    A("s_mul_i32 s59, s58, %d" % (14 * 4096))
    A("v_add_u32 v254, s59, v254")
    A("s_waitcnt lgkmcnt(0)")
    if PROF:
        A("s_mov_b32 s66, s64"); nstamp[0] = 1
    A("s_mov_b32 s32, %s" % s(sWS))
    A("s_and_b32 s33, %s, 0xffff" % s(sWS + 1))
    for t in range(7): tx = A.vm("global_load_dword %s, v1, %s offset:%d%s" % (v(4 + t), s(sX, 2), 128 * t, NT))
    A.vm("buffer_load_dword v151, v150, s[36:39], s40 offen" + NT)
    A("s_mov_b32 s24, %s" % s(sW1))
    A("s_and_b32 s25, %s, 0xffff" % s(sW1 + 1))
    A("s_mov_b32 s41, 0")
    srd(A, 28, sW2, S * F * 2)
    A("v_mov_b32 v255, v152")
    for i in range(8 if WU1 == 1 else 0):
        A.vm("buffer_load_dwordx4 v[160:163], v152, %s, s41 offen" % SW1)
        if i < 7: A("s_add_u32 s41, s41, 7168")
    def wu2(i):
        def f():
            A.vm("buffer_load_dwordx4 v[160:163], v254, %s, 0 offen" % SW2)
            A("v_add_u32 v254, 8192, v254")
        return f
    if XP: stamp(A)
    A("s_and_b32 s42, s2, 63")
    A("s_lshr_b32 s43, s2, 6")
    A("v_and_b32 v146, 63, v0")
    A("v_mul_u32_u24 v140, 14, v146")
    A("v_sub_u32 v141, %d, v140" % (445 * 2))
    A("v_cmp_lt_u32 %s, 31, v146" % s(sT5, 2))
    A("s_lshl_b32 s44, s43, 2")
    A("s_add_u32 s44, s44, %s" % s(sWAVE))
    A("v_cndmask_b32 v140, v140, v141, %s" % s(sT5, 2))
    A("s_lshl_b32 s44, s44, 7")
    A("s_add_u32 s44, s44, s42")
    A("v_mov_b32 v142, 1")
    A("v_cndmask_b32 v141, v142, -1, %s" % s(sT5, 2))
    A("s_movk_i32 s45, 450")
    for e in range(2):
        A("v_mul_i32_i24 %s, s44, v141" % v(147 + e))
        A("s_mul_i32 s3, s44, 450")
        A("v_and_b32 %s, 0x7ff, %s" % (v(147 + e), v(147 + e)))
        A("s_add_u32 s3, s3, 448")
        A("v_mad_u32_u24 %s, %s, s45, v140" % (v(147 + e), v(147 + e)))
        A("v_mov_b32 %s, s3" % v(149 + e))
        if e == 0: A("s_add_u32 s44, s44, 64")
    A("v_mov_b32 v140, 0x05040100")
    A("v_mov_b32 v141, 0x07060302")
    A("v_cndmask_b32 v142, v140, v141, %s" % s(sT5, 2))
    A("v_cndmask_b32 v143, v141, v140, %s" % s(sT5, 2))
    A("v_mov_b32 v140, 0x80000000")
    A("v_cndmask_b32 v144, 0, v140, %s" % s(sT5, 2))
    A("s_lshl_b32 s42, s42, 2")
    A("s_add_u32 s42, s42, s43")
    A("s_lshl_b32 s42, s42, 2")
    A("s_add_u32 s42, s42, %s" % s(sWAVE))
    A("s_lshl_b32 s42, s42, 11")
    A("s_add_u32 s3, s42, 0x%x" % WT)
    A("v_lshlrev_b32 v145, 4, v146")
    for e in range(2):
        A.vm("global_load_dwordx2 %s, %s, %s%s" % (v(128 + 4 * e, 2), v(147 + e), s(sWR, 2), NT))
        A.vm("global_load_dwordx2 %s, %s, %s%s" % (v(130 + 4 * e, 2), v(147 + e), s(sWI, 2), NT))
        A.vm("global_load_ushort %s, %s, %s%s" % (v(136 + 2 * e), v(149 + e), s(sWR, 2), NT))
        twp = A.vm("global_load_ushort %s, %s, %s%s" % (v(137 + 2 * e), v(149 + e), s(sWI, 2), NT))
    if WU2_AT == "start":
        for i in range(7): wu2(i)()
    poison_list(A, [T0], 154)
    stamp(A)
    if DW == 64:
        A("s_mul_i32 %s, s57, 37" % s(sT2))
        A("s_lshr_b32 %s, %s, 8" % (s(sT2), s(sT2)))
        A("s_mul_i32 %s, %s, 7" % (s(sDT2), s(sT2)))
        A("s_sub_u32 %s, s57, %s" % (s(sDT2), s(sDT2)))
        A("s_cmp_lt_u32 s57, 28")
        A("s_cselect_b32 %s, 0, 0x80000000" % s(sA2))
    else:
        A("s_lshr_b32 %s, s57, 3" % s(sT2))
        A("s_and_b32 %s, s57, 7" % s(sDT2))
        A("s_mov_b32 %s, 0" % s(sA2))
    A("s_lshl_b32 %s, s56, 2" % s(sST))
    A("s_add_u32 %s, %s, %s" % (s(sST), s(sST), s(sT2)))
    if MAP1 == "x":
        A("s_mov_b32 %s, %s" % (s(sFT), s(sST)))
        A("s_mov_b32 %s, %s" % (s(sDT), s(sDT2)))
        A("s_mov_b32 %s, %s" % (s(sROT1), s(sDT2)))
        A("s_cmp_lt_u32 s56, 7")
        A("s_cselect_b32 %s, %s, 0x80000000" % (s(sA1), s(sA2)))
    else:
        A("s_and_b32 %s, s56, 1" % s(sDT))
        A("s_lshl_b32 %s, %s, 2" % (s(sDT), s(sDT)))
        A("s_and_b32 %s, s57, 3" % s(sT2))
        A("s_add_u32 %s, %s, %s" % (s(sDT), s(sDT), s(sT2)))
        A("s_lshl_b32 %s, %s, 1" % (s(sROT1), s(sT2)))
        A("s_lshr_b32 s56, s56, 1")
        A("s_lshr_b32 s57, s57, 2")
        A("s_mul_i32 %s, s56, 7" % s(sFT))
        A("s_add_u32 %s, %s, s57" % (s(sFT), s(sFT)))
        A("s_cmp_lt_u32 %s, %d" % (s(sDT), 448 // DW))
        A("s_cselect_b32 %s, 0, 0x80000000" % s(sA1))
        A("s_cmp_lt_u32 s57, 7")
        A("s_cselect_b32 %s, %s, 0x80000000" % (s(sA1), s(sA1)))
    A("s_lshl_b32 %s, %s, 1" % (s(sSH1), s(sDT)))
    A("s_mov_b32 %s, %s" % (s(sSH2), s(sSH1)))
    if KROT == 3:
        A("s_and_b32 %s, %s, 3" % (s(sT2), s(sFT)))
        A("s_lshl_b32 %s, %s, 2" % (s(sSH1), s(sT2)))
        A("s_mul_i32 %s, %s, 7" % (s(sSH2), s(sT2)))
        A("s_add_u32 %s, %s, 1" % (s(sSH2), s(sSH2)))
        A("s_lshr_b32 %s, %s, 1" % (s(sSH2), s(sSH2)))
    if KROT in (4, 5):
        A("s_and_b32 %s, %s, 3" % (s(sT2), s(sFT)))
        A("s_mov_b32 %s, %s" % (s(sSH1), s(sT2)))
        A("s_mov_b32 %s, %s" % (s(sSH2), s(sT2)))
    if not KROT:
        A("s_mov_b32 %s, 0" % s(sSH1))
        A("s_mov_b32 %s, 0" % s(sSH2))
    A("s_mov_b32 %s, 200000" % s(sBUD))
    A("s_lshl_b32 %s, %s, 15" % (s(sRING), s(sWAVE)))
    A("s_mul_i32 %s, %s, %d" % (s(sWB1), s(sWAVE), 8 * 3584))
    A("s_add_u32 %s, %s, %d" % (s(sWB1 + 1), s(sWB1), 1024 * 3584))
    A("s_mul_i32 %s, %s, 14" % (s(sWB2), s(sWAVE)))
    A("s_sub_u32 %s, %s, 14" % (s(sWB2 + 1), s(sWB2)))
    for i in range(3):
        A("s_mov_b32 %s, %s" % (s(SB + 2 * i), fbits(C7[i + 1])))
        A("s_mov_b32 %s, %s" % (s(SB + 2 * i + 1), fbits(C7[i + 1])))
        A("s_mov_b32 %s, %s" % (s(SB + 6 + 2 * i), fbits(S7[i + 1])))
        A("s_mov_b32 %s, %s" % (s(SB + 6 + 2 * i + 1), fbits(S7[i + 1])))
    w1_voffs(A, PW1, 164)
    DU1 = lambda u, g: dma_chunk(A, 1, 4 * u, 4, PW1, 4 * g)
    DU2 = lambda u, g, vo=PW2: dma_chunk(A, 2, 4 * u, 4, vo, 4 * g)
    R = Rec(); a1_consts2(R); gen_f64(R, 48)
    if SCHED == "unit": A.bgq = DU1(0, 0) + DU1(1, 1)
    A.mix(R.l, 8)
    A.bg_flush()
    stamp(A)
    A.wvm(tx)
    stamp(A)
    a1_compute(A, Z0)
    A("v_cmp_lt_u32 %s, 31, v146" % s(sT5, 2))
    A("v_cmp_eq_u32 vcc, 32, v146")
    A.wvm(twp)
    WO = 32
    for e in range(2):
        r0, i0_ = 128 + 4 * e, 130 + 4 * e
        A("v_cndmask_b32 v40, %s, %s, %s" % (v(r0), v(r0 + 1), s(sT5, 2)))
        A("v_cndmask_b32 v41, %s, %s, %s" % (v(r0 + 1), v(r0), s(sT5, 2)))
        A("v_cndmask_b32 v42, %s, %s, %s" % (v(i0_), v(i0_ + 1), s(sT5, 2)))
        A("v_cndmask_b32 v43, %s, %s, %s" % (v(i0_ + 1), v(i0_), s(sT5, 2)))
        for sl in range(4):
            A("v_perm_b32 %s, %s, %s, %s" % (v(WO + 2 * sl + e), v(42 + sl // 2), v(40 + sl // 2), v(142 + sl % 2)))
            A("v_xor_b32 %s, %s, v144" % (v(WO + 2 * sl + e), v(WO + 2 * sl + e)))
        A("v_lshl_or_b32 v44, %s, 16, %s" % (v(137 + 2 * e), v(136 + 2 * e)))
        A("v_cndmask_b32 %s, %s, v44, vcc" % (v(WO + e), v(WO + e)))
    A("s_lshl_b32 %s, %s, 3" % (s(sT0), s(sWAVE)))
    A("s_add_u32 %s, %s, 0x%x" % (s(sT0), s(sT0), SCR + 16384))
    A("v_lshl_add_u32 v40, v146, 5, %s" % s(sT0))
    for sl in range(4):
        A.ds("ds_write_b64 v40, %s offset:%d" % (v(WO + 2 * sl, 2), 2048 * sl))
    A("s_lshl_b32 %s, %s, 11" % (s(sT0), s(sWAVE)))
    A("s_add_u32 %s, %s, 0x%x" % (s(sT0), s(sT0), SCR + 16384))
    A("v_add_u32 v40, %s, v145" % s(sT0))
    A("s_waitcnt lgkmcnt(0)")
    A("s_barrier")
    A.ds("ds_read_b128 v[32:35], v40")
    A.ds("ds_read_b128 v[36:39], v40 offset:1024")
    A("s_waitcnt lgkmcnt(1)")
    A.vm("buffer_store_dwordx4 v[32:35], v145, %s, s3 offen sc1" % SWS)
    A("s_waitcnt lgkmcnt(0)")
    A.vm("buffer_store_dwordx4 v[36:39], v145, %s, s3 offen offset:1024 sc1" % SWS)
    stamp(A)
    A("s_waitcnt vmcnt(0)")
    A("s_barrier")
    lw = A.newlabel("nb")
    A("s_cmp_lg_u32 %s, 0" % s(sWAVE))
    A("s_cbranch_scc1 %s" % lw)
    A("s_and_b32 %s, s2, 1" % s(sT0))
    A("s_lshl_b32 %s, %s, 7" % (s(sT0), s(sT0)))
    A("v_mov_b32 v11, %s" % s(sT0))
    A("v_mov_b32 v12, 1")
    A("s_mov_b64 exec, 1")
    A("global_atomic_add v11, v12, %s sc1" % s(sDBG, 2))
    A("s_mov_b64 exec, -1")
    A.label(lw)
    stamp(A)
    if WU2_AT == "beta":
        for i in range(7): wu2(i)()
    A("s_min_u32 %s, %s, 27" % (s(sT0), s(sFT)))
    A("s_lshl_b32 %s, %s, 7" % (s(sT0), s(sT0)))
    A("v_mov_b32 v164, %s" % s(sT0))
    A.vm("global_load_dword v172, v164, %s" % s(sB1, 2))
    A("s_min_u32 %s, %s, 31" % (s(sT0), s(sST)))
    A("s_lshl_b32 %s, %s, 7" % (s(sT0), s(sT0)))
    A("v_mov_b32 v164, %s" % s(sT0))
    A.vm("global_load_dword v172, v164, %s" % s(sB2, 2))
    if WU1 == 2:
        A("s_mov_b32 %s, 0" % s(sT0))
        for i in range(8):
            A.vm("buffer_load_dwordx4 v[160:163], v255, %s, %s offen" % (SW1, s(sT0)))
            if i < 7: A("s_add_u32 %s, %s, 7168" % (s(sT0), s(sT0)))
    if not PZ: poison_list(A, [H0, U0, X2, X1], 164)
    R = Rec(); a2_consts(R); f32_gen(R, 48); R.l.remove("W_HERE"); tr_addr(R, PTR1, 8, 164); w2_voffs(R, PW2, 164)
    c1 = dma_chunk(A, 1, 0, 16, PW1)
    if SCHED in ("win", "unit2"): A.bgq = c1[:PRE1]
    elif SCHED == "unit": A.bgq = DU1(2, 2) + DU1(3, 3)
    A.mix(R.l, 5 if SCHED != "unit" else 10)
    A.bg_flush()
    lw = A.newlabel("nb")
    A("s_cmp_lg_u32 %s, 0" % s(sWAVE))
    A("s_cbranch_scc1 %s" % lw)
    A("v_and_b32 v56, 1, v0")
    A("v_lshlrev_b32 v56, 7, v56")
    lt, lo = A.newlabel("bar"), A.newlabel("barok")
    A.label(lt)
    A("global_load_dword v57, v56, %s sc1" % s(sDBG, 2))
    A("s_waitcnt vmcnt(0)")
    A("v_cmp_gt_u32 vcc, 0x80, v57")
    A("s_cbranch_vccz %s" % lo)
    A("s_cmp_eq_u32 %s, 0" % s(sBUD))
    A("s_cbranch_scc1 %s" % lo)
    A("s_sub_u32 %s, %s, 1" % (s(sBUD), s(sBUD)))
    if SLEEP: A("s_sleep %d" % SLEEP)
    A("s_branch %s" % lt)
    A.label(lo)
    A.label(lw)
    A("s_barrier")
    stamp(A)
    colds = []
    def fin():
        prof_end(A)
        A("s_endpgm")
    def tr_ops(n, addr, rows, dstfn, slot0=0):
        q = []
        for i in range(slot0, slot0 + n):
            def trp(i=i):
                for tl in range(2):
                    for rd in range(2):
                        A.trtok = A.ds("ds_read_b64_tr_b16 %s, %s offset:%d" % (dstfn(8 * i + 4 * tl + 2 * rd), v(addr + tl), i * 2048 + rows[rd] * 128))
            q.append(trp)
        return q
    def after_tr(ops):
        f = ops[0]
        return [lambda: (A.wds(A.trtok), f())] + ops[1:]
    def waitdma(ops):
        f = ops[0]; tk__ = A.last_dma
        return [lambda: (A.wvm(tk__), f())] + ops[1:]
    def pairs(ops): return [(lambda o=ops[k:k + 2]: [x() for x in o]) for k in range(0, len(ops), 2)]
    def mark(name): return lambda: setattr(A, name, A.last_dma)
    trw1 = lambda n, base, s0: tr_ops(n, PTR1, (0, 4), lambda r: a(base + r, 2), s0)
    for l in range(2):
        zb, tb, hb, ub, xo = ((Z0, T0, H0, U0, X1), (Z1, T1, H1, U1, X3))[l]
        if l == 1:
            for i in range(3):
                A("s_mov_b32 %s, %s" % (s(SB + 2 * i), fbits(C7[i + 1])))
                A("s_mov_b32 %s, %s" % (s(SB + 2 * i + 1), fbits(C7[i + 1])))
                A("s_mov_b32 %s, %s" % (s(SB + 6 + 2 * i), fbits(S7[i + 1])))
                A("s_mov_b32 %s, %s" % (s(SB + 6 + 2 * i + 1), fbits(S7[i + 1])))
            R = Rec(); a1_consts(R); gen_f64(R, 48); a1_consts2(R)
            if F32EARLY: f32_gen(R, 48)
            emit(R)
            A("s_barrier")
            A("s_mov_b32 %s, 0x%x" % (s(sT1), X2))
            def xi():
                for t in range(7): A.vm("buffer_load_dword %s, v1, %s, %s offen offset:%d sc1" % (v(4 + t), SWS, s(sT1), 128 * t))
            poll_loads(A, xi, range(4, 11), 11, DLY[0])
            stamp(A)
            a1_compute(A, Z1)
            stamp(A)
            R = Rec(); a2_consts(R)
            if not F32EARLY: f32_gen(R, 48)
            k_ = R.l.index("W_HERE")
            for l_ in R.l[:k_]: A(l_)
            A("s_lshl_b32 %s, s2, 13" % s(sT2))
            A("s_add_u32 %s, %s, 0x%x" % (s(sT2), s(sT2), CNT))
            A("s_add_u32 %s, %s, 4096" % (s(sT3), s(sT2)))
            A("v_lshlrev_b32 v57, 4, v0")
            A.vm("buffer_load_dwordx4 %s, v57, %s, %s offen" % (v(WV, 4), SWS, s(sT2)))
            A.wtok = A.vm("buffer_load_dwordx4 %s, v57, %s, %s offen" % (v(WV + 4, 4), SWS, s(sT3)))
            for l_ in R.l[k_ + 1:]: A(l_)
            A("s_barrier")
        nop = lambda: None
        def spaced(ops, k):
            out = []
            for o in ops: out += [o] + [nop] * k
            return out
        def quad(ops): return [(lambda o=ops[k:k + 4]: [x() for x in o]) for k in range(0, len(ops), 4)]
        def a2_after():
            if l == 0 and WU2_AT == "a2":
                for i in range(7): wu2(i)()
            if l == 0:
                if SCHED == "win" and PZ:
                    for op in poison_ops(A, [H0, X1], 164, 168): op()
                    A.p1tok = A.ptok
                    A.bgq = trw1(16, 0, 0) + poison_ops(A, [U0, X2, Z1], 164, 168, False)
                elif SCHED == "win": A.bgq = [lambda: None] * 4 + waitdma(trw1(16, 0, 0))
                elif SCHED == "unit3":
                    A.bgq = DU1(0, 0) + DU1(1, 1) + [mark("h1")] + DU1(2, 2) + DU1(3, 3); A.auto = AUTO2
                else: A.bgq = pairs(trw1(16, 0, 0)) + after_tr(DU1(4, 0) + DU1(5, 1))
        a2_phase(A, zb, tb, l == 1, a2_after, lambda: [o() for o in c1[PRE1:]])
        stamp(A)
        if STOP == 2 + 5 * l: fin(); break
        R = Rec(); a3_consts(R)
        if l == 0:
            if WU2_AT == "w23":
                for i in range(7): wu2(i)()
            if not PZ: poison_list(A, [Z1], 164)
            if SCHED == "win":
                A("s_waitcnt lgkmcnt(0)")
                c2 = dma_chunk(A, 1, 16, 16, PW1)
                A.bgq = c2[:PRE2]
            elif SCHED == "unit3":
                A.wvm(A.h1)
                for op in trw1(8, 0, 0): op()
                A.bgq = after_tr(DU1(4, 0) + DU1(5, 1))
            else:
                A.bgq = DU1(6, 2)
        A.mix(R.l, {"win": 2, "unit3": 3}.get(SCHED, 6))
        A.bg_flush()
        A("s_barrier")
        def a3_after():
            if l == 0 and WU2_AT == "a3":
                for i in range(7): wu2(i)()
            if l == 0:
                if SCHED == "win": A.bgq = [lambda: None] * 4 + waitdma(trw1(16, 128, 0))
                elif SCHED == "unit3":
                    A.bgq = quad(trw1(8, 0, 8)) + quad(trw1(8, 128, 0)) + after_tr(DU1(6, 2)) + [mark("h7")] + DU1(7, 3) + DU2(0, 0) + DU2(1, 1); A.auto = AUTO3
                else: A.bgq = quad(trw1(12, 128, 0)) + DU1(7, 3) + after_tr(DU2(0, 0))
        a3_phase(A, l, tb, xo, hb, a3_after, (lambda: [o() for o in c2[PRE2:]]) if (l == 0 and PRE2 < 32) else None)
        stamp(A)
        if STOP == 3 + 5 * l: fin(); break
        R = Rec(); b_consts(R)
        if l == 0:
            tr_addr(R, vTR, 4, 8)
            w2_voffs(R, 10, 8)
            if SCHED == "win":
                A("s_waitcnt lgkmcnt(0)")
                A.bgq = dma_chunk(A, 2, 0, 12, PW2)
            elif SCHED == "unit3":
                A.wvm(A.h7)
                for op in trw1(4, 128, 8): op()
                A.bgq = after_tr(DU2(2, 2))
            else:
                A.bgq = DU2(1, 1) + DU2(2, 2)
        A.mix(R.l, 2)
        A.bg_flush()
        A("s_barrier")
        lasttr = (lambda: (trw1(4, 128, 12) if SCHED != "win" else []) + tr_ops(12, vTR, (0, 8), lambda r: v(W2V + r, 2)))
        def b1_tail():
            if l == 0:
                A.bg_flush()
                A("s_waitcnt lgkmcnt(0)")
                A.bgq = dma_chunk(A, 2, 12, 16, 10)
        def b1_first():
            if l == 0: A.bgq = lasttr()
        skip, cold = b1_phase(A, l, hb, ub, b1_tail, b1_first)
        colds.append(cold)
        if l == 0:
            dn = A.newlabel("b1done")
            A("s_branch %s" % dn)
            A.label(skip)
            A("s_waitcnt vmcnt(0)")
            for op in lasttr(): op()
            A("s_waitcnt lgkmcnt(0)")
            for op in dma_chunk(A, 2, 12, 16, 10): op()
            if PZ:
                A("v_mul_u32_u24 v16, 7168, v0")
                A("s_mov_b32 %s, 0x%x" % (s(sT2), H0))
                def hi_():
                    A("buffer_load_dword v17, v16, %s, %s offen sc1" % (SWS, s(sT2)))
                    A("v_mov_b32 v18, 0")
                    A("v_mov_b32 v19, 0")
                poll_loads(A, hi_, range(17, 20), 20, 16)
                A("s_barrier")
            A.label(dn)
        else:
            A.label(skip)
        stamp(A)
        if STOP == 4 + 5 * l: fin(); break
        skip, cold = b2_phase(A, l, ub, xo)
        colds.append(cold)
        if l == 0:
            dn = A.newlabel("b2done")
            A("s_branch %s" % dn)
            A.label(skip)
            A("s_waitcnt vmcnt(0)")
            if PZ: poison_list(A, [T1, H1, U1, X3], 32)
            A.label(dn)
        else:
            A.label(skip)
        if l == 0 and not PZ:
            poison_list(A, [T1, H1, U1, X3], 32)
        stamp(A)
        if STOP == 5 + 5 * l: fin(); break
    else:
        fin()
    for c in colds: c()
    A.label("L_exit")
    A("s_endpgm")
    A.label("L_code_end")
    lines, n = fix_hazards_fast(A.lines)
    if ALIGN:
        lines, fx, lf = align_pass(lines, ALIGN, ALNOP)
        print("align fixed", fx, "left", lf, file=sys.stderr)
    for p in lint_waits(lines): print("LINT", p, file=sys.stderr)
    hdr = open("cdna_kernels/%s.s.ref" % NAME).read().split("; Override launch")[0]
    out = hdr + "; @launch grid=(256,1,1) block=(256,1,1) lds=%d\n" % LDS_TOTAL
    out += '.amdgcn_target "amdgcn-amd-amdhsa--gfx950"\n.text\n.globl %s\n.p2align 8\n.type %s,@function\n' % (KN, KN)
    out += "\n".join(lines) + "\n"
    out += """.section .rodata,"a"
.p2align 6
.amdhsa_kernel %s
  .amdhsa_next_free_vgpr 512
  .amdhsa_next_free_sgpr 102
  .amdhsa_accum_offset 256
  .amdhsa_group_segment_fixed_size 0
  .amdhsa_kernarg_size 88
  .amdhsa_user_sgpr_count 2
  .amdhsa_user_sgpr_kernarg_segment_ptr 1
  .amdhsa_system_sgpr_workgroup_id_x 1
.end_amdhsa_kernel
""" % KN
    print("nops inserted:", n, "lines:", len(lines), "stamps:", nstamp[0], file=sys.stderr)
    return out

if __name__ == "__main__":
    outp = sys.argv[1] if len(sys.argv) > 1 else "p1.s"
    open(outp, "w").write(build())
    import subprocess
    r = subprocess.run(["clang", "-x", "assembler", "-target", "amdgcn-amd-amdhsa", "-mcpu=gfx950", "-c", outp, "-o", "chk.o"], capture_output=True, text=True)
    if r.returncode: print("ASM ERROR", r.stderr[:1500])
    else:
        o = subprocess.run(["llvm-readelf", "-S", "chk.o"], capture_output=True, text=True).stdout
        print("text bytes", [int(l.split()[-6 if len(l.split()) > 10 else -5], 16) for l in o.splitlines() if " .text" in l], file=sys.stderr)
```

```python
import re

def v(i, n=1):
    return "v%d" % i if n == 1 else "v[%d:%d]" % (i, i + n - 1)
def a(i, n=1):
    return "a%d" % i if n == 1 else "a[%d:%d]" % (i, i + n - 1)
def s(i, n=1):
    return "s%d" % i if n == 1 else "s[%d:%d]" % (i, i + n - 1)

_reg_re = re.compile(r'^(-|\|)?(?:abs\()?([vas])(?:(\d+)|\[(\d+):(\d+)\])\)?\|?$')

def parse_reg(tok):
    tok = tok.strip()
    if tok in ("vcc", "exec"):
        return [(tok, 0), (tok, 1)]
    if tok in ("vcc_lo", "exec_lo"):
        return [(tok[:-3], 0)]
    if tok in ("vcc_hi", "exec_hi"):
        return [(tok[:-3], 1)]
    if tok == "m0":
        return [("m0", 0)]
    m = _reg_re.match(tok)
    if not m:
        return []
    k = m.group(2)
    if m.group(3) is not None:
        return [(k, int(m.group(3)))]
    return [(k, i) for i in range(int(m.group(4)), int(m.group(5)) + 1)]

TRANS = ("v_exp_f32", "v_log_f32", "v_rcp_f32", "v_rsq_f32", "v_sqrt_f32", "v_sin_f32", "v_cos_f32", "v_rcp_iflag_f32")

class Ins:
    def __init__(self, text):
        self.text = text
        t = text.split(";")[0].strip()
        self.is_label = t.endswith(":")
        self.is_dir = t.startswith(".")
        self.mn = ""
        self.w = set(); self.r = set()
        self.kind = "other"
        self.passes = 0
        self.srcc = set(); self.srcab = set()
        self.dpp = False
        self.target = None
        self.nop = 0
        if self.is_label:
            self.label = t[:-1]; return
        if self.is_dir or not t:
            self.is_dir = True; return
        parts = t.split(None, 1)
        mn = parts[0]; self.mn = mn
        rest = parts[1] if len(parts) > 1 else ""
        ops = []; cur = ""; depth = 0
        for ch in rest:
            if ch in "[(": depth += 1
            if ch in "])": depth -= 1
            if ch == "," and depth == 0:
                ops.append(cur.strip()); cur = ""
            else:
                cur += ch
        if cur.strip(): ops.append(cur.strip())
        mods = []
        if ops:
            last = ops[-1]; depth = 0; cut = None
            for i, ch in enumerate(last):
                if ch in "[(": depth += 1
                if ch in "])": depth -= 1
                if ch == " " and depth == 0:
                    cut = i; break
            if cut is not None:
                mods = last[cut:].split(); ops[-1] = last[:cut]
        self.ops = ops; self.mods = mods
        R = lambda i: parse_reg(ops[i]) if i < len(ops) else []
        base = re.sub(r'_(e32|e64|dpp|sdwa)$', '', mn)
        self.base = base
        if mn.startswith("v_mfma"):
            self.kind = "mfma"
            self.w = set(R(0)); self.srcab = set(R(1)) | set(R(2)); self.srcc = set(R(3))
            self.r = self.srcab | self.srcc
            self.passes = 8 if "32x32" in mn else 4
            self.dfirst = R(0)[0]; self.dn = len(R(0))
        elif mn.startswith("v_"):
            self.kind = "valu"
            self.dpp = mn.endswith("_dpp") or any(m.startswith(("quad_perm", "row_", "wave_")) for m in mods)
            if base.startswith("v_cmp"):
                self.w = set(R(0)); self.r = set(sum((R(i) for i in range(1, len(ops))), []))
                if base.startswith("v_cmpx"): self.w |= {("exec", 0), ("exec", 1)}
            elif base in ("v_add_co_u32", "v_sub_co_u32", "v_subrev_co_u32", "v_addc_co_u32", "v_subb_co_u32", "v_mad_u64_u32"):
                self.w = set(R(0)) | set(R(1)); self.r = set(sum((R(i) for i in range(2, len(ops))), []))
            elif base in ("v_permlane16_swap_b32", "v_permlane32_swap_b32", "v_swap_b32"):
                self.w = set(R(0)) | set(R(1)); self.r = set(self.w)
            else:
                self.w = set(R(0)); self.r = set(sum((R(i) for i in range(1, len(ops))), []))
                if base in ("v_fmac_f32", "v_pk_fmac_f16", "v_writelane_b32", "v_dot2c_f32_bf16") or self.dpp or "sdwa" in mn:
                    self.r |= set(R(0))
                if base == "v_cndmask_b32" and len(ops) == 3:
                    self.r |= {("vcc", 0), ("vcc", 1)}
            self.trans = base in TRANS
        elif mn.startswith(("buffer_", "global_", "flat_", "scratch_")):
            self.kind = "vmem"
            allr = set(sum((R(i) for i in range(len(ops))), []))
            self.lds = ("lds" in mods) or ("_lds_" in mn)
            if mn in ("buffer_wbl2", "buffer_inv"):
                pass
            elif "load" in mn and not self.lds:
                self.w = set(R(0)); self.r = set(sum((R(i) for i in range(1, len(ops))), []))
            elif "atomic" in mn and "sc0" in mods:
                self.w = set(R(0)); self.r = allr
            else:
                self.r = allr
                if self.lds: self.r |= {("m0", 0)}
            self.wide_store = ("store" in mn) and (mn.endswith("x4") or mn.endswith("x3"))
            if self.wide_store:
                self.sdata = set(R(0)) if mn.startswith("buffer_") else set(R(1))
        elif mn.startswith("ds_"):
            self.kind = "ds"
            if "read" in mn or "permute" in mn or "swizzle" in mn or "_rtn" in mn:
                self.w = set(R(0)); self.r = set(sum((R(i) for i in range(1, len(ops))), []))
            else:
                self.r = set(sum((R(i) for i in range(len(ops))), []))
        elif mn.startswith("s_"):
            self.kind = "salu"
            if mn == "s_nop":
                self.kind = "nop"; self.nop = int(ops[0], 0) + 1
            elif mn in ("s_branch",) or mn.startswith("s_cbranch"):
                self.kind = "branch"; self.target = ops[0]
            elif mn.startswith(("s_load", "s_buffer_load", "s_memtime", "s_memrealtime")):
                self.kind = "smem"; self.w = set(R(0)); self.r = set(sum((R(i) for i in range(1, len(ops))), []))
            elif mn.startswith("s_cmp") or mn in ("s_waitcnt", "s_barrier", "s_endpgm", "s_sleep", "s_setprio", "s_bitcmp0_b32", "s_bitcmp1_b32"):
                self.r = set(sum((R(i) for i in range(len(ops))), []))
            else:
                self.w = set(R(0)); self.r = set(sum((R(i) for i in range(1, len(ops))), []))
                if "saveexec" in mn: self.w |= {("exec", 0), ("exec", 1)}
    def real(self):
        return not (self.is_label or self.is_dir)

def isv(rs): return {x for x in rs if x[0] in "va" and x[0] not in ("vcc",)}
def vregs(rs): return {x for x in rs if x[0] in ("v", "a")}
def sregs(rs): return {x for x in rs if x[0] in ("s", "vcc")}

def need(p, c):
    n = 0
    if p.kind == "valu":
        pw = vregs(p.w); ps = sregs(p.w)
        if c.kind == "mfma" and pw & c.r: n = max(n, 2)
        if c.kind == "valu":
            if c.dpp and pw & c.r: n = max(n, 2)
            if c.base in ("v_readlane_b32", "v_readfirstlane_b32") and pw & c.r: n = max(n, 1)
            if c.base.startswith("v_permlane") and pw & c.r: n = max(n, 2)
            if ps & c.r: n = max(n, 4 if c.base in ("v_readlane_b32", "v_writelane_b32") else 2)
            if p.trans and not c.trans and pw & c.r: n = max(n, 1)
            if p.trans and c.trans and pw & c.r: n = max(n, 1)
            if ("sdwa" in p.mn or any(m.startswith("op_sel") for m in p.mods) and not p.mn.startswith("v_pk")) and pw & (c.r | c.w): n = max(n, 1)
            if ("exec", 0) in p.w:
                n = max(n, 5 if c.dpp else (4 if c.base.startswith(("v_readlane", "v_readfirstlane", "v_writelane", "v_permlane")) else 0))
        if c.kind == "mfma" and ("exec", 0) in p.w: n = max(n, 4)
        if c.kind == "vmem" and ps & c.r: n = max(n, 5)
        if c.kind in ("salu", "smem", "branch") and ps & c.r: n = max(n, 1)
        if p.trans and c.kind in ("vmem", "ds", "mfma") and pw & c.r: n = max(n, 2 if c.kind == "mfma" else 1)
    if p.kind == "mfma":
        big = 12 if p.passes == 8 else 8
        if c.kind == "mfma":
            if p.w & c.srcab: n = max(n, big)
            if p.w & c.srcc:
                if not (c.srcc == p.w and c.passes == p.passes): n = max(n, big - 2)
            elif p.w & c.w: n = max(n, big)
        elif c.kind in ("valu", "vmem", "ds"):
            if p.w & (c.r | c.w): n = max(n, big)
            if c.kind == "valu" and p.srcc & c.w: n = max(n, 7 if p.passes == 8 else 3)
    if p.kind == "salu" and ("m0", 0) in p.w:
        if (c.kind == "vmem" and c.lds) or (c.kind == "ds" and "addtid" in c.mn): n = max(n, 1)
    if p.kind == "vmem" and getattr(p, "wide_store", False):
        if c.kind in ("valu", "mfma") and p.sdata & c.w: n = max(n, 2)
        elif c.kind in ("vmem", "ds") and p.sdata & c.w: n = max(n, 1)
    return n

MAXD = 13

def fix_hazards(lines):
    ins = [Ins(l) for l in lines]
    total = 0
    changed = True
    while changed:
        changed = False
        labels = {x.label: i for i, x in enumerate(ins) if x.is_label}
        srcs = {}
        for i, x in enumerate(ins):
            if x.kind == "branch" and x.target in labels:
                srcs.setdefault(labels[x.target], []).append(i)
        i = 0
        out = []
        inserted = False
        for ci, c in enumerate(ins):
            if c.real() and c.kind in ("valu", "mfma", "vmem", "ds", "salu", "smem", "branch") and not inserted:
                worst = 0
                stack = [(ci - 1, 0)]
                seen = set()
                while stack:
                    j, dist = stack.pop()
                    while j >= 0 and dist < MAXD:
                        if (j, dist) in seen: break
                        seen.add((j, dist))
                        p = ins[j]
                        if p.is_label:
                            for sidx in srcs.get(j, []):
                                stack.append((sidx, dist))
                            j -= 1; continue
                        if p.is_dir:
                            j -= 1; continue
                        if p.mn in ("s_endpgm",) or (p.mn == "s_branch" and j != ci and (j + 1 <= ci) and not any(True for _ in [])):
                            if p.mn == "s_endpgm" or (j, dist) not in [(q, d) for q, d in []]:
                                pass
                        nreq = need(p, c)
                        if nreq > dist: worst = max(worst, nreq - dist)
                        dist += p.nop if p.kind == "nop" else 1
                        if p.mn == "s_endpgm": break
                        j -= 1
                if worst > 0:
                    out.append(Ins("    s_nop %d" % (worst - 1)))
                    total += 1
                    inserted = True
            out.append(c)
        if inserted:
            ins = out; changed = True
    return [x.text for x in ins], total

def fix_hazards_fast(lines):
    ins = []
    total = 0
    for l in lines:
        c = Ins(l)
        if c.real() and c.kind != "nop":
            worst = 0; dist = 0; j = len(ins) - 1
            while j >= 0 and dist < MAXD:
                p = ins[j]
                if p.real():
                    if p.mn == "s_endpgm": break
                    nreq = need(p, c)
                    if nreq > dist: worst = max(worst, nreq - dist)
                    dist += p.nop if p.kind == "nop" else 1
                j -= 1
            if worst > 0:
                ins.append(Ins("    s_nop %d" % (worst - 1))); total += 1
        ins.append(c)
    again = True
    while again:
        again = False
        labels = {x.label: i for i, x in enumerate(ins) if x.is_label}
        for bi, b in enumerate(ins):
            if b.kind == "branch" and b.target in labels:
                li = labels[b.target]
                d0 = 0; ci = li + 1
                while ci < len(ins) and d0 < MAXD:
                    c = ins[ci]
                    if c.real():
                        if c.kind != "nop":
                            dist = d0; j = bi; worst = 0
                            while j >= 0 and dist < MAXD:
                                p = ins[j]
                                if p.real():
                                    nreq = need(p, c)
                                    if nreq > dist: worst = max(worst, nreq - dist)
                                    dist += p.nop if p.kind == "nop" else 1
                                j -= 1
                            if worst > 0:
                                ins.insert(ci, Ins("    s_nop %d" % (worst - 1))); total += 1
                                again = True; break
                        d0 += c.nop if c.kind == "nop" else 1
                        if c.mn in ("s_branch", "s_endpgm"): break
                    ci += 1
                if again: break
    return [x.text for x in ins], total

def lint_waits(lines):
    vm = []; lg = []; probs = []
    for n, l in enumerate(lines):
        c = Ins(l)
        if not c.real(): continue
        if c.mn == "s_endpgm":
            vm = []; lg = []; continue
        if c.mn == "s_waitcnt":
            t = " ".join(c.ops + c.mods)
            m = re.search(r'vmcnt\((\d+)\)', t)
            if m:
                k = int(m.group(1)); vm = vm[len(vm) - k:] if k < len(vm) and k > 0 else ([] if k == 0 else vm)
            m = re.search(r'lgkmcnt\((\d+)\)', t)
            if m:
                k = int(m.group(1))
                if any(x[1] == "smem" for x in lg) and k > 0:
                    probs.append((n, l, "counted lgkmcnt with smem outstanding"))
                lg = lg[len(lg) - k:] if k < len(lg) and k > 0 else ([] if k == 0 else lg)
            continue
        touched = c.r | c.w
        for (w, kind, ln) in vm + lg:
            if w & touched:
                if c.kind == kind and not (w & c.r) and kind in ("vmem", "ds"):
                    continue
                probs.append((n, l, "touches pending %s result from line %d" % (kind, ln)))
        if c.kind == "vmem": vm.append((set(c.w), "vmem", n))
        elif c.kind == "ds": lg.append((set(c.w), "ds", n))
        elif c.kind == "smem": lg.append((set(c.w), "smem", n))
        if len(vm) > 63: probs.append((n, l, "vmcnt overflow >63"))
    return probs

class Asm:
    def __init__(self):
        self.lines = []
        self.uid = 0
    def __call__(self, t):
        for x in t.split("\n"):
            x = x.strip()
            if x: self.lines.append("    " + x if not x.endswith(":") else x)
    def label(self, l):
        self.lines.append(l + ":")
    def newlabel(self, p="L"):
        self.uid += 1
        return "%s_%d" % (p, self.uid)
    def c(self, t):
        self.lines.append("    ; " + t)


class Asm2(Asm):
    def __init__(self):
        super().__init__()
        self.vmn = 0; self.dsn = 0
        self.bgq = []
        self.auto = 0; self._cnt = 0
    def __call__(self, t):
        super().__call__(t)
        if self.auto and t.lstrip().startswith("v_"):
            self._cnt += 2 if "mfma" in t or "_cos" in t or "_sin" in t or "_exp" in t or "_rcp" in t else 1
            if self._cnt >= self.auto:
                self._cnt = 0
                a = self.auto; self.auto = 0
                if self.bgq: self.bgq.pop(0)()
                self.auto = a
    def vm(self, t):
        self(t); self.vmn += 1; return self.vmn - 1
    def ds(self, t):
        self(t); self.dsn += 1; return self.dsn - 1
    def wvm(self, tok):
        n = self.vmn - tok - 1
        if n <= 63: self("s_waitcnt vmcnt(%d)" % n)
    def wds(self, tok):
        n = self.dsn - tok - 1
        self("s_waitcnt lgkmcnt(%d)" % min(n, 15))
    def bg(self, n=1):
        if self.auto: return
        for _ in range(n):
            if self.bgq: self.bgq.pop(0)()
    def st(self, n):
        q = getattr(self, "sq", [])
        for _ in range(n):
            if q: q.pop(0)()
    def bg_flush(self):
        self.auto = 0
        while self.bgq: self.bgq.pop(0)()
    def mix(self, fg, every):
        for i, l in enumerate(fg):
            self(l)
            if (i + 1) % every == 0: self.bg()

class Rec:
    def __init__(self): self.l = []
    def __call__(self, t):
        for x in t.split("\n"):
            if x.strip(): self.l.append(x.strip())

def zipmix(*streams):
    out = []; n = max(len(s) for s in streams); pos = [0] * len(streams)
    for i in range(1, n + 1):
        for k, s in enumerate(streams):
            tgt = (len(s) * i + n - 1) // n
            while pos[k] < tgt:
                out.append(s[pos[k]]); pos[k] += 1
    return out

import subprocess, os
_WIDEN_OK = ("v_add_f32", "v_sub_f32", "v_mul_f32", "v_mov_b32", "v_and_b32", "v_or_b32", "v_xor_b32", "v_lshlrev_b32", "v_lshrrev_b32",
             "v_add_u32", "v_sub_u32", "v_subrev_u32", "v_max_u32", "v_max_f32", "v_cos_f32", "v_sin_f32", "v_exp_f32", "v_rcp_f32", "v_rsq_f32",
             "v_cvt_f32_u32", "v_mul_u32_u24", "v_mul_i32_i24", "v_cndmask_b32", "v_cmp_eq_u32", "v_cmp_gt_u32", "v_cmp_lt_u32", "v_cmp_ne_u32")
def sizes_of(lines):
    txt = '.amdgcn_target "amdgcn-amd-amdhsa--gfx950"\n.text\n' + "\n".join(lines) + "\n"
    open("al.s", "w").write(txt)
    r = subprocess.run(["clang", "-x", "assembler", "-target", "amdgcn-amd-amdhsa", "-mcpu=gfx950", "-c", "al.s", "-o", "al.o"], capture_output=True, text=True)
    assert r.returncode == 0, r.stderr[:2000]
    o = subprocess.run(["llvm-objdump", "-d", "--mcpu=gfx950", "al.o"], capture_output=True, text=True).stdout
    out = []
    for l in o.splitlines():
        m = re.search(r'//\s+([0-9A-F]+):\s+((?:[0-9A-F]{8}\s*)+)', l)
        if m: out.append(4 * len(m.group(2).split()))
    return out

def align_pass(lines, B=32, usenop=False):
    idx = [i for i, l in enumerate(lines) if Ins(l).real()]
    sz = sizes_of(lines)
    assert len(sz) == len(idx), (len(sz), len(idx))
    lines = list(lines)
    off = 0; n = len(idx); fixed = 0; left = 0
    k = 0
    ins_nop = []
    while k < n:
        if sz[k] == 8 and off % 8 == 4:
            j = k; o = off; strad = False
            while j < n and sz[j] == 8:
                if o % B == B - 4: strad = True
                o += 8; j += 1
            if strad:
                p = k - 1
                mn = lines[idx[p]].split()[0] if p >= 0 else ""
                if p >= 0 and sz[p] == 4 and mn in _WIDEN_OK:
                    lines[idx[p]] = lines[idx[p]].replace(mn, mn + "_e64", 1); sz[p] = 8; off += 4; fixed += 1
                elif usenop and j - k >= usenop:
                    ins_nop.append(idx[k]); off += 4; fixed += 1
                else: left += 1
            off += 8 * (j - k); k = j
        else:
            off += sz[k]; k += 1
    for i in reversed(ins_nop): lines.insert(i, "    s_nop 0")
    return lines, fixed, left
```

```python
import math, struct, sys, os
from asmlib import *

NAME = "interleave_layers__spectral_gfnet__mixer_token_mlp__prompt"
S, D, F = 2048, 448, 1792
MB2 = 0x200000
Z0, Z1, T0, T1, WT, X1, X2, X3, H0, H1, U0, U1, CNT = [MB2 * i for i in range(13)]
WS_BYTES = 0x2000000
PROFOFF = 0x1C00000
PROF = int(os.environ.get("PROF", 0))
STOP = int(os.environ.get("STOP", 99))
SLEEP = int(os.environ.get("SLEEP", 2))
WUPRE = int(os.environ.get("WUPRE", 4))
XP = int(os.environ.get("XP", 0)); WU2_AT = os.environ.get("WU2_AT", "a3"); WU2FL = os.environ.get("WU2FL", " nt"); DMAFL = os.environ.get("DMAFL", "")
NT = os.environ.get("NT", "")
SCHED = os.environ.get("SCHED", "win")
DLY = [int(x) for x in os.environ.get("DLY", "0,0,10,12,12").split(",")]
MAP = os.environ.get("MAP", "x"); KROT = int(os.environ.get("KROT", 0))
AUTO2 = int(os.environ.get("AUTO2", 9)); AUTO3 = int(os.environ.get("AUTO3", 7))
FAKE16 = int(os.environ.get("FAKE16", 0))
STFL = os.environ.get("STFL", " sc1")
assert int(os.environ.get("FULLB", 1)) or STFL == " sc1"
PRE1 = int(os.environ.get("PRE1", 32)); PRE2 = int(os.environ.get("PRE2", 32))
DW = int(os.environ.get("DW", 64)); MAP1 = os.environ.get("MAP1", "x"); X2T = int(os.environ.get("X2T", 1))
OUTFL = os.environ.get("OUTFL", "").replace("_", " ")
EXM = int(os.environ.get("EXM", 0))
ALIGN = int(os.environ.get("ALIGN", 0)); ALNOP = int(os.environ.get("ALNOP", 0))
F32EARLY = int(os.environ.get("F32EARLY", 0))
PZ = int(os.environ.get("PZ", 1))
STASH = int(os.environ.get("STASH", 0)); STASHFL = os.environ.get("STASHFL", "").replace("_", " ")
RALL = int(os.environ.get("RALL", 6))
WU1POS = int(os.environ.get("WU1POS", 1))
STN = int(os.environ.get("STN", 0)); STM = int(os.environ.get("STM", 0))
WHOOK = int(os.environ.get("WHOOK", 1)); C4IN = os.environ.get("C4IN", "win")
NCNT = int(os.environ.get("NCNT", 32)); BDLY = int(os.environ.get("BDLY", 0)); BSLP = int(os.environ.get("BSLP", 2))
MASKED = int(os.environ.get("MASKED", 1)); FULLB = int(os.environ.get("FULLB", 1))
ROT = int(os.environ.get("ROT", 1)); WU1 = int(os.environ.get("WU1", 3))

def fbits(x): return "0x%08x" % struct.unpack("<I", struct.pack("<f", x))[0]
C7 = [math.cos(2 * math.pi * r / 7) for r in range(4)]
S7 = [math.sin(2 * math.pi * r / 7) for r in range(4)]
CV = "v_cvt_pk_bf16_f32"; M16 = "v_mfma_f32_16x16x32_bf16"; M32 = "v_mfma_f32_32x32x16_bf16"

sX, sWS, sWR, sWI, sW1, sB1, sW2, sB2, sOUT, sDBG = 4, 6, 8, 10, 12, 14, 16, 18, 20, 22
SW1, SW2, SWS = "s[24:27]", "s[28:31]", "s[32:35]"
SB = 36
sW, sWAVE, sDT, sFT, sST, sA1, sA2, sBUD = 48, 49, 50, 51, 52, 53, 54, 55
sT0, sT1, sT2, sT3 = 56, 57, 58, 59
sRING, sT4, sT5, sT6 = 60, 61, 62, 63
sC = 98
sWB1, sWB2 = 12, 16
sDT2, sROT1 = 64, 65
sSH1, sSH2, sEND = 99, 100, 101
SCR = 131072
LDS_TOTAL = 163840
LSTR = 272
YSTR = 448 * 4 + 64
HSTR = 896 + 32
A3_Y = 32 * LSTR
A3_H = A3_Y + 8 * YSTR
XL = 0
F64R, F64I = 96, 112
W2V = 160

nstamp = [0]
CLK = [int(x) for x in os.environ.get("CLK", "").split(",") if x]
BUDA = [int(x) for x in os.environ.get("BUDA", "22,23").split(",")]
BUDB = [int(x) for x in os.environ.get("BUDB", "23,24").split(",")]
FINE = int(os.environ.get("FINE", 0)); FINEON = [False]
def fstamp(A):
    if FINE: stamp(A)
DIAG = int(os.environ.get("DIAG", -1))
ndiag = [1]
def stamp(A):
    if DIAG >= 0:
        if ndiag[0] == DIAG:
            A("s_memrealtime s[96:97]")
            A("s_waitcnt lgkmcnt(0)")
        ndiag[0] += 1
    if not PROF: return
    if FINE and not FINEON[0]: return
    i = nstamp[0]; nstamp[0] += 1
    assert i < 32
    A("s_memrealtime s[8:9]")
    A("s_waitcnt lgkmcnt(0)")
    A("s_mov_b32 %s, s8" % s(66 + i))
    if CLK and i in CLK:
        A("s_memtime s[8:9]")
        A("s_waitcnt lgkmcnt(0)")
        if i == CLK[0]: A("s_mov_b32 s97, s8")
        else: A("s_sub_u32 s97, s8, s97")
        return
    for slot, st in ((30, BUDA), (31, BUDB)) if not CLK else ():
        if i == st[0]: A("s_mov_b32 %s, %s" % (s(66 + slot), s(sBUD)))
        if i == st[1]:
            A("s_sub_u32 %s, %s, %s" % (s(66 + slot), s(66 + slot), s(sBUD)))
            A("s_add_u32 %s, %s, 1000" % (s(66 + slot), s(66 + slot)))

def prof_end(A):
    if DIAG >= 0:
        stamp(A)
        l1, l2 = A.newlabel("dg"), A.newlabel("dg")
        A("s_cmp_lg_u32 s2, 75")
        A("s_cbranch_scc1 %s" % l2)
        A("s_memrealtime s[92:93]")
        A("s_waitcnt lgkmcnt(0)")
        if DIAG == 100:
            A("s_memtime s[96:97]")
            A("s_waitcnt lgkmcnt(0)")
        A("s_sub_u32 s96, s96, s94")
        if DIAG == 100: A("s_lshr_b32 s96, s96, 5")
        A("s_min_u32 s96, s96, 20000")
        A.label(l1)
        A("s_memrealtime s[90:91]")
        A("s_waitcnt lgkmcnt(0)")
        A("s_sub_u32 s90, s90, s92")
        A("s_cmp_lt_u32 s90, s96")
        A("s_cbranch_scc1 %s" % l1)
        A.label(l2)
    if not PROF: return
    A("s_waitcnt vmcnt(0)")
    stamp(A)
    n = 32
    A("s_lshl_b32 s56, s2, 9")
    A("s_add_u32 s56, s56, 0x%x" % PROFOFF)
    A("v_lshrrev_b32 v1, 6, v0")
    A("v_lshlrev_b32 v1, 7, v1")
    for i in range(n):
        A("v_mov_b32 v2, %s" % s(66 + i))
        A("buffer_store_dword v2, v1, %s, s56 offen offset:%d" % (SWS, 4 * i))

def c7(r):
    r %= 7; r = min(r, 7 - r); return s(SB + 2 * (r - 1), 2)
def s7(r):
    r %= 7
    return (s(SB + 6 + 2 * (r - 1), 2), 1) if r <= 3 else (s(SB + 6 + 2 * (7 - r - 1), 2), -1)

def red32(R, x, t):
    for m in ("quad_perm:[1,0,3,2]", "quad_perm:[2,3,0,1]", "row_half_mirror", "row_mirror"):
        R("v_add_f32_dpp %s, %s, %s %s row_mask:0xf bank_mask:0xf" % (v(x), v(x), v(x), m))
    R("v_mov_b32 %s, %s" % (v(t), v(x)))
    R("v_permlane16_swap_b32 %s, %s" % (v(x), v(t)))
    R("v_add_f32 %s, %s, %s" % (v(x), v(x), v(t)))

def gen_frags(R, nidx, qreg, ksteps, denom, dre, dim, tmp):
    nf, ang, n13 = tmp, tmp + 1, tmp + 2
    R("v_cvt_f32_u32 %s, %s" % (v(nf), v(nidx)))
    R("v_cvt_f32_u32 %s, %s" % (v(ang), v(qreg)))
    R("v_mul_f32 %s, %s, %s" % (v(nf), fbits(1.0 / denom), v(nf)))
    R("v_mul_f32 %s, 4.0, %s" % (v(ang), v(ang)))
    R("v_mul_f32 %s, %s, %s" % (v(n13), fbits(13.0), v(nf)))
    R("v_mul_f32 %s, %s, %s" % (v(ang), v(ang), v(nf)))
    n = 4 * ksteps
    def sc(i): return tmp + 3 + 2 * (i % 2), tmp + 4 + 2 * (i % 2)
    for i in range(n + 1):
        if i < n:
            cs, sn = sc(i)
            R("v_cos_f32 %s, %s" % (v(cs), v(ang)))
            R("v_sin_f32 %s, %s" % (v(sn), v(ang)))
            if i < n - 1: R("v_add_f32 %s, %s, %s" % (v(ang), v(ang), v(nf if i % 4 < 3 else n13)))
        if i > 0:
            cs, sn = sc(i - 1)
            R("%s %s, %s, %s" % (CV, v(dre + i - 1), v(cs), v(sn)))
            R("%s %s, -%s, %s" % (CV, v(dim + i - 1), v(sn), v(cs)))

def gen_f64(R, tmp):
    R("v_lshrrev_b32 %s, 6, v0" % v(tmp + 7))
    R("v_and_b32 %s, 15, v0" % v(tmp + 8))
    R("v_lshl_add_u32 %s, %s, 4, %s" % (v(tmp + 7), v(tmp + 7), v(tmp + 8)))
    R("v_bfe_u32 %s, v0, 4, 2" % v(tmp + 8))
    gen_frags(R, tmp + 7, tmp + 8, 4, 64, F64R, F64I, tmp)

def unpack7(R, src, dst):
    for t in range(7):
        R("v_lshlrev_b32 %s, 16, %s" % (v(dst + 2 * t), v(src + t)))
        R("v_and_b32 %s, 0xffff0000, %s" % (v(dst + 2 * t + 1), v(src + t)))

def stats_streams(z, a1, a2, t1, t2):
    R1 = Rec(); R2 = Rec()
    R1("v_pk_add_f32 %s, %s, %s" % (v(a1, 2), v(z, 2), v(z + 2, 2)))
    for k in range(2, 7): R1("v_pk_add_f32 %s, %s, %s" % (v(a1, 2), v(a1, 2), v(z + 2 * k, 2)))
    R1("v_add_f32 %s, %s, %s" % (v(a1), v(a1), v(a1 + 1)))
    red32(R1, a1, t1)
    R2("v_pk_mul_f32 %s, %s, %s" % (v(a2, 2), v(z, 2), v(z, 2)))
    for k in range(1, 7): R2("v_pk_fma_f32 %s, %s, %s, %s" % (v(a2, 2), v(z + 2 * k, 2), v(z + 2 * k, 2), v(a2, 2)))
    R2("v_add_f32 %s, %s, %s" % (v(a2), v(a2), v(a2 + 1)))
    red32(R2, a2, t2)
    return R1.l, R2.l

def mean_var(A, a1, a2):
    A("v_mul_f32 %s, %s, %s" % (v(a1), fbits(1.0 / D), v(a1)))
    A("v_mul_f32 %s, %s, %s" % (v(a2), fbits(1.0 / D), v(a2)))
    A("v_fma_f32 %s, -%s, %s, %s" % (v(a2), v(a1), v(a1), v(a2)))
    A("v_max_f32 %s, 0, %s" % (v(a2), v(a2)))

def poison(A, region, vtid16, vm1):
    A("s_lshl_b32 %s, s2, 13" % s(sT3))
    A("s_add_u32 %s, %s, 0x%x" % (s(sT3), s(sT3), region))
    A.vm("buffer_store_dwordx4 %s, %s, %s, %s offen sc1" % (v(vm1, 4), v(vtid16), SWS, s(sT3)))
    A("s_add_u32 %s, %s, 4096" % (s(sT3), s(sT3)))
    A.ptok = A.vm("buffer_store_dwordx4 %s, %s, %s, %s offen sc1" % (v(vm1, 4), v(vtid16), SWS, s(sT3)))

def poison_list(A, regions, t):
    A("v_lshlrev_b32 %s, 4, v0" % v(t))
    for k in range(4): A("v_mov_b32 %s, -1" % v(t + 2 + k))
    for r in regions: poison(A, r, t, t + 2)

def poison_ops(A, regions, va, vd, setup=True):
    ops = []
    if setup:
        def st():
            A("v_lshlrev_b32 %s, 4, v0" % v(va))
            for k in range(4): A("v_mov_b32 %s, -1" % v(vd + k))
        ops.append(st)
    for r in regions:
        for h in range(2):
            def op(r=r, h=h):
                A("s_lshl_b32 %s, s2, 13" % s(sC))
                A("s_add_u32 %s, %s, 0x%x" % (s(sC), s(sC), r + 4096 * h))
                A.ptok = A.vm("buffer_store_dwordx4 %s, %s, %s, %s offen sc1" % (v(vd, 4), v(va), SWS, s(sC)))
            ops.append(op)
    return ops

def maxchain(A, regs, t):
    regs = list(regs)
    A("v_max3_u32 %s, %s, %s, %s" % (v(t), v(regs[0]), v(regs[1]), v(regs[2])))
    regs = regs[3:]
    while len(regs) >= 2:
        A("v_max3_u32 %s, %s, %s, %s" % (v(t), v(t), v(regs[0]), v(regs[1]))); regs = regs[2:]
    if regs: A("v_max_u32 %s, %s, %s" % (v(t), v(t), v(regs[0])))

def poll_loads(A, issue, regs, t, dly=0, after=None):
    lt, lo = A.newlabel("poll"), A.newlabel("pollok")
    if dly: A("s_sleep %d" % dly)
    if after:
        lc = A.newlabel("pollc")
        issue(); tk_ = A.vmn - 1
        after()
        A.wvm(tk_)
        A("s_branch %s" % lc)
        n0 = A.vmn
    A.label(lt)
    issue()
    A("s_waitcnt vmcnt(0)")
    if after:
        A.vmn = n0
        A.label(lc)
    maxchain(A, regs, t)
    A("v_cmp_eq_u32 vcc, -1, %s" % v(t))
    A("s_cbranch_vccz %s" % lo)
    A("s_cmp_eq_u32 %s, 0" % s(sBUD))
    A("s_cbranch_scc1 %s" % lo)
    A("s_sub_u32 %s, %s, 1" % (s(sBUD), s(sBUD)))
    if MASKED: A("s_mov_b64 exec, vcc")
    if SLEEP: A("s_sleep %d" % SLEEP)
    A("s_branch %s" % lt)
    A.label(lo)
    if MASKED: A("s_mov_b64 exec, -1")

def dma_lane(R, dst, rowstride, t):
    R("v_bfe_u32 %s, v0, 3, 3" % v(t))
    R("s_mov_b32 %s, %d" % (s(sC), rowstride))
    R("v_mul_lo_u32 %s, %s, %s" % (v(dst), v(t), s(sC)))
    R("v_bfe_u32 %s, v0, 4, 1" % v(t))
    R("v_lshlrev_b32 %s, 2, %s" % (v(t), v(t)))
    R("v_and_b32 %s, 7, v0" % v(t + 1))
    R("v_xor_b32 %s, %s, %s" % (v(t), v(t), v(t + 1)))
    R("v_lshl_add_u32 %s, %s, 4, %s" % (v(dst), v(t), v(dst)))

def w1_voffs(R, dst, t):
    dma_lane(R, dst, 32 * 3584, t)
    R("s_lshl_b32 %s, %s, 7" % (s(sC), s(sFT)))
    R("s_or_b32 %s, %s, %s" % (s(sC), s(sC), s(sA1)))
    R("v_add_u32 %s, %s, %s" % (v(dst), s(sC), v(dst)))
    for i in range(1, 4):
        qd, h = i // 2, i % 2
        R("v_add_u32 %s, 0x%x, %s" % (v(dst + i), (512 * qd + 256 * h) * 3584 - ((qd % 2) * 2 + h) * 1024, v(dst)))

def w2_voffs(R, dst, t):
    dma_lane(R, dst, 4096, t)
    R("s_lshl_b32 %s, %s, 7" % (s(sC), s(sST)))
    R("s_or_b32 %s, %s, %s" % (s(sC), s(sC), s(sA2)))
    R("v_add_u32 %s, %s, %s" % (v(dst), s(sC), v(dst)))
    for i in range(1, 4):
        p, h = i // 2, i % 2
        R("v_add_u32 %s, 0x%x, %s" % (v(dst + i), p * 65536 + h * 32768 - (p * 2 + h) * 1024, v(dst)))

def tr_addr(R, dst, rowsel_hi, t):
    R("v_bfe_u32 %s, v0, 2, 2" % v(t))
    R("v_bfe_u32 %s, v0, 5, 1" % v(t + 1))
    R("v_mul_u32_u24 %s, %d, %s" % (v(t + 1), rowsel_hi, v(t + 1)))
    R("v_add_u32 %s, %s, %s" % (v(t + 1), v(t + 1), v(t)))
    R("v_lshlrev_b32 %s, 7, %s" % (v(dst), v(t + 1)))
    R("v_lshrrev_b32 %s, 4, v0" % v(t))
    R("v_xor_b32 %s, %s, v0" % (v(t), v(t)))
    R("v_bfe_u32 %s, %s, 3, 1" % (v(t), v(t)))
    R("v_lshl_add_u32 %s, %s, 6, %s" % (v(dst), v(t), v(dst)))
    R("v_bfe_u32 %s, v0, 4, 1" % v(t))
    R("v_lshl_add_u32 %s, %s, 5, %s" % (v(dst), v(t), v(dst)))
    R("v_and_b32 %s, 3, v0" % v(t))
    R("v_lshl_add_u32 %s, %s, 3, %s" % (v(dst), v(t), v(dst)))
    R("v_add_u32 %s, %s, %s" % (v(dst), s(sRING), v(dst)))
    R("v_xor_b32 %s, 64, %s" % (v(dst + 1), v(dst)))

def dma_chunk(A, which, ks0, n, voff, slot0=0):
    ops = []
    assert ks0 % 2 == 0 and n % 2 == 0
    for p in range(n // 2):
        for k in range(4):
            def op(p=p, k=k):
                if k == 0:
                    npair = n // 2
                    if KROT == 1:
                        A("s_add_u32 m0, %s, %d" % (s(sRING), (slot0 + 2 * p) * 2048))
                        A("s_add_u32 %s, %s, %d" % (s(sT4), s(sSH1 if which == 1 else sSH2), ks0 // 2 + p))
                    else:
                        if p == 0:
                            A("s_mov_b32 %s, %s" % (s(sT6), s(sROT1 if which == 1 else sDT2)))
                            for _ in range((7 // npair)):
                                A("s_cmp_ge_u32 %s, %d" % (s(sT6), npair))
                                A("s_cselect_b32 %s, %d, 0" % (s(sT4), npair))
                                A("s_sub_u32 %s, %s, %s" % (s(sT6), s(sT6), s(sT4)))
                        else:
                            A("s_add_u32 %s, %s, 1" % (s(sT6), s(sT6)))
                            A("s_cmp_eq_u32 %s, %d" % (s(sT6), npair))
                            A("s_cselect_b32 %s, 0, %s" % (s(sT6), s(sT6)))
                        A("s_lshl_b32 %s, %s, 12" % (s(sT4), s(sT6)))
                        A("s_add_u32 %s, %s, %s" % (s(sT4), s(sT4), s(sRING)))
                        A("s_add_u32 m0, %s, %d" % (s(sT4), slot0 * 2048))
                        A("s_add_u32 %s, %s, %d" % (s(sT4), s(sT6), ks0 // 2))
                        if KROT == 5:
                            if which == 2 and ks0 // 2 + npair > 12:
                                A("s_cmp_ge_u32 %s, 12" % s(sT4))
                                A("s_cselect_b32 s3, 1, 3")
                            else:
                                A("s_mov_b32 s3, 3")
                            A("s_add_u32 %s, %s, %s" % (s(sT5), s(sT4), s(sSH1)))
                            A("s_and_b32 %s, %s, s3" % (s(sT5), s(sT5)))
                            A("s_andn2_b32 %s, %s, s3" % (s(sT4), s(sT4)))
                            A("s_or_b32 %s, %s, %s" % (s(sT4), s(sT4), s(sT5)))
                        elif KROT: A("s_add_u32 %s, %s, %s" % (s(sT4), s(sT4), s(sSH1 if which == 1 else sSH2)))
                    if which == 1:
                        A("s_bfe_u32 %s, %s, 0x30001" % (s(sT5), s(sT4)))
                        A("s_bitcmp1_b32 %s, 0" % s(sT4))
                        A("s_cselect_b32 %s, %s, %s" % (s(sT4), s(sWB1 + 1), s(sWB1)))
                        A("s_mul_i32 %s, %s, 3584" % (s(sT5), s(sT5)))
                        A("s_add_u32 %s, %s, %s" % (s(sT5), s(sT5), s(sT4)))
                    else:
                        A("s_cmp_ge_u32 %s, 14" % s(sT4))
                        A("s_cselect_b32 %s, %s, %s" % (s(sT5), s(sWB2 + 1), s(sWB2)))
                        A("s_add_u32 %s, %s, %s" % (s(sT5), s(sT5), s(sT4)))
                        A("s_lshl_b32 %s, %s, 17" % (s(sT5), s(sT5)))
                A.last_dma = A.vm("buffer_load_dwordx4 %s, %s, %s offen offset:%d%s lds" % (v(voff + k), SW1 if which == 1 else SW2, s(sT5), k * 1024, DMAFL))
            ops.append(op)
    return ops

def tr_chunk(A, n, addr, rows, dstfn):
    for i in range(n):
        for tl in range(2):
            for rd in range(2):
                A.ds("ds_read_b64_tr_b16 %s, %s offset:%d" % (dstfn(8 * i + 4 * tl + 2 * rd), v(addr + tl), i * 2048 + rows[rd] * 128))

PW1, PTR1, PW2 = 240, 248, 250

def a1_consts(R):
    R("s_lshr_b32 %s, %s, 3" % (s(sT0), s(sW)))
    R("s_and_b32 %s, %s, 7" % (s(sT1), s(sW)))
    R("s_lshl_b32 %s, %s, 3" % (s(sT1), s(sT1)))
    R("v_lshrrev_b32 v1, 5, v0")
    R("v_add_u32 v1, %s, v1" % s(sT1))
    R("v_lshlrev_b32 v1, 5, v1")
    R("v_add_u32 v1, %s, v1" % s(sT0))
    R("v_mul_u32_u24 v1, 896, v1")
    R("v_and_b32 v2, 31, v0")
    R("v_lshl_add_u32 v1, v2, 2, v1")

def a1_consts2(R):
    TC, TS = 20, 26
    R("v_cvt_f32_u32 v14, v2")
    R("v_mul_f32 v14, %s, v14" % fbits(2.0 / 448))
    R("v_add_f32 v15, %s, v14" % fbits(1.0 / 448))
    for k in range(1, 4):
        if k == 1: a0, a1_ = 14, 15
        else:
            a0, a1_ = 16, 17
            R("v_mul_f32 v16, %s, v14" % fbits(float(k)))
            R("v_mul_f32 v17, %s, v15" % fbits(float(k)))
        R("v_cos_f32 %s, %s" % (v(TC + 2 * (k - 1)), v(a0)))
        R("v_cos_f32 %s, %s" % (v(TC + 2 * (k - 1) + 1), v(a1_)))
        R("v_sin_f32 %s, %s" % (v(TS + 2 * (k - 1)), v(a0)))
        R("v_sin_f32 %s, %s" % (v(TS + 2 * (k - 1) + 1), v(a1_)))
    R("v_lshrrev_b32 v3, 5, v0")
    R("v_mul_u32_u24 v3, %d, v3" % LSTR)
    R("v_lshl_add_u32 v3, v2, 3, v3")
    R("v_add_u32 v3, 0x%x, v3" % SCR)
    R("v_bfe_u32 v13, v0, 4, 2")
    R("v_and_b32 v12, 15, v0")
    R("v_mul_u32_u24 v18, %d, v12" % LSTR)
    R("v_lshl_add_u32 v18, v13, 4, v18")
    R("v_add_u32 v18, 0x%x, v18" % SCR)
    R("v_lshrrev_b32 v19, 1, v13")
    R("v_lshl_add_u32 v19, v19, 6, v12")
    R("v_lshrrev_b32 v14, 6, v0")
    R("v_lshl_add_u32 v19, v14, 4, v19")
    R("v_lshlrev_b32 v19, 5, v19")
    R("v_and_b32 v14, 1, v13")
    R("v_lshl_add_u32 v19, v14, 4, v19")

def a1_compute(A, zout, hook1=lambda: None, hook2=lambda: None):
    XR, TC, TS, Z = 4, 20, 26, 32
    unpack7(A, XR, Z)
    s1, s2 = stats_streams(Z, 46, 60, 4, 5)
    Dq = Rec()
    P, Q = 48, 54
    for t in range(1, 4):
        Dq("v_pk_add_f32 %s, %s, %s" % (v(P + 2 * (t - 1), 2), v(Z + 2 * t, 2), v(Z + 2 * (7 - t), 2)))
        Dq("v_pk_add_f32 %s, %s, %s neg_lo:[0,1] neg_hi:[0,1]" % (v(Q + 2 * (t - 1), 2), v(Z + 2 * t, 2), v(Z + 2 * (7 - t), 2)))
    RE, IM = 64, 70
    for k in range(1, 4):
        Rr, N = 76 + 4 * (k % 2), 78 + 4 * (k % 2)
        for t in range(1, 4):
            Dq("v_pk_fma_f32 %s, %s, %s, %s" % (v(Rr, 2), v(P + 2 * (t - 1), 2), c7(t * k), v(Z, 2) if t == 1 else v(Rr, 2)))
        for t in range(1, 4):
            cs, sg = s7(t * k)
            if t == 1: Dq("v_pk_mul_f32 %s, %s, %s" % (v(N, 2), v(Q, 2), cs))
            else:
                neg = "" if sg == 1 else " neg_lo:[1,0,0] neg_hi:[1,0,0]"
                Dq("v_pk_fma_f32 %s, %s, %s, %s%s" % (v(N, 2), v(Q + 2 * (t - 1), 2), cs, v(N, 2), neg))
        tc, ts = v(TC + 2 * (k - 1), 2), v(TS + 2 * (k - 1), 2)
        re, im = v(RE + 2 * (k - 1), 2), v(IM + 2 * (k - 1), 2)
        Dq("v_pk_mul_f32 %s, %s, %s" % (re, v(N, 2), ts))
        Dq("v_pk_mul_f32 %s, %s, %s" % (im, v(N, 2), tc))
        Dq("v_pk_fma_f32 %s, %s, %s, %s neg_lo:[0,0,1] neg_hi:[0,0,1]" % (re, v(Rr, 2), tc, re))
        Dq("v_pk_fma_f32 %s, %s, %s, %s" % (im, v(Rr, 2), ts, im))
    Dq("v_pk_add_f32 v[6:7], %s, %s" % (v(Z, 2), v(P, 2)))
    Dq("v_pk_add_f32 v[8:9], %s, %s" % (v(P + 2, 2), v(P + 4, 2)))
    Dq("v_pk_add_f32 v[6:7], v[6:7], v[8:9]")
    for l in zipmix(Dq.l, s1, s2): A(l)
    mean_var(A, 46, 60)
    A("v_add_f32 v60, %s, v60" % fbits(1e-5))
    A("v_rsq_f32 v60, v60")
    A("v_mul_f32 v46, %s, v46" % fbits(-7.0))
    A("v_mul_f32 v60, %s, v60" % fbits(1.0 / (448.0 * 2048.0)))
    A("v_pk_add_f32 v[6:7], v[6:7], v[46:47] op_sel_hi:[1,0]")
    for k in range(6):
        A("v_pk_mul_f32 %s, %s, v[60:61] op_sel_hi:[1,0]" % (v(RE + 2 * k, 2), v(RE + 2 * k, 2)))
    A("v_pk_mul_f32 v[6:7], v[6:7], v[60:61] op_sel_hi:[1,0]")
    for k in range(1, 4):
        o = 32 + 2 * k
        A("%s %s, %s, -%s" % (CV, v(o), v(RE + 2 * (k - 1)), v(IM + 2 * (k - 1))))
        A("%s %s, %s, -%s" % (CV, v(o + 1), v(RE + 2 * (k - 1) + 1), v(IM + 2 * (k - 1) + 1)))
        A.ds("ds_write_b64 v3, %s offset:%d" % (v(o, 2), k * 8 * LSTR))
    A("%s v32, v6, 0" % CV)
    A("%s v33, v7, 0" % CV)
    A.ds("ds_write_b64 v3, v[32:33]")
    hook1()
    A("s_lshl_b32 %s, %s, 13" % (s(sT0), s(sW)))
    A("s_add_u32 %s, %s, 0x%x" % (s(sT0), s(sT0), zout))
    A("s_add_u32 %s, %s, 4096" % (s(sT1), s(sT0)))
    A("s_waitcnt lgkmcnt(0)")
    fstamp(A)
    A("s_barrier")
    fstamp(A)
    AF = 64
    tk = []
    for mt in range(2):
        for t in range(4):
            tk.append(A.ds("ds_read_b128 %s, v18 offset:%d" % (v(AF + 16 * mt + 4 * t, 4), mt * 16 * LSTR + 64 * t)))
    DR, DI = 32, 40
    h2 = hook2()
    def fin_(mt):
        for r in range(4):
            A("%s %s, %s, %s" % (CV, v(48 + 4 * mt + r), v(DR + 4 * mt + r), v(DI + 4 * mt + r)))
        A.vm("buffer_store_dwordx4 %s, v19, %s, %s offen sc1" % (v(48 + 4 * mt, 4), SWS, s(sT0 + mt)))
    for mt in range(2):
        for t in range(4):
            A.wds(tk[4 * mt + t])
            A("%s %s, %s, %s, %s" % (M16, v(DR + 4 * mt, 4), v(AF + 16 * mt + 4 * t, 4), v(F64R + 4 * t, 4), "0" if t == 0 else v(DR + 4 * mt, 4)))
            A("%s %s, %s, %s, %s" % (M16, v(DI + 4 * mt, 4), v(AF + 16 * mt + 4 * t, 4), v(F64I + 4 * t, 4), "0" if t == 0 else v(DI + 4 * mt, 4)))
            if mt == 1 and t == 2: fin_(0)
    if h2: h2()
    fin_(1)

F32R, F32I = 128, 144
TW1, TW2, WV = 16, 24, 8
def a2_consts(R):
    R("v_and_b32 v2, 15, v0")
    R("v_bfe_u32 v3, v0, 4, 2")
    R("v_lshrrev_b32 v4, 6, v0")
    R("v_lshrrev_b32 v5, 1, v4")
    R("v_lshl_add_u32 v5, v5, 4, v2")
    R("v_lshlrev_b32 v5, 3, v5")
    R("v_and_b32 v6, 1, v4")
    R("v_lshl_add_u32 v5, v6, 2, v5")
    R("v_lshrrev_b32 v6, 1, v3")
    R("v_add_u32 v5, v5, v6")
    R("v_lshlrev_b32 v5, 13, v5")
    R("v_and_b32 v7, 1, v3")
    R("v_lshl_add_u32 v5, v7, 4, v5")
    R("v_lshl_add_u32 v56, v4, 4, v2")
    R("v_lshl_add_u32 v6, v56, 2, v6")
    R("v_lshlrev_b32 v6, 13, v6")
    R("v_lshl_add_u32 v7, v7, 4, v6")
    R("v_lshlrev_b32 v6, 8, v2")
    R("v_lshl_add_u32 v6, v4, 6, v6")
    R("v_lshl_add_u32 v6, v3, 4, v6")
    R("W_HERE")
    R("v_cvt_f32_u32 v57, v56")
    R("v_cvt_f32_u32 v58, v3")
    R("v_mul_f32 v57, %s, v57" % fbits(1.0 / 2048))
    R("v_mul_f32 v58, 4.0, v58")
    R("v_mul_f32 v59, %s, v57" % fbits(13.0))
    R("v_mul_f32 v58, v58, v57")
    for i in range(8):
        R("v_cos_f32 v60, v58"); R("v_sin_f32 v61, v58")
        if i < 7: R("v_add_f32 v58, v58, %s" % v(57 if i != 3 else 59))
        R("v_cvt_pk_f16_f32 %s, v60, -v61" % v(TW1 + i))
    R("v_lshlrev_b32 v56, 4, v4")
    R("v_lshl_add_u32 v56, v3, 2, v56")
    R("v_cvt_f32_u32 v56, v56")
    R("v_add_u32 v63, 16, v2")
    for nt in range(2):
        R("v_cvt_f32_u32 v57, %s" % v(2 if nt == 0 else 63))
        R("v_mul_f32 v57, %s, v57" % fbits(1.0 / 2048))
        R("v_mul_f32 v58, v56, v57")
        for r in range(4):
            R("v_cos_f32 v60, v58"); R("v_sin_f32 v61, v58")
            if r < 3: R("v_add_f32 v58, v58, v57")
            R("v_cvt_pk_f16_f32 %s, v60, v61" % v(TW2 + 4 * nt + r))

def f32_gen(R, t):
    R("v_and_b32 %s, 15, v0" % v(t + 7))
    R("v_bfe_u32 %s, v0, 4, 2" % v(t + 8))
    R("v_add_u32 %s, 16, %s" % (v(t + 9), v(t + 7)))
    for mt in range(2):
        gen_frags(R, t + 7 + 2 * mt, t + 8, 2, 32, F32R + 8 * mt, F32I + 8 * mt, t)

def cmul_mix(A, ar, ai, tw, t):
    A("v_fma_mix_f32 %s, %s, %s, 0 op_sel:[0,1,0] op_sel_hi:[0,1,0]" % (v(t), v(ai), v(tw)))
    A("v_fma_mix_f32 %s, %s, %s, 0 op_sel:[0,0,0] op_sel_hi:[0,1,0]" % (v(t + 1), v(ai), v(tw)))
    A("v_fma_mix_f32 %s, %s, %s, %s op_sel:[0,1,0] op_sel_hi:[0,1,0]" % (v(ai), v(ar), v(tw), v(t + 1)))
    A("v_fma_mix_f32 %s, %s, %s, -%s op_sel:[0,0,0] op_sel_hi:[0,1,0]" % (v(ar), v(ar), v(tw), v(t)))

def a2_wload(A):
    A("s_lshr_b32 %s, %s, 6" % (s(sT2), s(sW)))
    A("s_lshl_b32 %s, %s, 11" % (s(sT2), s(sT2)))
    A("s_and_b32 %s, %s, 63" % (s(sT3), s(sW)))
    A("s_lshl_b32 %s, %s, 5" % (s(sT3), s(sT3)))
    A("s_add_u32 %s, %s, %s" % (s(sT2), s(sT2), s(sT3)))
    A("s_add_u32 %s, %s, 0x%x" % (s(sT2), s(sT2), WT))
    A("s_add_u32 %s, %s, 16384" % (s(sT3), s(sT2)))
    for mt in range(2):
        A.wtok = A.vm("buffer_load_dwordx4 %s, v7, %s, %s offen sc1" % (v(WV + 4 * mt, 4), SWS, s(sT2 + mt)))

def a2_phase(A, zin, tout, poll, after_loads, post=lambda: None):
    A("s_lshl_b32 %s, %s, 5" % (s(sT0), s(sW)))
    A("s_add_u32 %s, %s, 0x%x" % (s(sT0), s(sT0), zin))
    A("s_add_u32 %s, %s, 16384" % (s(sT1), s(sT0)))
    G = 32
    def issue():
        A.vm("buffer_load_dwordx4 %s, v5, %s, %s offen sc1" % (v(G, 4), SWS, s(sT0)))
        return A.vm("buffer_load_dwordx4 %s, v5, %s, %s offen sc1" % (v(G + 4, 4), SWS, s(sT1)))
    A("v_lshlrev_b32 v62, 4, v0")
    A("v_lshl_add_u32 v62, v4, 10, v62")
    A("v_add_u32 v62, 0x%x, v62" % SCR)
    A("v_and_b32 v63, 63, v0")
    A("v_lshlrev_b32 v63, 4, v63")
    A("v_add_u32 v63, 0x%x, v63" % SCR)
    if poll:
        tw_tok = A.wtok
        poll_loads(A, issue, range(G, G + 8), 56, DLY[1])
    else:
        tz = issue(); a2_wload(A); tw_tok = A.wtok; post(); A.wvm(tz)
    stamp(A)
    A.ds("ds_write_b128 v62, %s" % v(G, 4))
    A.ds("ds_write_b128 v62, %s offset:1024" % v(G + 4, 4))
    after_loads()
    A("s_waitcnt lgkmcnt(0)")
    A("s_barrier")
    fstamp(A)
    DA = 64
    tk = [A.ds("ds_read_b128 %s, v63 offset:%d" % (v(DA + 4 * f, 4), 1024 * f)) for f in range(8)]
    GR, GI, P1, XR, XI, WR_, WI_, HR, HI = 32, 40, 48, 64, 72, 80, 88, 32, 40
    def mm(d, a_, b_, first): return "%s %s, %s, %s, %s" % (M16, v(d, 4), v(a_, 4), v(b_, 4), "0" if first else v(d, 4))
    def weave(ms, vs, lead=0, pre=None):
        n = len(ms) - lead; k = 0
        for i, m_ in enumerate(ms):
            if pre: pre(i)
            A(m_)
            if i >= lead:
                tgt = len(vs) * (i - lead + 1) // n
                while k < tgt:
                    (A.ds if vs[k].startswith("ds_") else A.vm if vs[k].startswith("buffer") else A)(vs[k]); k += 1
            if i % 2: A.bg()
    def tw(rr, ii, twr, dst, idx, tmp, swap):
        R = Rec()
        for i in idx:
            cmul_mix(R, rr + i, ii + i, twr + i, tmp + 2 * (i % 2))
            R("%s %s, %s, %s" % ((CV, v(dst + i), v(ii + i), v(rr + i)) if swap else (CV, v(dst + i), v(rr + i), v(ii + i))))
        return R.l
    def st1(mt): return [mm((GR, GI)[c] + 4 * mt, DA + 16 * mt + 4 * t, (F64R, F64I)[c] + 4 * t, t == 0) for t in range(4) for c in range(2)]
    weave(st1(0), [], pre=lambda i: A.wds(tk[i // 2]) if i % 2 == 0 else None)
    weave(st1(1), tw(GR, GI, TW1, P1, range(4), 56, False), lead=2, pre=lambda i: A.wds(tk[4 + i // 2]) if i % 2 == 0 else None)
    fstamp(A)
    def st2(ks): return [mm((XR, XI)[c] + 4 * mt, (F32R, F32I)[c] + 8 * mt + 4 * ks, P1 + 4 * ks, ks == 0) for mt in range(2) for c in range(2)]
    weave(st2(0), tw(GR, GI, TW1, P1, range(4, 8), 56, False))
    A.wvm(tw_tok)
    un = []
    for i in range(8):
        un += ["v_lshlrev_b32 %s, 16, %s" % (v(WR_ + i), v(WV + i)), "v_and_b32 %s, 0xffff0000, %s" % (v(WI_ + i), v(WV + i))]
    weave(st2(1), un)
    def wm(idx):
        R = Rec()
        for i in idx:
            xr, xi, wr, wi = v(XR + i, 2), v(XI + i, 2), v(WR_ + i, 2), v(WI_ + i, 2)
            t_ = 56 + 4 * ((i // 2) % 2) if False else 56
            R("v_pk_mul_f32 v[56:57], %s, %s" % (xi, wi))
            R("v_pk_mul_f32 v[58:59], %s, %s" % (xi, wr))
            R("v_pk_fma_f32 v[56:57], %s, %s, v[56:57] neg_lo:[0,0,1] neg_hi:[0,0,1]" % (xr, wr))
            R("v_pk_fma_f32 v[58:59], %s, %s, v[58:59]" % (xr, wi))
            R("%s %s, v58, v56" % (CV, v(P1 + i)))
            R("%s %s, v59, v57" % (CV, v(P1 + i + 1)))
        return R.l
    A.st(STM)
    for l_ in wm((0, 2)): A(l_)
    def st3(ks): return [mm((HI, HR)[c] + 4 * nt, P1 + 4 * ks, (F32R, F32I)[c] + 8 * nt + 4 * ks, ks == 0) for nt in range(2) for c in range(2)]
    weave(st3(0), wm((4, 6)))
    weave(st3(1), ["v_lshlrev_b32 v62, 4, v0", "v_add_u32 v62, 0x%x, v62" % (SCR + 8192),
                   "s_lshl_b32 %s, %s, 13" % (s(sT0), s(sW)), "s_add_u32 %s, %s, 0x%x" % (s(sT0), s(sT0), tout), "s_add_u32 %s, %s, 4096" % (s(sT1), s(sT0))])
    A.st(STM)
    for h in range(2):
        for i, l_ in enumerate(tw(HR, HI, TW2, P1, range(4 * h, 4 * h + 4), 64, True)):
            A(l_)
            if i % 5 == 4: A.bg()
        A.ds("ds_write_b128 v62, %s offset:%d" % (v(P1 + 4 * h, 4), 4096 * h))
    A.st(STN)
    if not poll and PZ: A.wvm(A.p1tok)
    A("s_waitcnt lgkmcnt(0)")
    fstamp(A)
    A("s_barrier")
    fstamp(A)
    tk = [A.ds("ds_read_b128 %s, v63 offset:%d" % (v(DA + 4 * f, 4), 8192 + 1024 * f)) for f in range(8)]
    A.st(STN)
    TR, TI = 32, 40
    def st4(nt): return [mm((TI, TR)[c] + 4 * nt, (F64R, F64I)[c] + 4 * t, DA + 16 * nt + 4 * t, t == 0) for t in range(4) for c in range(2)]
    def fin_(nt):
        return ["%s %s, %s, %s" % (CV, v(48 + 4 * nt + r), v(TI + 4 * nt + r), v(TR + 4 * nt + r)) for r in range(4)] + \
               ["buffer_store_dwordx4 %s, v6, %s, %s offen sc1" % (v(48 + 4 * nt, 4), SWS, s(sT0 + nt))]
    weave(st4(0), [], pre=lambda i: A.wds(tk[i // 2]) if i % 2 == 0 else None)
    weave(st4(1), fin_(0), lead=4, pre=lambda i: A.wds(tk[4 + i // 2]) if i % 2 == 0 else None)
    A.st(STM)
    for l_ in fin_(1): (A.vm if l_.startswith("buffer") else A)(l_)
    A.bg_flush()

def a3_consts(R):
    a1_consts(R)
    R("v_lshlrev_b32 v3, 13, v0")
    R("v_lshrrev_b32 v11, 6, v0")
    R("v_and_b32 v12, 15, v0")
    R("v_mul_u32_u24 v15, %d, v12" % LSTR)
    R("v_lshl_add_u32 v12, v11, 4, v12")
    R("v_bfe_u32 v13, v0, 4, 2")
    R("v_lshl_add_u32 v15, v13, 4, v15")
    R("v_add_u32 v15, 0x%x, v15" % SCR)
    R("v_lshrrev_b32 v14, 1, v11")
    R("v_lshlrev_b32 v14, 4, v14")
    R("v_and_b32 v30, 1, v11")
    R("v_lshl_add_u32 v14, v30, 1, v14")
    R("v_mul_u32_u24 v14, %d, v14" % LSTR)
    R("v_and_b32 v30, 63, v0")
    R("v_lshl_add_u32 v14, v30, 2, v14")
    R("v_add_u32 v14, 0x%x, v14" % SCR)
    TW = 24
    R("v_cvt_f32_u32 v30, v12")
    for k in range(1, 4):
        R("v_mul_f32 v31, %s, v30" % fbits(k / 448.0))
        R("v_cos_f32 %s, v31" % v(TW + 2 * (k - 1)))
        R("v_sin_f32 %s, v31" % v(TW + 2 * (k - 1) + 1))
    for k in range(6): R("v_add_f32 %s, %s, %s" % (v(TW + k), v(TW + k), v(TW + k)))
    R("v_mul_u32_u24 v62, %d, v13" % (2 * YSTR))
    R("v_lshl_add_u32 v62, v12, 2, v62")
    R("v_add_u32 v62, 0x%x, v62" % (SCR + A3_Y))
    R("v_lshrrev_b32 v31, 5, v0")
    R("v_mul_u32_u24 v30, %d, v31" % HSTR)
    R("v_lshl_add_u32 v30, v2, 2, v30")
    R("v_add_u32 v30, 0x%x, v30" % (SCR + A3_H))
    R("v_mul_u32_u24 v63, %d, v31" % YSTR)
    R("v_lshl_add_u32 v63, v2, 3, v63")
    R("v_add_u32 v63, 0x%x, v63" % (SCR + A3_Y))
    R("v_bfe_u32 v31, v0, 2, 2")
    R("v_mul_u32_u24 v31, %d, v31" % HSTR)
    R("v_and_b32 v12, 3, v0")
    R("v_lshl_add_u32 v31, v12, 3, v31")
    R("v_lshl_add_u32 v31, v13, 5, v31")
    R("v_lshl_add_u32 v31, v11, 7, v31")
    R("v_add_u32 v31, 0x%x, v31" % (SCR + A3_H))
    R("v_lshlrev_b32 v12, 4, v0")

def a3_phase(A, l, tin, xout, hout, after_loads, post=None):
    XR, TV, TW = 4, 16, 24
    if l == 0:
        for t in range(7): A.vm("global_load_dword %s, v1, %s offset:%d" % (v(XR + t), s(sX, 2), 128 * t))
    else:
        A("s_mov_b32 %s, 0x%x" % (s(sT1), X2))
        for t in range(7): A.vm("buffer_load_dword %s, v1, %s, %s offen offset:%d sc1" % (v(XR + t), SWS, s(sT1), 128 * t))
    A("s_lshl_b32 %s, %s, 5" % (s(sT0), s(sW)))
    A("s_add_u32 %s, %s, 0x%x" % (s(sT0), s(sT0), tin))
    def issue():
        A.vm("buffer_load_dwordx4 %s, v3, %s, %s offen sc1" % (v(TV, 4), SWS, s(sT0)))
        A.vm("buffer_load_dwordx4 %s, v3, %s, %s offen offset:16 sc1" % (v(TV + 4, 4), SWS, s(sT0)))
    poll_loads(A, issue, range(TV, TV + 8), 32, DLY[2] if post is None else 0, post)
    stamp(A)
    for row in range(8):
        A.ds("ds_write_b32 v14, %s offset:%d" % (v(TV + row), (4 * (row // 2) + (row & 1)) * LSTR))
    after_loads()
    A("s_waitcnt lgkmcnt(0)")
    A("s_barrier")
    fstamp(A)
    AF = 64
    tk = []
    for mt in range(2):
        for t in range(4):
            tk.append(A.ds("ds_read_b128 %s, v15 offset:%d" % (v(AF + 16 * mt + 4 * t, 4), mt * 16 * LSTR + 64 * t)))
    DR, DI = 32, 40
    Z = 128
    unpack7(A, XR, Z)
    UR, UI, U0 = 48, 54, DR
    def twk(k):
        tw = v(TW + 2 * (k - 1), 2)
        vr, vi = v(DR + 2 * k, 2), v(DI + 2 * k, 2)
        ur, ui = v(UR + 2 * (k - 1), 2), v(UI + 2 * (k - 1), 2)
        return ["v_pk_mul_f32 %s, %s, %s op_sel:[0,1] op_sel_hi:[1,1]" % (ur, vi, tw),
                "v_pk_mul_f32 %s, %s, %s op_sel:[0,0] op_sel_hi:[1,0]" % (ui, vi, tw),
                "v_pk_fma_f32 %s, %s, %s, %s op_sel:[0,0,0] op_sel_hi:[1,0,1] neg_lo:[0,0,1] neg_hi:[0,0,1]" % (ur, vr, tw, ur),
                "v_pk_fma_f32 %s, %s, %s, %s op_sel:[0,1,0] op_sel_hi:[1,1,1]" % (ui, vr, tw, ui)]
    early = twk(1)
    for t in range(1, 4):
        early.append("v_pk_fma_f32 %s, %s, %s, %s" % (v((16, 20, 68)[t - 1], 2), v(UR, 2), c7(t), v(U0, 2)))
        early.append("v_pk_mul_f32 %s, %s, %s" % (v((18, 22, 70)[t - 1], 2), v(UI, 2), s7(t)[0]))
    early.append("v_pk_add_f32 v[60:61], %s, %s" % (v(U0, 2), v(UR, 2)))
    for mt in range(2):
        for t in range(4):
            A.wds(tk[4 * mt + t])
            A("%s %s, %s, %s, %s" % (M16, v(DI + 4 * mt, 4), v(AF + 16 * mt + 4 * t, 4), v(F64R + 4 * t, 4), "0" if t == 0 else v(DI + 4 * mt, 4)))
            A("%s %s, %s, %s, %s" % (M16, v(DR + 4 * mt, 4), v(AF + 16 * mt + 4 * t, 4), v(F64I + 4 * t, 4), "0" if t == 0 else v(DR + 4 * mt, 4)))
            if mt == 1 and t >= 2:
                for l_ in early[(t - 2) * 4:(t - 1) * 4]: A(l_)
            A.bg()
    for l_ in early[8:]: A(l_)
    A.st(STM)
    for k in (2, 3):
        for l_ in twk(k): A(l_)
        A.bg()
    def ywrite(pair, t):
        A.ds("ds_write_b32 v62, %s offset:%d" % (v(pair), 256 * t))
        A.ds("ds_write_b32 v62, %s offset:%d" % (v(pair + 1), YSTR + 256 * t))
    A("v_pk_add_f32 v[66:67], %s, %s" % (v(UR + 2, 2), v(UR + 4, 2)))
    A("v_pk_add_f32 v[64:65], v[60:61], v[66:67]")
    ywrite(64, 0)
    for t in range(1, 4):
        aa, bb, y1, y2 = (16, 20, 68)[t - 1], (18, 22, 70)[t - 1], 40 + 4 * (t % 2), 42 + 4 * (t % 2)
        for k in range(2, 4):
            A("v_pk_fma_f32 %s, %s, %s, %s" % (v(aa, 2), v(UR + 2 * (k - 1), 2), c7(t * k), v(aa, 2)))
            cs, sg = s7(t * k)
            neg = "" if sg == 1 else " neg_lo:[1,0,0] neg_hi:[1,0,0]"
            A("v_pk_fma_f32 %s, %s, %s, %s%s" % (v(bb, 2), v(UI + 2 * (k - 1), 2), cs, v(bb, 2), neg))
        A("v_pk_add_f32 %s, %s, %s neg_lo:[0,1] neg_hi:[0,1]" % (v(y1, 2), v(aa, 2), v(bb, 2)))
        A("v_pk_add_f32 %s, %s, %s" % (v(y2, 2), v(aa, 2), v(bb, 2)))
        ywrite(y1, t); ywrite(y2, 7 - t)
        A.bg(2)
    A.st(STN)
    A("s_waitcnt lgkmcnt(0)")
    fstamp(A)
    A("s_barrier")
    fstamp(A)
    Y = 64
    tk = [A.ds("ds_read_b64 %s, v63 offset:%d" % (v(Y + 2 * t, 2), 256 * t)) for t in range(7)]
    A.bg(3)
    A.st(STN)
    for t in range(7):
        A.wds(tk[t])
        A("v_pk_add_f32 %s, %s, %s" % (v(Z + 2 * t, 2), v(Z + 2 * t, 2), v(Y + 2 * t, 2)))
    s1, s2 = stats_streams(Z, 46, 48, 50, 51)
    St = ["ds_write_b32 v30, %s offset:%d" % (v(XR + t), 128 * t + XL - A3_H + 65536 if False else 0) for t in range(0)]
    A("v_subrev_u32 v52, %d, v30" % (A3_H - XL))
    A("v_mov_b32 v53, %s" % fbits(1e-10))
    A("s_mov_b32 %s, %s" % (s(sT2), fbits(1.0 + 1e-5)))
    St = []
    for t in range(7):
        St += ["%s %s, %s, %s" % (CV, v(XR + t), v(Z + 2 * t), v(Z + 2 * t + 1)), "ds_write_b32 v52, %s offset:%d" % (v(XR + t), 128 * t)]
    for ln in zipmix(s1, s2, St):
        if ln.startswith("ds_"): A.ds(ln)
        else: A(ln)
    mean_var(A, 46, 48)
    A.st(STM)
    A("v_fma_f32 v48, v48, %s, v53" % s(sT2))
    A("v_rsq_f32 v48, v48")
    A("s_mul_i32 %s, %s, 7168" % (s(sT0), s(sW)))
    A("s_add_u32 %s, %s, 0x%x" % (s(sT0), s(sT0), hout))
    A("v_mul_f32 v46, -v46, v48" if False else "v_mul_f32 v46, v46, v48")
    for t in range(7):
        A("v_pk_fma_f32 %s, %s, v[48:49], v[46:47] op_sel_hi:[1,0,0] neg_lo:[0,0,1] neg_hi:[0,0,1]" % (v(Z + 2 * t, 2), v(Z + 2 * t, 2)))
    for t in range(7):
        A("%s %s, %s, %s" % (CV, v(64 + t), v(Z + 2 * t), v(Z + 2 * t + 1)))
        A.ds("ds_write_b32 v30, %s offset:%d" % (v(64 + t), 128 * t))
    A("s_add_u32 %s, %s, 4096" % (s(sT1), s(sT0)))
    A.st(STN)
    A("s_waitcnt lgkmcnt(0)")
    fstamp(A)
    A("s_barrier")
    fstamp(A)
    A.auto = 0
    A.ds("ds_read_b64_tr_b16 v[20:21], v31")
    A.ds("ds_read_b64_tr_b16 v[22:23], v31 offset:%d" % (4 * HSTR))
    A.ds("ds_read_b64_tr_b16 v[24:25], v31 offset:512")
    A.ds("ds_read_b64_tr_b16 v[26:27], v31 offset:%d" % (4 * HSTR + 512))
    A("v_cmp_gt_u32 vcc, 192, v0")
    A("v_mov_b32 v13, 0x80000000")
    A("v_cndmask_b32 v13, v13, v12, vcc")
    A("v_and_b32 v14, 63, v0")
    A("v_lshlrev_b32 v15, 4, v14")
    A("s_mul_i32 %s, %s, %d" % (s(sT2), s(sWAVE), 2 * HSTR))
    A("s_add_u32 %s, %s, 0x%x" % (s(sT2), s(sT2), SCR + XL))
    A("v_add_u32 v16, %s, v15" % s(sT2))
    A.ds("ds_read_b128 v[32:35], v16")
    A.ds("ds_read_b128 v[36:39], v16 offset:%d" % HSTR)
    A("v_readfirstlane_b32 %s, v1" % s(sT2))
    A("v_mov_b32 v17, 0x80000000")
    A("s_waitcnt lgkmcnt(4)")
    A.vm("buffer_store_dwordx4 v[20:23], v12, %s, %s offen sc1" % (SWS, s(sT0)))
    A("v_cmp_gt_u32 vcc, 56, v14")
    A("s_add_u32 %s, %s, 0x%x" % (s(sT2), s(sT2), xout))
    A("s_add_u32 %s, %s, %d" % (s(sT3), s(sT2), 32 * 896))
    A("v_cndmask_b32 v15, v17, v15, vcc")
    A("s_waitcnt lgkmcnt(2)")
    A.vm("buffer_store_dwordx4 v[24:27], v13, %s, %s offen sc1" % (SWS, s(sT1)))
    A("s_waitcnt lgkmcnt(0)")
    A.vm("buffer_store_dwordx4 v[32:35], v15, %s, %s offen sc1" % (SWS, s(sT2)))
    A.vm("buffer_store_dwordx4 v[36:39], v15, %s, %s offen sc1" % (SWS, s(sT3)))
    A.bg_flush()

ACC, RINGV, WF = 96, 32, 16
DEPTH = int(os.environ.get("DEPTH", 6))
vF0, vF1, vTR, vRW, vRR = 2, 3, 4, 6, 7

def b_fconsts(R, sdt):
    R("v_bfe_u32 v8, v0, 5, 1")
    R("v_mul_u32_u24 v8, 448, v8")
    R("v_and_b32 v9, 31, v0")
    R("v_add_u32 v8, v8, v9")
    R("s_mul_i32 %s, %s, %d" % (s(sC), s(sdt), DW))
    R("v_add_lshl_u32 v8, v8, %s, 4" % s(sC))
    R("v_add_u32 %s, 512, v8" % v(vF1))
    if DW < 64:
        R("v_cmp_gt_u32 vcc, %d, v9" % (DW - 32))
        R("v_mov_b32 v9, 0x80000000")
        R("v_cndmask_b32 %s, v9, %s, vcc" % (v(vF1), v(vF1)))
    R("v_and_b32 v9, 64, v0")
    R("v_cmp_eq_u32 vcc, 0, v9")
    R("v_cndmask_b32 %s, %s, v8, vcc" % (v(vF0), v(vF1)))
    R("v_cndmask_b32 %s, v8, %s, vcc" % (v(vF1), v(vF1)))

def b_consts(R):
    b_fconsts(R, sDT)
    R("v_and_b32 v8, 63, v0")
    R("v_lshlrev_b32 v8, 4, v8")
    R("v_lshrrev_b32 v9, 6, v0")
    R("v_lshl_add_u32 %s, v9, 13, v8" % v(vRR))
    R("v_add_u32 %s, 0x%x, %s" % (v(vRR), SCR, v(vRR)))
    R("v_xor_b32 %s, 8192, %s" % (v(vRW), v(vRR)))

def b_stream(A, nks, fbase, wop, w_is_A, wreads, tail, first=lambda: None, dly=0, init=lambda: None):
    cold = []
    assert DEPTH <= 7
    A("s_mul_i32 %s, %s, %d" % (s(sT0), s(sWAVE), nks * 14336))
    A("s_add_u32 %s, %s, 0x%x" % (s(sT0), s(sT0), fbase))
    sSH = sSH1 if nks == 32 else sSH2
    A("s_mul_i32 %s, %s, %d" % (s(sT1), s(sSH), 2 * 14336))
    A("s_add_u32 %s, %s, %s" % (s(sT1), s(sT1), s(sT0)))
    A("s_add_u32 %s, %s, %d" % (s(sEND), s(sT0), nks * 14336))
    sO = 36
    if KROT == 5:
        for j in range(6):
            A("s_add_u32 %s, %s, %d" % (s(sO + j), s(sSH1), j & 3))
            A("s_and_b32 %s, %s, %d" % (s(sO + j), s(sO + j), 3 if j < 4 else 1))
            A("s_mul_i32 %s, %s, 28672" % (s(sO + j), s(sO + j)))
            A("s_add_u32 %s, %s, %s" % (s(sO + j), s(sO + j), s(sT0)))
    def soff5(dst, ks):
        pair = ks // 2
        j = (pair & 3) if (nks == 32 or pair < 12) else 4 + (pair & 1)
        A("s_add_u32 %s, %s, %d" % (s(dst), s(sO + j), (pair & ~3) * 28672 + (ks & 1) * 14336))
    if EXM:
        A("s_bitcmp1_b32 %s, 0" % s(sWAVE))
        A("s_cselect_b32 s36, 0xffffff, -1")
        A("s_mov_b32 s37, s36")
        A("s_cselect_b32 s38, -1, 0xffffff")
        A("s_mov_b32 s39, s38")
    tok = {}
    def ld(ks, so):
        r = RINGV + 8 * (ks % 8)
        if FAKE16 == 3 and ks >= DEPTH:
            A("s_lshl_b32 s64, %s, 13" % s(sWAVE))
            A("s_add_u32 m0, s64, %d" % (SCR + (ks % 4) * 2048))
            A.vm("buffer_load_dwordx4 %s, %s, %s offen sc1 lds" % (v(vF0), SWS, so))
            A("s_add_u32 m0, s64, %d" % (SCR + (ks % 4) * 2048 + 1024))
            return A.vm("buffer_load_dwordx4 %s, %s, %s offen sc1 lds" % (v(vF1), SWS, so))
        if EXM and ks >= 8: A("s_mov_b64 exec, s[36:37]")
        A.vm("buffer_load_dwordx4 %s, %s, %s, %s offen%s" % (v(r, 4), v(vF0), SWS, so, STFL))
        if EXM and ks >= 8: A("s_mov_b64 exec, s[38:39]")
        t_ = A.vm("buffer_load_dwordx4 %s, %s, %s, %s offen%s" % (v(r + 4, 4), v(vF1), SWS, so, STFL))
        if EXM and ks >= 8: A("s_mov_b64 exec, -1")
        return t_
    def issue(ks):
        if KROT == 5: soff5(sT1, ks)
        elif ks > 0:
            A("s_add_u32 %s, %s, 14336" % (s(sT1), s(sT1)))
            if ks % 2 == 0 and KROT:
                A("s_cmp_eq_u32 %s, %s" % (s(sT1), s(sEND)))
                A("s_cselect_b32 %s, %s, %s" % (s(sT1), s(sT0), s(sT1)))
        tok[ks] = ld(ks, s(sT1))
    def branch(ks):
        lr, lb = A.newlabel("rty"), A.newlabel("bk")
        A("s_cbranch_vccnz %s" % lr)
        A.label(lb)
        cold.append((lr, lb, ks))
    if FULLB:
        if dly: A("s_sleep %d" % dly)
        for ks in range(DEPTH): issue(ks)
        init()
        A.wvm(tok[0])
        maxchain(A, range(RINGV, RINGV + 8), 8)
        A("v_cmp_eq_u32 vcc, -1, v8")
        branch(0)
    else:
        poll_loads(A, lambda: ld(0, s(sT1)), range(RINGV, RINGV + 8), 8, dly)
        for ks in range(1, DEPTH): issue(ks)
    stamp(A)
    first()
    for ks in range(nks):
        r = RINGV + 8 * (ks % 8)
        rn = RINGV + 8 * ((ks + 1) % 8)
        more = ks + 1 < nks
        wr = wreads(ks + 1) if more else []
        def mf(j):
            wt, ft = j >> 1, j & 1
            acc = v(ACC + 16 * j, 16)
            wreg = wop(ks, wt); freg = v(r + 4 * ft, 4)
            AA, BB = (wreg, freg) if w_is_A else (freg, wreg)
            if FAKE16 == 2 and (j > 0 and ks > 0): return
            if FAKE16 == 1:
                for h_ in range(2):
                    ac = v(ACC + 16 * j + 8 * (ks % 2) + 4 * h_, 4)
                    o2 = (wop(ks, wt ^ h_), v(r + 4 * ft, 4))
                    A("%s %s, %s, %s, %s" % (M16, ac, o2[0], o2[1], "0" if ks < 2 else ac))
                return
            A("%s %s, %s, %s, %s" % (M32, acc, AA, BB, "0" if (ks == 0 and j > 0) else acc))
        mf(1)
        if ks + DEPTH < nks: issue(ks + DEPTH)
        elif ks + DEPTH == nks: tail()
        else: A.bg(1)
        mf(3)
        for t_ in wr[:2]: A.ds(t_)
        if more:
            A.wvm(tok[ks + 1])
            A("v_max3_u32 v8, %s, %s, %s" % (v(rn), v(rn + 1), v(rn + 2)))
            A("v_max3_u32 v9, %s, %s, %s" % (v(rn + 3), v(rn + 4), v(rn + 5)))
        mf(2)
        for t_ in wr[2:]: wtok = A.ds(t_)
        if more:
            A("v_max3_u32 v8, v8, %s, %s" % (v(rn + 6), v(rn + 7)))
            A("v_max_u32 v8, v8, v9")
            A("v_cmp_eq_u32 vcc, -1, v8")
        mf(0)
        if more: branch(ks + 1)
        A.bg(1)
        if wr: A.wds(wtok)
    def emit_cold():
        for lr, lb, ks in cold:
            A.label(lr)
            A("s_cmp_eq_u32 %s, 0" % s(sBUD))
            A("s_cbranch_scc1 %s" % lb)
            A("s_sub_u32 %s, %s, 1" % (s(sBUD), s(sBUD)))
            if SLEEP: A("s_sleep %d" % SLEEP)
            last = (DEPTH if ks == 0 else min(ks + DEPTH, nks)) if (FULLB and ks < RALL) else ks + 1
            for k2 in range(ks, last):
                if KROT == 5: soff5(sC, k2)
                elif KROT:
                    A("s_lshl_b32 %s, %s, 1" % (s(sC), s(sSH)))
                    A("s_add_u32 %s, %s, %d" % (s(sC), s(sC), k2))
                    A("s_cmp_ge_u32 %s, %d" % (s(sC), nks))
                    A("s_cselect_b32 s64, %d, 0" % nks)
                    A("s_sub_u32 %s, %s, s64" % (s(sC), s(sC)))
                    A("s_mul_i32 %s, %s, 14336" % (s(sC), s(sC)))
                    A("s_add_u32 %s, %s, %s" % (s(sC), s(sC), s(sT0)))
                else:
                    A("s_add_u32 %s, %s, %d" % (s(sC), s(sT0), k2 * 14336))
                r = RINGV + 8 * (k2 % 8)
                A("buffer_load_dwordx4 %s, %s, %s, %s offen sc1" % (v(r, 4), v(vF0), SWS, s(sC)))
                A("buffer_load_dwordx4 %s, %s, %s, %s offen sc1" % (v(r + 4, 4), v(vF1), SWS, s(sC)))
            A("s_waitcnt vmcnt(0)")
            r = RINGV + 8 * (ks % 8)
            maxchain(A, range(r, r + 8), 8)
            A("v_cmp_eq_u32 vcc, -1, v8")
            A("s_cbranch_vccnz %s" % lr)
            A("s_branch %s" % lb)
    return emit_cold

def b_reduce(A, mid=lambda: None):
    for k, j in enumerate((1, 3)):
        for g in range(4):
            A.ds("ds_write_b128 %s, %s offset:%d" % (v(vRW), v(ACC + 16 * j + 4 * g, 4), k * 4096 + g * 1024))
    A.bg(4)
    A("s_waitcnt lgkmcnt(0)")
    mid()
    A("s_barrier")
    fstamp(A)
    T = 32
    tk = []
    for k in (1, 0):
        for g in range(4):
            tk.append(A.ds("ds_read_b128 %s, %s offset:%d" % (v(T + 16 * k + 4 * g, 4), v(vRR), k * 4096 + g * 1024)))
    A.wds(tk[3])
    for k in range(0, 16, 2):
        A("v_pk_add_f32 %s, %s, %s" % (v(ACC + 32 + k, 2), v(ACC + 32 + k, 2), v(T + 16 + k, 2)))
    A("s_waitcnt lgkmcnt(0)")
    for g in range(4):
        A.ds("ds_write_b128 %s, %s offset:%d" % (v(vRR), v(ACC + 32 + 4 * g, 4), g * 1024))
    for k in range(0, 16, 2):
        A("v_pk_add_f32 %s, %s, %s" % (v(ACC + k, 2), v(ACC + k, 2), v(T + k, 2)))
    A("v_xor_b32 v9, 16384, %s" % v(vRR))
    A.bg(4)
    A("s_waitcnt lgkmcnt(0)")
    A("s_barrier")
    tk = [A.ds("ds_read_b128 %s, v9 offset:%d" % (v(T + 4 * g, 4), g * 1024)) for g in range(4)]
    for g in range(4):
        A.wds(tk[g])
        for k in range(4 * g, 4 * g + 4, 2):
            A("v_pk_add_f32 %s, %s, %s" % (v(ACC + k, 2), v(ACC + k, 2), v(T + k, 2)))

def b1_phase(A, l, hin, uout, tail_extra, first):
    skip = A.newlabel("b1skip")
    A("s_cmp_lg_u32 %s, 0" % s(sA1))
    A("s_cbranch_scc1 %s" % skip)
    BV = 16
    A("s_lshr_b32 %s, %s, 1" % (s(sT2), s(sWAVE)))
    A("s_lshl_b32 %s, %s, 6" % (s(sT2), s(sT2)))
    A("s_lshl_b32 %s, %s, 7" % (s(sT3), s(sFT)))
    A("s_add_u32 %s, %s, %s" % (s(sT2), s(sT2), s(sT3)))
    A("v_bfe_u32 v9, v0, 5, 1")
    A("v_lshlrev_b32 v9, 3, v9")
    A("v_add_u32 v9, %s, v9" % s(sT2))
    for g in range(4):
        btok = A.vm("global_load_dwordx2 %s, v9, %s offset:%d" % (v(BV + 2 * g, 2), s(sB1, 2), 16 * g))
    def init():
        A.wvm(btok)
        for k in range(8):
            A("v_lshlrev_b32 %s, 16, %s" % (v(ACC + 2 * k), v(BV + k)))
            A("v_and_b32 %s, 0xffff0000, %s" % (v(ACC + 2 * k + 1), v(BV + k)))
    c0 = -2.0 * math.sqrt(2.0 / math.pi) * math.log2(math.e)
    def tail():
        A("s_lshl_b32 %s, %s, 2" % (s(sT2), s(sFT)))
        A("s_and_b32 %s, %s, 2" % (s(sT3), s(sWAVE)))
        A("s_add_u32 %s, %s, %s" % (s(sT2), s(sT2), s(sT3)))
        A("s_mul_i32 %s, %s, 14336" % (s(sT2), s(sT2)))
        A("s_add_u32 %s, %s, 0x%x" % (s(sT2), s(sT2), uout))
        A("s_add_u32 %s, %s, 14336" % (s(sT3), s(sT2)))
        A("s_mov_b32 s42, %s" % fbits(c0 * 0.044715))
        A("s_mov_b32 s43, s42")
        A("v_mov_b32 v14, %s" % fbits(c0))
        tail_extra()
    cold = b_stream(A, 32, hin, lambda ks, wt: a(8 * ks + 4 * wt, 4), True, lambda ks: [], tail, first, DLY[3], init)
    stamp(A)
    b_reduce(A)
    R = ACC
    for k in range(0, 16, 2):
        A("v_pk_mul_f32 %s, %s, %s" % (v(48 + k, 2), v(R + k, 2), v(R + k, 2)))
    for k in range(0, 16, 2):
        A("v_pk_fma_f32 %s, %s, s[42:43], v[14:15] op_sel_hi:[1,1,0]" % (v(48 + k, 2), v(48 + k, 2)))
    for k in range(0, 16, 2):
        A("v_pk_mul_f32 %s, %s, %s" % (v(48 + k, 2), v(48 + k, 2), v(R + k, 2)))
    for k in range(16):
        A("v_exp_f32 %s, %s" % (v(48 + k), v(48 + k)))
        if k % 4 == 3: A.bg()
    for k in range(0, 16, 2):
        A("v_pk_add_f32 %s, %s, 1.0 op_sel_hi:[1,0]" % (v(48 + k, 2), v(48 + k, 2)))
    for j in range(2):
        for k in range(8 * j, 8 * j + 8):
            A("v_rcp_f32 %s, %s" % (v(48 + k), v(48 + k)))
            if k % 4 == 3: A.bg()
        for k in range(8 * j, 8 * j + 8, 2):
            A("v_pk_mul_f32 %s, %s, %s" % (v(R + k, 2), v(R + k, 2), v(48 + k, 2)))
        for k in range(4):
            A("%s %s, %s, %s" % (CV, v(64 + 4 * j + k), v(R + 8 * j + 2 * k), v(R + 8 * j + 2 * k + 1)))
        A.vm("buffer_store_dwordx4 %s, %s, %s, %s offen sc1" % (v(64 + 4 * j, 4), v(vF0), SWS, s(sT2 + j)))
    A.bg_flush()
    return skip, cold

def b2_phase(A, l, uin, xin):
    skip = A.newlabel("b2skip")
    A("s_cmp_lg_u32 %s, 0" % s(sA2))
    A("s_cbranch_scc1 %s" % skip)
    A("s_lshr_b32 %s, %s, 1" % (s(sT2), s(sWAVE)))
    A("s_lshl_b32 %s, %s, 5" % (s(sT2), s(sT2)))
    A("s_lshl_b32 %s, %s, 6" % (s(sT3), s(sST)))
    A("s_add_u32 %s, %s, %s" % (s(sT2), s(sT2), s(sT3)))
    A("v_and_b32 v9, 31, v0")
    A("v_add_lshl_u32 v9, v9, %s, 1" % s(sT2))
    btok = A.vm("global_load_ushort v10, v9, %s" % s(sB2, 2))
    R_ = Rec(); tr_addr(R_, vTR, 4, 8)
    for l_ in R_.l: A(l_)
    A("s_barrier")
    def init():
        A.wvm(btok)
        for k in range(16): A("v_lshlrev_b32 %s, 16, v10" % v(ACC + k))
    NV = 12
    def pre(ks):
        if ks < NV: return []
        b = WF + 8 * (ks % 2)
        return ["ds_read_b64_tr_b16 %s, %s offset:%d" % (v(b + 4 * tl + 2 * rd, 2), v(vTR + tl), (ks - NV) * 2048 + (0, 8)[rd] * 128) for tl in range(2) for rd in range(2)]
    def wop(ks, wt):
        return v(W2V + 8 * ks + 4 * wt, 4) if ks < NV else v(WF + 8 * (ks % 2) + 4 * wt, 4)
    assert DEPTH <= 6
    XV = RINGV + 8 * ((28 - DEPTH - 1) % 8)
    def xissue():
        A.vm("buffer_load_dwordx4 %s, v10, %s, %s offen sc1" % (v(XV, 4), SWS, s(sT2)))
        return A.vm("buffer_load_dwordx4 %s, v11, %s, %s offen sc1" % (v(XV + 4, 4), SWS, s(sT2)))
    def tail():
        A("v_lshrrev_b32 v13, 6, v0")
        A("v_bfe_u32 v9, v0, 3, 3")
        A("v_lshl_add_u32 v10, v13, 4, v9")
        A("s_lshl_b32 %s, %s, 6" % (s(sT3), s(sST)))
        A("v_add_u32 v10, %s, v10" % s(sT3))
        A("v_mul_u32_u24 v10, 896, v10")
        A("v_and_b32 v14, 7, v0")
        A("v_lshl_add_u32 v10, v14, 4, v10")
        A("s_lshl_b32 %s, %s, 7" % (s(sT3), s(sDT)))
        A("v_add_u32 v10, %s, v10" % s(sT3))
        A("v_add_u32 v11, %d, v10" % (8 * 896))
        A("s_mov_b32 %s, 0x%x" % (s(sT2), xin))
        A.xt = xissue()
        Rr = Rec()
        Rr("v_lshlrev_b32 v13, 13, v13")
        Rr("v_bfe_u32 v15, v0, 3, 3")
        Rr("v_mul_u32_u24 v15, 144, v15")
        Rr("v_add_u32 v13, v13, v15")
        Rr("v_lshl_add_u32 v13, v14, 4, v13")
        Rr("v_add_u32 v13, 0x%x, v13" % (SCR + 4096))
        Rr("v_bfe_u32 v12, v0, 4, 1")
        Rr("v_bfe_u32 v15, v0, 7, 1")
        Rr("v_lshl_add_u32 v12, v15, 1, v12")
        Rr("v_lshlrev_b32 v12, 13, v12")
        Rr("v_and_b32 v15, 15, v0")
        Rr("v_mul_u32_u24 v15, 144, v15")
        Rr("v_add_u32 v12, v12, v15")
        Rr("v_bfe_u32 v15, v0, 5, 1")
        Rr("v_lshl_add_u32 v12, v15, 3, v12")
        Rr("v_and_b32 v15, 64, v0")
        Rr("v_add_u32 v12, v12, v15")
        Rr("v_add_u32 v12, 0x%x, v12" % (SCR + 4096))
        A.bgq = [(lambda o=Rr.l[k:k + 6]: [A(x) for x in o]) for k in range(0, len(Rr.l), 6)]
        if l == 0 and PZ:
            PV = RINGV + 8 * ((28 - DEPTH - 2) % 8)
            A.bgq = poison_ops(A, [T1, H1, U1, X3], PV + 4, PV) + A.bgq
    def first():
        q = getattr(A, "c4q", [])
        A.bgq = [(lambda o=q[k:k + 3]: [x() for x in o]) for k in range(0, len(q), 3)]
        A.c4q = []
    cold = b_stream(A, 28, uin, wop, False, pre, tail, first, DLY[4], init)
    stamp(A)
    if l == 1:
        srd(A, 24, sOUT, S * D * 2)
    XU = ACC + 16
    def xcheck():
        lo, lt = A.newlabel("xok"), A.newlabel("xrty")
        A.wvm(A.xt)
        A.label(lt)
        maxchain(A, range(XV, XV + 8), 8)
        A("v_cmp_eq_u32 vcc, -1, v8")
        A("s_cbranch_vccz %s" % lo)
        A("s_cmp_eq_u32 %s, 0" % s(sBUD))
        A("s_cbranch_scc1 %s" % lo)
        A("s_sub_u32 %s, %s, 1" % (s(sBUD), s(sBUD)))
        n0 = A.vmn; xissue(); A.vmn = n0
        A("s_waitcnt vmcnt(0)")
        A("s_branch %s" % lt)
        A.label(lo)
        for k in range(8):
            A("v_lshlrev_b32 %s, 16, %s" % (v(XU + 2 * k), v(XV + k)))
            A("v_and_b32 %s, 0xffff0000, %s" % (v(XU + 2 * k + 1), v(XV + k)))
    b_reduce(A, xcheck)
    R = ACC
    dst = (SWS, s(sT2), " sc1") if l == 0 else (SW1, "0", OUTFL)
    if l == 0: A("s_mov_b32 %s, 0x%x" % (s(sT2), X2))
    for g in range(4):
        for k in range(2):
            A("%s %s, %s, %s" % (CV, v(48 + 2 * g + k), v(R + 4 * g + 2 * k), v(R + 4 * g + 2 * k + 1)))
        A.ds("ds_write_b64 v12, %s offset:%d" % (v(48 + 2 * g, 2), 16 * g))
    A("s_waitcnt lgkmcnt(0)")
    A("s_barrier")
    t0 = A.ds("ds_read_b128 v[48:51], v13")
    t1 = A.ds("ds_read_b128 v[52:55], v13 offset:%d" % (8 * 144))
    for j in range(2):
        A.wds((t0, t1)[j])
        for k in range(4 * j, 4 * j + 4):
            A("v_lshlrev_b32 %s, 16, %s" % (v(32 + 2 * k), v(48 + k)))
            A("v_and_b32 %s, 0xffff0000, %s" % (v(32 + 2 * k + 1), v(48 + k)))
        for k in range(4 * j, 4 * j + 4):
            A("v_pk_add_f32 %s, %s, %s" % (v(XU + 2 * k, 2), v(XU + 2 * k, 2), v(32 + 2 * k, 2)))
        for k in range(4 * j, 4 * j + 4):
            A("%s %s, %s, %s" % (CV, v(56 + k), v(XU + 2 * k), v(XU + 2 * k + 1)))
        A.vm("buffer_store_dwordx4 %s, %s, %s, %s offen%s" % (v(56 + 4 * j, 4), v(10 + j), dst[0], dst[1], dst[2]))
    A.bg_flush()
    return skip, cold

def srd(A, d, base, nbytes):
    A("s_mov_b32 %s, %s" % (s(d), s(base)))
    A("s_and_b32 %s, %s, 0xffff" % (s(d + 1), s(base + 1)))
    if isinstance(nbytes, int): A("s_mov_b32 %s, 0x%x" % (s(d + 2), nbytes))
    else: A("s_mov_b32 %s, %s" % (s(d + 2), nbytes))
    A("s_mov_b32 %s, 0x20000" % s(d + 3))

def build():
    A = Asm2()
    KN = NAME + "_kernel"
    def emit(R):
        for l_ in R.l: A(l_)
    A.label(KN)
    A("s_cmp_ge_u32 s2, 256")
    A("s_cbranch_scc1 L_exit")
    A("s_load_dwordx2 %s, s[0:1], 0" % s(sX, 2))
    A("s_getpc_b64 s[36:37]")
    A.label("L_pc")
    A("v_lshlrev_b32 v150, 5, v0")
    A.vm("global_load_dword v151, v150, s[36:37]" + NT)
    A("s_load_dwordx2 %s, s[0:1], 80" % s(sWS, 2))
    A("s_load_dwordx8 %s, s[0:1], 32" % s(sW1, 8))
    A("s_load_dwordx4 %s, s[0:1], 8" % s(sWR, 4))
    A("s_load_dwordx4 %s, s[0:1], 64" % s(sOUT, 4))
    if DIAG >= 0: A("s_memrealtime s[94:95]" if DIAG != 100 else "s_memtime s[94:95]")
    if PROF:
        for i in range(32): A("s_mov_b32 %s, 0" % s(66 + i))
        A("s_memrealtime s[64:65]")
    A("s_and_b32 %s, s2, 7" % s(sT0))
    A("s_lshr_b32 %s, s2, 3" % s(sT1))
    A("s_lshl_b32 %s, %s, 5" % (s(sW), s(sT0)))
    A("s_add_u32 %s, %s, %s" % (s(sW), s(sW), s(sT1)))
    a1_consts(A)
    A("v_lshrrev_b32 v3, 6, v0")
    A("v_readfirstlane_b32 %s, v3" % s(sWAVE))
    A("s_and_b32 s37, s37, 0xffff")
    A("s_mov_b32 s38, L_code_end-L_pc")
    A("s_mov_b32 s39, 0x20000")
    A("s_lshl_b32 s40, s2, 9")
    A("s_and_b32 s40, s40, 0x1f000")
    A("v_lshlrev_b32 v150, 4, v0")
    A("s_mov_b32 s34, 0x%x" % WS_BYTES)
    A("s_mov_b32 s35, 0x20000")
    A("s_mov_b32 s26, 0x%x" % (S * F * 2))
    A("s_mov_b32 s27, 0x20000")
    A("s_and_b32 s56, s2, 7")
    A("s_lshr_b32 s57, s2, 3")
    A("s_lshl_b32 s58, s57, 2")
    A("s_add_u32 s58, s58, %s" % s(sWAVE))
    A("v_bfe_u32 v152, v0, 5, 1")
    A("v_and_b32 v153, 31, v0")
    A("v_lshlrev_b32 v153, 4, v153")
    A("s_lshl_b32 s59, s56, 9")
    A("v_add_u32 v153, s59, v153")
    A("v_lshl_add_u32 v254, v152, 12, v153")
    A("v_mul_u32_u24 v152, 3584, v152")
    A("v_add_u32 v152, v152, v153")
    A("s_mul_i32 s41, s58, %d" % (16 * 3584))
    A("s_cmp_eq_u32 s56, 7")
    A("s_cselect_b32 s41, 0x80000000, s41")
    A("v_add_u32 v152, s41, v152")
    A("s_mul_i32 s59, s58, %d" % (14 * 4096))
    A("v_add_u32 v254, s59, v254")
    A("s_waitcnt lgkmcnt(0)")
    if PROF:
        A("s_mov_b32 s66, s64"); nstamp[0] = 1
    A("s_mov_b32 s32, %s" % s(sWS))
    A("s_and_b32 s33, %s, 0xffff" % s(sWS + 1))
    if NCNT:
        lz, lz2 = A.newlabel("nz"), A.newlabel("nz")
        A("s_lshl_b32 %s, s2, 2" % s(sT5))
        A("s_or_b32 %s, %s, %s" % (s(sT5), s(sT5), s(sWAVE)))
        A("s_cmp_lg_u32 %s, 0" % s(sT5))
        A("s_cbranch_scc1 %s" % lz)
        A("v_lshlrev_b32 v12, 7, v0")
        A("v_mov_b32 v13, 0")
        A("s_mov_b32 %s, 0x%x" % (s(sT5), CNT))
        A("buffer_store_dword v13, v12, %s, %s offen sc1" % (SWS, s(sT5)))
        A.label(lz)
        zmark = A.vmn
    for t in range(7): tx = A.vm("global_load_dword %s, v1, %s offset:%d%s" % (v(4 + t), s(sX, 2), 128 * t, NT))
    A.vm("buffer_load_dword v151, v150, s[36:39], s40 offen" + NT)
    A("s_mov_b32 s24, %s" % s(sW1))
    A("s_and_b32 s25, %s, 0xffff" % s(sW1 + 1))
    A("s_mov_b32 s41, 0")
    srd(A, 28, sW2, S * F * 2)
    A("v_mov_b32 v255, v152")
    def wu1(idx, sr):
        for i in idx:
            A("s_mov_b32 %s, %d" % (s(sr), 7168 * i))
            A.vm("buffer_load_dwordx4 v[160:163], v255, %s, %s offen" % (SW1, s(sr)))
    if WU1POS == 0: wu1({1: range(8), 3: (0, 1, 4, 5), 4: (0, 1, 4, 5)}.get(WU1, ()), 41)
    def wu2(i):
        def f():
            A.vm("buffer_load_dwordx4 v[160:163], v254, %s, 0 offen" % SW2)
            A("v_add_u32 v254, 8192, v254")
        return f
    if XP: stamp(A)
    A("s_and_b32 s42, s2, 63")
    A("s_lshr_b32 s43, s2, 6")
    A("v_and_b32 v146, 63, v0")
    A("v_mul_u32_u24 v140, 14, v146")
    A("v_sub_u32 v141, %d, v140" % (445 * 2))
    A("v_cmp_lt_u32 %s, 31, v146" % s(sT5, 2))
    A("s_lshl_b32 s44, s43, 2")
    A("s_add_u32 s44, s44, %s" % s(sWAVE))
    A("v_cndmask_b32 v140, v140, v141, %s" % s(sT5, 2))
    A("s_lshl_b32 s44, s44, 7")
    A("s_add_u32 s44, s44, s42")
    A("v_mov_b32 v142, 1")
    A("v_cndmask_b32 v141, v142, -1, %s" % s(sT5, 2))
    A("s_movk_i32 s45, 450")
    for e in range(2):
        A("v_mul_i32_i24 %s, s44, v141" % v(147 + e))
        A("s_mul_i32 s3, s44, 450")
        A("v_and_b32 %s, 0x7ff, %s" % (v(147 + e), v(147 + e)))
        A("s_add_u32 s3, s3, 448")
        A("v_mad_u32_u24 %s, %s, s45, v140" % (v(147 + e), v(147 + e)))
        A("v_mov_b32 %s, s3" % v(149 + e))
        if e == 0: A("s_add_u32 s44, s44, 64")
    A("v_mov_b32 v140, 0x05040100")
    A("v_mov_b32 v141, 0x07060302")
    A("v_cndmask_b32 v142, v140, v141, %s" % s(sT5, 2))
    A("v_cndmask_b32 v143, v141, v140, %s" % s(sT5, 2))
    A("v_mov_b32 v140, 0x80000000")
    A("v_cndmask_b32 v144, 0, v140, %s" % s(sT5, 2))
    A("s_lshl_b32 s42, s42, 2")
    A("s_add_u32 s42, s42, s43")
    A("s_lshl_b32 s42, s42, 2")
    A("s_add_u32 s42, s42, %s" % s(sWAVE))
    A("s_lshl_b32 s42, s42, 11")
    A("s_add_u32 s3, s42, 0x%x" % WT)
    A("v_lshlrev_b32 v145, 4, v146")
    for e in range(2):
        A.vm("global_load_dwordx2 %s, %s, %s%s" % (v(128 + 4 * e, 2), v(147 + e), s(sWR, 2), NT))
        A.vm("global_load_dwordx2 %s, %s, %s%s" % (v(130 + 4 * e, 2), v(147 + e), s(sWI, 2), NT))
        A.vm("global_load_ushort %s, %s, %s%s" % (v(136 + 2 * e), v(149 + e), s(sWR, 2), NT))
        twp = A.vm("global_load_ushort %s, %s, %s%s" % (v(137 + 2 * e), v(149 + e), s(sWI, 2), NT))
    if WU2_AT == "start":
        for i in range(7): wu2(i)()
    if WU1POS == 1: wu1({1: range(8), 3: (0, 1, 4, 5), 4: (0, 1, 4, 5)}.get(WU1, ()), 41)
    poison_list(A, [T0], 154)
    if NCNT:
        A("s_lshl_b32 %s, s2, 2" % s(sT5))
        A("s_or_b32 %s, %s, %s" % (s(sT5), s(sT5), s(sWAVE)))
        A("s_cmp_lg_u32 %s, 0" % s(sT5))
        A("s_cbranch_scc1 %s" % lz2)
        A("v_mov_b32 v62, 0")
        A("v_mov_b32 v63, 1")
        A("s_waitcnt vmcnt(%d)" % (A.vmn - zmark))
        A("global_store_dword v62, v63, %s sc1" % s(sDBG, 2))
        A.label(lz2)
    stamp(A)
    if DW == 64:
        A("s_mul_i32 %s, s57, 37" % s(sT2))
        A("s_lshr_b32 %s, %s, 8" % (s(sT2), s(sT2)))
        A("s_mul_i32 %s, %s, 7" % (s(sDT2), s(sT2)))
        A("s_sub_u32 %s, s57, %s" % (s(sDT2), s(sDT2)))
        A("s_cmp_lt_u32 s57, 28")
        A("s_cselect_b32 %s, 0, 0x80000000" % s(sA2))
    else:
        A("s_lshr_b32 %s, s57, 3" % s(sT2))
        A("s_and_b32 %s, s57, 7" % s(sDT2))
        A("s_mov_b32 %s, 0" % s(sA2))
    A("s_lshl_b32 %s, s56, 2" % s(sST))
    A("s_add_u32 %s, %s, %s" % (s(sST), s(sST), s(sT2)))
    if MAP1 == "x":
        A("s_mov_b32 %s, %s" % (s(sFT), s(sST)))
        A("s_mov_b32 %s, %s" % (s(sDT), s(sDT2)))
        A("s_mov_b32 %s, %s" % (s(sROT1), s(sDT2)))
        A("s_cmp_lt_u32 s56, 7")
        A("s_cselect_b32 %s, %s, 0x80000000" % (s(sA1), s(sA2)))
    else:
        A("s_and_b32 %s, s56, 1" % s(sDT))
        A("s_lshl_b32 %s, %s, 2" % (s(sDT), s(sDT)))
        A("s_and_b32 %s, s57, 3" % s(sT2))
        A("s_add_u32 %s, %s, %s" % (s(sDT), s(sDT), s(sT2)))
        A("s_lshl_b32 %s, %s, 1" % (s(sROT1), s(sT2)))
        A("s_lshr_b32 s56, s56, 1")
        A("s_lshr_b32 s57, s57, 2")
        A("s_mul_i32 %s, s56, 7" % s(sFT))
        A("s_add_u32 %s, %s, s57" % (s(sFT), s(sFT)))
        A("s_cmp_lt_u32 %s, %d" % (s(sDT), 448 // DW))
        A("s_cselect_b32 %s, 0, 0x80000000" % s(sA1))
        A("s_mov_b32 %s, %s" % (s(sA2), s(sA1)))
        A("s_cmp_lt_u32 s57, 7")
        A("s_cselect_b32 %s, %s, 0x80000000" % (s(sA1), s(sA1)))
        A("s_lshl_b32 %s, s56, 3" % s(sST))
        A("s_add_u32 %s, %s, s57" % (s(sST), s(sST)))
        A("s_mov_b32 %s, %s" % (s(sDT2), s(sROT1)))
    A("s_lshl_b32 %s, %s, 1" % (s(sSH1), s(sDT)))
    A("s_mov_b32 %s, %s" % (s(sSH2), s(sSH1)))
    if KROT == 3:
        A("s_and_b32 %s, %s, 3" % (s(sT2), s(sFT)))
        A("s_lshl_b32 %s, %s, 2" % (s(sSH1), s(sT2)))
        A("s_mul_i32 %s, %s, 7" % (s(sSH2), s(sT2)))
        A("s_add_u32 %s, %s, 1" % (s(sSH2), s(sSH2)))
        A("s_lshr_b32 %s, %s, 1" % (s(sSH2), s(sSH2)))
    if KROT in (4, 5):
        A("s_and_b32 %s, %s, 3" % (s(sT2), s(sST)))
        A("s_mov_b32 %s, %s" % (s(sSH1), s(sT2)))
        A("s_mov_b32 %s, %s" % (s(sSH2), s(sT2)))
    if not KROT:
        A("s_mov_b32 %s, 0" % s(sSH1))
        A("s_mov_b32 %s, 0" % s(sSH2))
    A("s_mov_b32 %s, 200000" % s(sBUD))
    A("s_lshl_b32 %s, %s, 15" % (s(sRING), s(sWAVE)))
    A("s_mul_i32 %s, %s, %d" % (s(sWB1), s(sWAVE), 8 * 3584))
    A("s_add_u32 %s, %s, %d" % (s(sWB1 + 1), s(sWB1), 1024 * 3584))
    A("s_mul_i32 %s, %s, 14" % (s(sWB2), s(sWAVE)))
    A("s_sub_u32 %s, %s, 14" % (s(sWB2 + 1), s(sWB2)))
    for i in range(3):
        A("s_mov_b32 %s, %s" % (s(SB + 2 * i), fbits(C7[i + 1])))
        A("s_mov_b32 %s, %s" % (s(SB + 2 * i + 1), fbits(C7[i + 1])))
        A("s_mov_b32 %s, %s" % (s(SB + 6 + 2 * i), fbits(S7[i + 1])))
        A("s_mov_b32 %s, %s" % (s(SB + 6 + 2 * i + 1), fbits(S7[i + 1])))
    A("s_lshl_b32 %s, %s, 3" % (s(sT0), s(sWAVE)))
    A("s_add_u32 %s, %s, 0x%x" % (s(sT0), s(sT0), SCR + 16384))
    A("v_lshl_add_u32 v177, v146, 5, %s" % s(sT0))
    A("s_lshl_b32 %s, %s, 11" % (s(sT0), s(sWAVE)))
    A("s_add_u32 %s, %s, 0x%x" % (s(sT0), s(sT0), SCR + 16384))
    A("v_add_u32 v178, %s, v145" % s(sT0))
    w1_voffs(A, PW1, 164)
    DU1 = lambda u, g: dma_chunk(A, 1, 4 * u, 4, PW1, 4 * g)
    DU2 = lambda u, g, vo=PW2: dma_chunk(A, 2, 4 * u, 4, vo, 4 * g)
    R = Rec(); a1_consts2(R); gen_f64(R, 48)
    if SCHED == "unit": A.bgq = DU1(0, 0) + DU1(1, 1)
    A.mix(R.l, 8)
    A.bg_flush()
    stamp(A)
    A.wvm(tx)
    stamp(A)
    WO, WTm = 164, 172
    def whook1():
        A("v_cmp_lt_u32 %s, 31, v146" % s(sT5, 2))
        A("v_cmp_eq_u32 vcc, 32, v146")
        A.wvm(twp)
        for e in range(2):
            r0, i0_ = 128 + 4 * e, 130 + 4 * e
            A("v_cndmask_b32 %s, %s, %s, %s" % (v(WTm), v(r0), v(r0 + 1), s(sT5, 2)))
            A("v_cndmask_b32 %s, %s, %s, %s" % (v(WTm + 1), v(r0 + 1), v(r0), s(sT5, 2)))
            A("v_cndmask_b32 %s, %s, %s, %s" % (v(WTm + 2), v(i0_), v(i0_ + 1), s(sT5, 2)))
            A("v_cndmask_b32 %s, %s, %s, %s" % (v(WTm + 3), v(i0_ + 1), v(i0_), s(sT5, 2)))
            for sl in range(4):
                A("v_perm_b32 %s, %s, %s, %s" % (v(WO + 2 * sl + e), v(WTm + 2 + sl // 2), v(WTm + sl // 2), v(142 + sl % 2)))
                A("v_xor_b32 %s, %s, v144" % (v(WO + 2 * sl + e), v(WO + 2 * sl + e)))
            A("v_lshl_or_b32 %s, %s, 16, %s" % (v(WTm + 4), v(137 + 2 * e), v(136 + 2 * e)))
            A("v_cndmask_b32 %s, %s, %s, vcc" % (v(WO + e), v(WO + e), v(WTm + 4)))
        for sl in range(4):
            A.ds("ds_write_b64 v177, %s offset:%d" % (v(WO + 2 * sl, 2), 2048 * sl))
    def whook2():
        t0 = A.ds("ds_read_b128 %s, v178" % v(WO, 4))
        t1 = A.ds("ds_read_b128 %s, v178 offset:1024" % v(WO + 4, 4))
        def st():
            A.wds(t1)
            A.vm("buffer_store_dwordx4 %s, v145, %s, s3 offen sc1" % (v(WO, 4), SWS))
            A.vm("buffer_store_dwordx4 %s, v145, %s, s3 offen offset:1024 sc1" % (v(WO + 4, 4), SWS))
        return st
    if WHOOK:
        a1_compute(A, Z0, whook1, whook2)
        if NCNT:
            A("v_mov_b32 v11, 0")
            A.vm("global_load_dword v12, v11, %s sc1" % s(sDBG, 2))
    else:
        a1_compute(A, Z0)
        if NCNT:
            A("v_mov_b32 v11, 0")
            A.vm("global_load_dword v12, v11, %s sc1" % s(sDBG, 2))
        whook1()
        A("s_waitcnt lgkmcnt(0)")
        A("s_barrier")
        whook2()()
    stamp(A)
    A("s_waitcnt vmcnt(0)")
    A("s_barrier")
    lw = A.newlabel("nb")
    A("s_cmp_lg_u32 %s, 0" % s(sWAVE))
    A("s_cbranch_scc1 %s" % lw)
    if NCNT:
        lt, lo = A.newlabel("rdy"), A.newlabel("rdyok")
        A.label(lt)
        A("v_cmp_ne_u32 vcc, 0, v12")
        A("s_cbranch_vccnz %s" % lo)
        A("s_cmp_eq_u32 %s, 0" % s(sBUD))
        A("s_cbranch_scc1 %s" % lo)
        A("s_sub_u32 %s, %s, 1" % (s(sBUD), s(sBUD)))
        A("s_sleep 4")
        A("global_load_dword v12, v11, %s sc1" % s(sDBG, 2))
        A("s_waitcnt vmcnt(0)")
        A("s_branch %s" % lt)
        A.label(lo)
        A("s_and_b32 %s, s2, %d" % (s(sT0), NCNT - 1))
        A("s_lshl_b32 %s, %s, 7" % (s(sT0), s(sT0)))
        A("s_add_u32 %s, %s, 0x%x" % (s(sT0), s(sT0), CNT))
        A("v_mov_b32 v12, 1")
        A("s_mov_b64 exec, 1")
        A("buffer_atomic_add v12, v11, %s, %s offen sc1" % (SWS, s(sT0)))
    else:
        A("s_and_b32 %s, s2, 1" % s(sT0))
        A("s_lshl_b32 %s, %s, 7" % (s(sT0), s(sT0)))
        A("v_mov_b32 v11, %s" % s(sT0))
        A("v_mov_b32 v12, 1")
        A("s_mov_b64 exec, 1")
        A("global_atomic_add v11, v12, %s sc1" % s(sDBG, 2))
    A("s_mov_b64 exec, -1")
    A.label(lw)
    stamp(A)
    if WU2_AT == "beta":
        for i in range(7): wu2(i)()
    A("s_min_u32 %s, %s, 27" % (s(sT0), s(sFT)))
    A("s_lshl_b32 %s, %s, 7" % (s(sT0), s(sT0)))
    A("v_mov_b32 v164, %s" % s(sT0))
    A.vm("global_load_dword v172, v164, %s" % s(sB1, 2))
    A("s_min_u32 %s, %s, 31" % (s(sT0), s(sST)))
    A("s_lshl_b32 %s, %s, 7" % (s(sT0), s(sT0)))
    A("v_mov_b32 v164, %s" % s(sT0))
    A.vm("global_load_dword v172, v164, %s" % s(sB2, 2))
    wu1({2: (0, 1, 4, 5, 2, 3, 6, 7), 3: (2, 3, 6, 7)}.get(WU1, ()), sT0)
    if not PZ: poison_list(A, [H0, U0, X2, X1], 164)
    R = Rec(); a2_consts(R); f32_gen(R, 48); R.l.remove("W_HERE"); tr_addr(R, PTR1, 8, 164); w2_voffs(R, PW2, 164)
    if SCHED == "win": A.bgq = dma_chunk(A, 1, 0, 16, PW1)
    A.mix(R.l, 5)
    A.bg_flush()
    lw = A.newlabel("nb")
    A("s_cmp_lg_u32 %s, 0" % s(sWAVE))
    A("s_cbranch_scc1 %s" % lw)
    A("v_and_b32 v56, %d, v0" % ((NCNT or 2) - 1))
    A("v_lshlrev_b32 v56, 7, v56")
    A("s_mov_b32 %s, 0x%x" % (s(sT0), CNT))
    if BDLY: A("s_sleep %d" % BDLY)
    lt, lo = A.newlabel("bar"), A.newlabel("barok")
    A.label(lt)
    if NCNT: A("buffer_load_dword v57, v56, %s, %s offen sc1" % (SWS, s(sT0)))
    else: A("global_load_dword v57, v56, %s sc1" % s(sDBG, 2))
    A("s_waitcnt vmcnt(0)")
    A("v_cmp_gt_u32 vcc, %d, v57" % (256 // (NCNT or 2)))
    A("s_cbranch_vccz %s" % lo)
    A("s_cmp_eq_u32 %s, 0" % s(sBUD))
    A("s_cbranch_scc1 %s" % lo)
    A("s_sub_u32 %s, %s, 1" % (s(sBUD), s(sBUD)))
    A("s_sleep %d" % BSLP)
    A("s_branch %s" % lt)
    A.label(lo)
    A.label(lw)
    A("s_barrier")
    stamp(A)
    colds = []
    def fin():
        prof_end(A)
        A("s_endpgm")
    def tr_ops(n, addr, rows, dstfn, slot0=0):
        q = []
        for i in range(slot0, slot0 + n):
            def trp(i=i):
                for tl in range(2):
                    for rd in range(2):
                        A.trtok = A.ds("ds_read_b64_tr_b16 %s, %s offset:%d" % (dstfn(8 * i + 4 * tl + 2 * rd), v(addr + tl), i * 2048 + rows[rd] * 128))
            q.append(trp)
        return q
    def after_tr(ops):
        f = ops[0]
        return [lambda: (A.wds(A.trtok), f())] + ops[1:]
    def waitdma(ops):
        f = ops[0]; tk__ = A.last_dma
        return [lambda: (A.wvm(tk__), f())] + ops[1:]
    def pairs(ops): return [(lambda o=ops[k:k + 2]: [x() for x in o]) for k in range(0, len(ops), 2)]
    def mark(name): return lambda: setattr(A, name, A.last_dma)
    trw1 = lambda n, base, s0: tr_ops(n, PTR1, (0, 4), lambda r: a(base + r, 2), s0)
    for l in range(2):
        zb, tb, hb, ub, xo = ((Z0, T0, H0, U0, X1), (Z1, T1, H1, U1, X3))[l]
        if l == 1:
            for i in range(3):
                A("s_mov_b32 %s, %s" % (s(SB + 2 * i), fbits(C7[i + 1])))
                A("s_mov_b32 %s, %s" % (s(SB + 2 * i + 1), fbits(C7[i + 1])))
                A("s_mov_b32 %s, %s" % (s(SB + 6 + 2 * i), fbits(S7[i + 1])))
                A("s_mov_b32 %s, %s" % (s(SB + 6 + 2 * i + 1), fbits(S7[i + 1])))
            R = Rec(); a1_consts(R); gen_f64(R, 48); a1_consts2(R)
            if F32EARLY: f32_gen(R, 48)
            emit(R)
            A("s_barrier")
            A("s_mov_b32 %s, 0x%x" % (s(sT1), X2))
            def xi():
                for t in range(7): A.vm("buffer_load_dword %s, v1, %s, %s offen offset:%d sc1" % (v(4 + t), SWS, s(sT1), 128 * t))
            FINEON[0] = True
            fstamp(A)
            poll_loads(A, xi, range(4, 11), 11, DLY[0])
            stamp(A)
            a1_compute(A, Z1)
            stamp(A)
            R = Rec(); a2_consts(R)
            if not F32EARLY: f32_gen(R, 48)
            k_ = R.l.index("W_HERE")
            for l_ in R.l[:k_]: A(l_)
            A("s_lshl_b32 %s, s2, 13" % s(sT2))
            A("s_add_u32 %s, %s, 0x%x" % (s(sT2), s(sT2), CNT))
            A("s_add_u32 %s, %s, 4096" % (s(sT3), s(sT2)))
            A("v_lshlrev_b32 v57, 4, v0")
            if STASH:
                A.vm("buffer_load_dwordx4 %s, v57, %s, %s offen" % (v(WV, 4), SWS, s(sT2)))
                A.wtok = A.vm("buffer_load_dwordx4 %s, v57, %s, %s offen" % (v(WV + 4, 4), SWS, s(sT3)))
            else: a2_wload(A)
            for l_ in R.l[k_ + 1:]: A(l_)
            fstamp(A)
            A("s_barrier")
        late = SCHED == "late"
        def a2_after():
            if l == 0:
                if WU2_AT == "a2":
                    for i in range(7): wu2(i)()
                for op in poison_ops(A, [H0, X1], 164, 168): op()
                A.p1tok = A.ptok
                A.bgq = ([] if late else trw1(16, 0, 0)) + poison_ops(A, [U0, X2, Z1], 164, 168, False)
        a2_phase(A, zb, tb, l == 1, a2_after)
        stamp(A)
        if STOP == 2 + 5 * l: fin(); break
        R = Rec(); a3_consts(R)
        if l == 0:
            if WU2_AT == "w23":
                for i in range(7): wu2(i)()
            A("s_waitcnt lgkmcnt(0)")
            A.bgq = dma_chunk(A, 1, 0 if late else 16, 16, PW1)
        A.mix(R.l, 2)
        A.bg_flush()
        A("s_barrier")
        def a3_after():
            if l == 0:
                if WU2_AT == "a3":
                    for i in range(7): wu2(i)()
                A.bgq = trw1(16, 0 if late else 128, 0)
        a3_phase(A, l, tb, xo, hb, a3_after, (lambda: None) if l == 0 else None)
        stamp(A)
        if STOP == 3 + 5 * l: fin(); break
        R = Rec(); b_consts(R)
        if l == 0:
            tr_addr(R, vTR, 4, 8)
            w2_voffs(R, 10, 8)
            A("s_waitcnt lgkmcnt(0)")
            A.bgq = dma_chunk(A, 1, 16, 16, PW1) if late else dma_chunk(A, 2, 0, 12, PW2)
        A.mix(R.l, 2)
        A.bg_flush()
        A("s_barrier")
        trw2 = lambda: tr_ops(12, vTR, (0, 8), lambda r: v(W2V + r, 2))
        def b1_tail():
            if l == 0:
                A.bg_flush()
                A("s_waitcnt lgkmcnt(0)")
                A.bgq = (dma_chunk(A, 2, 0, 12, 10) + [mark("c3")] + dma_chunk(A, 2, 24, 4, 10, 12)) if late else dma_chunk(A, 2, 12, 16, 10)
        def b1_first():
            if l == 0: A.bgq = (pairs(trw1(16, 128, 0)) + [lambda: None, lambda: A("s_waitcnt lgkmcnt(0)")]) if late else trw2()
        skip, cold = b1_phase(A, l, hb, ub, b1_tail, b1_first)
        colds.append(cold)
        if l == 0:
            dn = A.newlabel("b1done")
            if late: A.wvm(A.c3)
            A("s_branch %s" % dn)
            A.label(skip)
            A("s_waitcnt vmcnt(0)")
            if late:
                for op in dma_chunk(A, 2, 0, 12, 10) + dma_chunk(A, 2, 24, 4, 10, 12): op()
            else:
                for op in trw2(): op()
                A("s_waitcnt lgkmcnt(0)")
                for op in dma_chunk(A, 2, 12, 16, 10): op()
            A("v_mul_u32_u24 v16, 7168, v0")
            A("s_mov_b32 %s, 0x%x" % (s(sT2), H0))
            def hi_():
                A("buffer_load_dword v17, v16, %s, %s offen sc1" % (SWS, s(sT2)))
                A("v_mov_b32 v18, 0")
                A("v_mov_b32 v19, 0")
            poll_loads(A, hi_, range(17, 20), 20, 16)
            A("s_barrier")
            A.label(dn)
            if late:
                for op in trw2(): op()
                A("s_waitcnt lgkmcnt(0)")
                A.c4q = dma_chunk(A, 2, 12, 12, 28)
                for k in range(4): A("v_mov_b32 %s, %s" % (v(28 + k), v(10 + k)))
                if C4IN == "win":
                    for op in A.c4q: op()
                    A.c4q = []
        else:
            A.label(skip)
        stamp(A)
        if STOP == 4 + 5 * l: fin(); break
        skip, cold = b2_phase(A, l, ub, xo)
        colds.append(cold)
        if l == 0:
            dn = A.newlabel("b2done")
            A("s_branch %s" % dn)
            A.label(skip)
            A("s_waitcnt vmcnt(0)")
            if PZ: poison_list(A, [T1, H1, U1, X3], 32)
            A.label(dn)
        else:
            A.label(skip)
        if l == 0 and not PZ:
            poison_list(A, [T1, H1, U1, X3], 32)
        stamp(A)
        if STOP == 5 + 5 * l: fin(); break
    else:
        fin()
    for c in colds: c()
    A.label("L_exit")
    A("s_endpgm")
    A.label("L_code_end")
    lines, n = fix_hazards_fast(A.lines)
    if ALIGN:
        lines, fx, lf = align_pass(lines, ALIGN, ALNOP)
        print("align fixed", fx, "left", lf, file=sys.stderr)
    pr = [p for p in lint_waits(lines) if "overflow" not in p[2]]
    for p in pr[:6]: print("LINT", p, file=sys.stderr)
    hdr = open("cdna_kernels/%s.s.ref" % NAME).read().split("; Override launch")[0]
    out = hdr + "; @launch grid=(256,1,1) block=(256,1,1) lds=%d\n" % LDS_TOTAL
    out += '.amdgcn_target "amdgcn-amd-amdhsa--gfx950"\n.text\n.globl %s\n.p2align 8\n.type %s,@function\n' % (KN, KN)
    out += "\n".join(lines) + "\n"
    out += """.section .rodata,"a"
.p2align 6
.amdhsa_kernel %s
  .amdhsa_next_free_vgpr 512
  .amdhsa_next_free_sgpr 102
  .amdhsa_accum_offset 256
  .amdhsa_group_segment_fixed_size 0
  .amdhsa_kernarg_size 88
  .amdhsa_user_sgpr_count 2
  .amdhsa_user_sgpr_kernarg_segment_ptr 1
  .amdhsa_system_sgpr_workgroup_id_x 1
.end_amdhsa_kernel
""" % KN
    print("nops inserted:", n, "lines:", len(lines), "stamps:", nstamp[0], file=sys.stderr)
    return out

if __name__ == "__main__":
    outp = sys.argv[1] if len(sys.argv) > 1 else "p1.s"
    open(outp, "w").write(build())
    import subprocess
    r = subprocess.run(["clang", "-x", "assembler", "-target", "amdgcn-amd-amdhsa", "-mcpu=gfx950", "-c", outp, "-o", "chk.o"], capture_output=True, text=True)
    if r.returncode: print("ASM ERROR", r.stderr[:1500])
    else:
        o = subprocess.run(["llvm-readelf", "-S", "chk.o"], capture_output=True, text=True).stdout
        print("text bytes", [int(l.split()[-6 if len(l.split()) > 10 else -5], 16) for l in o.splitlines() if " .text" in l], file=sys.stderr)
```

```python
import math, struct, sys, os
from asmlib import *

NAME = "interleave_layers__spectral_gfnet__mixer_token_mlp__prompt"
S, D, F = 2048, 448, 1792
MB2 = 0x200000
Z0, Z1, T0, T1, WT, X1, X2, X3, H0, H1, U0, U1, CNT = [MB2 * i for i in range(13)]
WS_BYTES = 0x2000000
PROFOFF = 0x1C00000
PROF = int(os.environ.get("PROF", 0))
STOP = int(os.environ.get("STOP", 99))
SLEEP = int(os.environ.get("SLEEP", 2))
WUPRE = int(os.environ.get("WUPRE", 4))
XP = int(os.environ.get("XP", 0)); WU2_AT = os.environ.get("WU2_AT", "a3"); WU2FL = os.environ.get("WU2FL", " nt"); DMAFL = os.environ.get("DMAFL", "")
NT = os.environ.get("NT", "")
SCHED = os.environ.get("SCHED", "win")
DLY = [int(x) for x in os.environ.get("DLY", "0,0,10,12,12").split(",")]
MAP = os.environ.get("MAP", "x"); KROT = int(os.environ.get("KROT", 0))
AUTO2 = int(os.environ.get("AUTO2", 9)); AUTO3 = int(os.environ.get("AUTO3", 7))
FAKE16 = int(os.environ.get("FAKE16", 0))
STFL = os.environ.get("STFL", " sc1")
assert int(os.environ.get("FULLB", 1)) or STFL == " sc1"
PRE1 = int(os.environ.get("PRE1", 32)); PRE2 = int(os.environ.get("PRE2", 32))
DW = int(os.environ.get("DW", 64)); MAP1 = os.environ.get("MAP1", "x"); X2T = int(os.environ.get("X2T", 1))
OUTFL = os.environ.get("OUTFL", "").replace("_", " ")
EXM = int(os.environ.get("EXM", 0))
ALIGN = int(os.environ.get("ALIGN", 0)); ALNOP = int(os.environ.get("ALNOP", 0))
F32EARLY = int(os.environ.get("F32EARLY", 0))
PZ = int(os.environ.get("PZ", 1))
STASH = int(os.environ.get("STASH", 0)); STASHFL = os.environ.get("STASHFL", "").replace("_", " ")
RALL = int(os.environ.get("RALL", 2))
WU1POS = int(os.environ.get("WU1POS", 1))
STN = int(os.environ.get("STN", 0)); STM = int(os.environ.get("STM", 0))
WHOOK = int(os.environ.get("WHOOK", 1)); C4IN = os.environ.get("C4IN", "win")
NCNT = int(os.environ.get("NCNT", 32)); BDLY = int(os.environ.get("BDLY", 0)); BSLP = int(os.environ.get("BSLP", 2))
LATEB = int(os.environ.get("LATEB", 0)); OVL = int(os.environ.get("OVL", 0)); T1AT = int(os.environ.get("T1AT", 6)); T1N = int(os.environ.get("T1N", 2)); EBG = int(os.environ.get("EBG", 3)); BOOST = int(os.environ.get("BOOST", 2)); BOOSTB1 = int(os.environ.get("BOOSTB1", 0)); EN = [int(x) for x in os.environ.get("EN", "6,4,6").split(",")]
MASKED = int(os.environ.get("MASKED", 1)); FULLB = int(os.environ.get("FULLB", 1))
ROT = int(os.environ.get("ROT", 1)); WU1 = int(os.environ.get("WU1", 3))

def fbits(x): return "0x%08x" % struct.unpack("<I", struct.pack("<f", x))[0]
C7 = [math.cos(2 * math.pi * r / 7) for r in range(4)]
S7 = [math.sin(2 * math.pi * r / 7) for r in range(4)]
CV = "v_cvt_pk_bf16_f32"; M16 = "v_mfma_f32_16x16x32_bf16"; M32 = "v_mfma_f32_32x32x16_bf16"

sX, sWS, sWR, sWI, sW1, sB1, sW2, sB2, sOUT, sDBG = 4, 6, 8, 10, 12, 14, 16, 18, 20, 22
SW1, SW2, SWS = "s[24:27]", "s[28:31]", "s[32:35]"
SB = 36
sW, sWAVE, sDT, sFT, sST, sA1, sA2, sBUD = 48, 49, 50, 51, 52, 53, 54, 55
sT0, sT1, sT2, sT3 = 56, 57, 58, 59
sRING, sT4, sT5, sT6 = 60, 61, 62, 63
sC = 98
sWB1, sWB2 = 12, 16
sDT2, sROT1 = 64, 65
sSH1, sSH2, sEND = 99, 100, 101
SCR = 131072
LDS_TOTAL = 163840
LSTR = 272
YSTR = 448 * 4 + 64
HSTR = 896 + 32
A3_Y = 32 * LSTR
A3_H = A3_Y + 8 * YSTR
XL = 0
F64R, F64I = 96, 112
W2V = 160

nstamp = [0]
CLK = [int(x) for x in os.environ.get("CLK", "").split(",") if x]
BUDA = [int(x) for x in os.environ.get("BUDA", "22,23").split(",")]
BUDB = [int(x) for x in os.environ.get("BUDB", "23,24").split(",")]
FINE = int(os.environ.get("FINE", 0)); FINEON = [False]
def fstamp(A):
    if FINE: stamp(A)
DIAG = int(os.environ.get("DIAG", -1))
ndiag = [1]
def stamp(A):
    if DIAG >= 0:
        if ndiag[0] == DIAG:
            A("s_memrealtime s[96:97]")
            A("s_waitcnt lgkmcnt(0)")
        ndiag[0] += 1
    if not PROF: return
    if FINE and not FINEON[0]: return
    i = nstamp[0]; nstamp[0] += 1
    assert i < 32
    A("s_memrealtime s[8:9]")
    A("s_waitcnt lgkmcnt(0)")
    A("s_mov_b32 %s, s8" % s(66 + i))
    if CLK and i in CLK:
        A("s_memtime s[8:9]")
        A("s_waitcnt lgkmcnt(0)")
        if i == CLK[0]: A("s_mov_b32 s97, s8")
        else: A("s_sub_u32 s97, s8, s97")
        return
    for slot, st in ((30, BUDA), (31, BUDB)) if not CLK else ():
        if i == st[0]: A("s_mov_b32 %s, %s" % (s(66 + slot), s(sBUD)))
        if i == st[1]:
            A("s_sub_u32 %s, %s, %s" % (s(66 + slot), s(66 + slot), s(sBUD)))
            A("s_add_u32 %s, %s, 1000" % (s(66 + slot), s(66 + slot)))

def prof_end(A):
    if DIAG >= 0:
        stamp(A)
        l1, l2 = A.newlabel("dg"), A.newlabel("dg")
        A("s_cmp_lg_u32 s2, 75")
        A("s_cbranch_scc1 %s" % l2)
        A("s_memrealtime s[92:93]")
        A("s_waitcnt lgkmcnt(0)")
        if DIAG == 100:
            A("s_memtime s[96:97]")
            A("s_waitcnt lgkmcnt(0)")
        A("s_sub_u32 s96, s96, s94")
        if DIAG == 100: A("s_lshr_b32 s96, s96, 5")
        A("s_min_u32 s96, s96, 20000")
        A.label(l1)
        A("s_memrealtime s[90:91]")
        A("s_waitcnt lgkmcnt(0)")
        A("s_sub_u32 s90, s90, s92")
        A("s_cmp_lt_u32 s90, s96")
        A("s_cbranch_scc1 %s" % l1)
        A.label(l2)
    if not PROF: return
    A("s_waitcnt vmcnt(0)")
    stamp(A)
    n = 32
    A("s_lshl_b32 s56, s2, 9")
    A("s_add_u32 s56, s56, 0x%x" % PROFOFF)
    A("v_lshrrev_b32 v1, 6, v0")
    A("v_lshlrev_b32 v1, 7, v1")
    for i in range(n):
        A("v_mov_b32 v2, %s" % s(66 + i))
        A("buffer_store_dword v2, v1, %s, s56 offen offset:%d" % (SWS, 4 * i))

def c7(r):
    r %= 7; r = min(r, 7 - r); return s(SB + 2 * (r - 1), 2)
def s7(r):
    r %= 7
    return (s(SB + 6 + 2 * (r - 1), 2), 1) if r <= 3 else (s(SB + 6 + 2 * (7 - r - 1), 2), -1)

def red32(R, x, t):
    for m in ("quad_perm:[1,0,3,2]", "quad_perm:[2,3,0,1]", "row_half_mirror", "row_mirror"):
        R("v_add_f32_dpp %s, %s, %s %s row_mask:0xf bank_mask:0xf" % (v(x), v(x), v(x), m))
    R("v_mov_b32 %s, %s" % (v(t), v(x)))
    R("v_permlane16_swap_b32 %s, %s" % (v(x), v(t)))
    R("v_add_f32 %s, %s, %s" % (v(x), v(x), v(t)))

def gen_frags(R, nidx, qreg, ksteps, denom, dre, dim, tmp):
    nf, ang, n13 = tmp, tmp + 1, tmp + 2
    R("v_cvt_f32_u32 %s, %s" % (v(nf), v(nidx)))
    R("v_cvt_f32_u32 %s, %s" % (v(ang), v(qreg)))
    R("v_mul_f32 %s, %s, %s" % (v(nf), fbits(1.0 / denom), v(nf)))
    R("v_mul_f32 %s, 4.0, %s" % (v(ang), v(ang)))
    R("v_mul_f32 %s, %s, %s" % (v(n13), fbits(13.0), v(nf)))
    R("v_mul_f32 %s, %s, %s" % (v(ang), v(ang), v(nf)))
    n = 4 * ksteps
    def sc(i): return tmp + 3 + 2 * (i % 2), tmp + 4 + 2 * (i % 2)
    for i in range(n + 1):
        if i < n:
            cs, sn = sc(i)
            R("v_cos_f32 %s, %s" % (v(cs), v(ang)))
            R("v_sin_f32 %s, %s" % (v(sn), v(ang)))
            if i < n - 1: R("v_add_f32 %s, %s, %s" % (v(ang), v(ang), v(nf if i % 4 < 3 else n13)))
        if i > 0:
            cs, sn = sc(i - 1)
            R("%s %s, %s, %s" % (CV, v(dre + i - 1), v(cs), v(sn)))
            R("%s %s, -%s, %s" % (CV, v(dim + i - 1), v(sn), v(cs)))

def gen_f64(R, tmp):
    R("v_lshrrev_b32 %s, 6, v0" % v(tmp + 7))
    R("v_and_b32 %s, 15, v0" % v(tmp + 8))
    R("v_lshl_add_u32 %s, %s, 4, %s" % (v(tmp + 7), v(tmp + 7), v(tmp + 8)))
    R("v_bfe_u32 %s, v0, 4, 2" % v(tmp + 8))
    gen_frags(R, tmp + 7, tmp + 8, 4, 64, F64R, F64I, tmp)

def unpack7(R, src, dst):
    for t in range(7):
        R("v_lshlrev_b32 %s, 16, %s" % (v(dst + 2 * t), v(src + t)))
        R("v_and_b32 %s, 0xffff0000, %s" % (v(dst + 2 * t + 1), v(src + t)))

def stats_streams(z, a1, a2, t1, t2):
    R1 = Rec(); R2 = Rec()
    R1("v_pk_add_f32 %s, %s, %s" % (v(a1, 2), v(z, 2), v(z + 2, 2)))
    for k in range(2, 7): R1("v_pk_add_f32 %s, %s, %s" % (v(a1, 2), v(a1, 2), v(z + 2 * k, 2)))
    R1("v_add_f32 %s, %s, %s" % (v(a1), v(a1), v(a1 + 1)))
    red32(R1, a1, t1)
    R2("v_pk_mul_f32 %s, %s, %s" % (v(a2, 2), v(z, 2), v(z, 2)))
    for k in range(1, 7): R2("v_pk_fma_f32 %s, %s, %s, %s" % (v(a2, 2), v(z + 2 * k, 2), v(z + 2 * k, 2), v(a2, 2)))
    R2("v_add_f32 %s, %s, %s" % (v(a2), v(a2), v(a2 + 1)))
    red32(R2, a2, t2)
    return R1.l, R2.l

def mean_var(A, a1, a2):
    A("v_mul_f32 %s, %s, %s" % (v(a1), fbits(1.0 / D), v(a1)))
    A("v_mul_f32 %s, %s, %s" % (v(a2), fbits(1.0 / D), v(a2)))
    A("v_fma_f32 %s, -%s, %s, %s" % (v(a2), v(a1), v(a1), v(a2)))
    A("v_max_f32 %s, 0, %s" % (v(a2), v(a2)))

def poison(A, region, vtid16, vm1):
    A("s_lshl_b32 %s, s2, 13" % s(sT3))
    A("s_add_u32 %s, %s, 0x%x" % (s(sT3), s(sT3), region))
    A.vm("buffer_store_dwordx4 %s, %s, %s, %s offen sc1" % (v(vm1, 4), v(vtid16), SWS, s(sT3)))
    A("s_add_u32 %s, %s, 4096" % (s(sT3), s(sT3)))
    A.ptok = A.vm("buffer_store_dwordx4 %s, %s, %s, %s offen sc1" % (v(vm1, 4), v(vtid16), SWS, s(sT3)))

def poison_list(A, regions, t):
    A("v_lshlrev_b32 %s, 4, v0" % v(t))
    for k in range(4): A("v_mov_b32 %s, -1" % v(t + 2 + k))
    for r in regions: poison(A, r, t, t + 2)

def poison_ops(A, regions, va, vd, setup=True):
    ops = []
    if setup:
        def st():
            A("v_lshlrev_b32 %s, 4, v0" % v(va))
            for k in range(4): A("v_mov_b32 %s, -1" % v(vd + k))
        ops.append(st)
    for r in regions:
        for h in range(2):
            def op(r=r, h=h):
                A("s_lshl_b32 %s, s2, 13" % s(sC))
                A("s_add_u32 %s, %s, 0x%x" % (s(sC), s(sC), r + 4096 * h))
                A.ptok = A.vm("buffer_store_dwordx4 %s, %s, %s, %s offen sc1" % (v(vd, 4), v(va), SWS, s(sC)))
            ops.append(op)
    return ops

def maxchain(A, regs, t):
    regs = list(regs)
    A("v_max3_u32 %s, %s, %s, %s" % (v(t), v(regs[0]), v(regs[1]), v(regs[2])))
    regs = regs[3:]
    while len(regs) >= 2:
        A("v_max3_u32 %s, %s, %s, %s" % (v(t), v(t), v(regs[0]), v(regs[1]))); regs = regs[2:]
    if regs: A("v_max_u32 %s, %s, %s" % (v(t), v(t), v(regs[0])))

def poll_loads(A, issue, regs, t, dly=0, after=None, slp=None):
    lt, lo = A.newlabel("poll"), A.newlabel("pollok")
    if dly: A("s_sleep %d" % dly)
    if after:
        lc = A.newlabel("pollc")
        issue(); tk_ = A.vmn - 1
        after()
        A.wvm(tk_)
        A("s_branch %s" % lc)
        n0 = A.vmn
    A.label(lt)
    issue()
    A("s_waitcnt vmcnt(0)")
    if after:
        A.vmn = n0
        A.label(lc)
    maxchain(A, regs, t)
    A("v_cmp_eq_u32 vcc, -1, %s" % v(t))
    A("s_cbranch_vccz %s" % lo)
    A("s_cmp_eq_u32 %s, 0" % s(sBUD))
    A("s_cbranch_scc1 %s" % lo)
    A("s_sub_u32 %s, %s, 1" % (s(sBUD), s(sBUD)))
    if MASKED: A("s_mov_b64 exec, vcc")
    if slp or SLEEP: A("s_sleep %d" % (slp or SLEEP))
    A("s_branch %s" % lt)
    A.label(lo)
    if MASKED: A("s_mov_b64 exec, -1")

def dma_lane(R, dst, rowstride, t):
    R("v_bfe_u32 %s, v0, 3, 3" % v(t))
    R("s_mov_b32 %s, %d" % (s(sC), rowstride))
    R("v_mul_lo_u32 %s, %s, %s" % (v(dst), v(t), s(sC)))
    R("v_bfe_u32 %s, v0, 4, 1" % v(t))
    R("v_lshlrev_b32 %s, 2, %s" % (v(t), v(t)))
    R("v_and_b32 %s, 7, v0" % v(t + 1))
    R("v_xor_b32 %s, %s, %s" % (v(t), v(t), v(t + 1)))
    R("v_lshl_add_u32 %s, %s, 4, %s" % (v(dst), v(t), v(dst)))

def w1_voffs(R, dst, t):
    dma_lane(R, dst, 32 * 3584, t)
    R("s_lshl_b32 %s, %s, 7" % (s(sC), s(sFT)))
    R("s_or_b32 %s, %s, %s" % (s(sC), s(sC), s(sA1)))
    R("v_add_u32 %s, %s, %s" % (v(dst), s(sC), v(dst)))
    for i in range(1, 4):
        qd, h = i // 2, i % 2
        R("v_add_u32 %s, 0x%x, %s" % (v(dst + i), (512 * qd + 256 * h) * 3584 - ((qd % 2) * 2 + h) * 1024, v(dst)))

def w2_voffs(R, dst, t):
    dma_lane(R, dst, 4096, t)
    R("s_lshl_b32 %s, %s, 7" % (s(sC), s(sST)))
    R("s_or_b32 %s, %s, %s" % (s(sC), s(sC), s(sA2)))
    R("v_add_u32 %s, %s, %s" % (v(dst), s(sC), v(dst)))
    for i in range(1, 4):
        p, h = i // 2, i % 2
        R("v_add_u32 %s, 0x%x, %s" % (v(dst + i), p * 65536 + h * 32768 - (p * 2 + h) * 1024, v(dst)))

def tr_addr(R, dst, rowsel_hi, t, swap16=False):
    R("v_bfe_u32 %s, v0, 2, 2" % v(t))
    R("v_bfe_u32 %s, v0, 5, 1" % v(t + 1))
    R("v_mul_u32_u24 %s, %d, %s" % (v(t + 1), rowsel_hi, v(t + 1)))
    R("v_add_u32 %s, %s, %s" % (v(t + 1), v(t + 1), v(t)))
    R("v_lshlrev_b32 %s, 7, %s" % (v(dst), v(t + 1)))
    R("v_lshrrev_b32 %s, 4, v0" % v(t))
    R("v_xor_b32 %s, %s, v0" % (v(t), v(t)))
    R("v_bfe_u32 %s, %s, 3, 1" % (v(t), v(t)))
    R("v_lshl_add_u32 %s, %s, 6, %s" % (v(dst), v(t), v(dst)))
    if swap16:
        R("v_lshrrev_b32 %s, 2, v0" % v(t))
        R("v_xor_b32 %s, %s, v0" % (v(t), v(t)))
        R("v_bfe_u32 %s, %s, 4, 1" % (v(t), v(t)))
    else:
        R("v_bfe_u32 %s, v0, 4, 1" % v(t))
    R("v_lshl_add_u32 %s, %s, 5, %s" % (v(dst), v(t), v(dst)))
    R("v_and_b32 %s, 3, v0" % v(t))
    R("v_lshl_add_u32 %s, %s, 3, %s" % (v(dst), v(t), v(dst)))
    R("v_add_u32 %s, %s, %s" % (v(dst), s(sRING), v(dst)))
    R("v_xor_b32 %s, 64, %s" % (v(dst + 1), v(dst)))

def dma_chunk(A, which, ks0, n, voff, slot0=0):
    ops = []
    assert ks0 % 2 == 0 and n % 2 == 0
    for p in range(n // 2):
        for k in range(4):
            def op(p=p, k=k):
                if k == 0:
                    npair = n // 2
                    if KROT == 1:
                        A("s_add_u32 m0, %s, %d" % (s(sRING), (slot0 + 2 * p) * 2048))
                        A("s_add_u32 %s, %s, %d" % (s(sT4), s(sSH1 if which == 1 else sSH2), ks0 // 2 + p))
                    else:
                        if p == 0:
                            A("s_mov_b32 %s, %s" % (s(sT6), s(sROT1 if which == 1 else sDT2)))
                            for _ in range((7 // npair)):
                                A("s_cmp_ge_u32 %s, %d" % (s(sT6), npair))
                                A("s_cselect_b32 %s, %d, 0" % (s(sT4), npair))
                                A("s_sub_u32 %s, %s, %s" % (s(sT6), s(sT6), s(sT4)))
                        else:
                            A("s_add_u32 %s, %s, 1" % (s(sT6), s(sT6)))
                            A("s_cmp_eq_u32 %s, %d" % (s(sT6), npair))
                            A("s_cselect_b32 %s, 0, %s" % (s(sT6), s(sT6)))
                        A("s_lshl_b32 %s, %s, 12" % (s(sT4), s(sT6)))
                        A("s_add_u32 %s, %s, %s" % (s(sT4), s(sT4), s(sRING)))
                        A("s_add_u32 m0, %s, %d" % (s(sT4), slot0 * 2048))
                        A("s_add_u32 %s, %s, %d" % (s(sT4), s(sT6), ks0 // 2))
                        if KROT == 5:
                            if which == 2 and ks0 // 2 + npair > 12:
                                A("s_cmp_ge_u32 %s, 12" % s(sT4))
                                A("s_cselect_b32 s3, 1, 3")
                            else:
                                A("s_mov_b32 s3, 3")
                            A("s_add_u32 %s, %s, %s" % (s(sT5), s(sT4), s(sSH1)))
                            A("s_and_b32 %s, %s, s3" % (s(sT5), s(sT5)))
                            A("s_andn2_b32 %s, %s, s3" % (s(sT4), s(sT4)))
                            A("s_or_b32 %s, %s, %s" % (s(sT4), s(sT4), s(sT5)))
                        elif KROT: A("s_add_u32 %s, %s, %s" % (s(sT4), s(sT4), s(sSH1 if which == 1 else sSH2)))
                    if which == 1:
                        A("s_bfe_u32 %s, %s, 0x30001" % (s(sT5), s(sT4)))
                        A("s_bitcmp1_b32 %s, 0" % s(sT4))
                        A("s_cselect_b32 %s, %s, %s" % (s(sT4), s(sWB1 + 1), s(sWB1)))
                        A("s_mul_i32 %s, %s, 3584" % (s(sT5), s(sT5)))
                        A("s_add_u32 %s, %s, %s" % (s(sT5), s(sT5), s(sT4)))
                    else:
                        A("s_cmp_ge_u32 %s, 14" % s(sT4))
                        A("s_cselect_b32 %s, %s, %s" % (s(sT5), s(sWB2 + 1), s(sWB2)))
                        A("s_add_u32 %s, %s, %s" % (s(sT5), s(sT5), s(sT4)))
                        A("s_lshl_b32 %s, %s, 17" % (s(sT5), s(sT5)))
                A.last_dma = A.vm("buffer_load_dwordx4 %s, %s, %s offen offset:%d%s lds" % (v(voff + k), SW1 if which == 1 else SW2, s(sT5), k * 1024, DMAFL))
            ops.append(op)
    return ops

def tr_chunk(A, n, addr, rows, dstfn):
    for i in range(n):
        for tl in range(2):
            for rd in range(2):
                A.ds("ds_read_b64_tr_b16 %s, %s offset:%d" % (dstfn(8 * i + 4 * tl + 2 * rd), v(addr + tl), i * 2048 + rows[rd] * 128))

PW1, PTR1, PW2 = 240, 248, 250

def a1_consts(R):
    R("s_lshr_b32 %s, %s, 3" % (s(sT0), s(sW)))
    R("s_and_b32 %s, %s, 7" % (s(sT1), s(sW)))
    R("s_lshl_b32 %s, %s, 3" % (s(sT1), s(sT1)))
    R("v_lshrrev_b32 v1, 5, v0")
    R("v_add_u32 v1, %s, v1" % s(sT1))
    R("v_lshlrev_b32 v1, 5, v1")
    R("v_add_u32 v1, %s, v1" % s(sT0))
    R("v_mul_u32_u24 v1, 896, v1")
    R("v_and_b32 v2, 31, v0")
    R("v_lshl_add_u32 v1, v2, 2, v1")

def a1_consts2(R):
    TC, TS = 20, 26
    R("v_cvt_f32_u32 v14, v2")
    R("v_mul_f32 v14, %s, v14" % fbits(2.0 / 448))
    R("v_add_f32 v15, %s, v14" % fbits(1.0 / 448))
    for k in range(1, 4):
        if k == 1: a0, a1_ = 14, 15
        else:
            a0, a1_ = 16, 17
            R("v_mul_f32 v16, %s, v14" % fbits(float(k)))
            R("v_mul_f32 v17, %s, v15" % fbits(float(k)))
        R("v_cos_f32 %s, %s" % (v(TC + 2 * (k - 1)), v(a0)))
        R("v_cos_f32 %s, %s" % (v(TC + 2 * (k - 1) + 1), v(a1_)))
        R("v_sin_f32 %s, %s" % (v(TS + 2 * (k - 1)), v(a0)))
        R("v_sin_f32 %s, %s" % (v(TS + 2 * (k - 1) + 1), v(a1_)))
    R("v_lshrrev_b32 v3, 5, v0")
    R("v_mul_u32_u24 v3, %d, v3" % LSTR)
    R("v_lshl_add_u32 v3, v2, 3, v3")
    R("v_add_u32 v3, 0x%x, v3" % SCR)
    R("v_bfe_u32 v13, v0, 4, 2")
    R("v_and_b32 v12, 15, v0")
    R("v_mul_u32_u24 v18, %d, v12" % LSTR)
    R("v_lshl_add_u32 v18, v13, 4, v18")
    R("v_add_u32 v18, 0x%x, v18" % SCR)
    R("v_lshrrev_b32 v19, 1, v13")
    R("v_lshl_add_u32 v19, v19, 6, v12")
    R("v_lshrrev_b32 v14, 6, v0")
    R("v_lshl_add_u32 v19, v14, 4, v19")
    R("v_lshlrev_b32 v19, 5, v19")
    R("v_and_b32 v14, 1, v13")
    R("v_lshl_add_u32 v19, v14, 4, v19")

def a1_compute(A, zout, hook1=lambda: None, hook2=lambda: None):
    XR, TC, TS, Z = 4, 20, 26, 32
    unpack7(A, XR, Z)
    s1, s2 = stats_streams(Z, 46, 60, 4, 5)
    Dq = Rec()
    P, Q = 48, 54
    for t in range(1, 4):
        Dq("v_pk_add_f32 %s, %s, %s" % (v(P + 2 * (t - 1), 2), v(Z + 2 * t, 2), v(Z + 2 * (7 - t), 2)))
        Dq("v_pk_add_f32 %s, %s, %s neg_lo:[0,1] neg_hi:[0,1]" % (v(Q + 2 * (t - 1), 2), v(Z + 2 * t, 2), v(Z + 2 * (7 - t), 2)))
    RE, IM = 64, 70
    for k in range(1, 4):
        Rr, N = 76 + 4 * (k % 2), 78 + 4 * (k % 2)
        for t in range(1, 4):
            Dq("v_pk_fma_f32 %s, %s, %s, %s" % (v(Rr, 2), v(P + 2 * (t - 1), 2), c7(t * k), v(Z, 2) if t == 1 else v(Rr, 2)))
        for t in range(1, 4):
            cs, sg = s7(t * k)
            if t == 1: Dq("v_pk_mul_f32 %s, %s, %s" % (v(N, 2), v(Q, 2), cs))
            else:
                neg = "" if sg == 1 else " neg_lo:[1,0,0] neg_hi:[1,0,0]"
                Dq("v_pk_fma_f32 %s, %s, %s, %s%s" % (v(N, 2), v(Q + 2 * (t - 1), 2), cs, v(N, 2), neg))
        tc, ts = v(TC + 2 * (k - 1), 2), v(TS + 2 * (k - 1), 2)
        re, im = v(RE + 2 * (k - 1), 2), v(IM + 2 * (k - 1), 2)
        Dq("v_pk_mul_f32 %s, %s, %s" % (re, v(N, 2), ts))
        Dq("v_pk_mul_f32 %s, %s, %s" % (im, v(N, 2), tc))
        Dq("v_pk_fma_f32 %s, %s, %s, %s neg_lo:[0,0,1] neg_hi:[0,0,1]" % (re, v(Rr, 2), tc, re))
        Dq("v_pk_fma_f32 %s, %s, %s, %s" % (im, v(Rr, 2), ts, im))
    Dq("v_pk_add_f32 v[6:7], %s, %s" % (v(Z, 2), v(P, 2)))
    Dq("v_pk_add_f32 v[8:9], %s, %s" % (v(P + 2, 2), v(P + 4, 2)))
    Dq("v_pk_add_f32 v[6:7], v[6:7], v[8:9]")
    for l in zipmix(Dq.l, s1, s2): A(l)
    mean_var(A, 46, 60)
    A("v_add_f32 v60, %s, v60" % fbits(1e-5))
    A("v_rsq_f32 v60, v60")
    A("v_mul_f32 v46, %s, v46" % fbits(-7.0))
    A("v_mul_f32 v60, %s, v60" % fbits(1.0 / (448.0 * 2048.0)))
    A("v_pk_add_f32 v[6:7], v[6:7], v[46:47] op_sel_hi:[1,0]")
    for k in range(6):
        A("v_pk_mul_f32 %s, %s, v[60:61] op_sel_hi:[1,0]" % (v(RE + 2 * k, 2), v(RE + 2 * k, 2)))
    A("v_pk_mul_f32 v[6:7], v[6:7], v[60:61] op_sel_hi:[1,0]")
    for k in range(1, 4):
        o = 32 + 2 * k
        A("%s %s, %s, -%s" % (CV, v(o), v(RE + 2 * (k - 1)), v(IM + 2 * (k - 1))))
        A("%s %s, %s, -%s" % (CV, v(o + 1), v(RE + 2 * (k - 1) + 1), v(IM + 2 * (k - 1) + 1)))
        A.ds("ds_write_b64 v3, %s offset:%d" % (v(o, 2), k * 8 * LSTR))
    A("%s v32, v6, 0" % CV)
    A("%s v33, v7, 0" % CV)
    A.ds("ds_write_b64 v3, v[32:33]")
    hook1()
    A("s_lshl_b32 %s, %s, 13" % (s(sT0), s(sW)))
    A("s_add_u32 %s, %s, 0x%x" % (s(sT0), s(sT0), zout))
    A("s_add_u32 %s, %s, 4096" % (s(sT1), s(sT0)))
    A("s_waitcnt lgkmcnt(0)")
    fstamp(A)
    A("s_barrier")
    fstamp(A)
    AF = 64
    tk = []
    for mt in range(2):
        for t in range(4):
            tk.append(A.ds("ds_read_b128 %s, v18 offset:%d" % (v(AF + 16 * mt + 4 * t, 4), mt * 16 * LSTR + 64 * t)))
    DR, DI = 32, 40
    h2 = hook2()
    def fin_(mt):
        for r in range(4):
            A("%s %s, %s, %s" % (CV, v(48 + 4 * mt + r), v(DR + 4 * mt + r), v(DI + 4 * mt + r)))
        A.vm("buffer_store_dwordx4 %s, v19, %s, %s offen sc1" % (v(48 + 4 * mt, 4), SWS, s(sT0 + mt)))
    for mt in range(2):
        for t in range(4):
            A.wds(tk[4 * mt + t])
            A("%s %s, %s, %s, %s" % (M16, v(DR + 4 * mt, 4), v(AF + 16 * mt + 4 * t, 4), v(F64R + 4 * t, 4), "0" if t == 0 else v(DR + 4 * mt, 4)))
            A("%s %s, %s, %s, %s" % (M16, v(DI + 4 * mt, 4), v(AF + 16 * mt + 4 * t, 4), v(F64I + 4 * t, 4), "0" if t == 0 else v(DI + 4 * mt, 4)))
            if mt == 1 and t == 2: fin_(0)
    if h2: h2()
    fin_(1)

F32R, F32I = 128, 144
TW1, TW2, WV = 16, 24, 8
def a2_consts(R):
    R("v_and_b32 v2, 15, v0")
    R("v_bfe_u32 v3, v0, 4, 2")
    R("v_lshrrev_b32 v4, 6, v0")
    R("v_lshrrev_b32 v5, 1, v4")
    R("v_lshl_add_u32 v5, v5, 4, v2")
    R("v_lshlrev_b32 v5, 3, v5")
    R("v_and_b32 v6, 1, v4")
    R("v_lshl_add_u32 v5, v6, 2, v5")
    R("v_lshrrev_b32 v6, 1, v3")
    R("v_add_u32 v5, v5, v6")
    R("v_lshlrev_b32 v5, 13, v5")
    R("v_and_b32 v7, 1, v3")
    R("v_lshl_add_u32 v5, v7, 4, v5")
    R("v_lshl_add_u32 v56, v4, 4, v2")
    R("v_lshl_add_u32 v6, v56, 2, v6")
    R("v_lshlrev_b32 v6, 13, v6")
    R("v_lshl_add_u32 v7, v7, 4, v6")
    R("v_lshlrev_b32 v6, 8, v2")
    R("v_lshl_add_u32 v6, v4, 6, v6")
    R("v_lshl_add_u32 v6, v3, 4, v6")
    R("W_HERE")
    R("v_cvt_f32_u32 v57, v56")
    R("v_cvt_f32_u32 v58, v3")
    R("v_mul_f32 v57, %s, v57" % fbits(1.0 / 2048))
    R("v_mul_f32 v58, 4.0, v58")
    R("v_mul_f32 v59, %s, v57" % fbits(13.0))
    R("v_mul_f32 v58, v58, v57")
    for i in range(8):
        R("v_cos_f32 v60, v58"); R("v_sin_f32 v61, v58")
        if i < 7: R("v_add_f32 v58, v58, %s" % v(57 if i != 3 else 59))
        R("v_cvt_pk_f16_f32 %s, v60, -v61" % v(TW1 + i))
    R("v_lshlrev_b32 v56, 4, v4")
    R("v_lshl_add_u32 v56, v3, 2, v56")
    R("v_cvt_f32_u32 v56, v56")
    R("v_add_u32 v63, 16, v2")
    for nt in range(2):
        R("v_cvt_f32_u32 v57, %s" % v(2 if nt == 0 else 63))
        R("v_mul_f32 v57, %s, v57" % fbits(1.0 / 2048))
        R("v_mul_f32 v58, v56, v57")
        for r in range(4):
            R("v_cos_f32 v60, v58"); R("v_sin_f32 v61, v58")
            if r < 3: R("v_add_f32 v58, v58, v57")
            R("v_cvt_pk_f16_f32 %s, v60, v61" % v(TW2 + 4 * nt + r))

def f32_gen(R, t):
    R("v_and_b32 %s, 15, v0" % v(t + 7))
    R("v_bfe_u32 %s, v0, 4, 2" % v(t + 8))
    R("v_add_u32 %s, 16, %s" % (v(t + 9), v(t + 7)))
    for mt in range(2):
        gen_frags(R, t + 7 + 2 * mt, t + 8, 2, 32, F32R + 8 * mt, F32I + 8 * mt, t)

def cmul_mix(A, ar, ai, tw, t):
    A("v_fma_mix_f32 %s, %s, %s, 0 op_sel:[0,1,0] op_sel_hi:[0,1,0]" % (v(t), v(ai), v(tw)))
    A("v_fma_mix_f32 %s, %s, %s, 0 op_sel:[0,0,0] op_sel_hi:[0,1,0]" % (v(t + 1), v(ai), v(tw)))
    A("v_fma_mix_f32 %s, %s, %s, %s op_sel:[0,1,0] op_sel_hi:[0,1,0]" % (v(ai), v(ar), v(tw), v(t + 1)))
    A("v_fma_mix_f32 %s, %s, %s, -%s op_sel:[0,0,0] op_sel_hi:[0,1,0]" % (v(ar), v(ar), v(tw), v(t)))

def a2_wload(A):
    A("s_lshr_b32 %s, %s, 6" % (s(sT2), s(sW)))
    A("s_lshl_b32 %s, %s, 11" % (s(sT2), s(sT2)))
    A("s_and_b32 %s, %s, 63" % (s(sT3), s(sW)))
    A("s_lshl_b32 %s, %s, 5" % (s(sT3), s(sT3)))
    A("s_add_u32 %s, %s, %s" % (s(sT2), s(sT2), s(sT3)))
    A("s_add_u32 %s, %s, 0x%x" % (s(sT2), s(sT2), WT))
    A("s_add_u32 %s, %s, 16384" % (s(sT3), s(sT2)))
    for mt in range(2):
        A.wtok = A.vm("buffer_load_dwordx4 %s, v7, %s, %s offen sc1" % (v(WV + 4 * mt, 4), SWS, s(sT2 + mt)))

def a2_phase(A, zin, tout, poll, after_loads, post=lambda: None):
    A("s_lshl_b32 %s, %s, 5" % (s(sT0), s(sW)))
    A("s_add_u32 %s, %s, 0x%x" % (s(sT0), s(sT0), zin))
    A("s_add_u32 %s, %s, 16384" % (s(sT1), s(sT0)))
    G = 32
    def issue():
        A.vm("buffer_load_dwordx4 %s, v5, %s, %s offen sc1" % (v(G, 4), SWS, s(sT0)))
        return A.vm("buffer_load_dwordx4 %s, v5, %s, %s offen sc1" % (v(G + 4, 4), SWS, s(sT1)))
    A("v_lshlrev_b32 v62, 4, v0")
    A("v_lshl_add_u32 v62, v4, 10, v62")
    A("v_add_u32 v62, 0x%x, v62" % SCR)
    A("v_and_b32 v63, 63, v0")
    A("v_lshlrev_b32 v63, 4, v63")
    A("v_add_u32 v63, 0x%x, v63" % SCR)
    if poll:
        tw_tok = A.wtok
        poll_loads(A, issue, range(G, G + 8), 56, DLY[1])
    else:
        tz = issue(); a2_wload(A); tw_tok = A.wtok; post(); A.wvm(tz)
    stamp(A)
    A.ds("ds_write_b128 v62, %s" % v(G, 4))
    A.ds("ds_write_b128 v62, %s offset:1024" % v(G + 4, 4))
    after_loads()
    A("s_waitcnt lgkmcnt(0)")
    A("s_barrier")
    fstamp(A)
    DA = 64
    tk = [A.ds("ds_read_b128 %s, v63 offset:%d" % (v(DA + 4 * f, 4), 1024 * f)) for f in range(8)]
    GR, GI, P1, XR, XI, WR_, WI_, HR, HI = 32, 40, 48, 64, 72, 80, 88, 32, 40
    def mm(d, a_, b_, first): return "%s %s, %s, %s, %s" % (M16, v(d, 4), v(a_, 4), v(b_, 4), "0" if first else v(d, 4))
    def weave(ms, vs, lead=0, pre=None):
        n = len(ms) - lead; k = 0
        for i, m_ in enumerate(ms):
            if pre: pre(i)
            A(m_)
            if i >= lead:
                tgt = len(vs) * (i - lead + 1) // n
                while k < tgt:
                    (A.ds if vs[k].startswith("ds_") else A.vm if vs[k].startswith("buffer") else A)(vs[k]); k += 1
            if i % 2: A.bg()
    def tw(rr, ii, twr, dst, idx, tmp, swap):
        R = Rec()
        for i in idx:
            cmul_mix(R, rr + i, ii + i, twr + i, tmp + 2 * (i % 2))
            R("%s %s, %s, %s" % ((CV, v(dst + i), v(ii + i), v(rr + i)) if swap else (CV, v(dst + i), v(rr + i), v(ii + i))))
        return R.l
    def st1(mt): return [mm((GR, GI)[c] + 4 * mt, DA + 16 * mt + 4 * t, (F64R, F64I)[c] + 4 * t, t == 0) for t in range(4) for c in range(2)]
    weave(st1(0), [], pre=lambda i: A.wds(tk[i // 2]) if i % 2 == 0 else None)
    weave(st1(1), tw(GR, GI, TW1, P1, range(4), 56, False), lead=2, pre=lambda i: A.wds(tk[4 + i // 2]) if i % 2 == 0 else None)
    fstamp(A)
    def st2(ks): return [mm((XR, XI)[c] + 4 * mt, (F32R, F32I)[c] + 8 * mt + 4 * ks, P1 + 4 * ks, ks == 0) for mt in range(2) for c in range(2)]
    weave(st2(0), tw(GR, GI, TW1, P1, range(4, 8), 56, False))
    A.wvm(tw_tok)
    un = []
    for i in range(8):
        un += ["v_lshlrev_b32 %s, 16, %s" % (v(WR_ + i), v(WV + i)), "v_and_b32 %s, 0xffff0000, %s" % (v(WI_ + i), v(WV + i))]
    weave(st2(1), un)
    def wm(idx):
        R = Rec()
        for i in idx:
            xr, xi, wr, wi = v(XR + i, 2), v(XI + i, 2), v(WR_ + i, 2), v(WI_ + i, 2)
            t_ = 56 + 4 * ((i // 2) % 2) if False else 56
            R("v_pk_mul_f32 v[56:57], %s, %s" % (xi, wi))
            R("v_pk_mul_f32 v[58:59], %s, %s" % (xi, wr))
            R("v_pk_fma_f32 v[56:57], %s, %s, v[56:57] neg_lo:[0,0,1] neg_hi:[0,0,1]" % (xr, wr))
            R("v_pk_fma_f32 v[58:59], %s, %s, v[58:59]" % (xr, wi))
            R("%s %s, v58, v56" % (CV, v(P1 + i)))
            R("%s %s, v59, v57" % (CV, v(P1 + i + 1)))
        return R.l
    A.st(STM)
    for l_ in wm((0, 2)): A(l_)
    def st3(ks): return [mm((HI, HR)[c] + 4 * nt, P1 + 4 * ks, (F32R, F32I)[c] + 8 * nt + 4 * ks, ks == 0) for nt in range(2) for c in range(2)]
    weave(st3(0), wm((4, 6)))
    weave(st3(1), ["v_lshlrev_b32 v62, 4, v0", "v_add_u32 v62, 0x%x, v62" % (SCR + 8192),
                   "s_lshl_b32 %s, %s, 13" % (s(sT0), s(sW)), "s_add_u32 %s, %s, 0x%x" % (s(sT0), s(sT0), tout), "s_add_u32 %s, %s, 4096" % (s(sT1), s(sT0))])
    A.st(STM)
    for h in range(2):
        for i, l_ in enumerate(tw(HR, HI, TW2, P1, range(4 * h, 4 * h + 4), 64, True)):
            A(l_)
            if i % 5 == 4: A.bg()
        A.ds("ds_write_b128 v62, %s offset:%d" % (v(P1 + 4 * h, 4), 4096 * h))
    A.st(STN)
    if not poll and PZ: A.wvm(A.p1tok)
    A("s_waitcnt lgkmcnt(0)")
    fstamp(A)
    A("s_barrier")
    fstamp(A)
    tk = [A.ds("ds_read_b128 %s, v63 offset:%d" % (v(DA + 4 * f, 4), 8192 + 1024 * f)) for f in range(8)]
    A.st(STN)
    TR, TI = 32, 40
    def st4(nt): return [mm((TI, TR)[c] + 4 * nt, (F64R, F64I)[c] + 4 * t, DA + 16 * nt + 4 * t, t == 0) for t in range(4) for c in range(2)]
    def fin_(nt):
        return ["%s %s, %s, %s" % (CV, v(48 + 4 * nt + r), v(TI + 4 * nt + r), v(TR + 4 * nt + r)) for r in range(4)] + \
               ["buffer_store_dwordx4 %s, v6, %s, %s offen sc1" % (v(48 + 4 * nt, 4), SWS, s(sT0 + nt))]
    weave(st4(0), [], pre=lambda i: A.wds(tk[i // 2]) if i % 2 == 0 else None)
    weave(st4(1), fin_(0), lead=4, pre=lambda i: A.wds(tk[4 + i // 2]) if i % 2 == 0 else None)
    A.st(STM)
    for l_ in fin_(1): (A.vm if l_.startswith("buffer") else A)(l_)
    A.bg_flush()

def a3_consts(R):
    a1_consts(R)
    R("v_lshlrev_b32 v3, 13, v0")
    R("v_lshrrev_b32 v11, 6, v0")
    R("v_and_b32 v12, 15, v0")
    R("v_mul_u32_u24 v15, %d, v12" % LSTR)
    R("v_lshl_add_u32 v12, v11, 4, v12")
    R("v_bfe_u32 v13, v0, 4, 2")
    R("v_lshl_add_u32 v15, v13, 4, v15")
    R("v_add_u32 v15, 0x%x, v15" % SCR)
    R("v_lshrrev_b32 v14, 1, v11")
    R("v_lshlrev_b32 v14, 4, v14")
    R("v_and_b32 v30, 1, v11")
    R("v_lshl_add_u32 v14, v30, 1, v14")
    R("v_mul_u32_u24 v14, %d, v14" % LSTR)
    R("v_and_b32 v30, 63, v0")
    R("v_lshl_add_u32 v14, v30, 2, v14")
    R("v_add_u32 v14, 0x%x, v14" % SCR)
    TW = 24
    R("v_cvt_f32_u32 v30, v12")
    for k in range(1, 4):
        R("v_mul_f32 v31, %s, v30" % fbits(k / 448.0))
        R("v_cos_f32 %s, v31" % v(TW + 2 * (k - 1)))
        R("v_sin_f32 %s, v31" % v(TW + 2 * (k - 1) + 1))
    for k in range(6): R("v_add_f32 %s, %s, %s" % (v(TW + k), v(TW + k), v(TW + k)))
    R("v_mul_u32_u24 v62, %d, v13" % (2 * YSTR))
    R("v_lshl_add_u32 v62, v12, 2, v62")
    R("v_add_u32 v62, 0x%x, v62" % (SCR + A3_Y))
    R("v_lshrrev_b32 v31, 5, v0")
    R("v_mul_u32_u24 v30, %d, v31" % HSTR)
    R("v_lshl_add_u32 v30, v2, 2, v30")
    R("v_add_u32 v30, 0x%x, v30" % (SCR + A3_H))
    R("v_mul_u32_u24 v63, %d, v31" % YSTR)
    R("v_lshl_add_u32 v63, v2, 3, v63")
    R("v_add_u32 v63, 0x%x, v63" % (SCR + A3_Y))
    R("v_bfe_u32 v31, v0, 2, 2")
    R("v_mul_u32_u24 v31, %d, v31" % HSTR)
    R("v_and_b32 v12, 3, v0")
    R("v_lshl_add_u32 v31, v12, 3, v31")
    R("v_lshl_add_u32 v31, v13, 5, v31")
    R("v_lshl_add_u32 v31, v11, 7, v31")
    R("v_add_u32 v31, 0x%x, v31" % (SCR + A3_H))
    R("v_lshlrev_b32 v12, 4, v0")

def a3_phase(A, l, tin, xout, hout, after_loads, post=None):
    XR, TV, TW = 4, 16, 24
    if l == 0:
        for t in range(7): A.vm("global_load_dword %s, v1, %s offset:%d" % (v(XR + t), s(sX, 2), 128 * t))
    else:
        A("s_mov_b32 %s, 0x%x" % (s(sT1), X2))
        for t in range(7): A.vm("buffer_load_dword %s, v1, %s, %s offen offset:%d sc1" % (v(XR + t), SWS, s(sT1), 128 * t))
    A("s_lshl_b32 %s, %s, 5" % (s(sT0), s(sW)))
    A("s_add_u32 %s, %s, 0x%x" % (s(sT0), s(sT0), tin))
    def issue():
        A.vm("buffer_load_dwordx4 %s, v3, %s, %s offen sc1" % (v(TV, 4), SWS, s(sT0)))
        A.vm("buffer_load_dwordx4 %s, v3, %s, %s offen offset:16 sc1" % (v(TV + 4, 4), SWS, s(sT0)))
    poll_loads(A, issue, range(TV, TV + 8), 32, DLY[2] if post is None else 0, post)
    stamp(A)
    for row in range(8):
        A.ds("ds_write_b32 v14, %s offset:%d" % (v(TV + row), (4 * (row // 2) + (row & 1)) * LSTR))
    after_loads()
    A("s_waitcnt lgkmcnt(0)")
    A("s_barrier")
    fstamp(A)
    AF = 64
    tk = []
    for mt in range(2):
        for t in range(4):
            tk.append(A.ds("ds_read_b128 %s, v15 offset:%d" % (v(AF + 16 * mt + 4 * t, 4), mt * 16 * LSTR + 64 * t)))
    DR, DI = 32, 40
    Z = 128
    unpack7(A, XR, Z)
    UR, UI, U0 = 48, 54, DR
    def twk(k):
        tw = v(TW + 2 * (k - 1), 2)
        vr, vi = v(DR + 2 * k, 2), v(DI + 2 * k, 2)
        ur, ui = v(UR + 2 * (k - 1), 2), v(UI + 2 * (k - 1), 2)
        return ["v_pk_mul_f32 %s, %s, %s op_sel:[0,1] op_sel_hi:[1,1]" % (ur, vi, tw),
                "v_pk_mul_f32 %s, %s, %s op_sel:[0,0] op_sel_hi:[1,0]" % (ui, vi, tw),
                "v_pk_fma_f32 %s, %s, %s, %s op_sel:[0,0,0] op_sel_hi:[1,0,1] neg_lo:[0,0,1] neg_hi:[0,0,1]" % (ur, vr, tw, ur),
                "v_pk_fma_f32 %s, %s, %s, %s op_sel:[0,1,0] op_sel_hi:[1,1,1]" % (ui, vr, tw, ui)]
    early = twk(1)
    for t in range(1, 4):
        early.append("v_pk_fma_f32 %s, %s, %s, %s" % (v((16, 20, 68)[t - 1], 2), v(UR, 2), c7(t), v(U0, 2)))
        early.append("v_pk_mul_f32 %s, %s, %s" % (v((18, 22, 70)[t - 1], 2), v(UI, 2), s7(t)[0]))
    early.append("v_pk_add_f32 v[60:61], %s, %s" % (v(U0, 2), v(UR, 2)))
    for mt in range(2):
        for t in range(4):
            A.wds(tk[4 * mt + t])
            A("%s %s, %s, %s, %s" % (M16, v(DI + 4 * mt, 4), v(AF + 16 * mt + 4 * t, 4), v(F64R + 4 * t, 4), "0" if t == 0 else v(DI + 4 * mt, 4)))
            A("%s %s, %s, %s, %s" % (M16, v(DR + 4 * mt, 4), v(AF + 16 * mt + 4 * t, 4), v(F64I + 4 * t, 4), "0" if t == 0 else v(DR + 4 * mt, 4)))
            if mt == 1 and t >= 2:
                for l_ in early[(t - 2) * 4:(t - 1) * 4]: A(l_)
            A.bg()
    for l_ in early[8:]: A(l_)
    A.st(STM)
    for k in (2, 3):
        for l_ in twk(k): A(l_)
        A.bg()
    def ywrite(pair, t):
        A.ds("ds_write_b32 v62, %s offset:%d" % (v(pair), 256 * t))
        A.ds("ds_write_b32 v62, %s offset:%d" % (v(pair + 1), YSTR + 256 * t))
    A("v_pk_add_f32 v[66:67], %s, %s" % (v(UR + 2, 2), v(UR + 4, 2)))
    A("v_pk_add_f32 v[64:65], v[60:61], v[66:67]")
    ywrite(64, 0)
    for t in range(1, 4):
        aa, bb, y1, y2 = (16, 20, 68)[t - 1], (18, 22, 70)[t - 1], 40 + 4 * (t % 2), 42 + 4 * (t % 2)
        for k in range(2, 4):
            A("v_pk_fma_f32 %s, %s, %s, %s" % (v(aa, 2), v(UR + 2 * (k - 1), 2), c7(t * k), v(aa, 2)))
            cs, sg = s7(t * k)
            neg = "" if sg == 1 else " neg_lo:[1,0,0] neg_hi:[1,0,0]"
            A("v_pk_fma_f32 %s, %s, %s, %s%s" % (v(bb, 2), v(UI + 2 * (k - 1), 2), cs, v(bb, 2), neg))
        A("v_pk_add_f32 %s, %s, %s neg_lo:[0,1] neg_hi:[0,1]" % (v(y1, 2), v(aa, 2), v(bb, 2)))
        A("v_pk_add_f32 %s, %s, %s" % (v(y2, 2), v(aa, 2), v(bb, 2)))
        ywrite(y1, t); ywrite(y2, 7 - t)
        A.bg(2)
    A.st(STN)
    A("s_waitcnt lgkmcnt(0)")
    fstamp(A)
    A("s_barrier")
    fstamp(A)
    Y = 64
    tk = [A.ds("ds_read_b64 %s, v63 offset:%d" % (v(Y + 2 * t, 2), 256 * t)) for t in range(7)]
    A.bg(3)
    A.st(STN)
    for t in range(7):
        A.wds(tk[t])
        A("v_pk_add_f32 %s, %s, %s" % (v(Z + 2 * t, 2), v(Z + 2 * t, 2), v(Y + 2 * t, 2)))
    s1, s2 = stats_streams(Z, 46, 48, 50, 51)
    St = ["ds_write_b32 v30, %s offset:%d" % (v(XR + t), 128 * t + XL - A3_H + 65536 if False else 0) for t in range(0)]
    A("v_subrev_u32 v52, %d, v30" % (A3_H - XL))
    A("v_mov_b32 v53, %s" % fbits(1e-10))
    A("s_mov_b32 %s, %s" % (s(sT2), fbits(1.0 + 1e-5)))
    St = []
    for t in range(7):
        St += ["%s %s, %s, %s" % (CV, v(XR + t), v(Z + 2 * t), v(Z + 2 * t + 1)), "ds_write_b32 v52, %s offset:%d" % (v(XR + t), 128 * t)]
    for ln in zipmix(s1, s2, St):
        if ln.startswith("ds_"): A.ds(ln)
        else: A(ln)
    mean_var(A, 46, 48)
    A.st(STM)
    A("v_fma_f32 v48, v48, %s, v53" % s(sT2))
    A("v_rsq_f32 v48, v48")
    A("s_mul_i32 %s, %s, 7168" % (s(sT0), s(sW)))
    A("s_add_u32 %s, %s, 0x%x" % (s(sT0), s(sT0), hout))
    A("v_mul_f32 v46, -v46, v48" if False else "v_mul_f32 v46, v46, v48")
    for t in range(7):
        A("v_pk_fma_f32 %s, %s, v[48:49], v[46:47] op_sel_hi:[1,0,0] neg_lo:[0,0,1] neg_hi:[0,0,1]" % (v(Z + 2 * t, 2), v(Z + 2 * t, 2)))
    for t in range(7):
        A("%s %s, %s, %s" % (CV, v(64 + t), v(Z + 2 * t), v(Z + 2 * t + 1)))
        A.ds("ds_write_b32 v30, %s offset:%d" % (v(64 + t), 128 * t))
    A("s_add_u32 %s, %s, 4096" % (s(sT1), s(sT0)))
    A.st(STN)
    A("s_waitcnt lgkmcnt(0)")
    fstamp(A)
    A("s_barrier")
    fstamp(A)
    A.auto = 0
    A.ds("ds_read_b64_tr_b16 v[20:21], v31")
    A.ds("ds_read_b64_tr_b16 v[22:23], v31 offset:%d" % (4 * HSTR))
    A.ds("ds_read_b64_tr_b16 v[24:25], v31 offset:512")
    A.ds("ds_read_b64_tr_b16 v[26:27], v31 offset:%d" % (4 * HSTR + 512))
    A("v_cmp_gt_u32 vcc, 192, v0")
    A("v_mov_b32 v13, 0x80000000")
    A("v_cndmask_b32 v13, v13, v12, vcc")
    A("v_and_b32 v14, 63, v0")
    A("v_lshlrev_b32 v15, 4, v14")
    A("s_mul_i32 %s, %s, %d" % (s(sT2), s(sWAVE), 2 * HSTR))
    A("s_add_u32 %s, %s, 0x%x" % (s(sT2), s(sT2), SCR + XL))
    A("v_add_u32 v16, %s, v15" % s(sT2))
    A.ds("ds_read_b128 v[32:35], v16")
    A.ds("ds_read_b128 v[36:39], v16 offset:%d" % HSTR)
    A("v_readfirstlane_b32 %s, v1" % s(sT2))
    A("v_mov_b32 v17, 0x80000000")
    A("s_waitcnt lgkmcnt(4)")
    A.vm("buffer_store_dwordx4 v[20:23], v12, %s, %s offen sc1" % (SWS, s(sT0)))
    A("v_cmp_gt_u32 vcc, 56, v14")
    A("s_add_u32 %s, %s, 0x%x" % (s(sT2), s(sT2), xout))
    A("s_add_u32 %s, %s, %d" % (s(sT3), s(sT2), 32 * 896))
    A("v_cndmask_b32 v15, v17, v15, vcc")
    A("s_waitcnt lgkmcnt(2)")
    A.vm("buffer_store_dwordx4 v[24:27], v13, %s, %s offen sc1" % (SWS, s(sT1)))
    A("s_waitcnt lgkmcnt(0)")
    A.vm("buffer_store_dwordx4 v[32:35], v15, %s, %s offen sc1" % (SWS, s(sT2)))
    A.vm("buffer_store_dwordx4 v[36:39], v15, %s, %s offen sc1" % (SWS, s(sT3)))
    A.bg_flush()

ACC, RINGV, WF, RT = 96, 32, 128, 128
DEPTH = int(os.environ.get("DEPTH", 6))
vF1_, vF2_, vTR, vRR, vTW, vTRD, vG0, vG1 = 2, 3, 4, 6, 7, 14, 24, 25
BIAS = 16
NV = 12
TILE = SCR + 24576

def b_consts(R):
    R("v_bfe_u32 v8, v0, 5, 1")
    R("v_mul_u32_u24 v8, 448, v8")
    R("s_lshl_b32 %s, %s, 6" % (s(sC), s(sDT)))
    R("v_add_u32 v8, %s, v8" % s(sC))
    R("v_and_b32 v9, 31, v0")
    R("v_add_lshl_u32 %s, v8, v9, 4" % v(vF1_))
    R("v_lshrrev_b32 %s, 2, v0" % v(vF2_))
    R("v_and_b32 %s, 16, %s" % (v(vF2_), v(vF2_)))
    R("v_xor_b32 v9, v9, %s" % v(vF2_))
    R("v_add_lshl_u32 %s, v8, v9, 4" % v(vF2_))
    R("v_and_b32 v8, 63, v0")
    R("v_lshlrev_b32 v8, 4, v8")
    R("v_add_u32 %s, 0x%x, v8" % (v(vRR), SCR))

def red_addr(A):
    for x in range(4):
        A("s_xor_b32 %s, %s, %d" % (s(sC), s(sWAVE), x))
        A("s_mul_i32 %s, %s, 6144" % (s(sC), s(sC)))
        A("v_add_u32 %s, %s, %s" % (v(10 + x), s(sC), v(vRR)))

def b_all(A, l, hin, uout, xin, first, tail1, skip_pre, vW2):
    cold = []
    sH, sU = sT0, sT1
    seq = [(0, p, q) for p in range(2) for q in range(16)] + [(1, p, q) for p in range(2) for q in range(14)]
    N1 = 32
    tok = {}
    def ld(i, track=True):
        g, p, q = seq[i]
        r = RINGV + 8 * (i % 8)
        emit_ = A.vm if track else A
        for h in range(2):
            A("s_add_u32 %s, %s, %d" % (s(sEND), s((sH, sU)[g]), (2 * q + h) * 14336))
            t_ = emit_("buffer_load_dwordx4 %s, %s, %s, %s offen offset:%d sc1" % (v(r + 4 * h, 4), v((vF1_, vF2_)[g]), SWS, s(sEND), 512 * p))
        return t_
    def branch(i):
        lr, lb = A.newlabel("rty"), A.newlabel("bk")
        A("s_cbranch_vccnz %s" % lr)
        A.label(lb)
        cold.append((lr, lb, i))
    accb = lambda p: (96, 128)[p]
    wfb = lambda p: (128, 96)[p]
    def wop(g, p, ks, wt):
        if g == 0: return a(8 * ks + 4 * wt, 4)
        if ks < NV: return v(W2V + 8 * ks + 4 * wt, 4)
        return v(wfb(p) + 16 * ((ks // 2) % 2) + 8 * (ks % 2) + 4 * wt, 4)
    def wreads(i):
        g, p, q = seq[i]
        if g == 0 or 2 * q < NV: return []
        return ["ds_read_b64_tr_b16 %s, %s offset:%d" % (v(wfb(p) + 16 * (q % 2) + 8 * h + 4 * tl + 2 * rd, 2), v(vTR + tl), (2 * q + h - NV) * 2048 + (0, 8)[rd] * 128)
                for h in range(2) for tl in range(2) for rd in range(2)]
    c0 = -2.0 * math.sqrt(2.0 / math.pi) * math.log2(math.e)
    skip1, skip2, b2e = A.newlabel("b1skip"), A.newlabel("b2skip"), A.newlabel("b2e")
    A("s_mul_i32 %s, %s, %d" % (s(sH), s(sWAVE), 32 * 14336))
    A("s_add_u32 %s, %s, 0x%x" % (s(sH), s(sH), hin))
    A("s_mul_i32 %s, %s, %d" % (s(sU), s(sWAVE), 28 * 14336))
    A("s_add_u32 %s, %s, 0x%x" % (s(sU), s(sU), uout))
    A("s_lshr_b32 %s, %s, 1" % (s(sT2), s(sWAVE)))
    A("s_lshl_b32 %s, %s, 5" % (s(sT2), s(sT2)))
    A("s_lshl_b32 %s, %s, 6" % (s(sT3), s(sST)))
    A("s_add_u32 %s, %s, %s" % (s(sT2), s(sT2), s(sT3)))
    A("v_and_b32 v9, 31, v0")
    A("v_add_lshl_u32 v9, v9, %s, 1" % s(sT2))
    A("v_and_b32 v9, 0xfff, v9")
    A.vm("global_load_ushort v26, v9, %s" % s(sB2, 2))
    A("s_cmp_lg_u32 %s, 0" % s(sA1))
    A("s_cbranch_scc1 %s" % skip1)
    A("s_lshl_b32 %s, %s, 5" % (s(sT2), s(sWAVE)))
    A("s_lshl_b32 %s, %s, 7" % (s(sT3), s(sFT)))
    A("s_add_u32 %s, %s, %s" % (s(sT2), s(sT2), s(sT3)))
    A("v_bfe_u32 v9, v0, 5, 1")
    A("v_lshlrev_b32 v9, 3, v9")
    A("v_add_u32 v9, %s, v9" % s(sT2))
    A.vm("global_load_dwordx2 v[28:29], v9, %s" % s(sB1, 2))
    btok = A.vm("global_load_dwordx2 v[30:31], v9, %s offset:16" % s(sB1, 2))
    A("s_lshl_b32 s44, %s, 2" % s(sFT))
    A("s_add_u32 s44, s44, %s" % s(sWAVE))
    A("s_mul_i32 s44, s44, 14336")
    A("s_add_u32 s44, s44, 0x%x" % uout)
    A("s_mov_b32 s42, %s" % fbits(c0 * 0.044715))
    A("s_mov_b32 s43, s42")
    if DLY[3] and l == 1: A("s_sleep %d" % DLY[3])
    for i in range(DEPTH): tok[i] = ld(i)
    A.wvm(btok)
    for k in range(4):
        A("v_lshlrev_b32 %s, 16, %s" % (v(BIAS + 2 * k), v(28 + k)))
        A("v_and_b32 %s, 0xffff0000, %s" % (v(BIAS + 2 * k + 1), v(28 + k)))
    A("v_mov_b32 v27, %s" % fbits(c0))
    def acc_init(g, p):
        out = []
        for k in range(8):
            out.append("v_mov_b32 %s, %s" % (v(accb(p) + k), v(BIAS + k)) if g == 0 else "v_lshlrev_b32 %s, 16, v26" % v(accb(p) + k))
            out.append("v_mov_b32 %s, 0" % v(accb(p) + 8 + k))
        return out
    for l_ in acc_init(0, 0): A(l_)
    def epilogue(g, p, mid=None):
        R = accb(p); T = R + 8; E = []; tk = {}
        for x in (2, 3, 1):
            for gg in range(2):
                E.append("ds_write_b128 %s, %s offset:%d" % (v(10 + x), v(R + 8 * x + 4 * gg, 4), (x - 1) * 2048 + gg * 1024))
        E.append("BREAK")
        E.append("s_waitcnt lgkmcnt(0)")
        if mid: E.append(mid)
        E.append("s_barrier")
        for k in range(6):
            E.append(lambda k=k: tk.__setitem__(k, A.ds("ds_read_b128 %s, v10 offset:%d" % (v(T + 4 * k, 4), k * 1024))))
        E.append("BREAK")
        for x in range(3):
            E.append(lambda x=x: A.wds(tk[2 * x + 1]))
            for k in range(0, 8, 2): E.append("v_pk_add_f32 %s, %s, %s" % (v(R + k, 2), v(R + k, 2), v(T + 8 * x + k, 2)))
        if g == 0:
            for k in range(0, 8, 2): E.append("v_pk_mul_f32 %s, %s, %s" % (v(T + k, 2), v(R + k, 2), v(R + k, 2)))
            for k in range(0, 8, 2): E.append("v_pk_fma_f32 %s, %s, s[42:43], v[26:27] op_sel:[0,0,1] op_sel_hi:[1,1,1]" % (v(T + k, 2), v(T + k, 2)))
            for k in range(0, 8, 2): E.append("v_pk_mul_f32 %s, %s, %s" % (v(T + k, 2), v(T + k, 2), v(R + k, 2)))
            for k in range(8): E.append("v_exp_f32 %s, %s" % (v(T + k), v(T + k)))
            for k in range(0, 8, 2): E.append("v_pk_add_f32 %s, %s, 1.0 op_sel_hi:[1,0]" % (v(T + k, 2), v(T + k, 2)))
            for k in range(8): E.append("v_rcp_f32 %s, %s" % (v(T + k), v(T + k)))
            for k in range(0, 8, 2): E.append("v_pk_mul_f32 %s, %s, %s" % (v(R + k, 2), v(R + k, 2), v(T + k, 2)))
            for k in range(4): E.append("%s %s, %s, %s" % (CV, v(T + 8 + k), v(R + 2 * k), v(R + 2 * k + 1)))
            E.append("buffer_store_dwordx4 %s, %s, %s, s44 offen offset:%d sc1" % (v(T + 8, 4), v(vF1_), SWS, 512 * p))
        else:
            for k in range(4): E.append("%s %s, %s, %s" % (CV, v(T + k), v(R + 2 * k), v(R + 2 * k + 1)))
            E.append("v_xor_b32 v15, %d, %s" % (64 * p, v(vTW)))
            E.append("ds_write_b64 v15, %s" % v(T, 2))
            E.append("v_xor_b32 v15, %d, %s" % (64 * p + 16, v(vTW)))
            E.append("ds_write_b64 v15, %s" % v(T + 2, 2))
        return E
    eq = []
    def erun(n):
        while eq and n > 0:
            it = eq.pop(0)
            if it == "BREAK":
                if n < 90: return
                A.bg(EBG); continue
            if callable(it): it()
            elif it.startswith("ds_"): A.ds(it)
            elif it.startswith("buffer"): A.vm(it)
            else: A(it)
            n -= 2 if (isinstance(it, str) and ("exp" in it or "rcp" in it)) else 1
    A.wvm(tok[0])
    maxchain(A, range(RINGV, RINGV + 8), 8)
    A("v_cmp_eq_u32 vcc, -1, v8")
    branch(0)
    stamp(A)
    first()
    XV = 64 + 0
    def xissue(track=True):
        e_ = A.vm if track else A
        e_("buffer_load_dwordx4 %s, %s, %s, %s offen sc1" % (v(A.XV, 4), v(vG0), SWS, s(sT2)))
        return e_("buffer_load_dwordx4 %s, %s, %s, %s offen sc1" % (v(A.XV + 4, 4), v(vG1), SWS, s(sT2)))
    for i, (g, p, q) in enumerate(seq):
        nq = (16, 14)[g]
        if i == N1:
            A.label(b2e)
            stamp(A)
        r = RINGV + 8 * (i % 8); rn = RINGV + 8 * ((i + 1) % 8)
        more = i + 1 < len(seq)
        wr = wreads(i + 1) if more else []
        def mf(h, wt):
            acc = v(accb(p) + 16 * wt, 16)
            wreg = wop(g, p, 2 * q + h, wt); freg = v(r + 4 * h, 4)
            AA, BB = (wreg, freg) if g == 0 else (freg, wreg)
            A("%s %s, %s, %s, %s" % (M32, acc, AA, BB, "0" if (q == 0 and h == 0 and wt == 1) else acc))
        mf(0, 1)
        lateb = LATEB and N1 - DEPTH <= i < N1
        if i + DEPTH < len(seq) and not lateb and (i + DEPTH) not in tok: tok[i + DEPTH] = ld(i + DEPTH)
        elif BOOST == 2 and i + 7 < len(seq) and (i + 7) not in tok and not lateb and i > 8 and q < 8: tok[i + 7] = ld(i + 7)
        chk = more and not (LATEB and i == N1 - 1)
        if i + DEPTH == len(seq):
            A.XV = RINGV + 8 * ((i - 1) % 8)
            A("s_mov_b32 %s, 0x%x" % (s(sT2), xin))
            A.xt = xissue()
            if l == 0:
                PV = RINGV + 8 * ((i - 2) % 8)
                A.bgq = poison_ops(A, [T1, H1, U1, X3], PV + 4, PV)
        if l == 0 and wr and i == N1 + NV // 2 - 1: A.wvm(A.last_dma)
        for t_ in wr[:3]: A.ds(t_)
        mf(0, 0)
        erun(EN[0])
        for t_ in wr[3:6]: A.ds(t_)
        if chk:
            A.wvm(tok[i + 1])
            A("v_max3_u32 v8, %s, %s, %s" % (v(rn), v(rn + 1), v(rn + 2)))
            A("v_max3_u32 v9, %s, %s, %s" % (v(rn + 3), v(rn + 4), v(rn + 5)))
        mf(1, 1)
        erun(EN[1])
        for t_ in wr[6:]: wtok = A.ds(t_)
        if q == 4: assert not eq or OVL == 0 or g == 0, eq
        if chk:
            A("v_max3_u32 v8, v8, %s, %s" % (v(rn + 6), v(rn + 7)))
            A("v_max_u32 v8, v8, v9")
            A("v_cmp_eq_u32 vcc, -1, v8")
        mf(1, 0)
        if chk: branch(i + 1)
        if LATEB and i == N1 - 1:
            for k_ in range(N1, N1 + DEPTH): tok[k_] = ld(k_)
        if i == N1 - T1AT: tail1()
        erun(EN[2])
        if (p == 1 and q == 9) or (g == 1 and p == 0 and q == 3):
            assert not eq
            A("s_barrier")
        if q == nq - 1 and more:
            for l_ in acc_init(seq[i + 1][0], seq[i + 1][1]): A(l_)
        A.bg(T1N if (i >= N1 - T1AT and i < N1) else 2 if i + DEPTH >= len(seq) else 1)
        if wr: A.wds(wtok)
        if i == 13: red_addr(A)
        if i == N1 + 8:
            A("v_lshrrev_b32 v15, 6, v0")
            A("v_bfe_u32 v9, v0, 3, 3")
            A("v_lshl_add_u32 v9, v15, 4, v9")
            A("s_lshl_b32 %s, %s, 6" % (s(sT3), s(sST)))
            A("v_add_u32 %s, %s, v9" % (v(vG0), s(sT3)))
            A("v_mul_u32_u24 %s, 896, %s" % (v(vG0), v(vG0)))
            A("v_and_b32 v15, 7, v0")
            A("v_lshl_add_u32 %s, v15, 4, %s" % (v(vG0), v(vG0)))
            A("s_lshl_b32 %s, %s, 7" % (s(sT3), s(sDT)))
            A("v_add_u32 %s, %s, %s" % (v(vG0), s(sT3), v(vG0)))
            A("v_add_u32 %s, %d, %s" % (v(vG1), 8 * 896, v(vG0)))
            A("v_xor_b32 v15, v15, v9")
            A("v_and_b32 v15, 7, v15")
            A("v_lshlrev_b32 %s, 7, v9" % v(vTRD))
            A("v_lshl_add_u32 %s, v15, 4, %s" % (v(vTRD), v(vTRD)))
            A("v_add_u32 %s, 0x%x, %s" % (v(vTRD), TILE, v(vTRD)))
        if i == N1 + 9:
            A("v_bfe_u32 v9, v0, 7, 1")
            A("v_lshlrev_b32 v9, 5, v9")
            A("v_and_b32 v15, 31, v0")
            A("v_add_u32 v9, v9, v15")
            A("v_bfe_u32 v15, v0, 6, 1")
            A("v_lshlrev_b32 v15, 1, v15")
            A("v_xor_b32 v15, v15, v9")
            A("v_and_b32 v15, 7, v15")
            A("v_lshlrev_b32 %s, 7, v9" % v(vTW))
            A("v_lshl_add_u32 %s, v15, 4, %s" % (v(vTW), v(vTW)))
            A("v_bfe_u32 v15, v0, 5, 1")
            A("v_lshl_add_u32 %s, v15, 3, %s" % (v(vTW), v(vTW)))
            A("v_add_u32 %s, 0x%x, %s" % (v(vTW), TILE, v(vTW)))
        if q == nq - 1:
            last = not more
            if p == 1: stamp(A)
            XU = 96
            def xcheck():
                lo, lt = A.newlabel("xok"), A.newlabel("xrty")
                A.wvm(A.xt)
                A.label(lt)
                maxchain(A, range(A.XV, A.XV + 8), 8)
                A("v_cmp_eq_u32 vcc, -1, v8")
                A("s_cbranch_vccz %s" % lo)
                A("s_cmp_eq_u32 %s, 0" % s(sBUD))
                A("s_cbranch_scc1 %s" % lo)
                A("s_sub_u32 %s, %s, 1" % (s(sBUD), s(sBUD)))
                xissue(False)
                A("s_waitcnt vmcnt(0)")
                A("s_branch %s" % lt)
                A.label(lo)
                for k in range(8):
                    A("v_lshlrev_b32 %s, 16, %s" % (v(XU + 2 * k), v(A.XV + k)))
                    A("v_and_b32 %s, 0xffff0000, %s" % (v(XU + 2 * k + 1), v(A.XV + k)))
            if last and l == 1: srd(A, 24, sOUT, S * D * 2)
            if BOOST and more and not (LATEB and i == N1 - 1) and (BOOSTB1 or i != N1 - 1):
                for k_ in range(i + DEPTH + 1, i + 9): tok[k_] = ld(k_)
            eq += epilogue(g, p, xcheck if last else None)
            if p == 1 or not (OVL >> g) & 1:
                erun(1000)
                if g == 0 and p == 1:
                    A.bg_flush()
                    stamp(A)
                    if LATEB:
                        A.wvm(tok[N1])
                        maxchain(A, range(rn, rn + 8), 8)
                        A("v_cmp_eq_u32 vcc, -1, v8")
                        branch(N1)
    dst = (SWS, s(sT2), " sc1") if l == 0 else (SW1, "0", OUTFL)
    if l == 0: A("s_mov_b32 %s, 0x%x" % (s(sT2), X2))
    A("s_waitcnt lgkmcnt(0)")
    A("s_barrier")
    t0 = A.ds("ds_read_b128 v[48:51], %s" % v(vTRD))
    t1 = A.ds("ds_read_b128 v[52:55], %s offset:1024" % v(vTRD))
    XU = 96
    for j in range(2):
        A.wds((t0, t1)[j])
        for k in range(4 * j, 4 * j + 4):
            A("v_lshlrev_b32 %s, 16, %s" % (v(32 + 2 * k), v(48 + k)))
            A("v_and_b32 %s, 0xffff0000, %s" % (v(32 + 2 * k + 1), v(48 + k)))
        for k in range(4 * j, 4 * j + 4):
            A("v_pk_add_f32 %s, %s, %s" % (v(XU + 2 * k, 2), v(XU + 2 * k, 2), v(32 + 2 * k, 2)))
        for k in range(4 * j, 4 * j + 4):
            A("%s %s, %s, %s" % (CV, v(56 + k), v(XU + 2 * k), v(XU + 2 * k + 1)))
        A.vm("buffer_store_dwordx4 %s, %s, %s, %s offen%s" % (v(56 + 4 * j, 4), v(vG0 + j), dst[0], dst[1], dst[2]))
    A.bg_flush()
    done = A.newlabel("bdone")
    def emit_cold():
        A.label(skip1)
        skip_pre()
        A("s_cmp_lg_u32 %s, 0" % s(sA2))
        A("s_cbranch_scc1 %s" % skip2)
        red_addr(A)
        r0 = RINGV + 8 * (N1 % 8)
        poll_loads(A, lambda: ld(N1, False), range(r0, r0 + 8), 8, 32, None, 8)
        for i in range(N1 + 1, N1 + DEPTH): ld(i, False)
        for l_ in acc_init(1, 0): A(l_)
        A("s_waitcnt vmcnt(0)")
        A("s_branch %s" % b2e)
        A.label(skip2)
        A("s_waitcnt vmcnt(0)")
        if l == 0: poison_list(A, [T1, H1, U1, X3], 32)
        A("s_branch %s" % done)
        for lr, lb, i in cold:
            A.label(lr)
            A("s_cmp_eq_u32 %s, 0" % s(sBUD))
            A("s_cbranch_scc1 %s" % lb)
            A("s_sub_u32 %s, %s, 1" % (s(sBUD), s(sBUD)))
            if SLEEP: A("s_sleep %d" % SLEEP)
            last_ = (DEPTH if i == 0 else min(i + DEPTH, len(seq))) if (i < RALL or i in (N1, N1 + 1, N1 + 14, N1 + 15)) else i + 1
            for k2 in range(i, last_): ld(k2, False)
            A("s_waitcnt vmcnt(0)")
            r = RINGV + 8 * (i % 8)
            maxchain(A, range(r, r + 8), 8)
            A("v_cmp_eq_u32 vcc, -1, v8")
            A("s_cbranch_vccnz %s" % lr)
            A("s_branch %s" % lb)
    A.label(done)
    return emit_cold

def srd(A, d, base, nbytes):
    A("s_mov_b32 %s, %s" % (s(d), s(base)))
    A("s_and_b32 %s, %s, 0xffff" % (s(d + 1), s(base + 1)))
    if isinstance(nbytes, int): A("s_mov_b32 %s, 0x%x" % (s(d + 2), nbytes))
    else: A("s_mov_b32 %s, %s" % (s(d + 2), nbytes))
    A("s_mov_b32 %s, 0x20000" % s(d + 3))

def build():
    A = Asm2()
    KN = NAME + "_kernel"
    def emit(R):
        for l_ in R.l: A(l_)
    A.label(KN)
    A("s_cmp_ge_u32 s2, 256")
    A("s_cbranch_scc1 L_exit")
    A("s_load_dwordx2 %s, s[0:1], 0" % s(sX, 2))
    A("s_getpc_b64 s[36:37]")
    A.label("L_pc")
    A("v_lshlrev_b32 v150, 5, v0")
    A.vm("global_load_dword v151, v150, s[36:37]" + NT)
    A("s_load_dwordx2 %s, s[0:1], 80" % s(sWS, 2))
    A("s_load_dwordx8 %s, s[0:1], 32" % s(sW1, 8))
    A("s_load_dwordx4 %s, s[0:1], 8" % s(sWR, 4))
    A("s_load_dwordx4 %s, s[0:1], 64" % s(sOUT, 4))
    if DIAG >= 0: A("s_memrealtime s[94:95]" if DIAG != 100 else "s_memtime s[94:95]")
    if PROF:
        for i in range(32): A("s_mov_b32 %s, 0" % s(66 + i))
        A("s_memrealtime s[64:65]")
    A("s_and_b32 %s, s2, 7" % s(sT0))
    A("s_lshr_b32 %s, s2, 3" % s(sT1))
    A("s_lshl_b32 %s, %s, 5" % (s(sW), s(sT0)))
    A("s_add_u32 %s, %s, %s" % (s(sW), s(sW), s(sT1)))
    a1_consts(A)
    A("v_lshrrev_b32 v3, 6, v0")
    A("v_readfirstlane_b32 %s, v3" % s(sWAVE))
    A("s_and_b32 s37, s37, 0xffff")
    A("s_mov_b32 s38, L_code_end-L_pc")
    A("s_mov_b32 s39, 0x20000")
    A("s_lshl_b32 s40, s2, 9")
    A("s_and_b32 s40, s40, 0x1f000")
    A("v_lshlrev_b32 v150, 4, v0")
    A("s_mov_b32 s34, 0x%x" % WS_BYTES)
    A("s_mov_b32 s35, 0x20000")
    A("s_mov_b32 s26, 0x%x" % (S * F * 2))
    A("s_mov_b32 s27, 0x20000")
    A("s_and_b32 s56, s2, 7")
    A("s_lshr_b32 s57, s2, 3")
    A("s_lshl_b32 s58, s57, 2")
    A("s_add_u32 s58, s58, %s" % s(sWAVE))
    A("v_bfe_u32 v152, v0, 5, 1")
    A("v_and_b32 v153, 31, v0")
    A("v_lshlrev_b32 v153, 4, v153")
    A("s_lshl_b32 s59, s56, 9")
    A("v_add_u32 v153, s59, v153")
    A("v_lshl_add_u32 v254, v152, 12, v153")
    A("v_mul_u32_u24 v152, 3584, v152")
    A("v_add_u32 v152, v152, v153")
    A("s_mul_i32 s41, s58, %d" % (16 * 3584))
    A("s_cmp_eq_u32 s56, 7")
    A("s_cselect_b32 s41, 0x80000000, s41")
    A("v_add_u32 v152, s41, v152")
    A("s_mul_i32 s59, s58, %d" % (14 * 4096))
    A("v_add_u32 v254, s59, v254")
    A("s_waitcnt lgkmcnt(0)")
    if PROF:
        A("s_mov_b32 s66, s64"); nstamp[0] = 1
    A("s_mov_b32 s32, %s" % s(sWS))
    A("s_and_b32 s33, %s, 0xffff" % s(sWS + 1))
    if NCNT:
        lz, lz2 = A.newlabel("nz"), A.newlabel("nz")
        A("s_lshl_b32 %s, s2, 2" % s(sT5))
        A("s_or_b32 %s, %s, %s" % (s(sT5), s(sT5), s(sWAVE)))
        A("s_cmp_lg_u32 %s, 0" % s(sT5))
        A("s_cbranch_scc1 %s" % lz)
        A("v_lshlrev_b32 v12, 7, v0")
        A("v_mov_b32 v13, 0")
        A("s_mov_b32 %s, 0x%x" % (s(sT5), CNT))
        A("buffer_store_dword v13, v12, %s, %s offen sc1" % (SWS, s(sT5)))
        A.label(lz)
        zmark = A.vmn
    for t in range(7): tx = A.vm("global_load_dword %s, v1, %s offset:%d%s" % (v(4 + t), s(sX, 2), 128 * t, NT))
    A.vm("buffer_load_dword v151, v150, s[36:39], s40 offen" + NT)
    A("s_mov_b32 s24, %s" % s(sW1))
    A("s_and_b32 s25, %s, 0xffff" % s(sW1 + 1))
    A("s_mov_b32 s41, 0")
    srd(A, 28, sW2, S * F * 2)
    A("v_mov_b32 v255, v152")
    def wu1(idx, sr):
        for i in idx:
            A("s_mov_b32 %s, %d" % (s(sr), 7168 * i))
            A.vm("buffer_load_dwordx4 v[160:163], v255, %s, %s offen" % (SW1, s(sr)))
    if WU1POS == 0: wu1({1: range(8), 3: (0, 1, 4, 5), 4: (0, 1, 4, 5)}.get(WU1, ()), 41)
    def wu2(i):
        def f():
            A.vm("buffer_load_dwordx4 v[160:163], v254, %s, 0 offen" % SW2)
            A("v_add_u32 v254, 8192, v254")
        return f
    if XP: stamp(A)
    A("s_and_b32 s42, s2, 63")
    A("s_lshr_b32 s43, s2, 6")
    A("v_and_b32 v146, 63, v0")
    A("v_mul_u32_u24 v140, 14, v146")
    A("v_sub_u32 v141, %d, v140" % (445 * 2))
    A("v_cmp_lt_u32 %s, 31, v146" % s(sT5, 2))
    A("s_lshl_b32 s44, s43, 2")
    A("s_add_u32 s44, s44, %s" % s(sWAVE))
    A("v_cndmask_b32 v140, v140, v141, %s" % s(sT5, 2))
    A("s_lshl_b32 s44, s44, 7")
    A("s_add_u32 s44, s44, s42")
    A("v_mov_b32 v142, 1")
    A("v_cndmask_b32 v141, v142, -1, %s" % s(sT5, 2))
    A("s_movk_i32 s45, 450")
    for e in range(2):
        A("v_mul_i32_i24 %s, s44, v141" % v(147 + e))
        A("s_mul_i32 s3, s44, 450")
        A("v_and_b32 %s, 0x7ff, %s" % (v(147 + e), v(147 + e)))
        A("s_add_u32 s3, s3, 448")
        A("v_mad_u32_u24 %s, %s, s45, v140" % (v(147 + e), v(147 + e)))
        A("v_mov_b32 %s, s3" % v(149 + e))
        if e == 0: A("s_add_u32 s44, s44, 64")
    A("v_mov_b32 v140, 0x05040100")
    A("v_mov_b32 v141, 0x07060302")
    A("v_cndmask_b32 v142, v140, v141, %s" % s(sT5, 2))
    A("v_cndmask_b32 v143, v141, v140, %s" % s(sT5, 2))
    A("v_mov_b32 v140, 0x80000000")
    A("v_cndmask_b32 v144, 0, v140, %s" % s(sT5, 2))
    A("s_lshl_b32 s42, s42, 2")
    A("s_add_u32 s42, s42, s43")
    A("s_lshl_b32 s42, s42, 2")
    A("s_add_u32 s42, s42, %s" % s(sWAVE))
    A("s_lshl_b32 s42, s42, 11")
    A("s_add_u32 s3, s42, 0x%x" % WT)
    A("v_lshlrev_b32 v145, 4, v146")
    for e in range(2):
        A.vm("global_load_dwordx2 %s, %s, %s%s" % (v(128 + 4 * e, 2), v(147 + e), s(sWR, 2), NT))
        A.vm("global_load_dwordx2 %s, %s, %s%s" % (v(130 + 4 * e, 2), v(147 + e), s(sWI, 2), NT))
        A.vm("global_load_ushort %s, %s, %s%s" % (v(136 + 2 * e), v(149 + e), s(sWR, 2), NT))
        twp = A.vm("global_load_ushort %s, %s, %s%s" % (v(137 + 2 * e), v(149 + e), s(sWI, 2), NT))
    if WU2_AT == "start":
        for i in range(7): wu2(i)()
    if WU1POS == 1: wu1({1: range(8), 3: (0, 1, 4, 5), 4: (0, 1, 4, 5)}.get(WU1, ()), 41)
    poison_list(A, [T0], 154)
    if NCNT:
        A("s_lshl_b32 %s, s2, 2" % s(sT5))
        A("s_or_b32 %s, %s, %s" % (s(sT5), s(sT5), s(sWAVE)))
        A("s_cmp_lg_u32 %s, 0" % s(sT5))
        A("s_cbranch_scc1 %s" % lz2)
        A("v_mov_b32 v62, 0")
        A("v_mov_b32 v63, 1")
        A("s_waitcnt vmcnt(%d)" % (A.vmn - zmark))
        A("global_store_dword v62, v63, %s sc1" % s(sDBG, 2))
        A.label(lz2)
    stamp(A)
    if DW == 64:
        A("s_mul_i32 %s, s57, 37" % s(sT2))
        A("s_lshr_b32 %s, %s, 8" % (s(sT2), s(sT2)))
        A("s_mul_i32 %s, %s, 7" % (s(sDT2), s(sT2)))
        A("s_sub_u32 %s, s57, %s" % (s(sDT2), s(sDT2)))
        A("s_cmp_lt_u32 s57, 28")
        A("s_cselect_b32 %s, 0, 0x80000000" % s(sA2))
    else:
        A("s_lshr_b32 %s, s57, 3" % s(sT2))
        A("s_and_b32 %s, s57, 7" % s(sDT2))
        A("s_mov_b32 %s, 0" % s(sA2))
    A("s_lshl_b32 %s, s56, 2" % s(sST))
    A("s_add_u32 %s, %s, %s" % (s(sST), s(sST), s(sT2)))
    if MAP1 == "x":
        A("s_mov_b32 %s, %s" % (s(sFT), s(sST)))
        A("s_mov_b32 %s, %s" % (s(sDT), s(sDT2)))
        A("s_mov_b32 %s, %s" % (s(sROT1), s(sDT2)))
        A("s_cmp_lt_u32 s56, 7")
        A("s_cselect_b32 %s, %s, 0x80000000" % (s(sA1), s(sA2)))
    else:
        A("s_and_b32 %s, s56, 1" % s(sDT))
        A("s_lshl_b32 %s, %s, 2" % (s(sDT), s(sDT)))
        A("s_and_b32 %s, s57, 3" % s(sT2))
        A("s_add_u32 %s, %s, %s" % (s(sDT), s(sDT), s(sT2)))
        A("s_lshl_b32 %s, %s, 1" % (s(sROT1), s(sT2)))
        A("s_lshr_b32 s56, s56, 1")
        A("s_lshr_b32 s57, s57, 2")
        A("s_mul_i32 %s, s56, 7" % s(sFT))
        A("s_add_u32 %s, %s, s57" % (s(sFT), s(sFT)))
        A("s_cmp_lt_u32 %s, %d" % (s(sDT), 448 // DW))
        A("s_cselect_b32 %s, 0, 0x80000000" % s(sA1))
        A("s_mov_b32 %s, %s" % (s(sA2), s(sA1)))
        A("s_cmp_lt_u32 s57, 7")
        A("s_cselect_b32 %s, %s, 0x80000000" % (s(sA1), s(sA1)))
        A("s_lshl_b32 %s, s56, 3" % s(sST))
        A("s_add_u32 %s, %s, s57" % (s(sST), s(sST)))
        A("s_mov_b32 %s, %s" % (s(sDT2), s(sROT1)))
    A("s_lshl_b32 %s, %s, 1" % (s(sSH1), s(sDT)))
    A("s_mov_b32 %s, %s" % (s(sSH2), s(sSH1)))
    if KROT == 3:
        A("s_and_b32 %s, %s, 3" % (s(sT2), s(sFT)))
        A("s_lshl_b32 %s, %s, 2" % (s(sSH1), s(sT2)))
        A("s_mul_i32 %s, %s, 7" % (s(sSH2), s(sT2)))
        A("s_add_u32 %s, %s, 1" % (s(sSH2), s(sSH2)))
        A("s_lshr_b32 %s, %s, 1" % (s(sSH2), s(sSH2)))
    if KROT in (4, 5):
        A("s_and_b32 %s, %s, 3" % (s(sT2), s(sST)))
        A("s_mov_b32 %s, %s" % (s(sSH1), s(sT2)))
        A("s_mov_b32 %s, %s" % (s(sSH2), s(sT2)))
    if not KROT:
        A("s_mov_b32 %s, 0" % s(sSH1))
        A("s_mov_b32 %s, 0" % s(sSH2))
    A("s_mov_b32 %s, 200000" % s(sBUD))
    A("s_lshl_b32 %s, %s, 15" % (s(sRING), s(sWAVE)))
    A("s_mul_i32 %s, %s, %d" % (s(sWB1), s(sWAVE), 8 * 3584))
    A("s_add_u32 %s, %s, %d" % (s(sWB1 + 1), s(sWB1), 1024 * 3584))
    A("s_mul_i32 %s, %s, 14" % (s(sWB2), s(sWAVE)))
    A("s_sub_u32 %s, %s, 14" % (s(sWB2 + 1), s(sWB2)))
    for i in range(3):
        A("s_mov_b32 %s, %s" % (s(SB + 2 * i), fbits(C7[i + 1])))
        A("s_mov_b32 %s, %s" % (s(SB + 2 * i + 1), fbits(C7[i + 1])))
        A("s_mov_b32 %s, %s" % (s(SB + 6 + 2 * i), fbits(S7[i + 1])))
        A("s_mov_b32 %s, %s" % (s(SB + 6 + 2 * i + 1), fbits(S7[i + 1])))
    A("s_lshl_b32 %s, %s, 3" % (s(sT0), s(sWAVE)))
    A("s_add_u32 %s, %s, 0x%x" % (s(sT0), s(sT0), SCR + 16384))
    A("v_lshl_add_u32 v177, v146, 5, %s" % s(sT0))
    A("s_lshl_b32 %s, %s, 11" % (s(sT0), s(sWAVE)))
    A("s_add_u32 %s, %s, 0x%x" % (s(sT0), s(sT0), SCR + 16384))
    A("v_add_u32 v178, %s, v145" % s(sT0))
    w1_voffs(A, PW1, 164)
    DU1 = lambda u, g: dma_chunk(A, 1, 4 * u, 4, PW1, 4 * g)
    DU2 = lambda u, g, vo=PW2: dma_chunk(A, 2, 4 * u, 4, vo, 4 * g)
    R = Rec(); a1_consts2(R); gen_f64(R, 48)
    if SCHED == "unit": A.bgq = DU1(0, 0) + DU1(1, 1)
    A.mix(R.l, 8)
    A.bg_flush()
    stamp(A)
    A.wvm(tx)
    stamp(A)
    WO, WTm = 164, 172
    def whook1():
        A("v_cmp_lt_u32 %s, 31, v146" % s(sT5, 2))
        A("v_cmp_eq_u32 vcc, 32, v146")
        A.wvm(twp)
        for e in range(2):
            r0, i0_ = 128 + 4 * e, 130 + 4 * e
            A("v_cndmask_b32 %s, %s, %s, %s" % (v(WTm), v(r0), v(r0 + 1), s(sT5, 2)))
            A("v_cndmask_b32 %s, %s, %s, %s" % (v(WTm + 1), v(r0 + 1), v(r0), s(sT5, 2)))
            A("v_cndmask_b32 %s, %s, %s, %s" % (v(WTm + 2), v(i0_), v(i0_ + 1), s(sT5, 2)))
            A("v_cndmask_b32 %s, %s, %s, %s" % (v(WTm + 3), v(i0_ + 1), v(i0_), s(sT5, 2)))
            for sl in range(4):
                A("v_perm_b32 %s, %s, %s, %s" % (v(WO + 2 * sl + e), v(WTm + 2 + sl // 2), v(WTm + sl // 2), v(142 + sl % 2)))
                A("v_xor_b32 %s, %s, v144" % (v(WO + 2 * sl + e), v(WO + 2 * sl + e)))
            A("v_lshl_or_b32 %s, %s, 16, %s" % (v(WTm + 4), v(137 + 2 * e), v(136 + 2 * e)))
            A("v_cndmask_b32 %s, %s, %s, vcc" % (v(WO + e), v(WO + e), v(WTm + 4)))
        for sl in range(4):
            A.ds("ds_write_b64 v177, %s offset:%d" % (v(WO + 2 * sl, 2), 2048 * sl))
    def whook2():
        t0 = A.ds("ds_read_b128 %s, v178" % v(WO, 4))
        t1 = A.ds("ds_read_b128 %s, v178 offset:1024" % v(WO + 4, 4))
        def st():
            A.wds(t1)
            A.vm("buffer_store_dwordx4 %s, v145, %s, s3 offen sc1" % (v(WO, 4), SWS))
            A.vm("buffer_store_dwordx4 %s, v145, %s, s3 offen offset:1024 sc1" % (v(WO + 4, 4), SWS))
        return st
    if WHOOK:
        a1_compute(A, Z0, whook1, whook2)
        if NCNT:
            A("v_mov_b32 v11, 0")
            A.vm("global_load_dword v12, v11, %s sc1" % s(sDBG, 2))
    else:
        a1_compute(A, Z0)
        if NCNT:
            A("v_mov_b32 v11, 0")
            A.vm("global_load_dword v12, v11, %s sc1" % s(sDBG, 2))
        whook1()
        A("s_waitcnt lgkmcnt(0)")
        A("s_barrier")
        whook2()()
    stamp(A)
    A("s_waitcnt vmcnt(0)")
    A("s_barrier")
    lw = A.newlabel("nb")
    A("s_cmp_lg_u32 %s, 0" % s(sWAVE))
    A("s_cbranch_scc1 %s" % lw)
    if NCNT:
        lt, lo = A.newlabel("rdy"), A.newlabel("rdyok")
        A.label(lt)
        A("v_cmp_ne_u32 vcc, 0, v12")
        A("s_cbranch_vccnz %s" % lo)
        A("s_cmp_eq_u32 %s, 0" % s(sBUD))
        A("s_cbranch_scc1 %s" % lo)
        A("s_sub_u32 %s, %s, 1" % (s(sBUD), s(sBUD)))
        A("s_sleep 4")
        A("global_load_dword v12, v11, %s sc1" % s(sDBG, 2))
        A("s_waitcnt vmcnt(0)")
        A("s_branch %s" % lt)
        A.label(lo)
        A("s_and_b32 %s, s2, %d" % (s(sT0), NCNT - 1))
        A("s_lshl_b32 %s, %s, 7" % (s(sT0), s(sT0)))
        A("s_add_u32 %s, %s, 0x%x" % (s(sT0), s(sT0), CNT))
        A("v_mov_b32 v12, 1")
        A("s_mov_b64 exec, 1")
        A("buffer_atomic_add v12, v11, %s, %s offen sc1" % (SWS, s(sT0)))
    else:
        A("s_and_b32 %s, s2, 1" % s(sT0))
        A("s_lshl_b32 %s, %s, 7" % (s(sT0), s(sT0)))
        A("v_mov_b32 v11, %s" % s(sT0))
        A("v_mov_b32 v12, 1")
        A("s_mov_b64 exec, 1")
        A("global_atomic_add v11, v12, %s sc1" % s(sDBG, 2))
    A("s_mov_b64 exec, -1")
    A.label(lw)
    stamp(A)
    if WU2_AT == "beta":
        for i in range(7): wu2(i)()
    A("s_min_u32 %s, %s, 27" % (s(sT0), s(sFT)))
    A("s_lshl_b32 %s, %s, 7" % (s(sT0), s(sT0)))
    A("v_mov_b32 v164, %s" % s(sT0))
    A.vm("global_load_dword v172, v164, %s" % s(sB1, 2))
    A("s_min_u32 %s, %s, 31" % (s(sT0), s(sST)))
    A("s_lshl_b32 %s, %s, 7" % (s(sT0), s(sT0)))
    A("v_mov_b32 v164, %s" % s(sT0))
    A.vm("global_load_dword v172, v164, %s" % s(sB2, 2))
    wu1({2: (0, 1, 4, 5, 2, 3, 6, 7), 3: (2, 3, 6, 7)}.get(WU1, ()), sT0)
    if not PZ: poison_list(A, [H0, U0, X2, X1], 164)
    R = Rec(); a2_consts(R); f32_gen(R, 48); R.l.remove("W_HERE"); tr_addr(R, PTR1, 8, 164, True); w2_voffs(R, PW2, 164)
    if SCHED == "win": A.bgq = dma_chunk(A, 1, 0, 16, PW1)
    A.mix(R.l, 5)
    A.bg_flush()
    lw = A.newlabel("nb")
    A("s_cmp_lg_u32 %s, 0" % s(sWAVE))
    A("s_cbranch_scc1 %s" % lw)
    A("v_and_b32 v56, %d, v0" % ((NCNT or 2) - 1))
    A("v_lshlrev_b32 v56, 7, v56")
    A("s_mov_b32 %s, 0x%x" % (s(sT0), CNT))
    if BDLY: A("s_sleep %d" % BDLY)
    lt, lo = A.newlabel("bar"), A.newlabel("barok")
    A.label(lt)
    if NCNT: A("buffer_load_dword v57, v56, %s, %s offen sc1" % (SWS, s(sT0)))
    else: A("global_load_dword v57, v56, %s sc1" % s(sDBG, 2))
    A("s_waitcnt vmcnt(0)")
    A("v_cmp_gt_u32 vcc, %d, v57" % (256 // (NCNT or 2)))
    A("s_cbranch_vccz %s" % lo)
    A("s_cmp_eq_u32 %s, 0" % s(sBUD))
    A("s_cbranch_scc1 %s" % lo)
    A("s_sub_u32 %s, %s, 1" % (s(sBUD), s(sBUD)))
    A("s_sleep %d" % BSLP)
    A("s_branch %s" % lt)
    A.label(lo)
    A.label(lw)
    A("s_barrier")
    stamp(A)
    colds = []
    def fin():
        prof_end(A)
        A("s_endpgm")
    def tr_ops(n, addr, rows, dstfn, slot0=0):
        q = []
        for i in range(slot0, slot0 + n):
            def trp(i=i):
                for tl in range(2):
                    for rd in range(2):
                        A.trtok = A.ds("ds_read_b64_tr_b16 %s, %s offset:%d" % (dstfn(8 * i + 4 * tl + 2 * rd), v(addr + tl), i * 2048 + rows[rd] * 128))
            q.append(trp)
        return q
    def after_tr(ops):
        f = ops[0]
        return [lambda: (A.wds(A.trtok), f())] + ops[1:]
    def waitdma(ops):
        f = ops[0]; tk__ = A.last_dma
        return [lambda: (A.wvm(tk__), f())] + ops[1:]
    def pairs(ops): return [(lambda o=ops[k:k + 2]: [x() for x in o]) for k in range(0, len(ops), 2)]
    def mark(name): return lambda: setattr(A, name, A.last_dma)
    trw1 = lambda n, base, s0: tr_ops(n, PTR1, (0, 4), lambda r: a(base + r, 2), s0)
    for l in range(2):
        zb, tb, hb, ub, xo = ((Z0, T0, H0, U0, X1), (Z1, T1, H1, U1, X3))[l]
        if l == 1:
            for i in range(3):
                A("s_mov_b32 %s, %s" % (s(SB + 2 * i), fbits(C7[i + 1])))
                A("s_mov_b32 %s, %s" % (s(SB + 2 * i + 1), fbits(C7[i + 1])))
                A("s_mov_b32 %s, %s" % (s(SB + 6 + 2 * i), fbits(S7[i + 1])))
                A("s_mov_b32 %s, %s" % (s(SB + 6 + 2 * i + 1), fbits(S7[i + 1])))
            R = Rec(); a1_consts(R); gen_f64(R, 48); a1_consts2(R)
            if F32EARLY: f32_gen(R, 48)
            emit(R)
            A("s_barrier")
            A("s_mov_b32 %s, 0x%x" % (s(sT1), X2))
            def xi():
                for t in range(7): A.vm("buffer_load_dword %s, v1, %s, %s offen offset:%d sc1" % (v(4 + t), SWS, s(sT1), 128 * t))
            FINEON[0] = True
            fstamp(A)
            poll_loads(A, xi, range(4, 11), 11, DLY[0])
            stamp(A)
            a1_compute(A, Z1)
            stamp(A)
            R = Rec(); a2_consts(R)
            if not F32EARLY: f32_gen(R, 48)
            k_ = R.l.index("W_HERE")
            for l_ in R.l[:k_]: A(l_)
            A("s_lshl_b32 %s, s2, 13" % s(sT2))
            A("s_add_u32 %s, %s, 0x%x" % (s(sT2), s(sT2), CNT))
            A("s_add_u32 %s, %s, 4096" % (s(sT3), s(sT2)))
            A("v_lshlrev_b32 v57, 4, v0")
            if STASH:
                A.vm("buffer_load_dwordx4 %s, v57, %s, %s offen" % (v(WV, 4), SWS, s(sT2)))
                A.wtok = A.vm("buffer_load_dwordx4 %s, v57, %s, %s offen" % (v(WV + 4, 4), SWS, s(sT3)))
            else: a2_wload(A)
            for l_ in R.l[k_ + 1:]: A(l_)
            fstamp(A)
            A("s_barrier")
        late = SCHED == "late"
        def a2_after():
            if l == 0:
                if WU2_AT == "a2":
                    for i in range(7): wu2(i)()
                for op in poison_ops(A, [H0, X1], 164, 168): op()
                A.p1tok = A.ptok
                A.bgq = ([] if late else trw1(16, 0, 0)) + poison_ops(A, [U0, X2, Z1], 164, 168, False)
        a2_phase(A, zb, tb, l == 1, a2_after)
        stamp(A)
        if STOP == 2 + 5 * l: fin(); break
        R = Rec(); a3_consts(R)
        if l == 0:
            if WU2_AT == "w23":
                for i in range(7): wu2(i)()
            A("s_waitcnt lgkmcnt(0)")
            A.bgq = dma_chunk(A, 1, 0 if late else 16, 16, PW1)
        A.mix(R.l, 2)
        A.bg_flush()
        A("s_barrier")
        def a3_after():
            if l == 0:
                if WU2_AT == "a3":
                    for i in range(7): wu2(i)()
                A.bgq = trw1(16, 0 if late else 128, 0)
        a3_phase(A, l, tb, xo, hb, a3_after, (lambda: None) if l == 0 else None)
        stamp(A)
        if STOP == 3 + 5 * l: fin(); break
        R = Rec(); b_consts(R); tr_addr(R, vTR, 4, 8)
        VW2 = 28
        if l == 0:
            A("s_waitcnt lgkmcnt(0)")
            A.bgq = dma_chunk(A, 2, 0, 12, PW2)
        A.mix(R.l, 2)
        A.bg_flush()
        A("s_barrier")
        trw2 = lambda: tr_ops(12, vTR, (0, 8), lambda r: v(W2V + r, 2))
        def b1_tail():
            if l == 0:
                A.bg_flush()
                A("s_waitcnt lgkmcnt(0)")
                A.bgq = dma_chunk(A, 2, 12, 16, VW2)
        def b1_first():
            if l == 0:
                R2 = Rec(); w2_voffs(R2, VW2, 14)
                A.bgq = trw2() + [(lambda o=R2.l[k:k + 4]: [A(x) for x in o]) for k in range(0, len(R2.l), 4)]
        def skip_pre(l=l):
            A("s_waitcnt vmcnt(0)")
            if l == 0:
                for op in trw2(): op()
                A("s_waitcnt lgkmcnt(0)")
                w2_voffs(A, VW2, 14)
                for op in dma_chunk(A, 2, 12, 16, VW2): op()
                A("v_mul_u32_u24 v16, 7168, v0")
                A("s_mov_b32 %s, 0x%x" % (s(sT2), H0))
                def hi_():
                    A("buffer_load_dword v17, v16, %s, %s offen sc1" % (SWS, s(sT2)))
                    A("v_mov_b32 v18, 0")
                    A("v_mov_b32 v19, 0")
                poll_loads(A, hi_, range(17, 20), 20, 16)
                A("s_barrier")
        colds.append(b_all(A, l, hb, ub, xo, b1_first, b1_tail, skip_pre, VW2))
        stamp(A)
        if STOP == 5 + 5 * l: fin(); break
    else:
        fin()
    for c in colds: c()
    A.label("L_exit")
    A("s_endpgm")
    A.label("L_code_end")
    lines, n = fix_hazards_fast(A.lines)
    if ALIGN:
        lines, fx, lf = align_pass(lines, ALIGN, ALNOP)
        print("align fixed", fx, "left", lf, file=sys.stderr)
    pr = [p for p in lint_waits(lines) if "overflow" not in p[2]]
    for p in pr[:6]: print("LINT", p, file=sys.stderr)
    hdr = open("cdna_kernels/%s.s.ref" % NAME).read().split("; Override launch")[0]
    out = hdr + "; @launch grid=(256,1,1) block=(256,1,1) lds=%d\n" % LDS_TOTAL
    out += '.amdgcn_target "amdgcn-amd-amdhsa--gfx950"\n.text\n.globl %s\n.p2align 8\n.type %s,@function\n' % (KN, KN)
    out += "\n".join(lines) + "\n"
    out += """.section .rodata,"a"
.p2align 6
.amdhsa_kernel %s
  .amdhsa_next_free_vgpr 512
  .amdhsa_next_free_sgpr 102
  .amdhsa_accum_offset 256
  .amdhsa_group_segment_fixed_size 0
  .amdhsa_kernarg_size 88
  .amdhsa_user_sgpr_count 2
  .amdhsa_user_sgpr_kernarg_segment_ptr 1
  .amdhsa_system_sgpr_workgroup_id_x 1
.end_amdhsa_kernel
""" % KN
    print("nops inserted:", n, "lines:", len(lines), "stamps:", nstamp[0], file=sys.stderr)
    return out

if __name__ == "__main__":
    outp = sys.argv[1] if len(sys.argv) > 1 else "p1.s"
    open(outp, "w").write(build())
    import subprocess
    r = subprocess.run(["clang", "-x", "assembler", "-target", "amdgcn-amd-amdhsa", "-mcpu=gfx950", "-c", outp, "-o", "chk.o"], capture_output=True, text=True)
    if r.returncode: print("ASM ERROR", r.stderr[:1500])
    else:
        o = subprocess.run(["llvm-readelf", "-S", "chk.o"], capture_output=True, text=True).stdout
        print("text bytes", [int(l.split()[-6 if len(l.split()) > 10 else -5], 16) for l in o.splitlines() if " .text" in l], file=sys.stderr)
```

```python
import math, struct, sys, os
from asmlib import *

NAME = "interleave_layers__spectral_gfnet__mixer_token_mlp__prompt"
S, D, F = 2048, 448, 1792
MB2 = 0x200000
Z0, Z1, T0, T1, WT, X1, X2, X3, H0, H1, U0, U1, CNT = [MB2 * i for i in range(13)]
WS_BYTES = 0x2000000
PROFOFF = 0x1C00000
PROF = int(os.environ.get("PROF", 0))
STOP = int(os.environ.get("STOP", 99))
SLEEP = int(os.environ.get("SLEEP", 2))
WUPRE = int(os.environ.get("WUPRE", 4))
XP = int(os.environ.get("XP", 0)); WU2_AT = os.environ.get("WU2_AT", "a3"); WU2FL = os.environ.get("WU2FL", " nt"); DMAFL = os.environ.get("DMAFL", "")
NT = os.environ.get("NT", "")
SCHED = os.environ.get("SCHED", "win")
DLY = [int(x) for x in os.environ.get("DLY", "0,0,10,12,12").split(",")]
MAP = os.environ.get("MAP", "x"); KROT = int(os.environ.get("KROT", 0))
AUTO2 = int(os.environ.get("AUTO2", 9)); AUTO3 = int(os.environ.get("AUTO3", 7))
FAKE16 = int(os.environ.get("FAKE16", 0))
STFL = os.environ.get("STFL", " sc1")
assert int(os.environ.get("FULLB", 1)) or STFL == " sc1"
PRE1 = int(os.environ.get("PRE1", 32)); PRE2 = int(os.environ.get("PRE2", 32))
DW = int(os.environ.get("DW", 64)); MAP1 = os.environ.get("MAP1", "x"); X2T = int(os.environ.get("X2T", 1))
OUTFL = os.environ.get("OUTFL", "").replace("_", " ")
EXM = int(os.environ.get("EXM", 0))
ALIGN = int(os.environ.get("ALIGN", 0)); ALNOP = int(os.environ.get("ALNOP", 0))
F32EARLY = int(os.environ.get("F32EARLY", 0))
PZ = int(os.environ.get("PZ", 1))
STASH = int(os.environ.get("STASH", 0)); STASHFL = os.environ.get("STASHFL", "").replace("_", " ")
RALL = int(os.environ.get("RALL", 2))
WU1POS = int(os.environ.get("WU1POS", 1))
STN = int(os.environ.get("STN", 0)); STM = int(os.environ.get("STM", 0))
WHOOK = int(os.environ.get("WHOOK", 1)); C4IN = os.environ.get("C4IN", "win")
NCNT = int(os.environ.get("NCNT", 32)); BDLY = int(os.environ.get("BDLY", 0)); BSLP = int(os.environ.get("BSLP", 2))
LATEB = int(os.environ.get("LATEB", 0)); OVL = int(os.environ.get("OVL", 2)); T1AT = int(os.environ.get("T1AT", 6)); T1N = int(os.environ.get("T1N", 2)); EBG = int(os.environ.get("EBG", 6)); BOOST = int(os.environ.get("BOOST", 2)); BOOSTB1 = int(os.environ.get("BOOSTB1", 0)); EN = [int(x) for x in os.environ.get("EN", "6,4,6").split(",")]
SPLITLD = int(os.environ.get("SPLITLD", 1))
DIAGHIT = int(os.environ.get("DIAGHIT", 0))
NOCHK = int(os.environ.get("NOCHK", 0)); NOLD = int(os.environ.get("NOLD", 0))
C3MID = int(os.environ.get("C3MID", 0))
A1SPLIT = int(os.environ.get("A1SPLIT", 999)); A2SPLIT = int(os.environ.get("A2SPLIT", 999))
FBK = int(os.environ.get("FBK", 0)); EARLYPF = int(os.environ.get("EARLYPF", 1))
CPF2 = int(os.environ.get("CPF2", 0))
PZA = os.environ.get("PZA", "a2"); PZB = os.environ.get("PZB", "a2")
GLD = int(os.environ.get("GLD", 0))
X7D = int(os.environ.get("X7D", 0))
MASKED = int(os.environ.get("MASKED", 1)); FULLB = int(os.environ.get("FULLB", 1))
ROT = int(os.environ.get("ROT", 1)); WU1 = int(os.environ.get("WU1", 3))

def fbits(x): return "0x%08x" % struct.unpack("<I", struct.pack("<f", x))[0]
C7 = [math.cos(2 * math.pi * r / 7) for r in range(4)]
S7 = [math.sin(2 * math.pi * r / 7) for r in range(4)]
CV = "v_cvt_pk_bf16_f32"; M16 = "v_mfma_f32_16x16x32_bf16"; M32 = "v_mfma_f32_32x32x16_bf16"

sX, sWS, sWR, sWI, sW1, sB1, sW2, sB2, sOUT, sDBG = 4, 6, 8, 10, 12, 14, 16, 18, 20, 22
SW1, SW2, SWS = "s[24:27]", "s[28:31]", "s[32:35]"
SB = 36
sW, sWAVE, sDT, sFT, sST, sA1, sA2, sBUD = 48, 49, 50, 51, 52, 53, 54, 55
sT0, sT1, sT2, sT3 = 56, 57, 58, 59
sRING, sT4, sT5, sT6 = 60, 61, 62, 63
sC = 98
sWB1, sWB2 = 12, 16
sDT2, sROT1 = 64, 65
sSH1, sSH2, sEND = 99, 100, 101
SCR = 131072
LDS_TOTAL = 163840
LSTR = 272
YSTR = 448 * 4 + 64
HSTR = 896 + 32
A3_Y = 32 * LSTR
A3_H = A3_Y + 8 * YSTR
XL = 0
F64R, F64I = 96, 112
W2V = 160

nstamp = [0]
CLK = [int(x) for x in os.environ.get("CLK", "").split(",") if x]
BUDA = [int(x) for x in os.environ.get("BUDA", "22,23").split(",")]
BUDB = [int(x) for x in os.environ.get("BUDB", "23,24").split(",")]
FINE = int(os.environ.get("FINE", 0)); FINEON = [False]
def fstamp(A):
    if FINE: stamp(A)
DIAG = int(os.environ.get("DIAG", -1))
ndiag = [1]
def stamp(A):
    if DIAG >= 0:
        if ndiag[0] == DIAG:
            A("s_memrealtime s[96:97]")
            A("s_waitcnt lgkmcnt(0)")
        ndiag[0] += 1
    if not PROF: return
    if FINE and not FINEON[0]: return
    i = nstamp[0]; nstamp[0] += 1
    assert i < 32
    A("s_memrealtime s[8:9]")
    A("s_waitcnt lgkmcnt(0)")
    A("s_mov_b32 %s, s8" % s(66 + i))
    if CLK and i in CLK:
        A("s_memtime s[8:9]")
        A("s_waitcnt lgkmcnt(0)")
        if i == CLK[0]: A("s_mov_b32 s97, s8")
        else: A("s_sub_u32 s97, s8, s97")
        return
    for slot, st in ((30, BUDA), (31, BUDB)) if not CLK else ():
        if i == st[0]: A("s_mov_b32 %s, %s" % (s(66 + slot), s(sBUD)))
        if i == st[1]:
            A("s_sub_u32 %s, %s, %s" % (s(66 + slot), s(66 + slot), s(sBUD)))
            A("s_add_u32 %s, %s, 1000" % (s(66 + slot), s(66 + slot)))

def prof_end(A):
    if DIAG >= 0:
        stamp(A)
        l1, l2 = A.newlabel("dg"), A.newlabel("dg")
        A("s_cmp_lg_u32 s2, 75")
        A("s_cbranch_scc1 %s" % l2)
        A("s_memrealtime s[92:93]")
        A("s_waitcnt lgkmcnt(0)")
        if DIAG == 100:
            A("s_memtime s[96:97]")
            A("s_waitcnt lgkmcnt(0)")
        A("s_sub_u32 s96, s96, s94")
        if DIAG == 100: A("s_lshr_b32 s96, s96, 5")
        A("s_min_u32 s96, s96, 20000")
        A.label(l1)
        A("s_memrealtime s[90:91]")
        A("s_waitcnt lgkmcnt(0)")
        A("s_sub_u32 s90, s90, s92")
        A("s_cmp_lt_u32 s90, s96")
        A("s_cbranch_scc1 %s" % l1)
        A.label(l2)
    if not PROF: return
    A("s_waitcnt vmcnt(0)")
    stamp(A)
    n = 32
    A("s_lshl_b32 s56, s2, 9")
    A("s_add_u32 s56, s56, 0x%x" % PROFOFF)
    A("v_lshrrev_b32 v1, 6, v0")
    A("v_lshlrev_b32 v1, 7, v1")
    for i in range(n):
        A("v_mov_b32 v2, %s" % s(66 + i))
        A("buffer_store_dword v2, v1, %s, s56 offen offset:%d" % (SWS, 4 * i))

def c7(r):
    r %= 7; r = min(r, 7 - r); return s(SB + 2 * (r - 1), 2)
def s7(r):
    r %= 7
    return (s(SB + 6 + 2 * (r - 1), 2), 1) if r <= 3 else (s(SB + 6 + 2 * (7 - r - 1), 2), -1)

def red32(R, x, t):
    for m in ("quad_perm:[1,0,3,2]", "quad_perm:[2,3,0,1]", "row_half_mirror", "row_mirror"):
        R("v_add_f32_dpp %s, %s, %s %s row_mask:0xf bank_mask:0xf" % (v(x), v(x), v(x), m))
    R("v_mov_b32 %s, %s" % (v(t), v(x)))
    R("v_permlane16_swap_b32 %s, %s" % (v(x), v(t)))
    R("v_add_f32 %s, %s, %s" % (v(x), v(x), v(t)))

def gen_frags(R, nidx, qreg, ksteps, denom, dre, dim, tmp):
    nf, ang, n13 = tmp, tmp + 1, tmp + 2
    R("v_cvt_f32_u32 %s, %s" % (v(nf), v(nidx)))
    R("v_cvt_f32_u32 %s, %s" % (v(ang), v(qreg)))
    R("v_mul_f32 %s, %s, %s" % (v(nf), fbits(1.0 / denom), v(nf)))
    R("v_mul_f32 %s, 4.0, %s" % (v(ang), v(ang)))
    R("v_mul_f32 %s, %s, %s" % (v(n13), fbits(13.0), v(nf)))
    R("v_mul_f32 %s, %s, %s" % (v(ang), v(ang), v(nf)))
    n = 4 * ksteps
    def sc(i): return tmp + 3 + 2 * (i % 2), tmp + 4 + 2 * (i % 2)
    for i in range(n + 1):
        if i < n:
            cs, sn = sc(i)
            R("v_cos_f32 %s, %s" % (v(cs), v(ang)))
            R("v_sin_f32 %s, %s" % (v(sn), v(ang)))
            if i < n - 1: R("v_add_f32 %s, %s, %s" % (v(ang), v(ang), v(nf if i % 4 < 3 else n13)))
        if i > 0:
            cs, sn = sc(i - 1)
            R("%s %s, %s, %s" % (CV, v(dre + i - 1), v(cs), v(sn)))
            R("%s %s, -%s, %s" % (CV, v(dim + i - 1), v(sn), v(cs)))

def gen_f64(R, tmp):
    R("v_lshrrev_b32 %s, 6, v0" % v(tmp + 7))
    R("v_and_b32 %s, 15, v0" % v(tmp + 8))
    R("v_lshl_add_u32 %s, %s, 4, %s" % (v(tmp + 7), v(tmp + 7), v(tmp + 8)))
    R("v_bfe_u32 %s, v0, 4, 2" % v(tmp + 8))
    gen_frags(R, tmp + 7, tmp + 8, 4, 64, F64R, F64I, tmp)

def unpack7(R, src, dst):
    for t in range(7):
        R("v_lshlrev_b32 %s, 16, %s" % (v(dst + 2 * t), v(src + t)))
        R("v_and_b32 %s, 0xffff0000, %s" % (v(dst + 2 * t + 1), v(src + t)))

def stats_streams(z, a1, a2, t1, t2):
    R1 = Rec(); R2 = Rec()
    R1("v_pk_add_f32 %s, %s, %s" % (v(a1, 2), v(z, 2), v(z + 2, 2)))
    for k in range(2, 7): R1("v_pk_add_f32 %s, %s, %s" % (v(a1, 2), v(a1, 2), v(z + 2 * k, 2)))
    R1("v_add_f32 %s, %s, %s" % (v(a1), v(a1), v(a1 + 1)))
    red32(R1, a1, t1)
    R2("v_pk_mul_f32 %s, %s, %s" % (v(a2, 2), v(z, 2), v(z, 2)))
    for k in range(1, 7): R2("v_pk_fma_f32 %s, %s, %s, %s" % (v(a2, 2), v(z + 2 * k, 2), v(z + 2 * k, 2), v(a2, 2)))
    R2("v_add_f32 %s, %s, %s" % (v(a2), v(a2), v(a2 + 1)))
    red32(R2, a2, t2)
    return R1.l, R2.l

def mean_var(A, a1, a2):
    A("v_mul_f32 %s, %s, %s" % (v(a1), fbits(1.0 / D), v(a1)))
    A("v_mul_f32 %s, %s, %s" % (v(a2), fbits(1.0 / D), v(a2)))
    A("v_fma_f32 %s, -%s, %s, %s" % (v(a2), v(a1), v(a1), v(a2)))
    A("v_max_f32 %s, 0, %s" % (v(a2), v(a2)))

def poison(A, region, vtid16, vm1):
    A("s_lshl_b32 %s, s2, 13" % s(sT3))
    A("s_add_u32 %s, %s, 0x%x" % (s(sT3), s(sT3), region))
    A.vm("buffer_store_dwordx4 %s, %s, %s, %s offen sc1" % (v(vm1, 4), v(vtid16), SWS, s(sT3)))
    A("s_add_u32 %s, %s, 4096" % (s(sT3), s(sT3)))
    A.ptok = A.vm("buffer_store_dwordx4 %s, %s, %s, %s offen sc1" % (v(vm1, 4), v(vtid16), SWS, s(sT3)))

def poison_list(A, regions, t):
    A("v_lshlrev_b32 %s, 4, v0" % v(t))
    for k in range(4): A("v_mov_b32 %s, -1" % v(t + 2 + k))
    for r in regions: poison(A, r, t, t + 2)

def poison_ops(A, regions, va, vd, setup=True):
    ops = []
    if setup:
        def st():
            A("v_lshlrev_b32 %s, 4, v0" % v(va))
            for k in range(4): A("v_mov_b32 %s, -1" % v(vd + k))
        ops.append(st)
    for r in regions:
        for h in range(2):
            def op(r=r, h=h):
                A("s_lshl_b32 %s, s2, 13" % s(sC))
                A("s_add_u32 %s, %s, 0x%x" % (s(sC), s(sC), r + 4096 * h))
                A.ptok = A.vm("buffer_store_dwordx4 %s, %s, %s, %s offen sc1" % (v(vd, 4), v(va), SWS, s(sC)))
            ops.append(op)
    return ops

def maxchain(A, regs, t):
    regs = list(regs)
    A("v_max3_u32 %s, %s, %s, %s" % (v(t), v(regs[0]), v(regs[1]), v(regs[2])))
    regs = regs[3:]
    while len(regs) >= 2:
        A("v_max3_u32 %s, %s, %s, %s" % (v(t), v(t), v(regs[0]), v(regs[1]))); regs = regs[2:]
    if regs: A("v_max_u32 %s, %s, %s" % (v(t), v(t), v(regs[0])))

def poll_loads(A, issue, regs, t, dly=0, after=None, slp=None):
    lt, lo = A.newlabel("poll"), A.newlabel("pollok")
    if dly: A("s_sleep %d" % dly)
    if after:
        lc = A.newlabel("pollc")
        issue(); tk_ = A.vmn - 1
        after()
        A.wvm(tk_)
        A("s_branch %s" % lc)
        n0 = A.vmn
    A.label(lt)
    issue()
    A("s_waitcnt vmcnt(0)")
    if after:
        A.vmn = n0
        A.label(lc)
    maxchain(A, regs, t)
    A("v_cmp_eq_u32 vcc, -1, %s" % v(t))
    A("s_cbranch_vccz %s" % lo)
    A("s_cmp_eq_u32 %s, 0" % s(sBUD))
    A("s_cbranch_scc1 %s" % lo)
    A("s_sub_u32 %s, %s, 1" % (s(sBUD), s(sBUD)))
    if MASKED: A("s_mov_b64 exec, vcc")
    if slp or SLEEP: A("s_sleep %d" % (slp or SLEEP))
    A("s_branch %s" % lt)
    A.label(lo)
    if MASKED: A("s_mov_b64 exec, -1")

def dma_lane(R, dst, rowstride, t):
    R("v_bfe_u32 %s, v0, 3, 3" % v(t))
    R("s_mov_b32 %s, %d" % (s(sC), rowstride))
    R("v_mul_lo_u32 %s, %s, %s" % (v(dst), v(t), s(sC)))
    R("v_bfe_u32 %s, v0, 4, 1" % v(t))
    R("v_lshlrev_b32 %s, 2, %s" % (v(t), v(t)))
    R("v_and_b32 %s, 7, v0" % v(t + 1))
    R("v_xor_b32 %s, %s, %s" % (v(t), v(t), v(t + 1)))
    R("v_lshl_add_u32 %s, %s, 4, %s" % (v(dst), v(t), v(dst)))

def w1_voffs(R, dst, t):
    dma_lane(R, dst, 32 * 3584, t)
    R("s_lshl_b32 %s, %s, 7" % (s(sC), s(sFT)))
    R("s_or_b32 %s, %s, %s" % (s(sC), s(sC), s(sA1)))
    R("v_add_u32 %s, %s, %s" % (v(dst), s(sC), v(dst)))
    for i in range(1, 4):
        qd, h = i // 2, i % 2
        R("v_add_u32 %s, 0x%x, %s" % (v(dst + i), (512 * qd + 256 * h) * 3584 - ((qd % 2) * 2 + h) * 1024, v(dst)))

def w2_voffs(R, dst, t):
    dma_lane(R, dst, 4096, t)
    R("s_lshl_b32 %s, %s, 7" % (s(sC), s(sST)))
    R("s_or_b32 %s, %s, %s" % (s(sC), s(sC), s(sA2)))
    R("v_add_u32 %s, %s, %s" % (v(dst), s(sC), v(dst)))
    for i in range(1, 4):
        p, h = i // 2, i % 2
        R("v_add_u32 %s, 0x%x, %s" % (v(dst + i), p * 65536 + h * 32768 - (p * 2 + h) * 1024, v(dst)))

def tr_addr(R, dst, rowsel_hi, t, swap16=False):
    R("v_bfe_u32 %s, v0, 2, 2" % v(t))
    R("v_bfe_u32 %s, v0, 5, 1" % v(t + 1))
    R("v_mul_u32_u24 %s, %d, %s" % (v(t + 1), rowsel_hi, v(t + 1)))
    R("v_add_u32 %s, %s, %s" % (v(t + 1), v(t + 1), v(t)))
    R("v_lshlrev_b32 %s, 7, %s" % (v(dst), v(t + 1)))
    R("v_lshrrev_b32 %s, 4, v0" % v(t))
    R("v_xor_b32 %s, %s, v0" % (v(t), v(t)))
    R("v_bfe_u32 %s, %s, 3, 1" % (v(t), v(t)))
    R("v_lshl_add_u32 %s, %s, 6, %s" % (v(dst), v(t), v(dst)))
    if swap16:
        R("v_lshrrev_b32 %s, 2, v0" % v(t))
        R("v_xor_b32 %s, %s, v0" % (v(t), v(t)))
        R("v_bfe_u32 %s, %s, 4, 1" % (v(t), v(t)))
    else:
        R("v_bfe_u32 %s, v0, 4, 1" % v(t))
    R("v_lshl_add_u32 %s, %s, 5, %s" % (v(dst), v(t), v(dst)))
    R("v_and_b32 %s, 3, v0" % v(t))
    R("v_lshl_add_u32 %s, %s, 3, %s" % (v(dst), v(t), v(dst)))
    R("v_add_u32 %s, %s, %s" % (v(dst), s(sRING), v(dst)))
    R("v_xor_b32 %s, 64, %s" % (v(dst + 1), v(dst)))

def dma_chunk(A, which, ks0, n, voff, slot0=0):
    ops = []
    assert ks0 % 2 == 0 and n % 2 == 0
    for p in range(n // 2):
        for k in range(4):
            def op(p=p, k=k):
                if k == 0:
                    npair = n // 2
                    if KROT == 1:
                        A("s_add_u32 m0, %s, %d" % (s(sRING), (slot0 + 2 * p) * 2048))
                        A("s_add_u32 %s, %s, %d" % (s(sT4), s(sSH1 if which == 1 else sSH2), ks0 // 2 + p))
                    else:
                        if p == 0:
                            A("s_mov_b32 %s, %s" % (s(sT6), s(sROT1 if which == 1 else sDT2)))
                            for _ in range((7 // npair)):
                                A("s_cmp_ge_u32 %s, %d" % (s(sT6), npair))
                                A("s_cselect_b32 %s, %d, 0" % (s(sT4), npair))
                                A("s_sub_u32 %s, %s, %s" % (s(sT6), s(sT6), s(sT4)))
                        else:
                            A("s_add_u32 %s, %s, 1" % (s(sT6), s(sT6)))
                            A("s_cmp_eq_u32 %s, %d" % (s(sT6), npair))
                            A("s_cselect_b32 %s, 0, %s" % (s(sT6), s(sT6)))
                        A("s_lshl_b32 %s, %s, 12" % (s(sT4), s(sT6)))
                        A("s_add_u32 %s, %s, %s" % (s(sT4), s(sT4), s(sRING)))
                        A("s_add_u32 m0, %s, %d" % (s(sT4), slot0 * 2048))
                        A("s_add_u32 %s, %s, %d" % (s(sT4), s(sT6), ks0 // 2))
                        if KROT == 5:
                            if which == 2 and ks0 // 2 + npair > 12:
                                A("s_cmp_ge_u32 %s, 12" % s(sT4))
                                A("s_cselect_b32 s3, 1, 3")
                            else:
                                A("s_mov_b32 s3, 3")
                            A("s_add_u32 %s, %s, %s" % (s(sT5), s(sT4), s(sSH1)))
                            A("s_and_b32 %s, %s, s3" % (s(sT5), s(sT5)))
                            A("s_andn2_b32 %s, %s, s3" % (s(sT4), s(sT4)))
                            A("s_or_b32 %s, %s, %s" % (s(sT4), s(sT4), s(sT5)))
                        elif KROT: A("s_add_u32 %s, %s, %s" % (s(sT4), s(sT4), s(sSH1 if which == 1 else sSH2)))
                    if which == 1:
                        A("s_bfe_u32 %s, %s, 0x30001" % (s(sT5), s(sT4)))
                        A("s_bitcmp1_b32 %s, 0" % s(sT4))
                        A("s_cselect_b32 %s, %s, %s" % (s(sT4), s(sWB1 + 1), s(sWB1)))
                        A("s_mul_i32 %s, %s, 3584" % (s(sT5), s(sT5)))
                        A("s_add_u32 %s, %s, %s" % (s(sT5), s(sT5), s(sT4)))
                    else:
                        A("s_cmp_ge_u32 %s, 14" % s(sT4))
                        A("s_cselect_b32 %s, %s, %s" % (s(sT5), s(sWB2 + 1), s(sWB2)))
                        A("s_add_u32 %s, %s, %s" % (s(sT5), s(sT5), s(sT4)))
                        A("s_lshl_b32 %s, %s, 17" % (s(sT5), s(sT5)))
                A.last_dma = A.vm("buffer_load_dwordx4 %s, %s, %s offen offset:%d%s lds" % (v(voff + k), SW1 if which == 1 else SW2, s(sT5), k * 1024, DMAFL))
            ops.append(op)
    return ops

def tr_chunk(A, n, addr, rows, dstfn):
    for i in range(n):
        for tl in range(2):
            for rd in range(2):
                A.ds("ds_read_b64_tr_b16 %s, %s offset:%d" % (dstfn(8 * i + 4 * tl + 2 * rd), v(addr + tl), i * 2048 + rows[rd] * 128))

PW1, PTR1, PW2 = 240, 248, 250

def a1_consts(R):
    R("s_lshr_b32 %s, %s, 3" % (s(sT0), s(sW)))
    R("s_and_b32 %s, %s, 7" % (s(sT1), s(sW)))
    R("s_lshl_b32 %s, %s, 3" % (s(sT1), s(sT1)))
    R("v_lshrrev_b32 v1, 5, v0")
    R("v_add_u32 v1, %s, v1" % s(sT1))
    R("v_lshlrev_b32 v1, 5, v1")
    R("v_add_u32 v1, %s, v1" % s(sT0))
    R("v_mul_u32_u24 v1, 896, v1")
    R("v_and_b32 v2, 31, v0")
    R("v_lshl_add_u32 v1, v2, 2, v1")

def a1_consts2(R):
    TC, TS = 20, 26
    R("v_cvt_f32_u32 v14, v2")
    R("v_mul_f32 v14, %s, v14" % fbits(2.0 / 448))
    R("v_add_f32 v15, %s, v14" % fbits(1.0 / 448))
    for k in range(1, 4):
        if k == 1: a0, a1_ = 14, 15
        else:
            a0, a1_ = 16, 17
            R("v_mul_f32 v16, %s, v14" % fbits(float(k)))
            R("v_mul_f32 v17, %s, v15" % fbits(float(k)))
        R("v_cos_f32 %s, %s" % (v(TC + 2 * (k - 1)), v(a0)))
        R("v_cos_f32 %s, %s" % (v(TC + 2 * (k - 1) + 1), v(a1_)))
        R("v_sin_f32 %s, %s" % (v(TS + 2 * (k - 1)), v(a0)))
        R("v_sin_f32 %s, %s" % (v(TS + 2 * (k - 1) + 1), v(a1_)))
    R("v_lshrrev_b32 v3, 5, v0")
    R("v_mul_u32_u24 v3, %d, v3" % LSTR)
    R("v_lshl_add_u32 v3, v2, 3, v3")
    R("v_add_u32 v3, 0x%x, v3" % SCR)
    R("v_bfe_u32 v13, v0, 4, 2")
    R("v_and_b32 v12, 15, v0")
    R("v_mul_u32_u24 v18, %d, v12" % LSTR)
    R("v_lshl_add_u32 v18, v13, 4, v18")
    R("v_add_u32 v18, 0x%x, v18" % SCR)
    R("v_lshrrev_b32 v19, 1, v13")
    R("v_lshl_add_u32 v19, v19, 6, v12")
    R("v_lshrrev_b32 v14, 6, v0")
    R("v_lshl_add_u32 v19, v14, 4, v19")
    R("v_lshlrev_b32 v19, 5, v19")
    R("v_and_b32 v14, 1, v13")
    R("v_lshl_add_u32 v19, v14, 4, v19")

def a1_compute(A, zout, hook1=lambda: None, hook2=lambda: None):
    XR, TC, TS, Z = 4, 20, 26, 32
    unpack7(A, XR, Z)
    s1, s2 = stats_streams(Z, 46, 60, 4, 5)
    Dq = Rec()
    P, Q = 48, 54
    for t in range(1, 4):
        Dq("v_pk_add_f32 %s, %s, %s" % (v(P + 2 * (t - 1), 2), v(Z + 2 * t, 2), v(Z + 2 * (7 - t), 2)))
        Dq("v_pk_add_f32 %s, %s, %s neg_lo:[0,1] neg_hi:[0,1]" % (v(Q + 2 * (t - 1), 2), v(Z + 2 * t, 2), v(Z + 2 * (7 - t), 2)))
    RE, IM = 64, 70
    for k in range(1, 4):
        Rr, N = 76 + 4 * (k % 2), 78 + 4 * (k % 2)
        for t in range(1, 4):
            Dq("v_pk_fma_f32 %s, %s, %s, %s" % (v(Rr, 2), v(P + 2 * (t - 1), 2), c7(t * k), v(Z, 2) if t == 1 else v(Rr, 2)))
        for t in range(1, 4):
            cs, sg = s7(t * k)
            if t == 1: Dq("v_pk_mul_f32 %s, %s, %s" % (v(N, 2), v(Q, 2), cs))
            else:
                neg = "" if sg == 1 else " neg_lo:[1,0,0] neg_hi:[1,0,0]"
                Dq("v_pk_fma_f32 %s, %s, %s, %s%s" % (v(N, 2), v(Q + 2 * (t - 1), 2), cs, v(N, 2), neg))
        tc, ts = v(TC + 2 * (k - 1), 2), v(TS + 2 * (k - 1), 2)
        re, im = v(RE + 2 * (k - 1), 2), v(IM + 2 * (k - 1), 2)
        Dq("v_pk_mul_f32 %s, %s, %s" % (re, v(N, 2), ts))
        Dq("v_pk_mul_f32 %s, %s, %s" % (im, v(N, 2), tc))
        Dq("v_pk_fma_f32 %s, %s, %s, %s neg_lo:[0,0,1] neg_hi:[0,0,1]" % (re, v(Rr, 2), tc, re))
        Dq("v_pk_fma_f32 %s, %s, %s, %s" % (im, v(Rr, 2), ts, im))
    Dq("v_pk_add_f32 v[6:7], %s, %s" % (v(Z, 2), v(P, 2)))
    Dq("v_pk_add_f32 v[8:9], %s, %s" % (v(P + 2, 2), v(P + 4, 2)))
    Dq("v_pk_add_f32 v[6:7], v[6:7], v[8:9]")
    for l in zipmix(Dq.l, s1, s2): A(l)
    mean_var(A, 46, 60)
    A("v_add_f32 v60, %s, v60" % fbits(1e-5))
    A("v_rsq_f32 v60, v60")
    A("v_mul_f32 v46, %s, v46" % fbits(-7.0))
    A("v_mul_f32 v60, %s, v60" % fbits(1.0 / (448.0 * 2048.0)))
    A("v_pk_add_f32 v[6:7], v[6:7], v[46:47] op_sel_hi:[1,0]")
    for k in range(6):
        A("v_pk_mul_f32 %s, %s, v[60:61] op_sel_hi:[1,0]" % (v(RE + 2 * k, 2), v(RE + 2 * k, 2)))
    A("v_pk_mul_f32 v[6:7], v[6:7], v[60:61] op_sel_hi:[1,0]")
    for k in range(1, 4):
        o = 32 + 2 * k
        A("%s %s, %s, -%s" % (CV, v(o), v(RE + 2 * (k - 1)), v(IM + 2 * (k - 1))))
        A("%s %s, %s, -%s" % (CV, v(o + 1), v(RE + 2 * (k - 1) + 1), v(IM + 2 * (k - 1) + 1)))
        A.ds("ds_write_b64 v3, %s offset:%d" % (v(o, 2), k * 8 * LSTR))
    A("%s v32, v6, 0" % CV)
    A("%s v33, v7, 0" % CV)
    A.ds("ds_write_b64 v3, v[32:33]")
    hook1()
    A("s_lshl_b32 %s, %s, 13" % (s(sT0), s(sW)))
    A("s_add_u32 %s, %s, 0x%x" % (s(sT0), s(sT0), zout))
    A("s_add_u32 %s, %s, 4096" % (s(sT1), s(sT0)))
    A("s_waitcnt lgkmcnt(0)")
    fstamp(A)
    A("s_barrier")
    fstamp(A)
    AF = 64
    tk = []
    for mt in range(2):
        for t in range(4):
            tk.append(A.ds("ds_read_b128 %s, v18 offset:%d" % (v(AF + 16 * mt + 4 * t, 4), mt * 16 * LSTR + 64 * t)))
    DR, DI = 32, 40
    h2 = hook2()
    def fin_(mt):
        for r in range(4):
            A("%s %s, %s, %s" % (CV, v(48 + 4 * mt + r), v(DR + 4 * mt + r), v(DI + 4 * mt + r)))
        A.vm("buffer_store_dwordx4 %s, v19, %s, %s offen sc1" % (v(48 + 4 * mt, 4), SWS, s(sT0 + mt)))
    for mt in range(2):
        for t in range(4):
            A.wds(tk[4 * mt + t])
            A("%s %s, %s, %s, %s" % (M16, v(DR + 4 * mt, 4), v(AF + 16 * mt + 4 * t, 4), v(F64R + 4 * t, 4), "0" if t == 0 else v(DR + 4 * mt, 4)))
            A("%s %s, %s, %s, %s" % (M16, v(DI + 4 * mt, 4), v(AF + 16 * mt + 4 * t, 4), v(F64I + 4 * t, 4), "0" if t == 0 else v(DI + 4 * mt, 4)))
            if mt == 1 and t == 2: fin_(0)
    if h2: h2()
    fin_(1)

F32R, F32I = 128, 144
TW1, TW2, WV = 16, 24, 8
def a2_consts(R):
    R("v_and_b32 v2, 15, v0")
    R("v_bfe_u32 v3, v0, 4, 2")
    R("v_lshrrev_b32 v4, 6, v0")
    R("v_lshrrev_b32 v5, 1, v4")
    R("v_lshl_add_u32 v5, v5, 4, v2")
    R("v_lshlrev_b32 v5, 3, v5")
    R("v_and_b32 v6, 1, v4")
    R("v_lshl_add_u32 v5, v6, 2, v5")
    R("v_lshrrev_b32 v6, 1, v3")
    R("v_add_u32 v5, v5, v6")
    R("v_lshlrev_b32 v5, 13, v5")
    R("v_and_b32 v7, 1, v3")
    R("v_lshl_add_u32 v5, v7, 4, v5")
    R("v_lshl_add_u32 v56, v4, 4, v2")
    R("v_lshl_add_u32 v6, v56, 2, v6")
    R("v_lshlrev_b32 v6, 13, v6")
    R("v_lshl_add_u32 v7, v7, 4, v6")
    R("v_lshlrev_b32 v6, 8, v2")
    R("v_lshl_add_u32 v6, v4, 6, v6")
    R("v_lshl_add_u32 v6, v3, 4, v6")
    R("W_HERE")
    R("v_cvt_f32_u32 v57, v56")
    R("v_cvt_f32_u32 v58, v3")
    R("v_mul_f32 v57, %s, v57" % fbits(1.0 / 2048))
    R("v_mul_f32 v58, 4.0, v58")
    R("v_mul_f32 v59, %s, v57" % fbits(13.0))
    R("v_mul_f32 v58, v58, v57")
    for i in range(8):
        R("v_cos_f32 v60, v58"); R("v_sin_f32 v61, v58")
        if i < 7: R("v_add_f32 v58, v58, %s" % v(57 if i != 3 else 59))
        R("v_cvt_pk_f16_f32 %s, v60, -v61" % v(TW1 + i))
    R("v_lshlrev_b32 v56, 4, v4")
    R("v_lshl_add_u32 v56, v3, 2, v56")
    R("v_cvt_f32_u32 v56, v56")
    R("v_add_u32 v47, 16, v2")
    for nt in range(2):
        R("v_cvt_f32_u32 v57, %s" % v(2 if nt == 0 else 47))
        R("v_mul_f32 v57, %s, v57" % fbits(1.0 / 2048))
        R("v_mul_f32 v58, v56, v57")
        for r in range(4):
            R("v_cos_f32 v60, v58"); R("v_sin_f32 v61, v58")
            if r < 3: R("v_add_f32 v58, v58, v57")
            R("v_cvt_pk_f16_f32 %s, v60, v61" % v(TW2 + 4 * nt + r))

def f32_gen(R, t):
    R("v_and_b32 %s, 15, v0" % v(t + 7))
    R("v_bfe_u32 %s, v0, 4, 2" % v(t + 8))
    R("v_add_u32 %s, 16, %s" % (v(t + 9), v(t + 7)))
    for mt in range(2):
        gen_frags(R, t + 7 + 2 * mt, t + 8, 2, 32, F32R + 8 * mt, F32I + 8 * mt, t)

def cmul_mix(A, ar, ai, tw, t):
    A("v_fma_mix_f32 %s, %s, %s, 0 op_sel:[0,1,0] op_sel_hi:[0,1,0]" % (v(t), v(ai), v(tw)))
    A("v_fma_mix_f32 %s, %s, %s, 0 op_sel:[0,0,0] op_sel_hi:[0,1,0]" % (v(t + 1), v(ai), v(tw)))
    A("v_fma_mix_f32 %s, %s, %s, %s op_sel:[0,1,0] op_sel_hi:[0,1,0]" % (v(ai), v(ar), v(tw), v(t + 1)))
    A("v_fma_mix_f32 %s, %s, %s, -%s op_sel:[0,0,0] op_sel_hi:[0,1,0]" % (v(ar), v(ar), v(tw), v(t)))

def a2_wload(A):
    A("s_lshr_b32 %s, %s, 6" % (s(sT2), s(sW)))
    A("s_lshl_b32 %s, %s, 11" % (s(sT2), s(sT2)))
    A("s_and_b32 %s, %s, 63" % (s(sT3), s(sW)))
    A("s_lshl_b32 %s, %s, 5" % (s(sT3), s(sT3)))
    A("s_add_u32 %s, %s, %s" % (s(sT2), s(sT2), s(sT3)))
    A("s_add_u32 %s, %s, 0x%x" % (s(sT2), s(sT2), WT))
    A("s_add_u32 %s, %s, 16384" % (s(sT3), s(sT2)))
    for mt in range(2):
        A.wtok = A.vm("buffer_load_dwordx4 %s, v7, %s, %s offen sc1" % (v(WV + 4 * mt, 4), SWS, s(sT2 + mt)))

def a2_phase(A, zin, tout, poll, after_loads, post=lambda: None):
    A("s_lshl_b32 %s, %s, 5" % (s(sT0), s(sW)))
    A("s_add_u32 %s, %s, 0x%x" % (s(sT0), s(sT0), zin))
    A("s_add_u32 %s, %s, 16384" % (s(sT1), s(sT0)))
    G = 32
    def issue():
        A.vm("buffer_load_dwordx4 %s, v5, %s, %s offen sc1" % (v(G, 4), SWS, s(sT0)))
        return A.vm("buffer_load_dwordx4 %s, v5, %s, %s offen sc1" % (v(G + 4, 4), SWS, s(sT1)))
    A("v_lshlrev_b32 v62, 4, v0")
    A("v_lshl_add_u32 v62, v4, 10, v62")
    A("v_add_u32 v62, 0x%x, v62" % SCR)
    A("v_and_b32 v63, 63, v0")
    A("v_lshlrev_b32 v63, 4, v63")
    A("v_add_u32 v63, 0x%x, v63" % SCR)
    if poll:
        tw_tok = A.wtok
        poll_loads(A, issue, range(G, G + 8), 40, DLY[1], (lambda: [A(x) for x in A.rest2]) if A.rest2 else None)
    else:
        tz = issue(); a2_wload(A); tw_tok = A.wtok; post(); A.wvm(tz)
    stamp(A)
    A.ds("ds_write_b128 v62, %s" % v(G, 4))
    A.ds("ds_write_b128 v62, %s offset:1024" % v(G + 4, 4))
    after_loads()
    A("s_waitcnt lgkmcnt(0)")
    A("s_barrier")
    fstamp(A)
    DA = 64
    tk = [A.ds("ds_read_b128 %s, v63 offset:%d" % (v(DA + 4 * f, 4), 1024 * f)) for f in range(8)]
    GR, GI, P1, XR, XI, WR_, WI_, HR, HI = 32, 40, 48, 64, 72, 80, 88, 32, 40
    def mm(d, a_, b_, first): return "%s %s, %s, %s, %s" % (M16, v(d, 4), v(a_, 4), v(b_, 4), "0" if first else v(d, 4))
    def weave(ms, vs, lead=0, pre=None):
        n = len(ms) - lead; k = 0
        for i, m_ in enumerate(ms):
            if pre: pre(i)
            A(m_)
            if i >= lead:
                tgt = len(vs) * (i - lead + 1) // n
                while k < tgt:
                    (A.ds if vs[k].startswith("ds_") else A.vm if vs[k].startswith("buffer") else A)(vs[k]); k += 1
            if i % 2: A.bg()
    def tw(rr, ii, twr, dst, idx, tmp, swap):
        R = Rec()
        for i in idx:
            cmul_mix(R, rr + i, ii + i, twr + i, tmp + 2 * (i % 2))
            R("%s %s, %s, %s" % ((CV, v(dst + i), v(ii + i), v(rr + i)) if swap else (CV, v(dst + i), v(rr + i), v(ii + i))))
        return R.l
    def st1(mt): return [mm((GR, GI)[c] + 4 * mt, DA + 16 * mt + 4 * t, (F64R, F64I)[c] + 4 * t, t == 0) for t in range(4) for c in range(2)]
    weave(st1(0), [], pre=lambda i: A.wds(tk[i // 2]) if i % 2 == 0 else None)
    weave(st1(1), tw(GR, GI, TW1, P1, range(4), 56, False), lead=2, pre=lambda i: A.wds(tk[4 + i // 2]) if i % 2 == 0 else None)
    fstamp(A)
    def st2(ks): return [mm((XR, XI)[c] + 4 * mt, (F32R, F32I)[c] + 8 * mt + 4 * ks, P1 + 4 * ks, ks == 0) for mt in range(2) for c in range(2)]
    weave(st2(0), tw(GR, GI, TW1, P1, range(4, 8), 56, False))
    A.wvm(tw_tok)
    un = []
    for i in range(8):
        un += ["v_lshlrev_b32 %s, 16, %s" % (v(WR_ + i), v(WV + i)), "v_and_b32 %s, 0xffff0000, %s" % (v(WI_ + i), v(WV + i))]
    weave(st2(1), un)
    def wm(idx):
        R = Rec()
        for i in idx:
            xr, xi, wr, wi = v(XR + i, 2), v(XI + i, 2), v(WR_ + i, 2), v(WI_ + i, 2)
            t_ = 56 + 4 * ((i // 2) % 2) if False else 56
            R("v_pk_mul_f32 v[56:57], %s, %s" % (xi, wi))
            R("v_pk_mul_f32 v[58:59], %s, %s" % (xi, wr))
            R("v_pk_fma_f32 v[56:57], %s, %s, v[56:57] neg_lo:[0,0,1] neg_hi:[0,0,1]" % (xr, wr))
            R("v_pk_fma_f32 v[58:59], %s, %s, v[58:59]" % (xr, wi))
            R("%s %s, v58, v56" % (CV, v(P1 + i)))
            R("%s %s, v59, v57" % (CV, v(P1 + i + 1)))
        return R.l
    A.st(STM)
    for l_ in wm((0, 2)): A(l_)
    def st3(ks): return [mm((HI, HR)[c] + 4 * nt, P1 + 4 * ks, (F32R, F32I)[c] + 8 * nt + 4 * ks, ks == 0) for nt in range(2) for c in range(2)]
    weave(st3(0), wm((4, 6)))
    weave(st3(1), ["v_lshlrev_b32 v62, 4, v0", "v_add_u32 v62, 0x%x, v62" % (SCR + 8192),
                   "s_lshl_b32 %s, %s, 13" % (s(sT0), s(sW)), "s_add_u32 %s, %s, 0x%x" % (s(sT0), s(sT0), tout), "s_add_u32 %s, %s, 4096" % (s(sT1), s(sT0))])
    A.st(STM)
    for h in range(2):
        for i, l_ in enumerate(tw(HR, HI, TW2, P1, range(4 * h, 4 * h + 4), 64, True)):
            A(l_)
            if i % 5 == 4: A.bg()
        A.ds("ds_write_b128 v62, %s offset:%d" % (v(P1 + 4 * h, 4), 4096 * h))
    A.st(STN)
    if not poll and PZ: A.wvm(A.p1tok)
    A("s_waitcnt lgkmcnt(0)")
    fstamp(A)
    A("s_barrier")
    fstamp(A)
    tk = [A.ds("ds_read_b128 %s, v63 offset:%d" % (v(DA + 4 * f, 4), 8192 + 1024 * f)) for f in range(8)]
    A.st(STN)
    TR, TI = 32, 40
    def st4(nt): return [mm((TI, TR)[c] + 4 * nt, (F64R, F64I)[c] + 4 * t, DA + 16 * nt + 4 * t, t == 0) for t in range(4) for c in range(2)]
    def fin_(nt):
        return ["%s %s, %s, %s" % (CV, v(48 + 4 * nt + r), v(TI + 4 * nt + r), v(TR + 4 * nt + r)) for r in range(4)] + \
               ["buffer_store_dwordx4 %s, v6, %s, %s offen sc1" % (v(48 + 4 * nt, 4), SWS, s(sT0 + nt))]
    weave(st4(0), [], pre=lambda i: A.wds(tk[i // 2]) if i % 2 == 0 else None)
    weave(st4(1), fin_(0), lead=4, pre=lambda i: A.wds(tk[4 + i // 2]) if i % 2 == 0 else None)
    A.st(STM)
    for l_ in fin_(1): (A.vm if l_.startswith("buffer") else A)(l_)
    A.bg_flush()

def a3_consts(R):
    a1_consts(R)
    R("v_lshlrev_b32 v3, 13, v0")
    R("v_lshrrev_b32 v11, 6, v0")
    R("v_and_b32 v12, 15, v0")
    R("v_mul_u32_u24 v15, %d, v12" % LSTR)
    R("v_lshl_add_u32 v12, v11, 4, v12")
    R("v_bfe_u32 v13, v0, 4, 2")
    R("v_lshl_add_u32 v15, v13, 4, v15")
    R("v_add_u32 v15, 0x%x, v15" % SCR)
    R("v_lshrrev_b32 v14, 1, v11")
    R("v_lshlrev_b32 v14, 4, v14")
    R("v_and_b32 v30, 1, v11")
    R("v_lshl_add_u32 v14, v30, 1, v14")
    R("v_mul_u32_u24 v14, %d, v14" % LSTR)
    R("v_and_b32 v30, 63, v0")
    R("v_lshl_add_u32 v14, v30, 2, v14")
    R("v_add_u32 v14, 0x%x, v14" % SCR)
    TW = 24
    R("v_cvt_f32_u32 v30, v12")
    for k in range(1, 4):
        R("v_mul_f32 v31, %s, v30" % fbits(k / 448.0))
        R("v_cos_f32 %s, v31" % v(TW + 2 * (k - 1)))
        R("v_sin_f32 %s, v31" % v(TW + 2 * (k - 1) + 1))
    for k in range(6): R("v_add_f32 %s, %s, %s" % (v(TW + k), v(TW + k), v(TW + k)))
    R("v_mul_u32_u24 v62, %d, v13" % (2 * YSTR))
    R("v_lshl_add_u32 v62, v12, 2, v62")
    R("v_add_u32 v62, 0x%x, v62" % (SCR + A3_Y))
    R("v_lshrrev_b32 v31, 5, v0")
    R("v_mul_u32_u24 v30, %d, v31" % HSTR)
    R("v_lshl_add_u32 v30, v2, 2, v30")
    R("v_add_u32 v30, 0x%x, v30" % (SCR + A3_H))
    R("v_mul_u32_u24 v63, %d, v31" % YSTR)
    R("v_lshl_add_u32 v63, v2, 3, v63")
    R("v_add_u32 v63, 0x%x, v63" % (SCR + A3_Y))
    R("v_bfe_u32 v31, v0, 2, 2")
    R("v_mul_u32_u24 v31, %d, v31" % HSTR)
    R("v_and_b32 v12, 3, v0")
    R("v_lshl_add_u32 v31, v12, 3, v31")
    R("v_lshl_add_u32 v31, v13, 5, v31")
    R("v_lshl_add_u32 v31, v11, 7, v31")
    R("v_add_u32 v31, 0x%x, v31" % (SCR + A3_H))
    R("v_lshlrev_b32 v12, 4, v0")

def a3_phase(A, l, tin, xout, hout, after_loads, post=None):
    XR, TV, TW = 4, 16, 24
    if l == 0:
        for t in range(7): A.vm("global_load_dword %s, v1, %s offset:%d" % (v(XR + t), s(sX, 2), 128 * t))
    else:
        A("s_mov_b32 %s, 0x%x" % (s(sT1), X2))
        for t in range(7): A.vm("buffer_load_dword %s, v1, %s, %s offen offset:%d sc1" % (v(XR + t), SWS, s(sT1), 128 * t))
    A("s_lshl_b32 %s, %s, 5" % (s(sT0), s(sW)))
    A("s_add_u32 %s, %s, 0x%x" % (s(sT0), s(sT0), tin))
    def issue():
        A.vm("buffer_load_dwordx4 %s, v3, %s, %s offen sc1" % (v(TV, 4), SWS, s(sT0)))
        A.vm("buffer_load_dwordx4 %s, v3, %s, %s offen offset:16 sc1" % (v(TV + 4, 4), SWS, s(sT0)))
    poll_loads(A, issue, range(TV, TV + 8), 32, DLY[2] if post is None else 0, post)
    stamp(A)
    for row in range(8):
        A.ds("ds_write_b32 v14, %s offset:%d" % (v(TV + row), (4 * (row // 2) + (row & 1)) * LSTR))
    after_loads()
    A("s_waitcnt lgkmcnt(0)")
    A("s_barrier")
    fstamp(A)
    AF = 64
    tk = []
    for mt in range(2):
        for t in range(4):
            tk.append(A.ds("ds_read_b128 %s, v15 offset:%d" % (v(AF + 16 * mt + 4 * t, 4), mt * 16 * LSTR + 64 * t)))
    DR, DI = 32, 40
    Z = 128
    unpack7(A, XR, Z)
    UR, UI, U0 = 48, 54, DR
    def twk(k):
        tw = v(TW + 2 * (k - 1), 2)
        vr, vi = v(DR + 2 * k, 2), v(DI + 2 * k, 2)
        ur, ui = v(UR + 2 * (k - 1), 2), v(UI + 2 * (k - 1), 2)
        return ["v_pk_mul_f32 %s, %s, %s op_sel:[0,1] op_sel_hi:[1,1]" % (ur, vi, tw),
                "v_pk_mul_f32 %s, %s, %s op_sel:[0,0] op_sel_hi:[1,0]" % (ui, vi, tw),
                "v_pk_fma_f32 %s, %s, %s, %s op_sel:[0,0,0] op_sel_hi:[1,0,1] neg_lo:[0,0,1] neg_hi:[0,0,1]" % (ur, vr, tw, ur),
                "v_pk_fma_f32 %s, %s, %s, %s op_sel:[0,1,0] op_sel_hi:[1,1,1]" % (ui, vr, tw, ui)]
    early = twk(1)
    for t in range(1, 4):
        early.append("v_pk_fma_f32 %s, %s, %s, %s" % (v((16, 20, 68)[t - 1], 2), v(UR, 2), c7(t), v(U0, 2)))
        early.append("v_pk_mul_f32 %s, %s, %s" % (v((18, 22, 70)[t - 1], 2), v(UI, 2), s7(t)[0]))
    early.append("v_pk_add_f32 v[60:61], %s, %s" % (v(U0, 2), v(UR, 2)))
    for mt in range(2):
        for t in range(4):
            A.wds(tk[4 * mt + t])
            A("%s %s, %s, %s, %s" % (M16, v(DI + 4 * mt, 4), v(AF + 16 * mt + 4 * t, 4), v(F64R + 4 * t, 4), "0" if t == 0 else v(DI + 4 * mt, 4)))
            A("%s %s, %s, %s, %s" % (M16, v(DR + 4 * mt, 4), v(AF + 16 * mt + 4 * t, 4), v(F64I + 4 * t, 4), "0" if t == 0 else v(DR + 4 * mt, 4)))
            if mt == 1 and t >= 2:
                for l_ in early[(t - 2) * 4:(t - 1) * 4]: A(l_)
            A.bg()
    for l_ in early[8:]: A(l_)
    A.st(STM)
    for k in (2, 3):
        for l_ in twk(k): A(l_)
        A.bg()
    def ywrite(pair, t):
        A.ds("ds_write_b32 v62, %s offset:%d" % (v(pair), 256 * t))
        A.ds("ds_write_b32 v62, %s offset:%d" % (v(pair + 1), YSTR + 256 * t))
    A("v_pk_add_f32 v[66:67], %s, %s" % (v(UR + 2, 2), v(UR + 4, 2)))
    A("v_pk_add_f32 v[64:65], v[60:61], v[66:67]")
    ywrite(64, 0)
    for t in range(1, 4):
        aa, bb, y1, y2 = (16, 20, 68)[t - 1], (18, 22, 70)[t - 1], 40 + 4 * (t % 2), 42 + 4 * (t % 2)
        for k in range(2, 4):
            A("v_pk_fma_f32 %s, %s, %s, %s" % (v(aa, 2), v(UR + 2 * (k - 1), 2), c7(t * k), v(aa, 2)))
            cs, sg = s7(t * k)
            neg = "" if sg == 1 else " neg_lo:[1,0,0] neg_hi:[1,0,0]"
            A("v_pk_fma_f32 %s, %s, %s, %s%s" % (v(bb, 2), v(UI + 2 * (k - 1), 2), cs, v(bb, 2), neg))
        A("v_pk_add_f32 %s, %s, %s neg_lo:[0,1] neg_hi:[0,1]" % (v(y1, 2), v(aa, 2), v(bb, 2)))
        A("v_pk_add_f32 %s, %s, %s" % (v(y2, 2), v(aa, 2), v(bb, 2)))
        ywrite(y1, t); ywrite(y2, 7 - t)
        A.bg(2)
    A.st(STN)
    A("s_waitcnt lgkmcnt(0)")
    fstamp(A)
    A("s_barrier")
    fstamp(A)
    Y = 64
    tk = [A.ds("ds_read_b64 %s, v63 offset:%d" % (v(Y + 2 * t, 2), 256 * t)) for t in range(7)]
    A.bg(3)
    A.st(STN)
    for t in range(7):
        A.wds(tk[t])
        A("v_pk_add_f32 %s, %s, %s" % (v(Z + 2 * t, 2), v(Z + 2 * t, 2), v(Y + 2 * t, 2)))
    s1, s2 = stats_streams(Z, 46, 48, 50, 51)
    St = ["ds_write_b32 v30, %s offset:%d" % (v(XR + t), 128 * t + XL - A3_H + 65536 if False else 0) for t in range(0)]
    A("v_subrev_u32 v52, %d, v30" % (A3_H - XL))
    A("v_mov_b32 v53, %s" % fbits(1e-10))
    A("s_mov_b32 %s, %s" % (s(sT2), fbits(1.0 + 1e-5)))
    St = []
    for t in range(7):
        St += ["%s %s, %s, %s" % (CV, v(XR + t), v(Z + 2 * t), v(Z + 2 * t + 1)), "ds_write_b32 v52, %s offset:%d" % (v(XR + t), 128 * t)]
    for ln in zipmix(s1, s2, St):
        if ln.startswith("ds_"): A.ds(ln)
        else: A(ln)
    mean_var(A, 46, 48)
    A.st(STM)
    A("v_fma_f32 v48, v48, %s, v53" % s(sT2))
    A("v_rsq_f32 v48, v48")
    A("s_mul_i32 %s, %s, 7168" % (s(sT0), s(sW)))
    A("s_add_u32 %s, %s, 0x%x" % (s(sT0), s(sT0), hout))
    A("v_mul_f32 v46, -v46, v48" if False else "v_mul_f32 v46, v46, v48")
    for t in range(7):
        A("v_pk_fma_f32 %s, %s, v[48:49], v[46:47] op_sel_hi:[1,0,0] neg_lo:[0,0,1] neg_hi:[0,0,1]" % (v(Z + 2 * t, 2), v(Z + 2 * t, 2)))
    for t in range(7):
        A("%s %s, %s, %s" % (CV, v(64 + t), v(Z + 2 * t), v(Z + 2 * t + 1)))
        A.ds("ds_write_b32 v30, %s offset:%d" % (v(64 + t), 128 * t))
    A("s_add_u32 %s, %s, 4096" % (s(sT1), s(sT0)))
    A.st(STN)
    A("s_waitcnt lgkmcnt(0)")
    fstamp(A)
    A("s_barrier")
    fstamp(A)
    A.auto = 0
    A.ds("ds_read_b64_tr_b16 v[20:21], v31")
    A.ds("ds_read_b64_tr_b16 v[22:23], v31 offset:%d" % (4 * HSTR))
    A.ds("ds_read_b64_tr_b16 v[24:25], v31 offset:512")
    A.ds("ds_read_b64_tr_b16 v[26:27], v31 offset:%d" % (4 * HSTR + 512))
    A("v_cmp_gt_u32 vcc, 192, v0")
    A("v_mov_b32 v13, 0x80000000")
    A("v_cndmask_b32 v13, v13, v12, vcc")
    A("v_and_b32 v14, 63, v0")
    A("v_lshlrev_b32 v15, 4, v14")
    A("s_mul_i32 %s, %s, %d" % (s(sT2), s(sWAVE), 2 * HSTR))
    A("s_add_u32 %s, %s, 0x%x" % (s(sT2), s(sT2), SCR + XL))
    A("v_add_u32 v16, %s, v15" % s(sT2))
    A.ds("ds_read_b128 v[32:35], v16")
    A.ds("ds_read_b128 v[36:39], v16 offset:%d" % HSTR)
    A("v_readfirstlane_b32 %s, v1" % s(sT2))
    A("v_mov_b32 v17, 0x80000000")
    A("s_waitcnt lgkmcnt(4)")
    A.vm("buffer_store_dwordx4 v[20:23], v12, %s, %s offen sc1" % (SWS, s(sT0)))
    A("v_cmp_gt_u32 vcc, 56, v14")
    A("s_add_u32 %s, %s, 0x%x" % (s(sT2), s(sT2), xout))
    A("s_add_u32 %s, %s, %d" % (s(sT3), s(sT2), 32 * 896))
    A("v_cndmask_b32 v15, v17, v15, vcc")
    A("s_waitcnt lgkmcnt(2)")
    A.vm("buffer_store_dwordx4 v[24:27], v13, %s, %s offen sc1" % (SWS, s(sT1)))
    A("s_waitcnt lgkmcnt(0)")
    A.vm("buffer_store_dwordx4 v[32:35], v15, %s, %s offen sc1" % (SWS, s(sT2)))
    A.vm("buffer_store_dwordx4 v[36:39], v15, %s, %s offen sc1" % (SWS, s(sT3)))
    A.bg_flush()

ACC, RINGV, WF, RT = 96, 32, 128, 128
DEPTH = int(os.environ.get("DEPTH", 6))
vF1_, vF2_, vTR, vRR, vTW, vTRD, vG0, vG1 = 2, 3, 4, 6, 7, 14, 24, 25
BIAS = 16
NV = 12
TILE = SCR + 24576

def b_consts(R):
    R("v_bfe_u32 v8, v0, 5, 1")
    R("v_mul_u32_u24 v8, 448, v8")
    R("s_lshl_b32 %s, %s, 6" % (s(sC), s(sDT)))
    R("v_add_u32 v8, %s, v8" % s(sC))
    R("v_and_b32 v9, 31, v0")
    R("v_add_lshl_u32 %s, v8, v9, 4" % v(vF1_))
    R("v_lshrrev_b32 %s, 2, v0" % v(vF2_))
    R("v_and_b32 %s, 16, %s" % (v(vF2_), v(vF2_)))
    R("v_xor_b32 v9, v9, %s" % v(vF2_))
    R("v_add_lshl_u32 %s, v8, v9, 4" % v(vF2_))
    R("v_and_b32 v8, 63, v0")
    R("v_lshlrev_b32 v8, 4, v8")
    R("v_add_u32 %s, 0x%x, v8" % (v(vRR), SCR))

def red_addr(A):
    for x in range(4):
        A("s_xor_b32 %s, %s, %d" % (s(sC), s(sWAVE), x))
        A("s_mul_i32 %s, %s, 6144" % (s(sC), s(sC)))
        A("v_add_u32 %s, %s, %s" % (v(10 + x), s(sC), v(vRR)))

def b_all(A, l, hin, uout, xin, first, tail1, skip_pre, vW2, hooks={}):
    cold = []
    sH, sU = sT0, sT1
    seq = [(0, p, q) for p in range(2) for q in range(16)] + [(1, p, q) for p in range(2) for q in range(14)]
    N1 = 32
    tok = {}
    def ld(i, track=True, hs=(0, 1)):
        g, p, q = seq[i]
        r = RINGV + 8 * (i % 8)
        emit_ = A.vm if track else A
        for h in hs:
            if GLD:
                A("s_add_u32 s46, %s, %d" % (s((38, 40)[g]), (2 * q + h) * 14336))
                A("s_addc_u32 s47, %s, 0" % s((39, 41)[g]))
                t_ = emit_("global_load_dwordx4 %s, %s, s[46:47] offset:%d sc1" % (v(r + 4 * h, 4), v((vF1_, vF2_)[g]), 512 * p))
                continue
            A("s_add_u32 %s, %s, %d" % (s(sEND), s((sH, sU)[g]), (2 * q + h) * 14336))
            t_ = emit_("buffer_load_dwordx4 %s, %s, %s, %s offen offset:%d sc1" % (v(r + 4 * h, 4), v((vF1_, vF2_)[g]), SWS, s(sEND), 0 if DIAGHIT else 512 * p))
        return t_
    def branch(i):
        lr, lb = A.newlabel("rty"), A.newlabel("bk")
        A("s_cbranch_vccnz %s" % lr)
        A.label(lb)
        cold.append((lr, lb, i))
    accb = lambda p: (96, 128)[p]
    wfb = lambda p: (128, 96)[p]
    def wop(g, p, ks, wt):
        if g == 0: return a(8 * ks + 4 * wt, 4)
        if ks < NV: return v(W2V + 8 * ks + 4 * wt, 4)
        return v(wfb(p) + 16 * ((ks // 2) % 2) + 8 * (ks % 2) + 4 * wt, 4)
    def wreads(i):
        g, p, q = seq[i]
        if g == 0 or 2 * q < NV: return []
        return ["ds_read_b64_tr_b16 %s, %s offset:%d" % (v(wfb(p) + 16 * (q % 2) + 8 * h + 4 * tl + 2 * rd, 2), v(vTR + tl), (2 * q + h - NV) * 2048 + (0, 8)[rd] * 128)
                for h in range(2) for tl in range(2) for rd in range(2)]
    c0 = -2.0 * math.sqrt(2.0 / math.pi) * math.log2(math.e)
    skip1, skip2, b2e = A.newlabel("b1skip"), A.newlabel("b2skip"), A.newlabel("b2e")
    A("s_mul_i32 %s, %s, %d" % (s(sH), s(sWAVE), 32 * 14336))
    A("s_add_u32 %s, %s, 0x%x" % (s(sH), s(sH), hin))
    A("s_mul_i32 %s, %s, %d" % (s(sU), s(sWAVE), 28 * 14336))
    A("s_add_u32 %s, %s, 0x%x" % (s(sU), s(sU), uout))
    if GLD:
        A("s_add_u32 s38, %s, %s" % (s(sWS), s(sH)))
        A("s_addc_u32 s39, %s, 0" % s(sWS + 1))
        A("s_add_u32 s40, %s, %s" % (s(sWS), s(sU)))
        A("s_addc_u32 s41, %s, 0" % s(sWS + 1))
    A("s_lshr_b32 %s, %s, 1" % (s(sT2), s(sWAVE)))
    A("s_lshl_b32 %s, %s, 5" % (s(sT2), s(sT2)))
    A("s_lshl_b32 %s, %s, 6" % (s(sT3), s(sST)))
    A("s_add_u32 %s, %s, %s" % (s(sT2), s(sT2), s(sT3)))
    A("v_and_b32 v9, 31, v0")
    A("v_add_lshl_u32 v9, v9, %s, 1" % s(sT2))
    A("v_and_b32 v9, 0xfff, v9")
    A.vm("global_load_ushort v26, v9, %s" % s(sB2, 2))
    A("s_cmp_lg_u32 %s, 0" % s(sA1))
    A("s_cbranch_scc1 %s" % skip1)
    A("s_lshl_b32 %s, %s, 5" % (s(sT2), s(sWAVE)))
    A("s_lshl_b32 %s, %s, 7" % (s(sT3), s(sFT)))
    A("s_add_u32 %s, %s, %s" % (s(sT2), s(sT2), s(sT3)))
    A("v_bfe_u32 v9, v0, 5, 1")
    A("v_lshlrev_b32 v9, 3, v9")
    A("v_add_u32 v9, %s, v9" % s(sT2))
    A.vm("global_load_dwordx2 v[28:29], v9, %s" % s(sB1, 2))
    btok = A.vm("global_load_dwordx2 v[30:31], v9, %s offset:16" % s(sB1, 2))
    A("s_lshl_b32 s44, %s, 2" % s(sFT))
    A("s_add_u32 s44, s44, %s" % s(sWAVE))
    A("s_mul_i32 s44, s44, 14336")
    A("s_add_u32 s44, s44, 0x%x" % uout)
    A("s_mov_b32 s42, %s" % fbits(c0 * 0.044715))
    A("s_mov_b32 s43, s42")
    if DLY[3] and (l == 1 or C3MID): A("s_sleep %d" % DLY[3])
    for i in range(DEPTH): tok[i] = ld(i)
    A.wvm(btok)
    for k in range(4):
        A("v_lshlrev_b32 %s, 16, %s" % (v(BIAS + 2 * k), v(28 + k)))
        A("v_and_b32 %s, 0xffff0000, %s" % (v(BIAS + 2 * k + 1), v(28 + k)))
    A("v_mov_b32 v27, %s" % fbits(c0))
    def acc_init(g, p):
        out = []
        for k in range(8):
            out.append("v_mov_b32 %s, %s" % (v(accb(p) + k), v(BIAS + k)) if g == 0 else "v_lshlrev_b32 %s, 16, v26" % v(accb(p) + k))
            out.append("v_mov_b32 %s, 0" % v(accb(p) + 8 + k))
        return out
    for l_ in acc_init(0, 0): A(l_)
    def epilogue(g, p, mid=None):
        R = accb(p); T = R + 8; E = []; tk = {}
        for x in (2, 3, 1):
            for gg in range(2):
                E.append("ds_write_b128 %s, %s offset:%d" % (v(10 + x), v(R + 8 * x + 4 * gg, 4), (x - 1) * 2048 + gg * 1024))
        E.append("BREAK")
        E.append("s_waitcnt lgkmcnt(0)")
        if mid: E.append(mid)
        E.append("s_barrier")
        for k in range(6):
            E.append(lambda k=k: tk.__setitem__(k, A.ds("ds_read_b128 %s, v10 offset:%d" % (v(T + 4 * k, 4), k * 1024))))
        E.append("BREAK")
        for x in range(3):
            E.append(lambda x=x: A.wds(tk[2 * x + 1]))
            for k in range(0, 8, 2): E.append("v_pk_add_f32 %s, %s, %s" % (v(R + k, 2), v(R + k, 2), v(T + 8 * x + k, 2)))
        if g == 0:
            for k in range(0, 8, 2): E.append("v_pk_mul_f32 %s, %s, %s" % (v(T + k, 2), v(R + k, 2), v(R + k, 2)))
            for k in range(0, 8, 2): E.append("v_pk_fma_f32 %s, %s, s[42:43], v[26:27] op_sel:[0,0,1] op_sel_hi:[1,1,1]" % (v(T + k, 2), v(T + k, 2)))
            for k in range(0, 8, 2): E.append("v_pk_mul_f32 %s, %s, %s" % (v(T + k, 2), v(T + k, 2), v(R + k, 2)))
            for k in range(8): E.append("v_exp_f32 %s, %s" % (v(T + k), v(T + k)))
            for k in range(0, 8, 2): E.append("v_pk_add_f32 %s, %s, 1.0 op_sel_hi:[1,0]" % (v(T + k, 2), v(T + k, 2)))
            for k in range(8): E.append("v_rcp_f32 %s, %s" % (v(T + k), v(T + k)))
            for k in range(0, 8, 2): E.append("v_pk_mul_f32 %s, %s, %s" % (v(R + k, 2), v(R + k, 2), v(T + k, 2)))
            for k in range(4): E.append("%s %s, %s, %s" % (CV, v(T + 8 + k), v(R + 2 * k), v(R + 2 * k + 1)))
            E.append("buffer_store_dwordx4 %s, %s, %s, s44 offen offset:%d sc1" % (v(T + 8, 4), v(vF1_), SWS, 512 * p))
        else:
            for k in range(4): E.append("%s %s, %s, %s" % (CV, v(T + k), v(R + 2 * k), v(R + 2 * k + 1)))
            E.append("v_xor_b32 v15, %d, %s" % (64 * p, v(vTW)))
            E.append("ds_write_b64 v15, %s" % v(T, 2))
            E.append("v_xor_b32 v15, %d, %s" % (64 * p + 16, v(vTW)))
            E.append("ds_write_b64 v15, %s" % v(T + 2, 2))
        return E
    eq = []
    def erun(n):
        while eq and n > 0:
            it = eq.pop(0)
            if it == "BREAK":
                if n < 90: return
                A.bg(EBG); continue
            if callable(it): it()
            elif it.startswith("ds_"): A.ds(it)
            elif it.startswith("buffer"): A.vm(it)
            else: A(it)
            n -= 2 if (isinstance(it, str) and ("exp" in it or "rcp" in it)) else 1
    A.wvm(tok[0])
    maxchain(A, range(RINGV, RINGV + 8), 8)
    A("v_cmp_eq_u32 vcc, -1, v8")
    branch(0)
    stamp(A)
    first()
    XV = 64 + 0
    def xissue(track=True):
        e_ = A.vm if track else A
        e_("buffer_load_dwordx4 %s, %s, %s, %s offen sc1" % (v(A.XV, 4), v(vG0), SWS, s(sT2)))
        return e_("buffer_load_dwordx4 %s, %s, %s, %s offen sc1" % (v(A.XV + 4, 4), v(vG1), SWS, s(sT2)))
    for i, (g, p, q) in enumerate(seq):
        nq = (16, 14)[g]
        if i == N1:
            A.label(b2e)
            stamp(A)
        r = RINGV + 8 * (i % 8); rn = RINGV + 8 * ((i + 1) % 8)
        more = i + 1 < len(seq)
        wr = wreads(i + 1) if more else []
        def mf(h, wt):
            acc = v(accb(p) + 16 * wt, 16)
            wreg = wop(g, p, 2 * q + h, wt); freg = v(r + 4 * h, 4)
            AA, BB = (wreg, freg) if g == 0 else (freg, wreg)
            A("%s %s, %s, %s, %s" % (M32, acc, AA, BB, "0" if (q == 0 and h == 0 and wt == 1) else acc))
        mf(0, 1)
        lateb = LATEB and N1 - DEPTH <= i < N1
        nxt = None
        if i + DEPTH < len(seq) and not lateb and (i + DEPTH) not in tok: nxt = i + DEPTH
        elif BOOST == 2 and i + 7 < len(seq) and (i + 7) not in tok and not lateb and i > 8 and q < 8: nxt = i + 7
        if NOLD and l == 1 and nxt is not None:
            tok[nxt] = 0; nxt = None
        if nxt is not None:
            if SPLITLD: ld(nxt, True, (0,))
            else: tok[nxt] = ld(nxt)
        chk = more and not (LATEB and i == N1 - 1)
        if NOCHK and l == 1 and more:
            A.wvm(tok[i + 1]); chk = False
        if i + DEPTH == len(seq):
            A.XV = 16
            A("s_mov_b32 %s, 0x%x" % (s(sT2), xin))
            A.xt = xissue()
            if l == 0:
                A.bgq = poison_ops(A, [T1, H1, U1, X3], 27, 28)
        if l == 0 and wr and i == N1 + NV // 2 - 1: A.wvm(A.last_dma)
        for t_ in wr[:3]: A.ds(t_)
        mf(0, 0)
        erun(EN[0])
        for t_ in wr[3:6]: A.ds(t_)
        if chk:
            A.wvm(tok[i + 1])
            A("v_max3_u32 v8, %s, %s, %s" % (v(rn), v(rn + 1), v(rn + 2)))
            A("v_max3_u32 v9, %s, %s, %s" % (v(rn + 3), v(rn + 4), v(rn + 5)))
        mf(1, 1)
        if nxt is not None and SPLITLD == 1: tok[nxt] = ld(nxt, True, (1,))
        erun(EN[1])
        for t_ in wr[6:]: wtok = A.ds(t_)
        if q == 4: assert not eq or OVL == 0 or g == 0, eq
        if chk:
            A("v_max3_u32 v8, v8, %s, %s" % (v(rn + 6), v(rn + 7)))
            A("v_max_u32 v8, v8, v9")
            A("v_cmp_eq_u32 vcc, -1, v8")
        mf(1, 0)
        if nxt is not None and SPLITLD == 2: tok[nxt] = ld(nxt, True, (1,))
        if chk: branch(i + 1)
        if LATEB and i == N1 - 1:
            for k_ in range(N1, N1 + DEPTH): tok[k_] = ld(k_)
        if i in hooks: hooks[i]()
        if i == N1 - T1AT: tail1()
        erun(EN[2])
        if (p == 1 and q == 9) or (g == 1 and p == 0 and q == 3):
            assert not eq
            A("s_barrier")
        if q == nq - 1 and more:
            for l_ in acc_init(seq[i + 1][0], seq[i + 1][1]): A(l_)
        A.bg(T1N if (i >= N1 - T1AT and i < N1) else 2 if (i + DEPTH >= len(seq) or (C3MID and 12 <= i < 26)) else 1)
        if wr: A.wds(wtok)
        if i == 13: red_addr(A)
        if i == N1 + 8:
            A("v_lshrrev_b32 v15, 6, v0")
            A("v_bfe_u32 v9, v0, 3, 3")
            A("v_lshl_add_u32 v9, v15, 4, v9")
            A("s_lshl_b32 %s, %s, 6" % (s(sT3), s(sST)))
            A("v_add_u32 %s, %s, v9" % (v(vG0), s(sT3)))
            A("v_mul_u32_u24 %s, 896, %s" % (v(vG0), v(vG0)))
            A("v_and_b32 v15, 7, v0")
            A("v_lshl_add_u32 %s, v15, 4, %s" % (v(vG0), v(vG0)))
            A("s_lshl_b32 %s, %s, 7" % (s(sT3), s(sDT)))
            A("v_add_u32 %s, %s, %s" % (v(vG0), s(sT3), v(vG0)))
            A("v_add_u32 %s, %d, %s" % (v(vG1), 8 * 896, v(vG0)))
            A("v_xor_b32 v15, v15, v9")
            A("v_and_b32 v15, 7, v15")
            A("v_lshlrev_b32 %s, 7, v9" % v(vTRD))
            A("v_lshl_add_u32 %s, v15, 4, %s" % (v(vTRD), v(vTRD)))
            A("v_add_u32 %s, 0x%x, %s" % (v(vTRD), TILE, v(vTRD)))
        if i == N1 + 9:
            A("v_bfe_u32 v9, v0, 7, 1")
            A("v_lshlrev_b32 v9, 5, v9")
            A("v_and_b32 v15, 31, v0")
            A("v_add_u32 v9, v9, v15")
            A("v_bfe_u32 v15, v0, 6, 1")
            A("v_lshlrev_b32 v15, 1, v15")
            A("v_xor_b32 v15, v15, v9")
            A("v_and_b32 v15, 7, v15")
            A("v_lshlrev_b32 %s, 7, v9" % v(vTW))
            A("v_lshl_add_u32 %s, v15, 4, %s" % (v(vTW), v(vTW)))
            A("v_bfe_u32 v15, v0, 5, 1")
            A("v_lshl_add_u32 %s, v15, 3, %s" % (v(vTW), v(vTW)))
            A("v_add_u32 %s, 0x%x, %s" % (v(vTW), TILE, v(vTW)))
        if q == nq - 1:
            last = not more
            if p == 1: stamp(A)
            XU = 96
            def xcheck():
                lo, lt = A.newlabel("xok"), A.newlabel("xrty")
                A.wvm(A.xt)
                A.label(lt)
                maxchain(A, range(A.XV, A.XV + 8), 8)
                A("v_cmp_eq_u32 vcc, -1, v8")
                A("s_cbranch_vccz %s" % lo)
                A("s_cmp_eq_u32 %s, 0" % s(sBUD))
                A("s_cbranch_scc1 %s" % lo)
                A("s_sub_u32 %s, %s, 1" % (s(sBUD), s(sBUD)))
                xissue(False)
                A("s_waitcnt vmcnt(0)")
                A("s_branch %s" % lt)
                A.label(lo)
                for k in range(8):
                    A("v_lshlrev_b32 %s, 16, %s" % (v(XU + 2 * k), v(A.XV + k)))
                    A("v_and_b32 %s, 0xffff0000, %s" % (v(XU + 2 * k + 1), v(A.XV + k)))
            if last and l == 1: srd(A, 24, sOUT, S * D * 2)
            if BOOST and more and not (LATEB and i == N1 - 1) and (BOOSTB1 or i != N1 - 1):
                for k_ in range(i + DEPTH + 1, i + 9): tok[k_] = ld(k_)
            eq += epilogue(g, p, xcheck if last else None)
            if p == 1 or not (OVL >> g) & 1:
                erun(1000)
                if g == 0 and p == 1:
                    A.bg_flush()
                    stamp(A)
                    if LATEB:
                        A.wvm(tok[N1])
                        maxchain(A, range(rn, rn + 8), 8)
                        A("v_cmp_eq_u32 vcc, -1, v8")
                        branch(N1)
    dst = (SWS, s(sT2), " sc1") if l == 0 else (SW1, "0", OUTFL)
    if l == 0: A("s_mov_b32 %s, 0x%x" % (s(sT2), X2))
    A("s_waitcnt lgkmcnt(0)")
    A("s_barrier")
    t0 = A.ds("ds_read_b128 v[48:51], %s" % v(vTRD))
    t1 = A.ds("ds_read_b128 v[52:55], %s offset:1024" % v(vTRD))
    XU = 96
    for j in range(2):
        A.wds((t0, t1)[j])
        for k in range(4 * j, 4 * j + 4):
            A("v_lshlrev_b32 %s, 16, %s" % (v(32 + 2 * k), v(48 + k)))
            A("v_and_b32 %s, 0xffff0000, %s" % (v(32 + 2 * k + 1), v(48 + k)))
        for k in range(4 * j, 4 * j + 4):
            A("v_pk_add_f32 %s, %s, %s" % (v(XU + 2 * k, 2), v(XU + 2 * k, 2), v(32 + 2 * k, 2)))
        for k in range(4 * j, 4 * j + 4):
            A("%s %s, %s, %s" % (CV, v(56 + k), v(XU + 2 * k), v(XU + 2 * k + 1)))
        A.vm("buffer_store_dwordx4 %s, %s, %s, %s offen%s" % (v(56 + 4 * j, 4), v(vG0 + j), dst[0], dst[1], dst[2]))
    A.bg_flush()
    done = A.newlabel("bdone")
    def emit_cold():
        A.label(skip1)
        skip_pre()
        A("s_cmp_lg_u32 %s, 0" % s(sA2))
        A("s_cbranch_scc1 %s" % skip2)
        red_addr(A)
        r0 = RINGV + 8 * (N1 % 8)
        poll_loads(A, lambda: ld(N1, False), range(r0, r0 + 8), 8, 32, None, 8)
        if X7D: A("s_sleep %d" % X7D)
        for i in range(N1 + 1, N1 + DEPTH): ld(i, False)
        for l_ in acc_init(1, 0): A(l_)
        A("s_waitcnt vmcnt(0)")
        A("s_branch %s" % b2e)
        A.label(skip2)
        A("s_waitcnt vmcnt(0)")
        if l == 0: poison_list(A, [T1, H1, U1, X3], 32)
        A("s_branch %s" % done)
        for lr, lb, i in cold:
            A.label(lr)
            A("s_cmp_eq_u32 %s, 0" % s(sBUD))
            A("s_cbranch_scc1 %s" % lb)
            A("s_sub_u32 %s, %s, 1" % (s(sBUD), s(sBUD)))
            if SLEEP: A("s_sleep %d" % SLEEP)
            last_ = (DEPTH if i == 0 else min(i + DEPTH, len(seq))) if (i < RALL or i in (N1, N1 + 1, N1 + 14, N1 + 15)) else i + 1
            for k2 in range(i, last_): ld(k2, False)
            A("s_waitcnt vmcnt(0)")
            r = RINGV + 8 * (i % 8)
            maxchain(A, range(r, r + 8), 8)
            A("v_cmp_eq_u32 vcc, -1, v8")
            A("s_cbranch_vccnz %s" % lr)
            A("s_branch %s" % lb)
    A.label(done)
    return emit_cold

def srd(A, d, base, nbytes):
    A("s_mov_b32 %s, %s" % (s(d), s(base)))
    A("s_and_b32 %s, %s, 0xffff" % (s(d + 1), s(base + 1)))
    if isinstance(nbytes, int): A("s_mov_b32 %s, 0x%x" % (s(d + 2), nbytes))
    else: A("s_mov_b32 %s, %s" % (s(d + 2), nbytes))
    A("s_mov_b32 %s, 0x20000" % s(d + 3))

def build():
    A = Asm2()
    KN = NAME + "_kernel"
    def emit(R):
        for l_ in R.l: A(l_)
    A.label(KN)
    A("s_cmp_ge_u32 s2, 256")
    A("s_cbranch_scc1 L_exit")
    A("s_load_dwordx2 %s, s[0:1], 0" % s(sX, 2))
    A("s_getpc_b64 s[36:37]")
    A.label("L_pc")
    if EARLYPF:
        A("v_lshlrev_b32 v150, 5, v0")
        A.vm("global_load_dword v151, v150, s[36:37]" + NT)
    A("s_load_dwordx2 %s, s[0:1], 80" % s(sWS, 2))
    A("s_load_dwordx8 %s, s[0:1], 32" % s(sW1, 8))
    A("s_load_dwordx4 %s, s[0:1], 8" % s(sWR, 4))
    A("s_load_dwordx4 %s, s[0:1], 64" % s(sOUT, 4))
    if DIAG >= 0: A("s_memrealtime s[94:95]" if DIAG != 100 else "s_memtime s[94:95]")
    if PROF:
        for i in range(32): A("s_mov_b32 %s, 0" % s(66 + i))
        A("s_memrealtime s[64:65]")
    A("s_and_b32 %s, s2, 7" % s(sT0))
    A("s_lshr_b32 %s, s2, 3" % s(sT1))
    A("s_lshl_b32 %s, %s, 5" % (s(sW), s(sT0)))
    A("s_add_u32 %s, %s, %s" % (s(sW), s(sW), s(sT1)))
    a1_consts(A)
    A("v_lshrrev_b32 v3, 6, v0")
    A("v_readfirstlane_b32 %s, v3" % s(sWAVE))
    A("s_and_b32 s37, s37, 0xffff")
    A("s_mov_b32 s38, L_code_end-L_pc")
    A("s_mov_b32 s39, 0x20000")
    A("s_lshl_b32 s40, s2, 9")
    A("s_and_b32 s40, s40, 0x1f000")
    A("v_lshlrev_b32 v179, 4, v0")
    A("s_mov_b32 s34, 0x%x" % WS_BYTES)
    A("s_mov_b32 s35, 0x20000")
    A("s_mov_b32 s26, 0x%x" % (S * F * 2))
    A("s_mov_b32 s27, 0x20000")
    A("s_and_b32 s56, s2, 7")
    A("s_lshr_b32 s57, s2, 3")
    A("s_lshl_b32 s58, s57, 2")
    A("s_add_u32 s58, s58, %s" % s(sWAVE))
    A("v_bfe_u32 v152, v0, 5, 1")
    A("v_and_b32 v153, 31, v0")
    A("v_lshlrev_b32 v153, 4, v153")
    A("s_lshl_b32 s59, s56, 9")
    A("v_add_u32 v153, s59, v153")
    A("v_lshl_add_u32 v254, v152, 12, v153")
    A("v_mul_u32_u24 v152, 3584, v152")
    A("v_add_u32 v152, v152, v153")
    A("s_mul_i32 s41, s58, %d" % (16 * 3584))
    A("s_cmp_eq_u32 s56, 7")
    A("s_cselect_b32 s41, 0x80000000, s41")
    A("v_add_u32 v152, s41, v152")
    A("s_mul_i32 s59, s58, %d" % (14 * 4096))
    A("v_add_u32 v254, s59, v254")
    A("s_and_b32 s42, s2, 63")
    A("s_lshr_b32 s43, s2, 6")
    A("v_and_b32 v146, 63, v0")
    A("v_mul_u32_u24 v140, 14, v146")
    A("v_sub_u32 v141, %d, v140" % (445 * 2))
    A("v_cmp_lt_u32 %s, 31, v146" % s(sT5, 2))
    A("s_lshl_b32 s44, s43, 2")
    A("s_add_u32 s44, s44, %s" % s(sWAVE))
    A("v_cndmask_b32 v140, v140, v141, %s" % s(sT5, 2))
    A("s_lshl_b32 s44, s44, 7")
    A("s_add_u32 s44, s44, s42")
    A("v_mov_b32 v142, 1")
    A("v_cndmask_b32 v141, v142, -1, %s" % s(sT5, 2))
    A("s_movk_i32 s45, 450")
    for e in range(2):
        A("v_mul_i32_i24 %s, s44, v141" % v(147 + e))
        A("s_mul_i32 s3, s44, 450")
        A("v_and_b32 %s, 0x7ff, %s" % (v(147 + e), v(147 + e)))
        A("s_add_u32 s3, s3, 448")
        A("v_mad_u32_u24 %s, %s, s45, v140" % (v(147 + e), v(147 + e)))
        A("v_mov_b32 %s, s3" % v(149 + e))
        if e == 0: A("s_add_u32 s44, s44, 64")
    A("v_mov_b32 v140, 0x05040100")
    A("v_mov_b32 v141, 0x07060302")
    A("v_cndmask_b32 v142, v140, v141, %s" % s(sT5, 2))
    A("v_cndmask_b32 v143, v141, v140, %s" % s(sT5, 2))
    A("v_mov_b32 v140, 0x80000000")
    A("v_cndmask_b32 v144, 0, v140, %s" % s(sT5, 2))
    A("s_lshl_b32 s42, s42, 2")
    A("s_add_u32 s42, s42, s43")
    A("s_lshl_b32 s42, s42, 2")
    A("s_add_u32 s42, s42, %s" % s(sWAVE))
    A("s_lshl_b32 s42, s42, 11")
    A("s_add_u32 s3, s42, 0x%x" % WT)
    A("v_lshlrev_b32 v145, 4, v146")
    A("s_waitcnt lgkmcnt(0)")
    if PROF:
        A("s_mov_b32 s66, s64"); nstamp[0] = 1
    A("s_mov_b32 s32, %s" % s(sWS))
    A("s_and_b32 s33, %s, 0xffff" % s(sWS + 1))
    if NCNT:
        lz, lz2 = A.newlabel("nz"), A.newlabel("nz")
        A("s_lshl_b32 %s, s2, 2" % s(sT5))
        A("s_or_b32 %s, %s, %s" % (s(sT5), s(sT5), s(sWAVE)))
        A("s_cmp_lg_u32 %s, 0" % s(sT5))
        A("s_cbranch_scc1 %s" % lz)
        A("v_lshlrev_b32 v12, 7, v0")
        A("v_mov_b32 v13, 0")
        A("s_mov_b32 %s, 0x%x" % (s(sT5), CNT))
        A("buffer_store_dword v13, v12, %s, %s offen sc1" % (SWS, s(sT5)))
        A.label(lz)
        zmark = A.vmn
    for t in range(7): tx = A.vm("global_load_dword %s, v1, %s offset:%d%s" % (v(4 + t), s(sX, 2), 128 * t, NT))
    for e in range(2):
        A.vm("global_load_dwordx2 %s, %s, %s%s" % (v(128 + 4 * e, 2), v(147 + e), s(sWR, 2), NT))
        A.vm("global_load_dwordx2 %s, %s, %s%s" % (v(130 + 4 * e, 2), v(147 + e), s(sWI, 2), NT))
        A.vm("global_load_ushort %s, %s, %s%s" % (v(136 + 2 * e), v(149 + e), s(sWR, 2), NT))
        twp = A.vm("global_load_ushort %s, %s, %s%s" % (v(137 + 2 * e), v(149 + e), s(sWI, 2), NT))
    A.vm("buffer_load_dword v151, v179, s[36:39], s40 offen" + NT)
    A("s_mov_b32 s24, %s" % s(sW1))
    A("s_and_b32 s25, %s, 0xffff" % s(sW1 + 1))
    A("s_mov_b32 s41, 0")
    srd(A, 28, sW2, S * F * 2)
    A("v_mov_b32 v255, v152")
    def wu1(idx, sr):
        for i in idx:
            A("s_mov_b32 %s, %d" % (s(sr), 7168 * i))
            A.vm("buffer_load_dwordx4 v[160:163], v255, %s, %s offen" % (SW1, s(sr)))
    if WU1POS == 0: wu1({1: range(8), 3: (0, 1, 4, 5), 4: (0, 1, 4, 5)}.get(WU1, ()), 41)
    def wu2(i):
        def f():
            A.vm("buffer_load_dwordx4 v[160:163], v254, %s, 0 offen" % SW2)
            A("v_add_u32 v254, 8192, v254")
        return f
    if XP: stamp(A)
    if WU2_AT == "start":
        for i in range(7): wu2(i)()
    if WU1POS == 1: wu1({1: range(8), 3: (0, 1, 4, 5), 4: (0, 1, 4, 5)}.get(WU1, ()), 41)
    poison_list(A, [T0], 154)
    if not FBK:
        if NCNT:
            A("s_lshl_b32 %s, s2, 2" % s(sT5))
            A("s_or_b32 %s, %s, %s" % (s(sT5), s(sT5), s(sWAVE)))
            A("s_cmp_lg_u32 %s, 0" % s(sT5))
            A("s_cbranch_scc1 %s" % lz2)
            A("v_mov_b32 v62, 0")
            A("v_mov_b32 v63, 1")
            A("s_waitcnt vmcnt(%d)" % (A.vmn - zmark))
            A("global_store_dword v62, v63, %s sc1" % s(sDBG, 2))
            A.label(lz2)
    stamp(A)
    if DW == 64:
        A("s_mul_i32 %s, s57, 37" % s(sT2))
        A("s_lshr_b32 %s, %s, 8" % (s(sT2), s(sT2)))
        A("s_mul_i32 %s, %s, 7" % (s(sDT2), s(sT2)))
        A("s_sub_u32 %s, s57, %s" % (s(sDT2), s(sDT2)))
        A("s_cmp_lt_u32 s57, 28")
        A("s_cselect_b32 %s, 0, 0x80000000" % s(sA2))
    else:
        A("s_lshr_b32 %s, s57, 3" % s(sT2))
        A("s_and_b32 %s, s57, 7" % s(sDT2))
        A("s_mov_b32 %s, 0" % s(sA2))
    A("s_lshl_b32 %s, s56, 2" % s(sST))
    A("s_add_u32 %s, %s, %s" % (s(sST), s(sST), s(sT2)))
    if MAP1 == "x":
        A("s_mov_b32 %s, %s" % (s(sFT), s(sST)))
        A("s_mov_b32 %s, %s" % (s(sDT), s(sDT2)))
        A("s_mov_b32 %s, %s" % (s(sROT1), s(sDT2)))
        A("s_cmp_lt_u32 s56, 7")
        A("s_cselect_b32 %s, %s, 0x80000000" % (s(sA1), s(sA2)))
    else:
        A("s_and_b32 %s, s56, 1" % s(sDT))
        A("s_lshl_b32 %s, %s, 2" % (s(sDT), s(sDT)))
        A("s_and_b32 %s, s57, 3" % s(sT2))
        A("s_add_u32 %s, %s, %s" % (s(sDT), s(sDT), s(sT2)))
        A("s_lshl_b32 %s, %s, 1" % (s(sROT1), s(sT2)))
        A("s_lshr_b32 s56, s56, 1")
        A("s_lshr_b32 s57, s57, 2")
        A("s_mul_i32 %s, s56, 7" % s(sFT))
        A("s_add_u32 %s, %s, s57" % (s(sFT), s(sFT)))
        A("s_cmp_lt_u32 %s, %d" % (s(sDT), 448 // DW))
        A("s_cselect_b32 %s, 0, 0x80000000" % s(sA1))
        A("s_mov_b32 %s, %s" % (s(sA2), s(sA1)))
        A("s_cmp_lt_u32 s57, 7")
        A("s_cselect_b32 %s, %s, 0x80000000" % (s(sA1), s(sA1)))
        A("s_lshl_b32 %s, s56, 3" % s(sST))
        A("s_add_u32 %s, %s, s57" % (s(sST), s(sST)))
        A("s_mov_b32 %s, %s" % (s(sDT2), s(sROT1)))
    A("s_lshl_b32 %s, %s, 1" % (s(sSH1), s(sDT)))
    A("s_mov_b32 %s, %s" % (s(sSH2), s(sSH1)))
    if KROT == 3:
        A("s_and_b32 %s, %s, 3" % (s(sT2), s(sFT)))
        A("s_lshl_b32 %s, %s, 2" % (s(sSH1), s(sT2)))
        A("s_mul_i32 %s, %s, 7" % (s(sSH2), s(sT2)))
        A("s_add_u32 %s, %s, 1" % (s(sSH2), s(sSH2)))
        A("s_lshr_b32 %s, %s, 1" % (s(sSH2), s(sSH2)))
    if KROT in (4, 5):
        A("s_and_b32 %s, %s, 3" % (s(sT2), s(sST)))
        A("s_mov_b32 %s, %s" % (s(sSH1), s(sT2)))
        A("s_mov_b32 %s, %s" % (s(sSH2), s(sT2)))
    if not KROT:
        A("s_mov_b32 %s, 0" % s(sSH1))
        A("s_mov_b32 %s, 0" % s(sSH2))
    A("s_mov_b32 %s, 200000" % s(sBUD))
    A("s_lshl_b32 %s, %s, 15" % (s(sRING), s(sWAVE)))
    A("s_mul_i32 %s, %s, %d" % (s(sWB1), s(sWAVE), 8 * 3584))
    A("s_add_u32 %s, %s, %d" % (s(sWB1 + 1), s(sWB1), 1024 * 3584))
    A("s_mul_i32 %s, %s, 14" % (s(sWB2), s(sWAVE)))
    A("s_sub_u32 %s, %s, 14" % (s(sWB2 + 1), s(sWB2)))
    for i in range(3):
        A("s_mov_b32 %s, %s" % (s(SB + 2 * i), fbits(C7[i + 1])))
        A("s_mov_b32 %s, %s" % (s(SB + 2 * i + 1), fbits(C7[i + 1])))
        A("s_mov_b32 %s, %s" % (s(SB + 6 + 2 * i), fbits(S7[i + 1])))
        A("s_mov_b32 %s, %s" % (s(SB + 6 + 2 * i + 1), fbits(S7[i + 1])))
    A("s_lshl_b32 %s, %s, 3" % (s(sT0), s(sWAVE)))
    A("s_add_u32 %s, %s, 0x%x" % (s(sT0), s(sT0), SCR + 16384))
    A("v_lshl_add_u32 v177, v146, 5, %s" % s(sT0))
    A("s_lshl_b32 %s, %s, 11" % (s(sT0), s(sWAVE)))
    A("s_add_u32 %s, %s, 0x%x" % (s(sT0), s(sT0), SCR + 16384))
    A("v_add_u32 v178, %s, v145" % s(sT0))
    w1_voffs(A, PW1, 164)
    DU1 = lambda u, g: dma_chunk(A, 1, 4 * u, 4, PW1, 4 * g)
    DU2 = lambda u, g, vo=PW2: dma_chunk(A, 2, 4 * u, 4, vo, 4 * g)
    R = Rec(); a1_consts2(R); gen_f64(R, 48)
    if SCHED == "unit": A.bgq = DU1(0, 0) + DU1(1, 1)
    A.mix(R.l, 8)
    A.bg_flush()
    stamp(A)
    A.wvm(tx)
    if FBK:
        A("s_lshl_b32 %s, s2, 2" % s(sT0))
        A("s_or_b32 %s, %s, %s" % (s(sT0), s(sT0), s(sWAVE)))
        A("s_cmp_lg_u32 %s, 0" % s(sT0))
        A("s_cbranch_scc1 %s" % lz2)
        A("v_mov_b32 v62, 0")
        A("v_mov_b32 v63, 1")
        A("global_store_dword v62, v63, %s sc1" % s(sDBG, 2))
        A.label(lz2)
    stamp(A)
    WO, WTm = 164, 172
    def whook1():
        A("v_cmp_lt_u32 %s, 31, v146" % s(sT5, 2))
        A("v_cmp_eq_u32 vcc, 32, v146")
        A.wvm(twp)
        for e in range(2):
            r0, i0_ = 128 + 4 * e, 130 + 4 * e
            A("v_cndmask_b32 %s, %s, %s, %s" % (v(WTm), v(r0), v(r0 + 1), s(sT5, 2)))
            A("v_cndmask_b32 %s, %s, %s, %s" % (v(WTm + 1), v(r0 + 1), v(r0), s(sT5, 2)))
            A("v_cndmask_b32 %s, %s, %s, %s" % (v(WTm + 2), v(i0_), v(i0_ + 1), s(sT5, 2)))
            A("v_cndmask_b32 %s, %s, %s, %s" % (v(WTm + 3), v(i0_ + 1), v(i0_), s(sT5, 2)))
            for sl in range(4):
                A("v_perm_b32 %s, %s, %s, %s" % (v(WO + 2 * sl + e), v(WTm + 2 + sl // 2), v(WTm + sl // 2), v(142 + sl % 2)))
                A("v_xor_b32 %s, %s, v144" % (v(WO + 2 * sl + e), v(WO + 2 * sl + e)))
            A("v_lshl_or_b32 %s, %s, 16, %s" % (v(WTm + 4), v(137 + 2 * e), v(136 + 2 * e)))
            A("v_cndmask_b32 %s, %s, %s, vcc" % (v(WO + e), v(WO + e), v(WTm + 4)))
        for sl in range(4):
            A.ds("ds_write_b64 v177, %s offset:%d" % (v(WO + 2 * sl, 2), 2048 * sl))
    def whook2():
        t0 = A.ds("ds_read_b128 %s, v178" % v(WO, 4))
        t1 = A.ds("ds_read_b128 %s, v178 offset:1024" % v(WO + 4, 4))
        def st():
            A.wds(t1)
            A.vm("buffer_store_dwordx4 %s, v145, %s, s3 offen sc1" % (v(WO, 4), SWS))
            A.vm("buffer_store_dwordx4 %s, v145, %s, s3 offen offset:1024 sc1" % (v(WO + 4, 4), SWS))
        return st
    if WHOOK:
        a1_compute(A, Z0, whook1, whook2)
        if NCNT:
            A("v_mov_b32 v11, 0")
            A.vm("global_load_dword v12, v11, %s sc1" % s(sDBG, 2))
    else:
        a1_compute(A, Z0)
        if NCNT:
            A("v_mov_b32 v11, 0")
            A.vm("global_load_dword v12, v11, %s sc1" % s(sDBG, 2))
        whook1()
        A("s_waitcnt lgkmcnt(0)")
        A("s_barrier")
        whook2()()
    stamp(A)
    A("s_waitcnt vmcnt(0)")
    A("s_barrier")
    lw = A.newlabel("nb")
    A("s_cmp_lg_u32 %s, 0" % s(sWAVE))
    A("s_cbranch_scc1 %s" % lw)
    if FBK:
        lt, lo = A.newlabel("fb"), A.newlabel("fbok")
        A("v_cmp_ne_u32 vcc, 0, v12")
        A("v_readfirstlane_b32 s10, v12")
        A("v_mov_b32 v12, 1")
        A("s_mov_b64 exec, 1")
        A("s_cbranch_vccnz %s" % lt)
        A("global_atomic_add v11, v12, %s offset:128 sc1" % s(sDBG, 2))
        A("s_branch %s" % lo)
        A.label(lt)
        A("s_and_b32 %s, s2, %d" % (s(sT0), NCNT - 1))
        A("s_lshl_b32 %s, %s, 7" % (s(sT0), s(sT0)))
        A("s_add_u32 %s, %s, 0x%x" % (s(sT0), s(sT0), CNT))
        A("buffer_atomic_add v12, v11, %s, %s offen sc1" % (SWS, s(sT0)))
        A.label(lo)
    elif NCNT:
        lt, lo = A.newlabel("rdy"), A.newlabel("rdyok")
        A.label(lt)
        A("v_cmp_ne_u32 vcc, 0, v12")
        A("s_cbranch_vccnz %s" % lo)
        A("s_cmp_eq_u32 %s, 0" % s(sBUD))
        A("s_cbranch_scc1 %s" % lo)
        A("s_sub_u32 %s, %s, 1" % (s(sBUD), s(sBUD)))
        A("s_sleep 4")
        A("global_load_dword v12, v11, %s sc1" % s(sDBG, 2))
        A("s_waitcnt vmcnt(0)")
        A("s_branch %s" % lt)
        A.label(lo)
        A("s_and_b32 %s, s2, %d" % (s(sT0), NCNT - 1))
        A("s_lshl_b32 %s, %s, 7" % (s(sT0), s(sT0)))
        A("s_add_u32 %s, %s, 0x%x" % (s(sT0), s(sT0), CNT))
        A("v_mov_b32 v12, 1")
        A("s_mov_b64 exec, 1")
        A("buffer_atomic_add v12, v11, %s, %s offen sc1" % (SWS, s(sT0)))
    else:
        A("s_and_b32 %s, s2, 1" % s(sT0))
        A("s_lshl_b32 %s, %s, 7" % (s(sT0), s(sT0)))
        A("v_mov_b32 v11, %s" % s(sT0))
        A("v_mov_b32 v12, 1")
        A("s_mov_b64 exec, 1")
        A("global_atomic_add v11, v12, %s sc1" % s(sDBG, 2))
    A("s_mov_b64 exec, -1")
    A.label(lw)
    stamp(A)
    if WU2_AT == "beta":
        for i in range(7): wu2(i)()
    A("s_min_u32 %s, %s, 27" % (s(sT0), s(sFT)))
    A("s_lshl_b32 %s, %s, 7" % (s(sT0), s(sT0)))
    A("v_mov_b32 v164, %s" % s(sT0))
    A.vm("global_load_dword v172, v164, %s" % s(sB1, 2))
    A("s_min_u32 %s, %s, 31" % (s(sT0), s(sST)))
    A("s_lshl_b32 %s, %s, 7" % (s(sT0), s(sT0)))
    A("v_mov_b32 v164, %s" % s(sT0))
    A.vm("global_load_dword v172, v164, %s" % s(sB2, 2))
    wu1({2: (0, 1, 4, 5, 2, 3, 6, 7), 3: (2, 3, 6, 7)}.get(WU1, ()), sT0)
    for op in poison_ops(A, ([H0, X1] if PZA == "beta" else []) + ([U0, X2, Z1] if PZB == "beta" else []), 173, 168): op()
    A.p1tok = 0
    R = Rec(); a2_consts(R); f32_gen(R, 48); R.l.remove("W_HERE"); tr_addr(R, PTR1, 8, 164, True); w2_voffs(R, PW2, 164)
    if SCHED == "win": A.bgq = dma_chunk(A, 1, 0, 16, PW1)
    A.mix(R.l, 5)
    A.bg_flush()
    lw = A.newlabel("nb")
    A("s_cmp_lg_u32 %s, 0" % s(sWAVE))
    A("s_cbranch_scc1 %s" % lw)
    A("v_and_b32 v56, %d, v0" % ((NCNT or 2) - 1))
    A("v_lshlrev_b32 v56, 7, v56")
    A("s_mov_b32 %s, 0x%x" % (s(sT0), CNT))
    A("v_and_b32 v59, 1, v0")
    A("v_lshlrev_b32 v59, 7, v59")
    if BDLY: A("s_sleep %d" % BDLY)
    lt, lo = A.newlabel("bar"), A.newlabel("barok")
    A.label(lt)
    if FBK:
        assert NCNT == 32
        A("global_load_dword v58, v59, %s sc1" % s(sDBG, 2))
        A("buffer_load_dword v57, v56, %s, %s offen sc1" % (SWS, s(sT0)))
        A("s_waitcnt vmcnt(0)")
        for m in ("quad_perm:[1,0,3,2]", "quad_perm:[2,3,0,1]", "row_half_mirror", "row_mirror"):
            A("v_add_u32_dpp v57, v57, v57 %s row_mask:0xf bank_mask:0xf" % m)
        A("v_readlane_b32 %s, v58, 0" % s(sT1))
        A("v_readlane_b32 %s, v58, 1" % s(sT2))
        A("v_readlane_b32 %s, v57, 0" % s(sT3))
        A("v_readlane_b32 %s, v57, 16" % s(sC))
        A("s_add_u32 %s, %s, %s" % (s(sT2), s(sT2), s(sT3)))
        A("s_add_u32 %s, %s, %s" % (s(sT2), s(sT2), s(sC)))
        A("s_cmp_eq_u32 s10, 0")
        A("s_cselect_b32 %s, 0, %s" % (s(sT2), s(sT2)))
        A("s_mov_b32 s10, %s" % s(sT1))
        A("s_cmp_ge_u32 %s, 256" % s(sT2))
        A("s_cbranch_scc1 %s" % lo)
    else:
        if NCNT: A("buffer_load_dword v57, v56, %s, %s offen sc1" % (SWS, s(sT0)))
        else: A("global_load_dword v57, v56, %s sc1" % s(sDBG, 2))
        A("s_waitcnt vmcnt(0)")
        A("v_cmp_gt_u32 vcc, %d, v57" % (256 // (NCNT or 2)))
        A("s_cbranch_vccz %s" % lo)
    A("s_cmp_eq_u32 %s, 0" % s(sBUD))
    A("s_cbranch_scc1 %s" % lo)
    A("s_sub_u32 %s, %s, 1" % (s(sBUD), s(sBUD)))
    A("s_sleep %d" % BSLP)
    A("s_branch %s" % lt)
    A.label(lo)
    A.label(lw)
    A("s_barrier")
    stamp(A)
    colds = []
    def fin():
        prof_end(A)
        A("s_endpgm")
    def tr_ops(n, addr, rows, dstfn, slot0=0):
        q = []
        for i in range(slot0, slot0 + n):
            def trp(i=i):
                for tl in range(2):
                    for rd in range(2):
                        A.trtok = A.ds("ds_read_b64_tr_b16 %s, %s offset:%d" % (dstfn(8 * i + 4 * tl + 2 * rd), v(addr + tl), i * 2048 + rows[rd] * 128))
            q.append(trp)
        return q
    def after_tr(ops):
        f = ops[0]
        return [lambda: (A.wds(A.trtok), f())] + ops[1:]
    def waitdma(ops):
        f = ops[0]; tk__ = A.last_dma
        return [lambda: (A.wvm(tk__), f())] + ops[1:]
    def pairs(ops): return [(lambda o=ops[k:k + 2]: [x() for x in o]) for k in range(0, len(ops), 2)]
    def mark(name): return lambda: setattr(A, name, A.last_dma)
    trw1 = lambda n, base, s0: tr_ops(n, PTR1, (0, 4), lambda r: a(base + r, 2), s0)
    for l in range(2):
        zb, tb, hb, ub, xo = ((Z0, T0, H0, U0, X1), (Z1, T1, H1, U1, X3))[l]
        if l == 1:
            A.label("L_layer1")
            for i in range(3):
                A("s_mov_b32 %s, %s" % (s(SB + 2 * i), fbits(C7[i + 1])))
                A("s_mov_b32 %s, %s" % (s(SB + 2 * i + 1), fbits(C7[i + 1])))
                A("s_mov_b32 %s, %s" % (s(SB + 6 + 2 * i), fbits(S7[i + 1])))
                A("s_mov_b32 %s, %s" % (s(SB + 6 + 2 * i + 1), fbits(S7[i + 1])))
            R = Rec(); a1_consts(R); gen_f64(R, 48); a1_consts2(R)
            if F32EARLY: f32_gen(R, 48)
            rest1 = R.l[A1SPLIT:]
            for l_ in R.l[:A1SPLIT]: A(l_)
            A("s_barrier")
            A("s_mov_b32 %s, 0x%x" % (s(sT1), X2))
            def xi():
                for t in range(7): A.vm("buffer_load_dword %s, v1, %s, %s offen offset:%d sc1" % (v(4 + t), SWS, s(sT1), 128 * t))
            FINEON[0] = True
            fstamp(A)
            poll_loads(A, xi, range(4, 11), 11, DLY[0], (lambda: [A(x) for x in rest1]) if rest1 else None)
            stamp(A)
            a1_compute(A, Z1)
            stamp(A)
            R = Rec(); a2_consts(R)
            if not F32EARLY: f32_gen(R, 48)
            k_ = R.l.index("W_HERE")
            for l_ in R.l[:k_]: A(l_)
            A("s_lshl_b32 %s, s2, 13" % s(sT2))
            A("s_add_u32 %s, %s, 0x%x" % (s(sT2), s(sT2), CNT))
            A("s_add_u32 %s, %s, 4096" % (s(sT3), s(sT2)))
            A("v_lshlrev_b32 v57, 4, v0")
            if STASH:
                A.vm("buffer_load_dwordx4 %s, v57, %s, %s offen" % (v(WV, 4), SWS, s(sT2)))
                A.wtok = A.vm("buffer_load_dwordx4 %s, v57, %s, %s offen" % (v(WV + 4, 4), SWS, s(sT3)))
            else: a2_wload(A)
            A.rest2 = R.l[k_ + 1 + A2SPLIT:]
            for l_ in R.l[k_ + 1:k_ + 1 + A2SPLIT]: A(l_)
            fstamp(A)
            A("s_barrier")
        late = SCHED == "late"
        def a2_after():
            if l == 0:
                if WU2_AT == "a2":
                    for i in range(7): wu2(i)()
                if PZA == "a2":
                    for op in poison_ops(A, [H0, X1], 173, 168, False): op()
                    A.p1tok = A.ptok
                A.bgq = ([] if late else trw1(16, 0, 0)) + (poison_ops(A, [U0, X2, Z1], 173, 168, False) if PZB == "a2" else [])
        a2_phase(A, zb, tb, l == 1, a2_after)
        stamp(A)
        if STOP == 2 + 5 * l: fin(); break
        R = Rec(); a3_consts(R)
        if l == 0:
            if WU2_AT == "w23":
                for i in range(7): wu2(i)()
            if PZB == "w23":
                for op in poison_ops(A, [U0, X2, Z1], 173, 168, False): op()
            A("s_waitcnt lgkmcnt(0)")
            A.bgq = dma_chunk(A, 1, 0 if late else 16, 16, PW1)
        A.mix(R.l, 2)
        A.bg_flush()
        A("s_barrier")
        def a3_after():
            if l == 0:
                if WU2_AT == "a3":
                    for i in range(7): wu2(i)()
                A.bgq = trw1(16, 0 if late else 128, 0)
        a3_phase(A, l, tb, xo, hb, a3_after, (lambda: None) if l == 0 else None)
        stamp(A)
        if STOP == 3 + 5 * l: fin(); break
        R = Rec(); b_consts(R); tr_addr(R, vTR, 4, 8)
        VW2 = 28
        if l == 0:
            A("s_waitcnt lgkmcnt(0)")
            if not C3MID: A.bgq = dma_chunk(A, 2, 0, 12, PW2)
        A.mix(R.l, 2)
        A.bg_flush()
        A("s_barrier")
        trw2 = lambda: tr_ops(12, vTR, (0, 8), lambda r: v(W2V + r, 2))
        def b1_tail():
            if l == 0:
                A.bg_flush()
                A("s_waitcnt lgkmcnt(0)")
                A.bgq = dma_chunk(A, 2, 12, 16, VW2)
        def b1_first():
            if l == 0:
                R2 = Rec(); w2_voffs(R2, VW2, 14)
                A.bgq = ([] if C3MID else trw2()) + [(lambda o=R2.l[k:k + 4]: [A(x) for x in o]) for k in range(0, len(R2.l), 4)]
        hooks = {}
        if l == 0 and CPF2:
            def h_cpf():
                A("s_getpc_b64 s[36:37]")
                A.label("L_pc2")
                A("s_add_u32 s36, s36, L_layer1-L_pc2")
                A("s_addc_u32 s37, s37, 0")
                A("s_and_b32 s37, s37, 0xffff")
                A("s_mov_b32 s38, L_code_end-L_layer1")
                A("s_mov_b32 s39, 0x20000")
                A("s_lshr_b32 s40, s2, 3")
                A("s_lshl_b32 s40, s40, 10")
                A("v_lshlrev_b32 v15, 2, v0")
                A.vm("buffer_load_dword v15, v15, s[36:39], s40 offen")
            hooks[CPF2] = h_cpf
        if l == 0 and C3MID:
            def h_c3(): A.bgq = dma_chunk(A, 2, 0, 12, VW2)
            def h_tr():
                A.bg_flush()
                A.trwait = A.last_dma
            def h_tr2():
                A.wvm(A.trwait)
                A.bgq = pairs(trw2())
            hooks = {C3MID: h_c3, 20: h_tr, 22: h_tr2}
        def skip_pre(l=l):
            A("s_waitcnt vmcnt(0)")
            if l == 0:
                w2_voffs(A, VW2, 14)
                if C3MID:
                    for op in dma_chunk(A, 2, 0, 12, VW2): op()
                    A("s_waitcnt vmcnt(0)")
                for op in trw2(): op()
                A("s_waitcnt lgkmcnt(0)")
                for op in dma_chunk(A, 2, 12, 16, VW2): op()
                A("v_mul_u32_u24 v16, 7168, v0")
                A("s_mov_b32 %s, 0x%x" % (s(sT2), H0))
                def hi_():
                    A("buffer_load_dword v17, v16, %s, %s offen sc1" % (SWS, s(sT2)))
                    A("v_mov_b32 v18, 0")
                    A("v_mov_b32 v19, 0")
                poll_loads(A, hi_, range(17, 20), 20, 16)
                A("s_barrier")
        colds.append(b_all(A, l, hb, ub, xo, b1_first, b1_tail, skip_pre, VW2, hooks))
        stamp(A)
        if STOP == 5 + 5 * l: fin(); break
    else:
        fin()
    for c in colds: c()
    A.label("L_exit")
    A("s_endpgm")
    A.label("L_code_end")
    lines, n = fix_hazards_fast(A.lines)
    if ALIGN:
        lines, fx, lf = align_pass(lines, ALIGN, ALNOP)
        print("align fixed", fx, "left", lf, file=sys.stderr)
    pr = [p for p in lint_waits(lines) if "overflow" not in p[2]]
    for p in pr[:6]: print("LINT", p, file=sys.stderr)
    hdr = open("cdna_kernels/%s.s.ref" % NAME).read().split("; Override launch")[0]
    out = hdr + "; @launch grid=(256,1,1) block=(256,1,1) lds=%d\n" % LDS_TOTAL
    out += '.amdgcn_target "amdgcn-amd-amdhsa--gfx950"\n.text\n.globl %s\n.p2align 8\n.type %s,@function\n' % (KN, KN)
    out += "\n".join(lines) + "\n"
    out += """.section .rodata,"a"
.p2align 6
.amdhsa_kernel %s
  .amdhsa_next_free_vgpr 512
  .amdhsa_next_free_sgpr 102
  .amdhsa_accum_offset 256
  .amdhsa_group_segment_fixed_size 0
  .amdhsa_kernarg_size 88
  .amdhsa_user_sgpr_count 2
  .amdhsa_user_sgpr_kernarg_segment_ptr 1
  .amdhsa_system_sgpr_workgroup_id_x 1
.end_amdhsa_kernel
""" % KN
    print("nops inserted:", n, "lines:", len(lines), "stamps:", nstamp[0], file=sys.stderr)
    return out

if __name__ == "__main__":
    outp = sys.argv[1] if len(sys.argv) > 1 else "p1.s"
    open(outp, "w").write(build())
    import subprocess
    r = subprocess.run(["clang", "-x", "assembler", "-target", "amdgcn-amd-amdhsa", "-mcpu=gfx950", "-c", outp, "-o", "chk.o"], capture_output=True, text=True)
    if r.returncode: print("ASM ERROR", r.stderr[:1500])
    else:
        o = subprocess.run(["llvm-readelf", "-S", "chk.o"], capture_output=True, text=True).stdout
        print("text bytes", [int(l.split()[-6 if len(l.split()) > 10 else -5], 16) for l in o.splitlines() if " .text" in l], file=sys.stderr)
```

```python
import math, struct, sys, os
from asmlib import *

NAME = "interleave_layers__spectral_gfnet__mixer_token_mlp__prompt"
S, D, F = 2048, 448, 1792
MB2 = 0x200000
Z0, Z1, T0, T1, WT, X1, X2, X3, H0, H1, U0, U1, CNT = [MB2 * i for i in range(13)]
WS_BYTES = 0x2000000
PROFOFF = 0x1C00000
PROF = int(os.environ.get("PROF", 0))
STOP = int(os.environ.get("STOP", 99))
SLEEP = int(os.environ.get("SLEEP", 2))
WUPRE = int(os.environ.get("WUPRE", 4))
XP = int(os.environ.get("XP", 0)); WU2_AT = os.environ.get("WU2_AT", "a3"); WU2FL = os.environ.get("WU2FL", " nt"); DMAFL = os.environ.get("DMAFL", "")
NT = os.environ.get("NT", "")
SCHED = os.environ.get("SCHED", "win")
DLY = [int(x) for x in os.environ.get("DLY", "0,0,10,12,12").split(",")]
MAP = os.environ.get("MAP", "x"); KROT = int(os.environ.get("KROT", 0))
AUTO2 = int(os.environ.get("AUTO2", 9)); AUTO3 = int(os.environ.get("AUTO3", 7))
FAKE16 = int(os.environ.get("FAKE16", 0))
STFL = os.environ.get("STFL", " sc1")
assert int(os.environ.get("FULLB", 1)) or STFL == " sc1"
PRE1 = int(os.environ.get("PRE1", 32)); PRE2 = int(os.environ.get("PRE2", 32))
DW = int(os.environ.get("DW", 64)); MAP1 = os.environ.get("MAP1", "x"); X2T = int(os.environ.get("X2T", 1))
OUTFL = os.environ.get("OUTFL", "").replace("_", " ")
EXM = int(os.environ.get("EXM", 0))
ALIGN = int(os.environ.get("ALIGN", 0)); ALNOP = int(os.environ.get("ALNOP", 0))
F32EARLY = int(os.environ.get("F32EARLY", 0))
PZ = int(os.environ.get("PZ", 1))
STASH = int(os.environ.get("STASH", 0)); STASHFL = os.environ.get("STASHFL", "").replace("_", " ")
RALL = int(os.environ.get("RALL", 2))
WU1POS = int(os.environ.get("WU1POS", 1))
STN = int(os.environ.get("STN", 0)); STM = int(os.environ.get("STM", 0))
WHOOK = int(os.environ.get("WHOOK", 1)); C4IN = os.environ.get("C4IN", "win")
NCNT = int(os.environ.get("NCNT", 32)); BDLY = int(os.environ.get("BDLY", 0)); BSLP = int(os.environ.get("BSLP", 2))
LATEB = int(os.environ.get("LATEB", 0)); OVL = int(os.environ.get("OVL", 2)); T1AT = int(os.environ.get("T1AT", 6)); T1N = int(os.environ.get("T1N", 2)); EBG = int(os.environ.get("EBG", 6)); BOOST = int(os.environ.get("BOOST", 2)); BOOSTB1 = int(os.environ.get("BOOSTB1", 0)); EN = [int(x) for x in os.environ.get("EN", "6,4,6,0").split(",")]
SPLITLD = int(os.environ.get("SPLITLD", 1))
DIAGHIT = int(os.environ.get("DIAGHIT", 0))
NOCHK = int(os.environ.get("NOCHK", 0)); NOLD = int(os.environ.get("NOLD", 0))
C3MID = int(os.environ.get("C3MID", 0))
A1SPLIT = int(os.environ.get("A1SPLIT", 999)); A2SPLIT = int(os.environ.get("A2SPLIT", 999))
FBK = int(os.environ.get("FBK", 0)); EARLYPF = int(os.environ.get("EARLYPF", 1))
CPF2 = int(os.environ.get("CPF2", 0))
PZA = os.environ.get("PZA", "a2"); PZB = os.environ.get("PZB", "a2")
GLD = int(os.environ.get("GLD", 0))
X7D = int(os.environ.get("X7D", 0))
FASTR = int(os.environ.get("FASTR", 1))
SCAL = int(os.environ.get("SCAL", 1))
PAUSE = [int(x) for x in os.environ.get("PAUSE", "0,0").split(",")]
_l = lambda k, d: [int(x) for x in os.environ.get(k, d).split(",")]
ENG = [_l("EN0", "6,4,6,2"), _l("EN1", "6,4,6,0")]; PAUSEG = [_l("PAUSE0", "5,2"), _l("PAUSE1", "0,0")]
MASKED = int(os.environ.get("MASKED", 1)); FULLB = int(os.environ.get("FULLB", 1))
ROT = int(os.environ.get("ROT", 1)); WU1 = int(os.environ.get("WU1", 3))

def fbits(x): return "0x%08x" % struct.unpack("<I", struct.pack("<f", x))[0]
C7 = [math.cos(2 * math.pi * r / 7) for r in range(4)]
S7 = [math.sin(2 * math.pi * r / 7) for r in range(4)]
CV = "v_cvt_pk_bf16_f32"; M16 = "v_mfma_f32_16x16x32_bf16"; M32 = "v_mfma_f32_32x32x16_bf16"

sX, sWS, sWR, sWI, sW1, sB1, sW2, sB2, sOUT, sDBG = 4, 6, 8, 10, 12, 14, 16, 18, 20, 22
SW1, SW2, SWS = "s[24:27]", "s[28:31]", "s[32:35]"
SB = 36
sW, sWAVE, sDT, sFT, sST, sA1, sA2, sBUD = 48, 49, 50, 51, 52, 53, 54, 55
sT0, sT1, sT2, sT3 = 56, 57, 58, 59
sRING, sT4, sT5, sT6 = 60, 61, 62, 63
sC = 98
sWB1, sWB2 = 12, 16
sDT2, sROT1 = 64, 65
sSH1, sSH2, sEND = 99, 100, 101
SCR = 131072
LDS_TOTAL = 163840
LSTR = 272
YSTR = 448 * 4 + 64
HSTR = 896 + 32
A3_Y = 32 * LSTR
A3_H = A3_Y + 8 * YSTR
XL = 0
F64R, F64I = 96, 112
W2V = 160

nstamp = [0]
CLK = [int(x) for x in os.environ.get("CLK", "").split(",") if x]
BUDA = [int(x) for x in os.environ.get("BUDA", "22,23").split(",")]
BUDB = [int(x) for x in os.environ.get("BUDB", "23,24").split(",")]
FINE = int(os.environ.get("FINE", 0)); FINEON = [False]
def fstamp(A):
    if FINE: stamp(A)
DIAG = int(os.environ.get("DIAG", -1))
ndiag = [1]
def stamp(A):
    if DIAG >= 0:
        if ndiag[0] == DIAG:
            A("s_memrealtime s[96:97]")
            A("s_waitcnt lgkmcnt(0)")
        ndiag[0] += 1
    if not PROF: return
    if FINE and not FINEON[0]: return
    i = nstamp[0]; nstamp[0] += 1
    assert i < 32
    A("s_memrealtime s[8:9]")
    A("s_waitcnt lgkmcnt(0)")
    A("s_mov_b32 %s, s8" % s(66 + i))
    if CLK and i in CLK:
        A("s_memtime s[8:9]")
        A("s_waitcnt lgkmcnt(0)")
        if i == CLK[0]: A("s_mov_b32 s97, s8")
        else: A("s_sub_u32 s97, s8, s97")
        return
    for slot, st in ((30, BUDA), (31, BUDB)) if not CLK else ():
        if i == st[0]: A("s_mov_b32 %s, %s" % (s(66 + slot), s(sBUD)))
        if i == st[1]:
            A("s_sub_u32 %s, %s, %s" % (s(66 + slot), s(66 + slot), s(sBUD)))
            A("s_add_u32 %s, %s, 1000" % (s(66 + slot), s(66 + slot)))

def prof_end(A):
    if DIAG >= 0:
        stamp(A)
        l1, l2 = A.newlabel("dg"), A.newlabel("dg")
        A("s_cmp_lg_u32 s2, 75")
        A("s_cbranch_scc1 %s" % l2)
        A("s_memrealtime s[92:93]")
        A("s_waitcnt lgkmcnt(0)")
        if DIAG == 100:
            A("s_memtime s[96:97]")
            A("s_waitcnt lgkmcnt(0)")
        A("s_sub_u32 s96, s96, s94")
        if DIAG == 100: A("s_lshr_b32 s96, s96, 5")
        A("s_min_u32 s96, s96, 20000")
        A.label(l1)
        A("s_memrealtime s[90:91]")
        A("s_waitcnt lgkmcnt(0)")
        A("s_sub_u32 s90, s90, s92")
        A("s_cmp_lt_u32 s90, s96")
        A("s_cbranch_scc1 %s" % l1)
        A.label(l2)
    if not PROF: return
    A("s_waitcnt vmcnt(0)")
    stamp(A)
    n = 32
    A("s_lshl_b32 s56, s2, 9")
    A("s_add_u32 s56, s56, 0x%x" % PROFOFF)
    A("v_lshrrev_b32 v1, 6, v0")
    A("v_lshlrev_b32 v1, 7, v1")
    for i in range(n):
        A("v_mov_b32 v2, %s" % s(66 + i))
        A("buffer_store_dword v2, v1, %s, s56 offen offset:%d" % (SWS, 4 * i))

def c7(r):
    r %= 7; r = min(r, 7 - r); return s(SB + 2 * (r - 1), 2)
def s7(r):
    r %= 7
    return (s(SB + 6 + 2 * (r - 1), 2), 1) if r <= 3 else (s(SB + 6 + 2 * (7 - r - 1), 2), -1)

def red32(R, x, t):
    for m in ("quad_perm:[1,0,3,2]", "quad_perm:[2,3,0,1]", "row_half_mirror", "row_mirror"):
        R("v_add_f32_dpp %s, %s, %s %s row_mask:0xf bank_mask:0xf" % (v(x), v(x), v(x), m))
    R("v_mov_b32 %s, %s" % (v(t), v(x)))
    R("v_permlane16_swap_b32 %s, %s" % (v(x), v(t)))
    R("v_add_f32 %s, %s, %s" % (v(x), v(x), v(t)))

def gen_frags(R, nidx, qreg, ksteps, denom, dre, dim, tmp):
    nf, ang, n13 = tmp, tmp + 1, tmp + 2
    R("v_cvt_f32_u32 %s, %s" % (v(nf), v(nidx)))
    R("v_cvt_f32_u32 %s, %s" % (v(ang), v(qreg)))
    R("v_mul_f32 %s, %s, %s" % (v(nf), fbits(1.0 / denom), v(nf)))
    R("v_mul_f32 %s, 4.0, %s" % (v(ang), v(ang)))
    R("v_mul_f32 %s, %s, %s" % (v(n13), fbits(13.0), v(nf)))
    R("v_mul_f32 %s, %s, %s" % (v(ang), v(ang), v(nf)))
    n = 4 * ksteps
    def sc(i): return tmp + 3 + 2 * (i % 2), tmp + 4 + 2 * (i % 2)
    for i in range(n + 1):
        if i < n:
            cs, sn = sc(i)
            R("v_cos_f32 %s, %s" % (v(cs), v(ang)))
            R("v_sin_f32 %s, %s" % (v(sn), v(ang)))
            if i < n - 1: R("v_add_f32 %s, %s, %s" % (v(ang), v(ang), v(nf if i % 4 < 3 else n13)))
        if i > 0:
            cs, sn = sc(i - 1)
            R("%s %s, %s, %s" % (CV, v(dre + i - 1), v(cs), v(sn)))
            R("%s %s, -%s, %s" % (CV, v(dim + i - 1), v(sn), v(cs)))

def gen_f64(R, tmp):
    R("v_lshrrev_b32 %s, 6, v0" % v(tmp + 7))
    R("v_and_b32 %s, 15, v0" % v(tmp + 8))
    R("v_lshl_add_u32 %s, %s, 4, %s" % (v(tmp + 7), v(tmp + 7), v(tmp + 8)))
    R("v_bfe_u32 %s, v0, 4, 2" % v(tmp + 8))
    gen_frags(R, tmp + 7, tmp + 8, 4, 64, F64R, F64I, tmp)

def unpack7(R, src, dst):
    for t in range(7):
        R("v_lshlrev_b32 %s, 16, %s" % (v(dst + 2 * t), v(src + t)))
        R("v_and_b32 %s, 0xffff0000, %s" % (v(dst + 2 * t + 1), v(src + t)))

def stats_streams(z, a1, a2, t1, t2):
    R1 = Rec(); R2 = Rec()
    R1("v_pk_add_f32 %s, %s, %s" % (v(a1, 2), v(z, 2), v(z + 2, 2)))
    for k in range(2, 7): R1("v_pk_add_f32 %s, %s, %s" % (v(a1, 2), v(a1, 2), v(z + 2 * k, 2)))
    R1("v_add_f32 %s, %s, %s" % (v(a1), v(a1), v(a1 + 1)))
    red32(R1, a1, t1)
    R2("v_pk_mul_f32 %s, %s, %s" % (v(a2, 2), v(z, 2), v(z, 2)))
    for k in range(1, 7): R2("v_pk_fma_f32 %s, %s, %s, %s" % (v(a2, 2), v(z + 2 * k, 2), v(z + 2 * k, 2), v(a2, 2)))
    R2("v_add_f32 %s, %s, %s" % (v(a2), v(a2), v(a2 + 1)))
    red32(R2, a2, t2)
    return R1.l, R2.l

def mean_var(A, a1, a2):
    A("v_mul_f32 %s, %s, %s" % (v(a1), fbits(1.0 / D), v(a1)))
    A("v_mul_f32 %s, %s, %s" % (v(a2), fbits(1.0 / D), v(a2)))
    A("v_fma_f32 %s, -%s, %s, %s" % (v(a2), v(a1), v(a1), v(a2)))
    A("v_max_f32 %s, 0, %s" % (v(a2), v(a2)))

def poison(A, region, vtid16, vm1):
    A("s_lshl_b32 %s, s2, 13" % s(sT3))
    A("s_add_u32 %s, %s, 0x%x" % (s(sT3), s(sT3), region))
    A.vm("buffer_store_dwordx4 %s, %s, %s, %s offen sc1" % (v(vm1, 4), v(vtid16), SWS, s(sT3)))
    A("s_add_u32 %s, %s, 4096" % (s(sT3), s(sT3)))
    A.ptok = A.vm("buffer_store_dwordx4 %s, %s, %s, %s offen sc1" % (v(vm1, 4), v(vtid16), SWS, s(sT3)))

def poison_list(A, regions, t):
    A("v_lshlrev_b32 %s, 4, v0" % v(t))
    for k in range(4): A("v_mov_b32 %s, -1" % v(t + 2 + k))
    for r in regions: poison(A, r, t, t + 2)

def poison_ops(A, regions, va, vd, setup=True):
    ops = []
    if setup:
        def st():
            A("v_lshlrev_b32 %s, 4, v0" % v(va))
            for k in range(4): A("v_mov_b32 %s, -1" % v(vd + k))
        ops.append(st)
    for r in regions:
        for h in range(2):
            def op(r=r, h=h):
                A("s_lshl_b32 %s, s2, 13" % s(sC))
                A("s_add_u32 %s, %s, 0x%x" % (s(sC), s(sC), r + 4096 * h))
                A.ptok = A.vm("buffer_store_dwordx4 %s, %s, %s, %s offen sc1" % (v(vd, 4), v(va), SWS, s(sC)))
            ops.append(op)
    return ops

def maxchain(A, regs, t):
    regs = list(regs)
    A("v_max3_u32 %s, %s, %s, %s" % (v(t), v(regs[0]), v(regs[1]), v(regs[2])))
    regs = regs[3:]
    while len(regs) >= 2:
        A("v_max3_u32 %s, %s, %s, %s" % (v(t), v(t), v(regs[0]), v(regs[1]))); regs = regs[2:]
    if regs: A("v_max_u32 %s, %s, %s" % (v(t), v(t), v(regs[0])))

def poll_loads(A, issue, regs, t, dly=0, after=None, slp=None):
    lt, lo = A.newlabel("poll"), A.newlabel("pollok")
    if dly: A("s_sleep %d" % dly)
    if after:
        lc = A.newlabel("pollc")
        issue(); tk_ = A.vmn - 1
        after()
        A.wvm(tk_)
        A("s_branch %s" % lc)
        n0 = A.vmn
    A.label(lt)
    issue()
    A("s_waitcnt vmcnt(0)")
    if after:
        A.vmn = n0
        A.label(lc)
    maxchain(A, regs, t)
    A("v_cmp_eq_u32 vcc, -1, %s" % v(t))
    A("s_cbranch_vccz %s" % lo)
    A("s_cmp_eq_u32 %s, 0" % s(sBUD))
    A("s_cbranch_scc1 %s" % lo)
    A("s_sub_u32 %s, %s, 1" % (s(sBUD), s(sBUD)))
    if MASKED: A("s_mov_b64 exec, vcc")
    if slp or SLEEP: A("s_sleep %d" % (slp or SLEEP))
    A("s_branch %s" % lt)
    A.label(lo)
    if MASKED: A("s_mov_b64 exec, -1")

def dma_lane(R, dst, rowstride, t):
    R("v_bfe_u32 %s, v0, 3, 3" % v(t))
    R("s_mov_b32 %s, %d" % (s(sC), rowstride))
    R("v_mul_lo_u32 %s, %s, %s" % (v(dst), v(t), s(sC)))
    R("v_bfe_u32 %s, v0, 4, 1" % v(t))
    R("v_lshlrev_b32 %s, 2, %s" % (v(t), v(t)))
    R("v_and_b32 %s, 7, v0" % v(t + 1))
    R("v_xor_b32 %s, %s, %s" % (v(t), v(t), v(t + 1)))
    R("v_lshl_add_u32 %s, %s, 4, %s" % (v(dst), v(t), v(dst)))

def w1_voffs(R, dst, t):
    dma_lane(R, dst, 32 * 3584, t)
    R("s_lshl_b32 %s, %s, 7" % (s(sC), s(sFT)))
    R("s_or_b32 %s, %s, %s" % (s(sC), s(sC), s(sA1)))
    R("v_add_u32 %s, %s, %s" % (v(dst), s(sC), v(dst)))
    for i in range(1, 4):
        qd, h = i // 2, i % 2
        R("v_add_u32 %s, 0x%x, %s" % (v(dst + i), (512 * qd + 256 * h) * 3584 - ((qd % 2) * 2 + h) * 1024, v(dst)))

def w2_voffs(R, dst, t):
    dma_lane(R, dst, 4096, t)
    R("s_lshl_b32 %s, %s, 7" % (s(sC), s(sST)))
    R("s_or_b32 %s, %s, %s" % (s(sC), s(sC), s(sA2)))
    R("v_add_u32 %s, %s, %s" % (v(dst), s(sC), v(dst)))
    for i in range(1, 4):
        p, h = i // 2, i % 2
        R("v_add_u32 %s, 0x%x, %s" % (v(dst + i), p * 65536 + h * 32768 - (p * 2 + h) * 1024, v(dst)))

def tr_addr(R, dst, rowsel_hi, t, swap16=False):
    R("v_bfe_u32 %s, v0, 2, 2" % v(t))
    R("v_bfe_u32 %s, v0, 5, 1" % v(t + 1))
    R("v_mul_u32_u24 %s, %d, %s" % (v(t + 1), rowsel_hi, v(t + 1)))
    R("v_add_u32 %s, %s, %s" % (v(t + 1), v(t + 1), v(t)))
    R("v_lshlrev_b32 %s, 7, %s" % (v(dst), v(t + 1)))
    R("v_lshrrev_b32 %s, 4, v0" % v(t))
    R("v_xor_b32 %s, %s, v0" % (v(t), v(t)))
    R("v_bfe_u32 %s, %s, 3, 1" % (v(t), v(t)))
    R("v_lshl_add_u32 %s, %s, 6, %s" % (v(dst), v(t), v(dst)))
    if swap16:
        R("v_lshrrev_b32 %s, 2, v0" % v(t))
        R("v_xor_b32 %s, %s, v0" % (v(t), v(t)))
        R("v_bfe_u32 %s, %s, 4, 1" % (v(t), v(t)))
    else:
        R("v_bfe_u32 %s, v0, 4, 1" % v(t))
    R("v_lshl_add_u32 %s, %s, 5, %s" % (v(dst), v(t), v(dst)))
    R("v_and_b32 %s, 3, v0" % v(t))
    R("v_lshl_add_u32 %s, %s, 3, %s" % (v(dst), v(t), v(dst)))
    R("v_add_u32 %s, %s, %s" % (v(dst), s(sRING), v(dst)))
    R("v_xor_b32 %s, 64, %s" % (v(dst + 1), v(dst)))

def dma_chunk(A, which, ks0, n, voff, slot0=0):
    ops = []
    assert ks0 % 2 == 0 and n % 2 == 0
    for p in range(n // 2):
        for k in range(4):
            def op(p=p, k=k):
                if k == 0:
                    npair = n // 2
                    if KROT == 1:
                        A("s_add_u32 m0, %s, %d" % (s(sRING), (slot0 + 2 * p) * 2048))
                        A("s_add_u32 %s, %s, %d" % (s(sT4), s(sSH1 if which == 1 else sSH2), ks0 // 2 + p))
                    else:
                        if p == 0:
                            A("s_mov_b32 %s, %s" % (s(sT6), s(sROT1 if which == 1 else sDT2)))
                            for _ in range((7 // npair)):
                                A("s_cmp_ge_u32 %s, %d" % (s(sT6), npair))
                                A("s_cselect_b32 %s, %d, 0" % (s(sT4), npair))
                                A("s_sub_u32 %s, %s, %s" % (s(sT6), s(sT6), s(sT4)))
                        else:
                            A("s_add_u32 %s, %s, 1" % (s(sT6), s(sT6)))
                            A("s_cmp_eq_u32 %s, %d" % (s(sT6), npair))
                            A("s_cselect_b32 %s, 0, %s" % (s(sT6), s(sT6)))
                        A("s_lshl_b32 %s, %s, 12" % (s(sT4), s(sT6)))
                        A("s_add_u32 %s, %s, %s" % (s(sT4), s(sT4), s(sRING)))
                        A("s_add_u32 m0, %s, %d" % (s(sT4), slot0 * 2048))
                        A("s_add_u32 %s, %s, %d" % (s(sT4), s(sT6), ks0 // 2))
                        if KROT == 5:
                            if which == 2 and ks0 // 2 + npair > 12:
                                A("s_cmp_ge_u32 %s, 12" % s(sT4))
                                A("s_cselect_b32 s3, 1, 3")
                            else:
                                A("s_mov_b32 s3, 3")
                            A("s_add_u32 %s, %s, %s" % (s(sT5), s(sT4), s(sSH1)))
                            A("s_and_b32 %s, %s, s3" % (s(sT5), s(sT5)))
                            A("s_andn2_b32 %s, %s, s3" % (s(sT4), s(sT4)))
                            A("s_or_b32 %s, %s, %s" % (s(sT4), s(sT4), s(sT5)))
                        elif KROT: A("s_add_u32 %s, %s, %s" % (s(sT4), s(sT4), s(sSH1 if which == 1 else sSH2)))
                    if which == 1:
                        A("s_bfe_u32 %s, %s, 0x30001" % (s(sT5), s(sT4)))
                        A("s_bitcmp1_b32 %s, 0" % s(sT4))
                        A("s_cselect_b32 %s, %s, %s" % (s(sT4), s(sWB1 + 1), s(sWB1)))
                        A("s_mul_i32 %s, %s, 3584" % (s(sT5), s(sT5)))
                        A("s_add_u32 %s, %s, %s" % (s(sT5), s(sT5), s(sT4)))
                    else:
                        A("s_cmp_ge_u32 %s, 14" % s(sT4))
                        A("s_cselect_b32 %s, %s, %s" % (s(sT5), s(sWB2 + 1), s(sWB2)))
                        A("s_add_u32 %s, %s, %s" % (s(sT5), s(sT5), s(sT4)))
                        A("s_lshl_b32 %s, %s, 17" % (s(sT5), s(sT5)))
                A.last_dma = A.vm("buffer_load_dwordx4 %s, %s, %s offen offset:%d%s lds" % (v(voff + k), SW1 if which == 1 else SW2, s(sT5), k * 1024, DMAFL))
            ops.append(op)
    return ops

def tr_chunk(A, n, addr, rows, dstfn):
    for i in range(n):
        for tl in range(2):
            for rd in range(2):
                A.ds("ds_read_b64_tr_b16 %s, %s offset:%d" % (dstfn(8 * i + 4 * tl + 2 * rd), v(addr + tl), i * 2048 + rows[rd] * 128))

PW1, PTR1, PW2 = 240, 248, 250

def a1_consts(R):
    R("s_lshr_b32 %s, %s, 3" % (s(sT0), s(sW)))
    R("s_and_b32 %s, %s, 7" % (s(sT1), s(sW)))
    R("s_lshl_b32 %s, %s, 3" % (s(sT1), s(sT1)))
    R("v_lshrrev_b32 v1, 5, v0")
    R("v_add_u32 v1, %s, v1" % s(sT1))
    R("v_lshlrev_b32 v1, 5, v1")
    R("v_add_u32 v1, %s, v1" % s(sT0))
    R("v_mul_u32_u24 v1, 896, v1")
    R("v_and_b32 v2, 31, v0")
    R("v_lshl_add_u32 v1, v2, 2, v1")

def a1_consts2(R):
    TC, TS = 20, 26
    R("v_cvt_f32_u32 v14, v2")
    R("v_mul_f32 v14, %s, v14" % fbits(2.0 / 448))
    R("v_add_f32 v15, %s, v14" % fbits(1.0 / 448))
    for k in range(1, 4):
        if k == 1: a0, a1_ = 14, 15
        else:
            a0, a1_ = 16, 17
            R("v_mul_f32 v16, %s, v14" % fbits(float(k)))
            R("v_mul_f32 v17, %s, v15" % fbits(float(k)))
        R("v_cos_f32 %s, %s" % (v(TC + 2 * (k - 1)), v(a0)))
        R("v_cos_f32 %s, %s" % (v(TC + 2 * (k - 1) + 1), v(a1_)))
        R("v_sin_f32 %s, %s" % (v(TS + 2 * (k - 1)), v(a0)))
        R("v_sin_f32 %s, %s" % (v(TS + 2 * (k - 1) + 1), v(a1_)))
    R("v_lshrrev_b32 v3, 5, v0")
    R("v_mul_u32_u24 v3, %d, v3" % LSTR)
    R("v_lshl_add_u32 v3, v2, 3, v3")
    R("v_add_u32 v3, 0x%x, v3" % SCR)
    R("v_bfe_u32 v13, v0, 4, 2")
    R("v_and_b32 v12, 15, v0")
    R("v_mul_u32_u24 v18, %d, v12" % LSTR)
    R("v_lshl_add_u32 v18, v13, 4, v18")
    R("v_add_u32 v18, 0x%x, v18" % SCR)
    R("v_lshrrev_b32 v19, 1, v13")
    R("v_lshl_add_u32 v19, v19, 6, v12")
    R("v_lshrrev_b32 v14, 6, v0")
    R("v_lshl_add_u32 v19, v14, 4, v19")
    R("v_lshlrev_b32 v19, 5, v19")
    R("v_and_b32 v14, 1, v13")
    R("v_lshl_add_u32 v19, v14, 4, v19")

def a1_compute(A, zout, hook1=lambda: None, hook2=lambda: None):
    XR, TC, TS, Z = 4, 20, 26, 32
    unpack7(A, XR, Z)
    s1, s2 = stats_streams(Z, 46, 60, 4, 5)
    Dq = Rec()
    P, Q = 48, 54
    for t in range(1, 4):
        Dq("v_pk_add_f32 %s, %s, %s" % (v(P + 2 * (t - 1), 2), v(Z + 2 * t, 2), v(Z + 2 * (7 - t), 2)))
        Dq("v_pk_add_f32 %s, %s, %s neg_lo:[0,1] neg_hi:[0,1]" % (v(Q + 2 * (t - 1), 2), v(Z + 2 * t, 2), v(Z + 2 * (7 - t), 2)))
    RE, IM = 64, 70
    for k in range(1, 4):
        Rr, N = 76 + 4 * (k % 2), 78 + 4 * (k % 2)
        for t in range(1, 4):
            Dq("v_pk_fma_f32 %s, %s, %s, %s" % (v(Rr, 2), v(P + 2 * (t - 1), 2), c7(t * k), v(Z, 2) if t == 1 else v(Rr, 2)))
        for t in range(1, 4):
            cs, sg = s7(t * k)
            if t == 1: Dq("v_pk_mul_f32 %s, %s, %s" % (v(N, 2), v(Q, 2), cs))
            else:
                neg = "" if sg == 1 else " neg_lo:[1,0,0] neg_hi:[1,0,0]"
                Dq("v_pk_fma_f32 %s, %s, %s, %s%s" % (v(N, 2), v(Q + 2 * (t - 1), 2), cs, v(N, 2), neg))
        tc, ts = v(TC + 2 * (k - 1), 2), v(TS + 2 * (k - 1), 2)
        re, im = v(RE + 2 * (k - 1), 2), v(IM + 2 * (k - 1), 2)
        Dq("v_pk_mul_f32 %s, %s, %s" % (re, v(N, 2), ts))
        Dq("v_pk_mul_f32 %s, %s, %s" % (im, v(N, 2), tc))
        Dq("v_pk_fma_f32 %s, %s, %s, %s neg_lo:[0,0,1] neg_hi:[0,0,1]" % (re, v(Rr, 2), tc, re))
        Dq("v_pk_fma_f32 %s, %s, %s, %s" % (im, v(Rr, 2), ts, im))
    Dq("v_pk_add_f32 v[6:7], %s, %s" % (v(Z, 2), v(P, 2)))
    Dq("v_pk_add_f32 v[8:9], %s, %s" % (v(P + 2, 2), v(P + 4, 2)))
    Dq("v_pk_add_f32 v[6:7], v[6:7], v[8:9]")
    for l in zipmix(Dq.l, s1, s2): A(l)
    mean_var(A, 46, 60)
    A("v_add_f32 v60, %s, v60" % fbits(1e-5))
    A("v_rsq_f32 v60, v60")
    A("v_mul_f32 v46, %s, v46" % fbits(-7.0))
    A("v_mul_f32 v60, %s, v60" % fbits(1.0 / (448.0 * 2048.0)))
    A("v_pk_add_f32 v[6:7], v[6:7], v[46:47] op_sel_hi:[1,0]")
    for k in range(6):
        A("v_pk_mul_f32 %s, %s, v[60:61] op_sel_hi:[1,0]" % (v(RE + 2 * k, 2), v(RE + 2 * k, 2)))
    A("v_pk_mul_f32 v[6:7], v[6:7], v[60:61] op_sel_hi:[1,0]")
    for k in range(1, 4):
        o = 32 + 2 * k
        A("%s %s, %s, -%s" % (CV, v(o), v(RE + 2 * (k - 1)), v(IM + 2 * (k - 1))))
        A("%s %s, %s, -%s" % (CV, v(o + 1), v(RE + 2 * (k - 1) + 1), v(IM + 2 * (k - 1) + 1)))
        A.ds("ds_write_b64 v3, %s offset:%d" % (v(o, 2), k * 8 * LSTR))
    A("%s v32, v6, 0" % CV)
    A("%s v33, v7, 0" % CV)
    A.ds("ds_write_b64 v3, v[32:33]")
    hook1()
    A("s_lshl_b32 %s, %s, 13" % (s(sT0), s(sW)))
    A("s_add_u32 %s, %s, 0x%x" % (s(sT0), s(sT0), zout))
    A("s_add_u32 %s, %s, 4096" % (s(sT1), s(sT0)))
    A("s_waitcnt lgkmcnt(0)")
    fstamp(A)
    A("s_barrier")
    fstamp(A)
    AF = 64
    tk = []
    for mt in range(2):
        for t in range(4):
            tk.append(A.ds("ds_read_b128 %s, v18 offset:%d" % (v(AF + 16 * mt + 4 * t, 4), mt * 16 * LSTR + 64 * t)))
    DR, DI = 32, 40
    h2 = hook2()
    def fin_(mt):
        for r in range(4):
            A("%s %s, %s, %s" % (CV, v(48 + 4 * mt + r), v(DR + 4 * mt + r), v(DI + 4 * mt + r)))
        A.vm("buffer_store_dwordx4 %s, v19, %s, %s offen sc1" % (v(48 + 4 * mt, 4), SWS, s(sT0 + mt)))
    for mt in range(2):
        for t in range(4):
            A.wds(tk[4 * mt + t])
            A("%s %s, %s, %s, %s" % (M16, v(DR + 4 * mt, 4), v(AF + 16 * mt + 4 * t, 4), v(F64R + 4 * t, 4), "0" if t == 0 else v(DR + 4 * mt, 4)))
            A("%s %s, %s, %s, %s" % (M16, v(DI + 4 * mt, 4), v(AF + 16 * mt + 4 * t, 4), v(F64I + 4 * t, 4), "0" if t == 0 else v(DI + 4 * mt, 4)))
            if mt == 1 and t == 2: fin_(0)
    if h2: h2()
    fin_(1)

F32R, F32I = 128, 144
TW1, TW2, WV = 16, 24, 8
def a2_consts(R):
    R("v_and_b32 v2, 15, v0")
    R("v_bfe_u32 v3, v0, 4, 2")
    R("v_lshrrev_b32 v4, 6, v0")
    R("v_lshrrev_b32 v5, 1, v4")
    R("v_lshl_add_u32 v5, v5, 4, v2")
    R("v_lshlrev_b32 v5, 3, v5")
    R("v_and_b32 v6, 1, v4")
    R("v_lshl_add_u32 v5, v6, 2, v5")
    R("v_lshrrev_b32 v6, 1, v3")
    R("v_add_u32 v5, v5, v6")
    R("v_lshlrev_b32 v5, 13, v5")
    R("v_and_b32 v7, 1, v3")
    R("v_lshl_add_u32 v5, v7, 4, v5")
    R("v_lshl_add_u32 v56, v4, 4, v2")
    R("v_lshl_add_u32 v6, v56, 2, v6")
    R("v_lshlrev_b32 v6, 13, v6")
    R("v_lshl_add_u32 v7, v7, 4, v6")
    R("v_lshlrev_b32 v6, 8, v2")
    R("v_lshl_add_u32 v6, v4, 6, v6")
    R("v_lshl_add_u32 v6, v3, 4, v6")
    R("W_HERE")
    R("v_cvt_f32_u32 v57, v56")
    R("v_cvt_f32_u32 v58, v3")
    R("v_mul_f32 v57, %s, v57" % fbits(1.0 / 2048))
    R("v_mul_f32 v58, 4.0, v58")
    R("v_mul_f32 v59, %s, v57" % fbits(13.0))
    R("v_mul_f32 v58, v58, v57")
    for i in range(8):
        R("v_cos_f32 v60, v58"); R("v_sin_f32 v61, v58")
        if i < 7: R("v_add_f32 v58, v58, %s" % v(57 if i != 3 else 59))
        R("v_cvt_pk_f16_f32 %s, v60, -v61" % v(TW1 + i))
    R("v_lshlrev_b32 v56, 4, v4")
    R("v_lshl_add_u32 v56, v3, 2, v56")
    R("v_cvt_f32_u32 v56, v56")
    R("v_add_u32 v47, 16, v2")
    for nt in range(2):
        R("v_cvt_f32_u32 v57, %s" % v(2 if nt == 0 else 47))
        R("v_mul_f32 v57, %s, v57" % fbits(1.0 / 2048))
        R("v_mul_f32 v58, v56, v57")
        for r in range(4):
            R("v_cos_f32 v60, v58"); R("v_sin_f32 v61, v58")
            if r < 3: R("v_add_f32 v58, v58, v57")
            R("v_cvt_pk_f16_f32 %s, v60, v61" % v(TW2 + 4 * nt + r))

def f32_gen(R, t):
    R("v_and_b32 %s, 15, v0" % v(t + 7))
    R("v_bfe_u32 %s, v0, 4, 2" % v(t + 8))
    R("v_add_u32 %s, 16, %s" % (v(t + 9), v(t + 7)))
    for mt in range(2):
        gen_frags(R, t + 7 + 2 * mt, t + 8, 2, 32, F32R + 8 * mt, F32I + 8 * mt, t)

def cmul_mix(A, ar, ai, tw, t):
    A("v_fma_mix_f32 %s, %s, %s, 0 op_sel:[0,1,0] op_sel_hi:[0,1,0]" % (v(t), v(ai), v(tw)))
    A("v_fma_mix_f32 %s, %s, %s, 0 op_sel:[0,0,0] op_sel_hi:[0,1,0]" % (v(t + 1), v(ai), v(tw)))
    A("v_fma_mix_f32 %s, %s, %s, %s op_sel:[0,1,0] op_sel_hi:[0,1,0]" % (v(ai), v(ar), v(tw), v(t + 1)))
    A("v_fma_mix_f32 %s, %s, %s, -%s op_sel:[0,0,0] op_sel_hi:[0,1,0]" % (v(ar), v(ar), v(tw), v(t)))

def a2_wload(A):
    A("s_lshr_b32 %s, %s, 6" % (s(sT2), s(sW)))
    A("s_lshl_b32 %s, %s, 11" % (s(sT2), s(sT2)))
    A("s_and_b32 %s, %s, 63" % (s(sT3), s(sW)))
    A("s_lshl_b32 %s, %s, 5" % (s(sT3), s(sT3)))
    A("s_add_u32 %s, %s, %s" % (s(sT2), s(sT2), s(sT3)))
    A("s_add_u32 %s, %s, 0x%x" % (s(sT2), s(sT2), WT))
    A("s_add_u32 %s, %s, 16384" % (s(sT3), s(sT2)))
    for mt in range(2):
        A.wtok = A.vm("buffer_load_dwordx4 %s, v7, %s, %s offen sc1" % (v(WV + 4 * mt, 4), SWS, s(sT2 + mt)))

def a2_phase(A, zin, tout, poll, after_loads, post=lambda: None):
    A("s_lshl_b32 %s, %s, 5" % (s(sT0), s(sW)))
    A("s_add_u32 %s, %s, 0x%x" % (s(sT0), s(sT0), zin))
    A("s_add_u32 %s, %s, 16384" % (s(sT1), s(sT0)))
    G = 32
    def issue():
        A.vm("buffer_load_dwordx4 %s, v5, %s, %s offen sc1" % (v(G, 4), SWS, s(sT0)))
        return A.vm("buffer_load_dwordx4 %s, v5, %s, %s offen sc1" % (v(G + 4, 4), SWS, s(sT1)))
    A("v_lshlrev_b32 v62, 4, v0")
    A("v_lshl_add_u32 v62, v4, 10, v62")
    A("v_add_u32 v62, 0x%x, v62" % SCR)
    A("v_and_b32 v63, 63, v0")
    A("v_lshlrev_b32 v63, 4, v63")
    A("v_add_u32 v63, 0x%x, v63" % SCR)
    if poll:
        tw_tok = A.wtok
        poll_loads(A, issue, range(G, G + 8), 40, DLY[1], (lambda: [A(x) for x in A.rest2]) if A.rest2 else None)
    else:
        tz = issue(); a2_wload(A); tw_tok = A.wtok; post(); A.wvm(tz)
    stamp(A)
    A.ds("ds_write_b128 v62, %s" % v(G, 4))
    A.ds("ds_write_b128 v62, %s offset:1024" % v(G + 4, 4))
    after_loads()
    A("s_waitcnt lgkmcnt(0)")
    A("s_barrier")
    fstamp(A)
    DA = 64
    tk = [A.ds("ds_read_b128 %s, v63 offset:%d" % (v(DA + 4 * f, 4), 1024 * f)) for f in range(8)]
    GR, GI, P1, XR, XI, WR_, WI_, HR, HI = 32, 40, 48, 64, 72, 80, 88, 32, 40
    def mm(d, a_, b_, first): return "%s %s, %s, %s, %s" % (M16, v(d, 4), v(a_, 4), v(b_, 4), "0" if first else v(d, 4))
    def weave(ms, vs, lead=0, pre=None):
        n = len(ms) - lead; k = 0
        for i, m_ in enumerate(ms):
            if pre: pre(i)
            A(m_)
            if i >= lead:
                tgt = len(vs) * (i - lead + 1) // n
                while k < tgt:
                    (A.ds if vs[k].startswith("ds_") else A.vm if vs[k].startswith("buffer") else A)(vs[k]); k += 1
            if i % 2: A.bg()
    def tw(rr, ii, twr, dst, idx, tmp, swap):
        R = Rec()
        for i in idx:
            cmul_mix(R, rr + i, ii + i, twr + i, tmp + 2 * (i % 2))
            R("%s %s, %s, %s" % ((CV, v(dst + i), v(ii + i), v(rr + i)) if swap else (CV, v(dst + i), v(rr + i), v(ii + i))))
        return R.l
    def st1(mt): return [mm((GR, GI)[c] + 4 * mt, DA + 16 * mt + 4 * t, (F64R, F64I)[c] + 4 * t, t == 0) for t in range(4) for c in range(2)]
    weave(st1(0), [], pre=lambda i: A.wds(tk[i // 2]) if i % 2 == 0 else None)
    weave(st1(1), tw(GR, GI, TW1, P1, range(4), 56, False), lead=2, pre=lambda i: A.wds(tk[4 + i // 2]) if i % 2 == 0 else None)
    fstamp(A)
    def st2(ks): return [mm((XR, XI)[c] + 4 * mt, (F32R, F32I)[c] + 8 * mt + 4 * ks, P1 + 4 * ks, ks == 0) for mt in range(2) for c in range(2)]
    weave(st2(0), tw(GR, GI, TW1, P1, range(4, 8), 56, False))
    A.wvm(tw_tok)
    un = []
    for i in range(8):
        un += ["v_lshlrev_b32 %s, 16, %s" % (v(WR_ + i), v(WV + i)), "v_and_b32 %s, 0xffff0000, %s" % (v(WI_ + i), v(WV + i))]
    weave(st2(1), un)
    def wm(idx):
        R = Rec()
        for i in idx:
            xr, xi, wr, wi = v(XR + i, 2), v(XI + i, 2), v(WR_ + i, 2), v(WI_ + i, 2)
            t_ = 56 + 4 * ((i // 2) % 2) if False else 56
            R("v_pk_mul_f32 v[56:57], %s, %s" % (xi, wi))
            R("v_pk_mul_f32 v[58:59], %s, %s" % (xi, wr))
            R("v_pk_fma_f32 v[56:57], %s, %s, v[56:57] neg_lo:[0,0,1] neg_hi:[0,0,1]" % (xr, wr))
            R("v_pk_fma_f32 v[58:59], %s, %s, v[58:59]" % (xr, wi))
            R("%s %s, v58, v56" % (CV, v(P1 + i)))
            R("%s %s, v59, v57" % (CV, v(P1 + i + 1)))
        return R.l
    A.st(STM)
    for l_ in wm((0, 2)): A(l_)
    def st3(ks): return [mm((HI, HR)[c] + 4 * nt, P1 + 4 * ks, (F32R, F32I)[c] + 8 * nt + 4 * ks, ks == 0) for nt in range(2) for c in range(2)]
    weave(st3(0), wm((4, 6)))
    weave(st3(1), ["v_lshlrev_b32 v62, 4, v0", "v_add_u32 v62, 0x%x, v62" % (SCR + 8192),
                   "s_lshl_b32 %s, %s, 13" % (s(sT0), s(sW)), "s_add_u32 %s, %s, 0x%x" % (s(sT0), s(sT0), tout), "s_add_u32 %s, %s, 4096" % (s(sT1), s(sT0))])
    A.st(STM)
    for h in range(2):
        for i, l_ in enumerate(tw(HR, HI, TW2, P1, range(4 * h, 4 * h + 4), 64, True)):
            A(l_)
            if i % 5 == 4: A.bg()
        A.ds("ds_write_b128 v62, %s offset:%d" % (v(P1 + 4 * h, 4), 4096 * h))
    A.st(STN)
    if not poll and PZ: A.wvm(A.p1tok)
    A("s_waitcnt lgkmcnt(0)")
    fstamp(A)
    A("s_barrier")
    fstamp(A)
    tk = [A.ds("ds_read_b128 %s, v63 offset:%d" % (v(DA + 4 * f, 4), 8192 + 1024 * f)) for f in range(8)]
    A.st(STN)
    TR, TI = 32, 40
    def st4(nt): return [mm((TI, TR)[c] + 4 * nt, (F64R, F64I)[c] + 4 * t, DA + 16 * nt + 4 * t, t == 0) for t in range(4) for c in range(2)]
    def fin_(nt):
        return ["%s %s, %s, %s" % (CV, v(48 + 4 * nt + r), v(TI + 4 * nt + r), v(TR + 4 * nt + r)) for r in range(4)] + \
               ["buffer_store_dwordx4 %s, v6, %s, %s offen sc1" % (v(48 + 4 * nt, 4), SWS, s(sT0 + nt))]
    weave(st4(0), [], pre=lambda i: A.wds(tk[i // 2]) if i % 2 == 0 else None)
    weave(st4(1), fin_(0), lead=4, pre=lambda i: A.wds(tk[4 + i // 2]) if i % 2 == 0 else None)
    A.st(STM)
    for l_ in fin_(1): (A.vm if l_.startswith("buffer") else A)(l_)
    A.bg_flush()

def a3_consts(R):
    a1_consts(R)
    R("v_lshlrev_b32 v3, 13, v0")
    R("v_lshrrev_b32 v11, 6, v0")
    R("v_and_b32 v12, 15, v0")
    R("v_mul_u32_u24 v15, %d, v12" % LSTR)
    R("v_lshl_add_u32 v12, v11, 4, v12")
    R("v_bfe_u32 v13, v0, 4, 2")
    R("v_lshl_add_u32 v15, v13, 4, v15")
    R("v_add_u32 v15, 0x%x, v15" % SCR)
    R("v_lshrrev_b32 v14, 1, v11")
    R("v_lshlrev_b32 v14, 4, v14")
    R("v_and_b32 v30, 1, v11")
    R("v_lshl_add_u32 v14, v30, 1, v14")
    R("v_mul_u32_u24 v14, %d, v14" % LSTR)
    R("v_and_b32 v30, 63, v0")
    R("v_lshl_add_u32 v14, v30, 2, v14")
    R("v_add_u32 v14, 0x%x, v14" % SCR)
    TW = 24
    R("v_cvt_f32_u32 v30, v12")
    for k in range(1, 4):
        R("v_mul_f32 v31, %s, v30" % fbits(k / 448.0))
        R("v_cos_f32 %s, v31" % v(TW + 2 * (k - 1)))
        R("v_sin_f32 %s, v31" % v(TW + 2 * (k - 1) + 1))
    for k in range(6): R("v_add_f32 %s, %s, %s" % (v(TW + k), v(TW + k), v(TW + k)))
    R("v_mul_u32_u24 v62, %d, v13" % (2 * YSTR))
    R("v_lshl_add_u32 v62, v12, 2, v62")
    R("v_add_u32 v62, 0x%x, v62" % (SCR + A3_Y))
    R("v_lshrrev_b32 v31, 5, v0")
    R("v_mul_u32_u24 v30, %d, v31" % HSTR)
    R("v_lshl_add_u32 v30, v2, 2, v30")
    R("v_add_u32 v30, 0x%x, v30" % (SCR + A3_H))
    R("v_mul_u32_u24 v63, %d, v31" % YSTR)
    R("v_lshl_add_u32 v63, v2, 3, v63")
    R("v_add_u32 v63, 0x%x, v63" % (SCR + A3_Y))
    R("v_bfe_u32 v31, v0, 2, 2")
    R("v_mul_u32_u24 v31, %d, v31" % HSTR)
    R("v_and_b32 v12, 3, v0")
    R("v_lshl_add_u32 v31, v12, 3, v31")
    R("v_lshl_add_u32 v31, v13, 5, v31")
    R("v_lshl_add_u32 v31, v11, 7, v31")
    R("v_add_u32 v31, 0x%x, v31" % (SCR + A3_H))
    R("v_lshlrev_b32 v12, 4, v0")

def a3_phase(A, l, tin, xout, hout, after_loads, post=None):
    XR, TV, TW = 4, 16, 24
    if l == 0:
        for t in range(7): A.vm("global_load_dword %s, v1, %s offset:%d" % (v(XR + t), s(sX, 2), 128 * t))
    else:
        A("s_mov_b32 %s, 0x%x" % (s(sT1), X2))
        for t in range(7): A.vm("buffer_load_dword %s, v1, %s, %s offen offset:%d sc1" % (v(XR + t), SWS, s(sT1), 128 * t))
    A("s_lshl_b32 %s, %s, 5" % (s(sT0), s(sW)))
    A("s_add_u32 %s, %s, 0x%x" % (s(sT0), s(sT0), tin))
    def issue():
        A.vm("buffer_load_dwordx4 %s, v3, %s, %s offen sc1" % (v(TV, 4), SWS, s(sT0)))
        A.vm("buffer_load_dwordx4 %s, v3, %s, %s offen offset:16 sc1" % (v(TV + 4, 4), SWS, s(sT0)))
    poll_loads(A, issue, range(TV, TV + 8), 32, DLY[2] if post is None else 0, post)
    stamp(A)
    for row in range(8):
        A.ds("ds_write_b32 v14, %s offset:%d" % (v(TV + row), (4 * (row // 2) + (row & 1)) * LSTR))
    after_loads()
    A("s_waitcnt lgkmcnt(0)")
    A("s_barrier")
    fstamp(A)
    AF = 64
    tk = []
    for mt in range(2):
        for t in range(4):
            tk.append(A.ds("ds_read_b128 %s, v15 offset:%d" % (v(AF + 16 * mt + 4 * t, 4), mt * 16 * LSTR + 64 * t)))
    DR, DI = 32, 40
    Z = 128
    unpack7(A, XR, Z)
    UR, UI, U0 = 48, 54, DR
    def twk(k):
        tw = v(TW + 2 * (k - 1), 2)
        vr, vi = v(DR + 2 * k, 2), v(DI + 2 * k, 2)
        ur, ui = v(UR + 2 * (k - 1), 2), v(UI + 2 * (k - 1), 2)
        return ["v_pk_mul_f32 %s, %s, %s op_sel:[0,1] op_sel_hi:[1,1]" % (ur, vi, tw),
                "v_pk_mul_f32 %s, %s, %s op_sel:[0,0] op_sel_hi:[1,0]" % (ui, vi, tw),
                "v_pk_fma_f32 %s, %s, %s, %s op_sel:[0,0,0] op_sel_hi:[1,0,1] neg_lo:[0,0,1] neg_hi:[0,0,1]" % (ur, vr, tw, ur),
                "v_pk_fma_f32 %s, %s, %s, %s op_sel:[0,1,0] op_sel_hi:[1,1,1]" % (ui, vr, tw, ui)]
    early = twk(1)
    for t in range(1, 4):
        early.append("v_pk_fma_f32 %s, %s, %s, %s" % (v((16, 20, 68)[t - 1], 2), v(UR, 2), c7(t), v(U0, 2)))
        early.append("v_pk_mul_f32 %s, %s, %s" % (v((18, 22, 70)[t - 1], 2), v(UI, 2), s7(t)[0]))
    early.append("v_pk_add_f32 v[60:61], %s, %s" % (v(U0, 2), v(UR, 2)))
    for mt in range(2):
        for t in range(4):
            A.wds(tk[4 * mt + t])
            A("%s %s, %s, %s, %s" % (M16, v(DI + 4 * mt, 4), v(AF + 16 * mt + 4 * t, 4), v(F64R + 4 * t, 4), "0" if t == 0 else v(DI + 4 * mt, 4)))
            A("%s %s, %s, %s, %s" % (M16, v(DR + 4 * mt, 4), v(AF + 16 * mt + 4 * t, 4), v(F64I + 4 * t, 4), "0" if t == 0 else v(DR + 4 * mt, 4)))
            if mt == 1 and t >= 2:
                for l_ in early[(t - 2) * 4:(t - 1) * 4]: A(l_)
            A.bg()
    for l_ in early[8:]: A(l_)
    A.st(STM)
    for k in (2, 3):
        for l_ in twk(k): A(l_)
        A.bg()
    def ywrite(pair, t):
        A.ds("ds_write_b32 v62, %s offset:%d" % (v(pair), 256 * t))
        A.ds("ds_write_b32 v62, %s offset:%d" % (v(pair + 1), YSTR + 256 * t))
    A("v_pk_add_f32 v[66:67], %s, %s" % (v(UR + 2, 2), v(UR + 4, 2)))
    A("v_pk_add_f32 v[64:65], v[60:61], v[66:67]")
    ywrite(64, 0)
    for t in range(1, 4):
        aa, bb, y1, y2 = (16, 20, 68)[t - 1], (18, 22, 70)[t - 1], 40 + 4 * (t % 2), 42 + 4 * (t % 2)
        for k in range(2, 4):
            A("v_pk_fma_f32 %s, %s, %s, %s" % (v(aa, 2), v(UR + 2 * (k - 1), 2), c7(t * k), v(aa, 2)))
            cs, sg = s7(t * k)
            neg = "" if sg == 1 else " neg_lo:[1,0,0] neg_hi:[1,0,0]"
            A("v_pk_fma_f32 %s, %s, %s, %s%s" % (v(bb, 2), v(UI + 2 * (k - 1), 2), cs, v(bb, 2), neg))
        A("v_pk_add_f32 %s, %s, %s neg_lo:[0,1] neg_hi:[0,1]" % (v(y1, 2), v(aa, 2), v(bb, 2)))
        A("v_pk_add_f32 %s, %s, %s" % (v(y2, 2), v(aa, 2), v(bb, 2)))
        ywrite(y1, t); ywrite(y2, 7 - t)
        A.bg(2)
    A.st(STN)
    A("s_waitcnt lgkmcnt(0)")
    fstamp(A)
    A("s_barrier")
    fstamp(A)
    Y = 64
    tk = [A.ds("ds_read_b64 %s, v63 offset:%d" % (v(Y + 2 * t, 2), 256 * t)) for t in range(7)]
    A.bg(3)
    A.st(STN)
    for t in range(7):
        A.wds(tk[t])
        A("v_pk_add_f32 %s, %s, %s" % (v(Z + 2 * t, 2), v(Z + 2 * t, 2), v(Y + 2 * t, 2)))
    s1, s2 = stats_streams(Z, 46, 48, 50, 51)
    St = ["ds_write_b32 v30, %s offset:%d" % (v(XR + t), 128 * t + XL - A3_H + 65536 if False else 0) for t in range(0)]
    A("v_subrev_u32 v52, %d, v30" % (A3_H - XL))
    A("v_mov_b32 v53, %s" % fbits(1e-10))
    A("s_mov_b32 %s, %s" % (s(sT2), fbits(1.0 + 1e-5)))
    St = []
    for t in range(7):
        St += ["%s %s, %s, %s" % (CV, v(XR + t), v(Z + 2 * t), v(Z + 2 * t + 1)), "ds_write_b32 v52, %s offset:%d" % (v(XR + t), 128 * t)]
    for ln in zipmix(s1, s2, St):
        if ln.startswith("ds_"): A.ds(ln)
        else: A(ln)
    mean_var(A, 46, 48)
    A.st(STM)
    A("v_fma_f32 v48, v48, %s, v53" % s(sT2))
    A("v_rsq_f32 v48, v48")
    A("s_mul_i32 %s, %s, 7168" % (s(sT0), s(sW)))
    A("s_add_u32 %s, %s, 0x%x" % (s(sT0), s(sT0), hout))
    A("v_mul_f32 v46, -v46, v48" if False else "v_mul_f32 v46, v46, v48")
    for t in range(7):
        A("v_pk_fma_f32 %s, %s, v[48:49], v[46:47] op_sel_hi:[1,0,0] neg_lo:[0,0,1] neg_hi:[0,0,1]" % (v(Z + 2 * t, 2), v(Z + 2 * t, 2)))
    for t in range(7):
        A("%s %s, %s, %s" % (CV, v(64 + t), v(Z + 2 * t), v(Z + 2 * t + 1)))
        A.ds("ds_write_b32 v30, %s offset:%d" % (v(64 + t), 128 * t))
    A("s_add_u32 %s, %s, 4096" % (s(sT1), s(sT0)))
    A.st(STN)
    A("s_waitcnt lgkmcnt(0)")
    fstamp(A)
    A("s_barrier")
    fstamp(A)
    A.auto = 0
    A.ds("ds_read_b64_tr_b16 v[20:21], v31")
    A.ds("ds_read_b64_tr_b16 v[22:23], v31 offset:%d" % (4 * HSTR))
    A.ds("ds_read_b64_tr_b16 v[24:25], v31 offset:512")
    A.ds("ds_read_b64_tr_b16 v[26:27], v31 offset:%d" % (4 * HSTR + 512))
    A("v_cmp_gt_u32 vcc, 192, v0")
    A("v_mov_b32 v13, 0x80000000")
    A("v_cndmask_b32 v13, v13, v12, vcc")
    A("v_and_b32 v14, 63, v0")
    A("v_lshlrev_b32 v15, 4, v14")
    A("s_mul_i32 %s, %s, %d" % (s(sT2), s(sWAVE), 2 * HSTR))
    A("s_add_u32 %s, %s, 0x%x" % (s(sT2), s(sT2), SCR + XL))
    A("v_add_u32 v16, %s, v15" % s(sT2))
    A.ds("ds_read_b128 v[32:35], v16")
    A.ds("ds_read_b128 v[36:39], v16 offset:%d" % HSTR)
    A("v_readfirstlane_b32 %s, v1" % s(sT2))
    A("v_mov_b32 v17, 0x80000000")
    A("s_waitcnt lgkmcnt(4)")
    A.vm("buffer_store_dwordx4 v[20:23], v12, %s, %s offen sc1" % (SWS, s(sT0)))
    A("v_cmp_gt_u32 vcc, 56, v14")
    A("s_add_u32 %s, %s, 0x%x" % (s(sT2), s(sT2), xout))
    A("s_add_u32 %s, %s, %d" % (s(sT3), s(sT2), 32 * 896))
    A("v_cndmask_b32 v15, v17, v15, vcc")
    A("s_waitcnt lgkmcnt(2)")
    A.vm("buffer_store_dwordx4 v[24:27], v13, %s, %s offen sc1" % (SWS, s(sT1)))
    A("s_waitcnt lgkmcnt(0)")
    A.vm("buffer_store_dwordx4 v[32:35], v15, %s, %s offen sc1" % (SWS, s(sT2)))
    A.vm("buffer_store_dwordx4 v[36:39], v15, %s, %s offen sc1" % (SWS, s(sT3)))
    A.bg_flush()

ACC, RINGV, WF, RT = 96, 32, 128, 128
DEPTH = int(os.environ.get("DEPTH", 6))
vF1_, vF2_, vTR, vRR, vTW, vTRD, vG0, vG1 = 2, 3, 4, 6, 7, 14, 24, 25
BIAS = 16
NV = 12
TILE = SCR + 24576

def b_consts(R):
    R("v_bfe_u32 v8, v0, 5, 1")
    R("v_mul_u32_u24 v8, 448, v8")
    R("s_mul_i32 %s, %s, %d" % (s(sC), s(sDT), DW))
    R("v_add_u32 v8, %s, v8" % s(sC))
    R("v_and_b32 v9, 31, v0")
    R("v_add_lshl_u32 %s, v8, v9, 4" % v(vF1_))
    R("v_lshrrev_b32 %s, 2, v0" % v(vF2_))
    R("v_and_b32 %s, 16, %s" % (v(vF2_), v(vF2_)))
    R("v_xor_b32 v9, v9, %s" % v(vF2_))
    R("v_add_lshl_u32 %s, v8, v9, 4" % v(vF2_))
    R("v_and_b32 v8, 63, v0")
    R("v_lshlrev_b32 v8, 4, v8")
    R("v_add_u32 %s, 0x%x, v8" % (v(vRR), SCR))

def red_addr(A):
    for x in range(4):
        A("s_xor_b32 %s, %s, %d" % (s(sC), s(sWAVE), x))
        A("s_mul_i32 %s, %s, 6144" % (s(sC), s(sC)))
        A("v_add_u32 %s, %s, %s" % (v(10 + x), s(sC), v(vRR)))

def b_all(A, l, hin, uout, xin, first, tail1, skip_pre, vW2, hooks={}):
    cold = []
    sH, sU = sT0, sT1
    seq = [(0, p, q) for p in range(2) for q in range(16)] + [(1, p, q) for p in range(2) for q in range(14)]
    N1 = 32
    tok = {}
    def ld(i, track=True, hs=(0, 1)):
        g, p, q = seq[i]
        r = RINGV + 8 * (i % 8)
        emit_ = A.vm if track else A
        for h in hs:
            if GLD:
                A("s_add_u32 s46, %s, %d" % (s((38, 40)[g]), (2 * q + h) * 14336))
                A("s_addc_u32 s47, %s, 0" % s((39, 41)[g]))
                t_ = emit_("global_load_dwordx4 %s, %s, s[46:47] offset:%d sc1" % (v(r + 4 * h, 4), v((vF1_, vF2_)[g]), 512 * p))
                continue
            A("s_add_u32 %s, %s, %d" % (s(sEND), s((sH, sU)[g]), (2 * q + h) * 14336))
            msk = DW < 64 and p == 1
            if msk: A("s_mov_b64 exec, %s" % s((36, 38)[g], 2))
            t_ = emit_("buffer_load_dwordx4 %s, %s, %s, %s offen offset:%d sc1" % (v(r + 4 * h, 4), v((vF1_, vF2_)[g]), SWS, s(sEND), 0 if DIAGHIT else 512 * p))
            if msk: A("s_mov_b64 exec, -1")
        return t_
    def branch(i):
        lr, lb = A.newlabel("rty"), A.newlabel("bk")
        A("s_cbranch_vccnz %s" % lr)
        A.label(lb)
        cold.append((lr, lb, i))
    accb = lambda p: (96, 128)[p]
    wfb = lambda p: (128, 96)[p]
    def wop(g, p, ks, wt):
        if g == 0: return a(8 * ks + 4 * wt, 4)
        if ks < NV: return v(W2V + 8 * ks + 4 * wt, 4)
        return v(wfb(p) + 16 * ((ks // 2) % 2) + 8 * (ks % 2) + 4 * wt, 4)
    def wreads(i):
        g, p, q = seq[i]
        if g == 0 or 2 * q < NV: return []
        return ["ds_read_b64_tr_b16 %s, %s offset:%d" % (v(wfb(p) + 16 * (q % 2) + 8 * h + 4 * tl + 2 * rd, 2), v(vTR + tl), (2 * q + h - NV) * 2048 + (0, 8)[rd] * 128)
                for h in range(2) for tl in range(2) for rd in range(2)]
    c0 = -2.0 * math.sqrt(2.0 / math.pi) * math.log2(math.e)
    skip1, skip2, b2e = A.newlabel("b1skip"), A.newlabel("b2skip"), A.newlabel("b2e")
    A("s_mul_i32 %s, %s, %d" % (s(sH), s(sWAVE), 32 * 14336))
    A("s_add_u32 %s, %s, 0x%x" % (s(sH), s(sH), hin))
    A("s_mul_i32 %s, %s, %d" % (s(sU), s(sWAVE), 28 * 14336))
    A("s_add_u32 %s, %s, 0x%x" % (s(sU), s(sU), uout))
    if GLD:
        A("s_add_u32 s38, %s, %s" % (s(sWS), s(sH)))
        A("s_addc_u32 s39, %s, 0" % s(sWS + 1))
        A("s_add_u32 s40, %s, %s" % (s(sWS), s(sU)))
        A("s_addc_u32 s41, %s, 0" % s(sWS + 1))
    if DW < 64:
        A("s_mov_b32 s36, 0xffffff")
        A("s_mov_b32 s37, s36")
        A("s_bitcmp1_b32 %s, 0" % s(sWAVE))
        A("s_cselect_b32 s38, 0xffff00ff, s36")
        A("s_mov_b32 s39, s38")
    A("s_lshr_b32 %s, %s, 1" % (s(sT2), s(sWAVE)))
    A("s_lshl_b32 %s, %s, 5" % (s(sT2), s(sT2)))
    A("s_lshl_b32 %s, %s, 6" % (s(sT3), s(sST)))
    A("s_add_u32 %s, %s, %s" % (s(sT2), s(sT2), s(sT3)))
    A("v_and_b32 v9, 31, v0")
    A("v_add_lshl_u32 v9, v9, %s, 1" % s(sT2))
    A("v_and_b32 v9, 0xfff, v9")
    A.vm("global_load_ushort v26, v9, %s" % s(sB2, 2))
    A("s_cmp_lg_u32 %s, 0" % s(sA1))
    A("s_cbranch_scc1 %s" % skip1)
    A("s_lshl_b32 %s, %s, 5" % (s(sT2), s(sWAVE)))
    A("s_lshl_b32 %s, %s, 7" % (s(sT3), s(sFT)))
    A("s_add_u32 %s, %s, %s" % (s(sT2), s(sT2), s(sT3)))
    A("v_bfe_u32 v9, v0, 5, 1")
    A("v_lshlrev_b32 v9, 3, v9")
    A("v_add_u32 v9, %s, v9" % s(sT2))
    A.vm("global_load_dwordx2 v[28:29], v9, %s" % s(sB1, 2))
    btok = A.vm("global_load_dwordx2 v[30:31], v9, %s offset:16" % s(sB1, 2))
    A("s_lshl_b32 s44, %s, 2" % s(sFT))
    A("s_add_u32 s44, s44, %s" % s(sWAVE))
    A("s_mul_i32 s44, s44, 14336")
    A("s_add_u32 s44, s44, 0x%x" % uout)
    A("s_mov_b32 s42, %s" % fbits(c0 * 0.044715))
    A("s_mov_b32 s43, s42")
    if DLY[3] and (l == 1 or C3MID): A("s_sleep %d" % DLY[3])
    for i in range(DEPTH): tok[i] = ld(i)
    A.wvm(btok)
    for k in range(4):
        A("v_lshlrev_b32 %s, 16, %s" % (v(BIAS + 2 * k), v(28 + k)))
        A("v_and_b32 %s, 0xffff0000, %s" % (v(BIAS + 2 * k + 1), v(28 + k)))
    A("v_mov_b32 v27, %s" % fbits(c0))
    def acc_init(g, p):
        out = []
        for k in range(8):
            out.append("v_mov_b32 %s, %s" % (v(accb(p) + k), v(BIAS + k)) if g == 0 else "v_lshlrev_b32 %s, 16, v26" % v(accb(p) + k))
            out.append("v_mov_b32 %s, 0" % v(accb(p) + 8 + k))
        return out
    for l_ in acc_init(0, 0): A(l_)
    def epilogue(g, p, mid=None):
        R = accb(p); T = R + 8; E = []; tk = {}
        for x in (2, 3, 1):
            for gg in range(2):
                E.append("ds_write_b128 %s, %s offset:%d" % (v(10 + x), v(R + 8 * x + 4 * gg, 4), (x - 1) * 2048 + gg * 1024))
        E.append("BREAK")
        E.append("s_waitcnt lgkmcnt(0)")
        if mid: E.append(mid)
        E.append("s_barrier")
        for k in range(6):
            E.append(lambda k=k: tk.__setitem__(k, A.ds("ds_read_b128 %s, v10 offset:%d" % (v(T + 4 * k, 4), k * 1024))))
        E.append("BREAK")
        sc = SCAL and p == 0 and (OVL >> g) & 1
        def op2(name, d, a_, b_):
            if sc: return ["v_%s_f32 %s, %s, %s" % (name, v(d + k), v(a_ + k), v(b_ + k)) for k in range(8)]
            return ["v_pk_%s_f32 %s, %s, %s" % (name, v(d + k, 2), v(a_ + k, 2), v(b_ + k, 2)) for k in range(0, 8, 2)]
        for x in range(3):
            E.append(lambda x=x: A.wds(tk[2 * x + 1]))
            E += op2("add", R, R, T + 8 * x)
        if g == 0:
            E += op2("mul", T, R, R)
            if sc: E += ["v_fma_f32 %s, %s, s42, v27" % (v(T + k), v(T + k)) for k in range(8)]
            else: E += ["v_pk_fma_f32 %s, %s, s[42:43], v[26:27] op_sel:[0,0,1] op_sel_hi:[1,1,1]" % (v(T + k, 2), v(T + k, 2)) for k in range(0, 8, 2)]
            E += op2("mul", T, T, R)
            for k in range(8): E.append("v_exp_f32 %s, %s" % (v(T + k), v(T + k)))
            if sc: E += ["v_add_f32 %s, 1.0, %s" % (v(T + k), v(T + k)) for k in range(8)]
            else: E += ["v_pk_add_f32 %s, %s, 1.0 op_sel_hi:[1,0]" % (v(T + k, 2), v(T + k, 2)) for k in range(0, 8, 2)]
            for k in range(8): E.append("v_rcp_f32 %s, %s" % (v(T + k), v(T + k)))
            E += op2("mul", R, R, T)
            for k in range(4): E.append("%s %s, %s, %s" % (CV, v(T + 8 + k), v(R + 2 * k), v(R + 2 * k + 1)))
            if DW < 64 and p == 1: E.append("s_mov_b64 exec, s[36:37]")
            E.append("buffer_store_dwordx4 %s, %s, %s, s44 offen offset:%d sc1" % (v(T + 8, 4), v(vF1_), SWS, 512 * p))
            if DW < 64 and p == 1: E.append("s_mov_b64 exec, -1")
        else:
            for k in range(4): E.append("%s %s, %s, %s" % (CV, v(T + k), v(R + 2 * k), v(R + 2 * k + 1)))
            E.append("v_xor_b32 v15, %d, %s" % (64 * p, v(vTW)))
            E.append("ds_write_b64 v15, %s" % v(T, 2))
            E.append("v_xor_b32 v15, %d, %s" % (64 * p + 16, v(vTW)))
            E.append("ds_write_b64 v15, %s" % v(T + 2, 2))
        return E
    eq = []
    pause = [0]
    def erun(n):
        if n < 90 and pause[0] > 0:
            pause[0] -= 1; return
        while eq and n > 0:
            it = eq.pop(0)
            if it == "BREAK":
                if n < 90:
                    PS = PAUSEG[A.curg]; pause[0] = PS.pop(0); PS.append(pause[0]); return
                A.bg(EBG); continue
            if callable(it): it()
            elif it.startswith("ds_"): A.ds(it)
            elif it.startswith("buffer"): A.vm(it)
            else: A(it)
            n -= 2 if (isinstance(it, str) and ("exp" in it or "rcp" in it)) else 1
    A.wvm(tok[0])
    maxchain(A, range(RINGV, RINGV + 8), 8)
    A("v_cmp_eq_u32 vcc, -1, v8")
    branch(0)
    stamp(A)
    first()
    XV = 64 + 0
    def xissue(track=True):
        e_ = A.vm if track else A
        e_("buffer_load_dwordx4 %s, %s, %s, %s offen sc1" % (v(A.XV, 4), v(vG0), SWS, s(sT2)))
        return e_("buffer_load_dwordx4 %s, %s, %s, %s offen sc1" % (v(A.XV + 4, 4), v(vG1), SWS, s(sT2)))
    for i, (g, p, q) in enumerate(seq):
        nq = (16, 14)[g]
        A.curg = g
        if i == N1:
            A.label(b2e)
            stamp(A)
        r = RINGV + 8 * (i % 8); rn = RINGV + 8 * ((i + 1) % 8)
        more = i + 1 < len(seq)
        wr = wreads(i + 1) if more else []
        def mf(h, wt):
            acc = v(accb(p) + 16 * wt, 16)
            wreg = wop(g, p, 2 * q + h, wt); freg = v(r + 4 * h, 4)
            AA, BB = (wreg, freg) if g == 0 else (freg, wreg)
            if FAKE16:
                for e_ in range(2):
                    ac = v(accb(p) + 16 * wt + 8 * h + 4 * e_, 4)
                    o_ = (wop(g, p, 2 * q + (h ^ e_), wt), v(r + 4 * h, 4))
                    A("%s %s, %s, %s, %s" % (M16, ac, o_[0], o_[1], "0" if q == 0 else ac))
                return
            A("%s %s, %s, %s, %s" % (M32, acc, AA, BB, "0" if (q == 0 and h == 0 and wt == 1) else acc))
        mf(0, 1)
        erun(ENG[g][3])
        lateb = LATEB and N1 - DEPTH <= i < N1
        nxt = None
        if i + DEPTH < len(seq) and not lateb and (i + DEPTH) not in tok: nxt = i + DEPTH
        elif BOOST == 2 and i + 7 < len(seq) and (i + 7) not in tok and not lateb and i > 8 and q < 8: nxt = i + 7
        if NOLD and l == 1 and nxt is not None:
            tok[nxt] = 0; nxt = None
        if nxt is not None:
            if SPLITLD: ld(nxt, True, (0,))
            else: tok[nxt] = ld(nxt)
        chk = more and not (LATEB and i == N1 - 1)
        if NOCHK and l == 1 and more:
            A.wvm(tok[i + 1]); chk = False
        if i + DEPTH == len(seq):
            A.XV = 16
            A("s_mov_b32 %s, 0x%x" % (s(sT2), xin))
            A.xt = xissue()
            if l == 0:
                A.bgq = poison_ops(A, [T1, H1, U1, X3], 27, 28)
        if wr: assert not eq, eq
        if l == 0 and wr and i == N1 + NV // 2 - 1: A.wvm(A.last_dma)
        for t_ in wr[:3]: A.ds(t_)
        mf(0, 0)
        erun(ENG[g][0])
        for t_ in wr[3:6]: A.ds(t_)
        if chk:
            A.wvm(tok[i + 1])
            A("v_max3_u32 v8, %s, %s, %s" % (v(rn), v(rn + 1), v(rn + 2)))
            A("v_max3_u32 v9, %s, %s, %s" % (v(rn + 3), v(rn + 4), v(rn + 5)))
        mf(1, 1)
        if nxt is not None and SPLITLD == 1: tok[nxt] = ld(nxt, True, (1,))
        erun(ENG[g][1])
        for t_ in wr[6:]: wtok = A.ds(t_)
        if chk:
            A("v_max3_u32 v8, v8, %s, %s" % (v(rn + 6), v(rn + 7)))
            A("v_max_u32 v8, v8, v9")
            A("v_cmp_eq_u32 vcc, -1, v8")
        mf(1, 0)
        if nxt is not None and SPLITLD == 2: tok[nxt] = ld(nxt, True, (1,))
        if chk: branch(i + 1)
        if LATEB and i == N1 - 1:
            for k_ in range(N1, N1 + DEPTH): tok[k_] = ld(k_)
        if i in hooks: hooks[i]()
        if i == N1 - T1AT: tail1()
        erun(ENG[g][2])
        if (p == 1 and q == (12 if g == 0 else 9)) or (g == 1 and p == 0 and q == 3):
            assert not eq
            A("s_barrier")
        if q == nq - 1 and more:
            for l_ in acc_init(seq[i + 1][0], seq[i + 1][1]): A(l_)
        A.bg(T1N if (i >= N1 - T1AT and i < N1) else 2 if (i + DEPTH >= len(seq) or (C3MID and 12 <= i < 26)) else 1)
        if wr: A.wds(wtok)
        if i == 13: red_addr(A)
        if i == N1 + 8:
            A("v_lshrrev_b32 v15, 6, v0")
            A("v_bfe_u32 v9, v0, 3, 3")
            A("v_lshl_add_u32 v9, v15, 4, v9")
            A("s_lshl_b32 %s, %s, 6" % (s(sT3), s(sST)))
            A("v_add_u32 %s, %s, v9" % (v(vG0), s(sT3)))
            A("v_mul_u32_u24 %s, 896, %s" % (v(vG0), v(vG0)))
            A("v_and_b32 v15, 7, v0")
            A("v_lshl_add_u32 %s, v15, 4, %s" % (v(vG0), v(vG0)))
            A("s_mul_i32 %s, %s, %d" % (s(sT3), s(sDT), 2 * DW))
            A("v_add_u32 %s, %s, %s" % (v(vG0), s(sT3), v(vG0)))
            if DW < 64:
                A("v_cmp_eq_u32 s[40:41], 7, v15")
                A("v_mov_b32 %s, 0x80000000" % v(vG1))
                A("v_cndmask_b32 %s, %s, %s, s[40:41]" % (v(vG0), v(vG0), v(vG1)))
            A("v_add_u32 %s, %d, %s" % (v(vG1), 8 * 896, v(vG0)))
            A("v_xor_b32 v15, v15, v9")
            A("v_and_b32 v15, 7, v15")
            A("v_lshlrev_b32 %s, 7, v9" % v(vTRD))
            A("v_lshl_add_u32 %s, v15, 4, %s" % (v(vTRD), v(vTRD)))
            A("v_add_u32 %s, 0x%x, %s" % (v(vTRD), TILE, v(vTRD)))
        if i == N1 + 9:
            A("v_bfe_u32 v9, v0, 7, 1")
            A("v_lshlrev_b32 v9, 5, v9")
            A("v_and_b32 v15, 31, v0")
            A("v_add_u32 v9, v9, v15")
            A("v_bfe_u32 v15, v0, 6, 1")
            A("v_lshlrev_b32 v15, 1, v15")
            A("v_xor_b32 v15, v15, v9")
            A("v_and_b32 v15, 7, v15")
            A("v_lshlrev_b32 %s, 7, v9" % v(vTW))
            A("v_lshl_add_u32 %s, v15, 4, %s" % (v(vTW), v(vTW)))
            A("v_bfe_u32 v15, v0, 5, 1")
            A("v_lshl_add_u32 %s, v15, 3, %s" % (v(vTW), v(vTW)))
            A("v_add_u32 %s, 0x%x, %s" % (v(vTW), TILE, v(vTW)))
        if q == nq - 1:
            last = not more
            if p == 1: stamp(A)
            XU = 96
            def xcheck():
                lo, lt = A.newlabel("xok"), A.newlabel("xrty")
                A.wvm(A.xt)
                A.label(lt)
                maxchain(A, range(A.XV, A.XV + 8), 8)
                A("v_cmp_eq_u32 vcc, -1, v8")
                A("s_cbranch_vccz %s" % lo)
                A("s_cmp_eq_u32 %s, 0" % s(sBUD))
                A("s_cbranch_scc1 %s" % lo)
                A("s_sub_u32 %s, %s, 1" % (s(sBUD), s(sBUD)))
                xissue(False)
                A("s_waitcnt vmcnt(0)")
                A("s_branch %s" % lt)
                A.label(lo)
                for k in range(8):
                    A("v_lshlrev_b32 %s, 16, %s" % (v(XU + 2 * k), v(A.XV + k)))
                    A("v_and_b32 %s, 0xffff0000, %s" % (v(XU + 2 * k + 1), v(A.XV + k)))
            if last and l == 1: srd(A, 24, sOUT, S * D * 2)
            if BOOST and more and not (LATEB and i == N1 - 1) and (BOOSTB1 or i != N1 - 1):
                for k_ in range(i + DEPTH + 1, i + 9): tok[k_] = ld(k_)
            eq += epilogue(g, p, xcheck if last else None)
            if p == 1 or not (OVL >> g) & 1:
                erun(1000)
                if g == 0 and p == 1:
                    A.bg_flush()
                    stamp(A)
                    if LATEB:
                        A.wvm(tok[N1])
                        maxchain(A, range(rn, rn + 8), 8)
                        A("v_cmp_eq_u32 vcc, -1, v8")
                        branch(N1)
    dst = (SWS, s(sT2), " sc1") if l == 0 else (SW1, "0", OUTFL)
    if l == 0: A("s_mov_b32 %s, 0x%x" % (s(sT2), X2))
    A("s_waitcnt lgkmcnt(0)")
    A("s_barrier")
    t0 = A.ds("ds_read_b128 v[48:51], %s" % v(vTRD))
    t1 = A.ds("ds_read_b128 v[52:55], %s offset:1024" % v(vTRD))
    XU = 96
    for j in range(2):
        A.wds((t0, t1)[j])
        for k in range(4 * j, 4 * j + 4):
            A("v_lshlrev_b32 %s, 16, %s" % (v(32 + 2 * k), v(48 + k)))
            A("v_and_b32 %s, 0xffff0000, %s" % (v(32 + 2 * k + 1), v(48 + k)))
        for k in range(4 * j, 4 * j + 4):
            A("v_pk_add_f32 %s, %s, %s" % (v(XU + 2 * k, 2), v(XU + 2 * k, 2), v(32 + 2 * k, 2)))
        for k in range(4 * j, 4 * j + 4):
            A("%s %s, %s, %s" % (CV, v(56 + k), v(XU + 2 * k), v(XU + 2 * k + 1)))
        A.vm("buffer_store_dwordx4 %s, %s, %s, %s offen%s" % (v(56 + 4 * j, 4), v(vG0 + j), dst[0], dst[1], dst[2]))
    A.bg_flush()
    done = A.newlabel("bdone")
    def emit_cold():
        A.label(skip1)
        skip_pre()
        A("s_cmp_lg_u32 %s, 0" % s(sA2))
        A("s_cbranch_scc1 %s" % skip2)
        red_addr(A)
        r0 = RINGV + 8 * (N1 % 8)
        poll_loads(A, lambda: ld(N1, False), range(r0, r0 + 8), 8, 32, None, 8)
        if X7D: A("s_sleep %d" % X7D)
        for i in range(N1 + 1, N1 + DEPTH): ld(i, False)
        for l_ in acc_init(1, 0): A(l_)
        A("s_waitcnt vmcnt(0)")
        A("s_branch %s" % b2e)
        A.label(skip2)
        A("s_waitcnt vmcnt(0)")
        if l == 0: poison_list(A, [T1, H1, U1, X3], 32)
        A("s_branch %s" % done)
        for lr, lb, i in cold:
            A.label(lr)
            A("s_cmp_eq_u32 %s, 0" % s(sBUD))
            A("s_cbranch_scc1 %s" % lb)
            A("s_sub_u32 %s, %s, 1" % (s(sBUD), s(sBUD)))
            fast = FASTR and i < min(RALL, 2)
            if SLEEP and not fast: A("s_sleep %d" % SLEEP)
            last_ = (DEPTH if i == 0 else min(i + DEPTH, len(seq))) if (i < RALL or i in (N1, N1 + 1, N1 + 14, N1 + 15)) else i + 1
            for k2 in range(i, last_): ld(k2, False)
            A("s_waitcnt vmcnt(%d)" % (2 * (last_ - i - 1) if fast else 0))
            r = RINGV + 8 * (i % 8)
            maxchain(A, range(r, r + 8), 8)
            A("v_cmp_eq_u32 vcc, -1, v8")
            A("s_cbranch_vccnz %s" % lr)
            A("s_branch %s" % lb)
    A.label(done)
    return emit_cold

def srd(A, d, base, nbytes):
    A("s_mov_b32 %s, %s" % (s(d), s(base)))
    A("s_and_b32 %s, %s, 0xffff" % (s(d + 1), s(base + 1)))
    if isinstance(nbytes, int): A("s_mov_b32 %s, 0x%x" % (s(d + 2), nbytes))
    else: A("s_mov_b32 %s, %s" % (s(d + 2), nbytes))
    A("s_mov_b32 %s, 0x20000" % s(d + 3))

def build():
    A = Asm2()
    KN = NAME + "_kernel"
    def emit(R):
        for l_ in R.l: A(l_)
    A.label(KN)
    A("s_cmp_ge_u32 s2, 256")
    A("s_cbranch_scc1 L_exit")
    A("s_load_dwordx2 %s, s[0:1], 0" % s(sX, 2))
    A("s_getpc_b64 s[36:37]")
    A.label("L_pc")
    if EARLYPF:
        A("v_lshlrev_b32 v150, 5, v0")
        A.vm("global_load_dword v151, v150, s[36:37]" + NT)
    A("s_load_dwordx2 %s, s[0:1], 80" % s(sWS, 2))
    A("s_load_dwordx8 %s, s[0:1], 32" % s(sW1, 8))
    A("s_load_dwordx4 %s, s[0:1], 8" % s(sWR, 4))
    A("s_load_dwordx4 %s, s[0:1], 64" % s(sOUT, 4))
    if DIAG >= 0: A("s_memrealtime s[94:95]" if DIAG != 100 else "s_memtime s[94:95]")
    if PROF:
        for i in range(32): A("s_mov_b32 %s, 0" % s(66 + i))
        A("s_memrealtime s[64:65]")
    A("s_and_b32 %s, s2, 7" % s(sT0))
    A("s_lshr_b32 %s, s2, 3" % s(sT1))
    A("s_lshl_b32 %s, %s, 5" % (s(sW), s(sT0)))
    A("s_add_u32 %s, %s, %s" % (s(sW), s(sW), s(sT1)))
    a1_consts(A)
    A("v_lshrrev_b32 v3, 6, v0")
    A("v_readfirstlane_b32 %s, v3" % s(sWAVE))
    A("s_and_b32 s37, s37, 0xffff")
    A("s_mov_b32 s38, L_code_end-L_pc")
    A("s_mov_b32 s39, 0x20000")
    A("s_lshl_b32 s40, s2, 9")
    A("s_and_b32 s40, s40, 0x1f000")
    A("v_lshlrev_b32 v179, 4, v0")
    A("s_mov_b32 s34, 0x%x" % WS_BYTES)
    A("s_mov_b32 s35, 0x20000")
    A("s_mov_b32 s26, 0x%x" % (S * F * 2))
    A("s_mov_b32 s27, 0x20000")
    A("s_and_b32 s56, s2, 7")
    A("s_lshr_b32 s57, s2, 3")
    A("s_lshl_b32 s58, s57, 2")
    A("s_add_u32 s58, s58, %s" % s(sWAVE))
    A("v_bfe_u32 v152, v0, 5, 1")
    A("v_and_b32 v153, 31, v0")
    A("v_lshlrev_b32 v153, 4, v153")
    A("s_lshl_b32 s59, s56, 9")
    A("v_add_u32 v153, s59, v153")
    A("v_lshl_add_u32 v254, v152, 12, v153")
    A("v_mul_u32_u24 v152, 3584, v152")
    A("v_add_u32 v152, v152, v153")
    A("s_mul_i32 s41, s58, %d" % (16 * 3584))
    A("s_cmp_eq_u32 s56, 7")
    A("s_cselect_b32 s41, 0x80000000, s41")
    A("v_add_u32 v152, s41, v152")
    A("s_mul_i32 s59, s58, %d" % (14 * 4096))
    A("v_add_u32 v254, s59, v254")
    A("s_and_b32 s42, s2, 63")
    A("s_lshr_b32 s43, s2, 6")
    A("v_and_b32 v146, 63, v0")
    A("v_mul_u32_u24 v140, 14, v146")
    A("v_sub_u32 v141, %d, v140" % (445 * 2))
    A("v_cmp_lt_u32 %s, 31, v146" % s(sT5, 2))
    A("s_lshl_b32 s44, s43, 2")
    A("s_add_u32 s44, s44, %s" % s(sWAVE))
    A("v_cndmask_b32 v140, v140, v141, %s" % s(sT5, 2))
    A("s_lshl_b32 s44, s44, 7")
    A("s_add_u32 s44, s44, s42")
    A("v_mov_b32 v142, 1")
    A("v_cndmask_b32 v141, v142, -1, %s" % s(sT5, 2))
    A("s_movk_i32 s45, 450")
    for e in range(2):
        A("v_mul_i32_i24 %s, s44, v141" % v(147 + e))
        A("s_mul_i32 s3, s44, 450")
        A("v_and_b32 %s, 0x7ff, %s" % (v(147 + e), v(147 + e)))
        A("s_add_u32 s3, s3, 448")
        A("v_mad_u32_u24 %s, %s, s45, v140" % (v(147 + e), v(147 + e)))
        A("v_mov_b32 %s, s3" % v(149 + e))
        if e == 0: A("s_add_u32 s44, s44, 64")
    A("v_mov_b32 v140, 0x05040100")
    A("v_mov_b32 v141, 0x07060302")
    A("v_cndmask_b32 v142, v140, v141, %s" % s(sT5, 2))
    A("v_cndmask_b32 v143, v141, v140, %s" % s(sT5, 2))
    A("v_mov_b32 v140, 0x80000000")
    A("v_cndmask_b32 v144, 0, v140, %s" % s(sT5, 2))
    A("s_lshl_b32 s42, s42, 2")
    A("s_add_u32 s42, s42, s43")
    A("s_lshl_b32 s42, s42, 2")
    A("s_add_u32 s42, s42, %s" % s(sWAVE))
    A("s_lshl_b32 s42, s42, 11")
    A("s_add_u32 s3, s42, 0x%x" % WT)
    A("v_lshlrev_b32 v145, 4, v146")
    A("s_waitcnt lgkmcnt(0)")
    if PROF:
        A("s_mov_b32 s66, s64"); nstamp[0] = 1
    A("s_mov_b32 s32, %s" % s(sWS))
    A("s_and_b32 s33, %s, 0xffff" % s(sWS + 1))
    if NCNT:
        lz, lz2 = A.newlabel("nz"), A.newlabel("nz")
        A("s_lshl_b32 %s, s2, 2" % s(sT5))
        A("s_or_b32 %s, %s, %s" % (s(sT5), s(sT5), s(sWAVE)))
        A("s_cmp_lg_u32 %s, 0" % s(sT5))
        A("s_cbranch_scc1 %s" % lz)
        A("v_lshlrev_b32 v12, 7, v0")
        A("v_mov_b32 v13, 0")
        A("s_mov_b32 %s, 0x%x" % (s(sT5), CNT))
        A("buffer_store_dword v13, v12, %s, %s offen sc1" % (SWS, s(sT5)))
        A.label(lz)
        zmark = A.vmn
    for t in range(7): tx = A.vm("global_load_dword %s, v1, %s offset:%d%s" % (v(4 + t), s(sX, 2), 128 * t, NT))
    for e in range(2):
        A.vm("global_load_dwordx2 %s, %s, %s%s" % (v(128 + 4 * e, 2), v(147 + e), s(sWR, 2), NT))
        A.vm("global_load_dwordx2 %s, %s, %s%s" % (v(130 + 4 * e, 2), v(147 + e), s(sWI, 2), NT))
        A.vm("global_load_ushort %s, %s, %s%s" % (v(136 + 2 * e), v(149 + e), s(sWR, 2), NT))
        twp = A.vm("global_load_ushort %s, %s, %s%s" % (v(137 + 2 * e), v(149 + e), s(sWI, 2), NT))
    A.vm("buffer_load_dword v151, v179, s[36:39], s40 offen" + NT)
    A("s_mov_b32 s24, %s" % s(sW1))
    A("s_and_b32 s25, %s, 0xffff" % s(sW1 + 1))
    A("s_mov_b32 s41, 0")
    srd(A, 28, sW2, S * F * 2)
    A("v_mov_b32 v255, v152")
    def wu1(idx, sr):
        for i in idx:
            A("s_mov_b32 %s, %d" % (s(sr), 7168 * i))
            A.vm("buffer_load_dwordx4 v[160:163], v255, %s, %s offen" % (SW1, s(sr)))
    if WU1POS == 0: wu1({1: range(8), 3: (0, 1, 4, 5), 4: (0, 1, 4, 5)}.get(WU1, ()), 41)
    def wu2(i):
        def f():
            A.vm("buffer_load_dwordx4 v[160:163], v254, %s, 0 offen" % SW2)
            A("v_add_u32 v254, 8192, v254")
        return f
    if XP: stamp(A)
    if WU2_AT == "start":
        for i in range(7): wu2(i)()
    if WU1POS == 1: wu1({1: range(8), 3: (0, 1, 4, 5), 4: (0, 1, 4, 5)}.get(WU1, ()), 41)
    poison_list(A, [T0], 154)
    if not FBK:
        if NCNT:
            A("s_lshl_b32 %s, s2, 2" % s(sT5))
            A("s_or_b32 %s, %s, %s" % (s(sT5), s(sT5), s(sWAVE)))
            A("s_cmp_lg_u32 %s, 0" % s(sT5))
            A("s_cbranch_scc1 %s" % lz2)
            A("v_mov_b32 v62, 0")
            A("v_mov_b32 v63, 1")
            A("s_waitcnt vmcnt(%d)" % (A.vmn - zmark))
            A("global_store_dword v62, v63, %s sc1" % s(sDBG, 2))
            A.label(lz2)
    stamp(A)
    if DW == 64:
        A("s_mul_i32 %s, s57, 37" % s(sT2))
        A("s_lshr_b32 %s, %s, 8" % (s(sT2), s(sT2)))
        A("s_mul_i32 %s, %s, 7" % (s(sDT2), s(sT2)))
        A("s_sub_u32 %s, s57, %s" % (s(sDT2), s(sDT2)))
        A("s_cmp_lt_u32 s57, 28")
        A("s_cselect_b32 %s, 0, 0x80000000" % s(sA2))
    else:
        A("s_lshr_b32 %s, s57, 3" % s(sT2))
        A("s_and_b32 %s, s57, 7" % s(sDT2))
        A("s_mov_b32 %s, 0" % s(sA2))
    A("s_lshl_b32 %s, s56, 2" % s(sST))
    A("s_add_u32 %s, %s, %s" % (s(sST), s(sST), s(sT2)))
    if MAP1 == "x":
        A("s_mov_b32 %s, %s" % (s(sFT), s(sST)))
        A("s_mov_b32 %s, %s" % (s(sDT), s(sDT2)))
        A("s_mov_b32 %s, %s" % (s(sROT1), s(sDT2)))
        A("s_cmp_lt_u32 s56, 7")
        A("s_cselect_b32 %s, %s, 0x80000000" % (s(sA1), s(sA2)))
    else:
        A("s_and_b32 %s, s56, 1" % s(sDT))
        A("s_lshl_b32 %s, %s, 2" % (s(sDT), s(sDT)))
        A("s_and_b32 %s, s57, 3" % s(sT2))
        A("s_add_u32 %s, %s, %s" % (s(sDT), s(sDT), s(sT2)))
        A("s_lshl_b32 %s, %s, 1" % (s(sROT1), s(sT2)))
        A("s_lshr_b32 s56, s56, 1")
        A("s_lshr_b32 s57, s57, 2")
        A("s_mul_i32 %s, s56, 7" % s(sFT))
        A("s_add_u32 %s, %s, s57" % (s(sFT), s(sFT)))
        A("s_cmp_lt_u32 %s, %d" % (s(sDT), 448 // DW))
        A("s_cselect_b32 %s, 0, 0x80000000" % s(sA1))
        A("s_mov_b32 %s, %s" % (s(sA2), s(sA1)))
        A("s_cmp_lt_u32 s57, 7")
        A("s_cselect_b32 %s, %s, 0x80000000" % (s(sA1), s(sA1)))
        A("s_lshl_b32 %s, s56, 3" % s(sST))
        A("s_add_u32 %s, %s, s57" % (s(sST), s(sST)))
        A("s_mov_b32 %s, %s" % (s(sDT2), s(sROT1)))
    A("s_lshl_b32 %s, %s, 1" % (s(sSH1), s(sDT)))
    A("s_mov_b32 %s, %s" % (s(sSH2), s(sSH1)))
    if KROT == 3:
        A("s_and_b32 %s, %s, 3" % (s(sT2), s(sFT)))
        A("s_lshl_b32 %s, %s, 2" % (s(sSH1), s(sT2)))
        A("s_mul_i32 %s, %s, 7" % (s(sSH2), s(sT2)))
        A("s_add_u32 %s, %s, 1" % (s(sSH2), s(sSH2)))
        A("s_lshr_b32 %s, %s, 1" % (s(sSH2), s(sSH2)))
    if KROT in (4, 5):
        A("s_and_b32 %s, %s, 3" % (s(sT2), s(sST)))
        A("s_mov_b32 %s, %s" % (s(sSH1), s(sT2)))
        A("s_mov_b32 %s, %s" % (s(sSH2), s(sT2)))
    if not KROT:
        A("s_mov_b32 %s, 0" % s(sSH1))
        A("s_mov_b32 %s, 0" % s(sSH2))
    A("s_mov_b32 %s, 200000" % s(sBUD))
    A("s_lshl_b32 %s, %s, 15" % (s(sRING), s(sWAVE)))
    A("s_mul_i32 %s, %s, %d" % (s(sWB1), s(sWAVE), 8 * 3584))
    A("s_add_u32 %s, %s, %d" % (s(sWB1 + 1), s(sWB1), 1024 * 3584))
    A("s_mul_i32 %s, %s, 14" % (s(sWB2), s(sWAVE)))
    A("s_sub_u32 %s, %s, 14" % (s(sWB2 + 1), s(sWB2)))
    for i in range(3):
        A("s_mov_b32 %s, %s" % (s(SB + 2 * i), fbits(C7[i + 1])))
        A("s_mov_b32 %s, %s" % (s(SB + 2 * i + 1), fbits(C7[i + 1])))
        A("s_mov_b32 %s, %s" % (s(SB + 6 + 2 * i), fbits(S7[i + 1])))
        A("s_mov_b32 %s, %s" % (s(SB + 6 + 2 * i + 1), fbits(S7[i + 1])))
    A("s_lshl_b32 %s, %s, 3" % (s(sT0), s(sWAVE)))
    A("s_add_u32 %s, %s, 0x%x" % (s(sT0), s(sT0), SCR + 16384))
    A("v_lshl_add_u32 v177, v146, 5, %s" % s(sT0))
    A("s_lshl_b32 %s, %s, 11" % (s(sT0), s(sWAVE)))
    A("s_add_u32 %s, %s, 0x%x" % (s(sT0), s(sT0), SCR + 16384))
    A("v_add_u32 v178, %s, v145" % s(sT0))
    w1_voffs(A, PW1, 164)
    DU1 = lambda u, g: dma_chunk(A, 1, 4 * u, 4, PW1, 4 * g)
    DU2 = lambda u, g, vo=PW2: dma_chunk(A, 2, 4 * u, 4, vo, 4 * g)
    R = Rec(); a1_consts2(R); gen_f64(R, 48)
    if SCHED == "unit": A.bgq = DU1(0, 0) + DU1(1, 1)
    A.mix(R.l, 8)
    A.bg_flush()
    stamp(A)
    A.wvm(tx)
    if FBK:
        A("s_lshl_b32 %s, s2, 2" % s(sT0))
        A("s_or_b32 %s, %s, %s" % (s(sT0), s(sT0), s(sWAVE)))
        A("s_cmp_lg_u32 %s, 0" % s(sT0))
        A("s_cbranch_scc1 %s" % lz2)
        A("v_mov_b32 v62, 0")
        A("v_mov_b32 v63, 1")
        A("global_store_dword v62, v63, %s sc1" % s(sDBG, 2))
        A.label(lz2)
    stamp(A)
    WO, WTm = 164, 172
    def whook1():
        A("v_cmp_lt_u32 %s, 31, v146" % s(sT5, 2))
        A("v_cmp_eq_u32 vcc, 32, v146")
        A.wvm(twp)
        for e in range(2):
            r0, i0_ = 128 + 4 * e, 130 + 4 * e
            A("v_cndmask_b32 %s, %s, %s, %s" % (v(WTm), v(r0), v(r0 + 1), s(sT5, 2)))
            A("v_cndmask_b32 %s, %s, %s, %s" % (v(WTm + 1), v(r0 + 1), v(r0), s(sT5, 2)))
            A("v_cndmask_b32 %s, %s, %s, %s" % (v(WTm + 2), v(i0_), v(i0_ + 1), s(sT5, 2)))
            A("v_cndmask_b32 %s, %s, %s, %s" % (v(WTm + 3), v(i0_ + 1), v(i0_), s(sT5, 2)))
            for sl in range(4):
                A("v_perm_b32 %s, %s, %s, %s" % (v(WO + 2 * sl + e), v(WTm + 2 + sl // 2), v(WTm + sl // 2), v(142 + sl % 2)))
                A("v_xor_b32 %s, %s, v144" % (v(WO + 2 * sl + e), v(WO + 2 * sl + e)))
            A("v_lshl_or_b32 %s, %s, 16, %s" % (v(WTm + 4), v(137 + 2 * e), v(136 + 2 * e)))
            A("v_cndmask_b32 %s, %s, %s, vcc" % (v(WO + e), v(WO + e), v(WTm + 4)))
        for sl in range(4):
            A.ds("ds_write_b64 v177, %s offset:%d" % (v(WO + 2 * sl, 2), 2048 * sl))
    def whook2():
        t0 = A.ds("ds_read_b128 %s, v178" % v(WO, 4))
        t1 = A.ds("ds_read_b128 %s, v178 offset:1024" % v(WO + 4, 4))
        def st():
            A.wds(t1)
            A.vm("buffer_store_dwordx4 %s, v145, %s, s3 offen sc1" % (v(WO, 4), SWS))
            A.vm("buffer_store_dwordx4 %s, v145, %s, s3 offen offset:1024 sc1" % (v(WO + 4, 4), SWS))
        return st
    if WHOOK:
        a1_compute(A, Z0, whook1, whook2)
        if NCNT:
            A("v_mov_b32 v11, 0")
            A.vm("global_load_dword v12, v11, %s sc1" % s(sDBG, 2))
    else:
        a1_compute(A, Z0)
        if NCNT:
            A("v_mov_b32 v11, 0")
            A.vm("global_load_dword v12, v11, %s sc1" % s(sDBG, 2))
        whook1()
        A("s_waitcnt lgkmcnt(0)")
        A("s_barrier")
        whook2()()
    stamp(A)
    A("s_waitcnt vmcnt(0)")
    A("s_barrier")
    lw = A.newlabel("nb")
    A("s_cmp_lg_u32 %s, 0" % s(sWAVE))
    A("s_cbranch_scc1 %s" % lw)
    if FBK:
        lt, lo = A.newlabel("fb"), A.newlabel("fbok")
        A("v_cmp_ne_u32 vcc, 0, v12")
        A("v_readfirstlane_b32 s10, v12")
        A("v_mov_b32 v12, 1")
        A("s_mov_b64 exec, 1")
        A("s_cbranch_vccnz %s" % lt)
        A("global_atomic_add v11, v12, %s offset:128 sc1" % s(sDBG, 2))
        A("s_branch %s" % lo)
        A.label(lt)
        A("s_and_b32 %s, s2, %d" % (s(sT0), NCNT - 1))
        A("s_lshl_b32 %s, %s, 7" % (s(sT0), s(sT0)))
        A("s_add_u32 %s, %s, 0x%x" % (s(sT0), s(sT0), CNT))
        A("buffer_atomic_add v12, v11, %s, %s offen sc1" % (SWS, s(sT0)))
        A.label(lo)
    elif NCNT:
        lt, lo = A.newlabel("rdy"), A.newlabel("rdyok")
        A.label(lt)
        A("v_cmp_ne_u32 vcc, 0, v12")
        A("s_cbranch_vccnz %s" % lo)
        A("s_cmp_eq_u32 %s, 0" % s(sBUD))
        A("s_cbranch_scc1 %s" % lo)
        A("s_sub_u32 %s, %s, 1" % (s(sBUD), s(sBUD)))
        A("s_sleep 4")
        A("global_load_dword v12, v11, %s sc1" % s(sDBG, 2))
        A("s_waitcnt vmcnt(0)")
        A("s_branch %s" % lt)
        A.label(lo)
        A("s_and_b32 %s, s2, %d" % (s(sT0), NCNT - 1))
        A("s_lshl_b32 %s, %s, 7" % (s(sT0), s(sT0)))
        A("s_add_u32 %s, %s, 0x%x" % (s(sT0), s(sT0), CNT))
        A("v_mov_b32 v12, 1")
        A("s_mov_b64 exec, 1")
        A("buffer_atomic_add v12, v11, %s, %s offen sc1" % (SWS, s(sT0)))
    else:
        A("s_and_b32 %s, s2, 1" % s(sT0))
        A("s_lshl_b32 %s, %s, 7" % (s(sT0), s(sT0)))
        A("v_mov_b32 v11, %s" % s(sT0))
        A("v_mov_b32 v12, 1")
        A("s_mov_b64 exec, 1")
        A("global_atomic_add v11, v12, %s sc1" % s(sDBG, 2))
    A("s_mov_b64 exec, -1")
    A.label(lw)
    stamp(A)
    if WU2_AT == "beta":
        for i in range(7): wu2(i)()
    A("s_min_u32 %s, %s, 27" % (s(sT0), s(sFT)))
    A("s_lshl_b32 %s, %s, 7" % (s(sT0), s(sT0)))
    A("v_mov_b32 v164, %s" % s(sT0))
    A.vm("global_load_dword v172, v164, %s" % s(sB1, 2))
    A("s_min_u32 %s, %s, 31" % (s(sT0), s(sST)))
    A("s_lshl_b32 %s, %s, 7" % (s(sT0), s(sT0)))
    A("v_mov_b32 v164, %s" % s(sT0))
    A.vm("global_load_dword v172, v164, %s" % s(sB2, 2))
    wu1({2: (0, 1, 4, 5, 2, 3, 6, 7), 3: (2, 3, 6, 7)}.get(WU1, ()), sT0)
    for op in poison_ops(A, ([H0, X1] if PZA == "beta" else []) + ([U0, X2, Z1] if PZB == "beta" else []), 173, 168): op()
    A.p1tok = 0
    R = Rec(); a2_consts(R); f32_gen(R, 48); R.l.remove("W_HERE"); tr_addr(R, PTR1, 8, 164, True); w2_voffs(R, PW2, 164)
    if SCHED == "win": A.bgq = dma_chunk(A, 1, 0, 16, PW1)
    A.mix(R.l, 5)
    A.bg_flush()
    lw = A.newlabel("nb")
    A("s_cmp_lg_u32 %s, 0" % s(sWAVE))
    A("s_cbranch_scc1 %s" % lw)
    A("v_and_b32 v56, %d, v0" % ((NCNT or 2) - 1))
    A("v_lshlrev_b32 v56, 7, v56")
    A("s_mov_b32 %s, 0x%x" % (s(sT0), CNT))
    A("v_and_b32 v59, 1, v0")
    A("v_lshlrev_b32 v59, 7, v59")
    if BDLY: A("s_sleep %d" % BDLY)
    lt, lo = A.newlabel("bar"), A.newlabel("barok")
    A.label(lt)
    if FBK:
        assert NCNT == 32
        A("global_load_dword v58, v59, %s sc1" % s(sDBG, 2))
        A("buffer_load_dword v57, v56, %s, %s offen sc1" % (SWS, s(sT0)))
        A("s_waitcnt vmcnt(0)")
        for m in ("quad_perm:[1,0,3,2]", "quad_perm:[2,3,0,1]", "row_half_mirror", "row_mirror"):
            A("v_add_u32_dpp v57, v57, v57 %s row_mask:0xf bank_mask:0xf" % m)
        A("v_readlane_b32 %s, v58, 0" % s(sT1))
        A("v_readlane_b32 %s, v58, 1" % s(sT2))
        A("v_readlane_b32 %s, v57, 0" % s(sT3))
        A("v_readlane_b32 %s, v57, 16" % s(sC))
        A("s_add_u32 %s, %s, %s" % (s(sT2), s(sT2), s(sT3)))
        A("s_add_u32 %s, %s, %s" % (s(sT2), s(sT2), s(sC)))
        A("s_cmp_eq_u32 s10, 0")
        A("s_cselect_b32 %s, 0, %s" % (s(sT2), s(sT2)))
        A("s_mov_b32 s10, %s" % s(sT1))
        A("s_cmp_ge_u32 %s, 256" % s(sT2))
        A("s_cbranch_scc1 %s" % lo)
    else:
        if NCNT: A("buffer_load_dword v57, v56, %s, %s offen sc1" % (SWS, s(sT0)))
        else: A("global_load_dword v57, v56, %s sc1" % s(sDBG, 2))
        A("s_waitcnt vmcnt(0)")
        A("v_cmp_gt_u32 vcc, %d, v57" % (256 // (NCNT or 2)))
        A("s_cbranch_vccz %s" % lo)
    A("s_cmp_eq_u32 %s, 0" % s(sBUD))
    A("s_cbranch_scc1 %s" % lo)
    A("s_sub_u32 %s, %s, 1" % (s(sBUD), s(sBUD)))
    A("s_sleep %d" % BSLP)
    A("s_branch %s" % lt)
    A.label(lo)
    A.label(lw)
    A("s_barrier")
    stamp(A)
    colds = []
    def fin():
        prof_end(A)
        A("s_endpgm")
    def tr_ops(n, addr, rows, dstfn, slot0=0):
        q = []
        for i in range(slot0, slot0 + n):
            def trp(i=i):
                for tl in range(2):
                    for rd in range(2):
                        A.trtok = A.ds("ds_read_b64_tr_b16 %s, %s offset:%d" % (dstfn(8 * i + 4 * tl + 2 * rd), v(addr + tl), i * 2048 + rows[rd] * 128))
            q.append(trp)
        return q
    def after_tr(ops):
        f = ops[0]
        return [lambda: (A.wds(A.trtok), f())] + ops[1:]
    def waitdma(ops):
        f = ops[0]; tk__ = A.last_dma
        return [lambda: (A.wvm(tk__), f())] + ops[1:]
    def pairs(ops): return [(lambda o=ops[k:k + 2]: [x() for x in o]) for k in range(0, len(ops), 2)]
    def mark(name): return lambda: setattr(A, name, A.last_dma)
    trw1 = lambda n, base, s0: tr_ops(n, PTR1, (0, 4), lambda r: a(base + r, 2), s0)
    for l in range(2):
        zb, tb, hb, ub, xo = ((Z0, T0, H0, U0, X1), (Z1, T1, H1, U1, X3))[l]
        if l == 1:
            A.label("L_layer1")
            for i in range(3):
                A("s_mov_b32 %s, %s" % (s(SB + 2 * i), fbits(C7[i + 1])))
                A("s_mov_b32 %s, %s" % (s(SB + 2 * i + 1), fbits(C7[i + 1])))
                A("s_mov_b32 %s, %s" % (s(SB + 6 + 2 * i), fbits(S7[i + 1])))
                A("s_mov_b32 %s, %s" % (s(SB + 6 + 2 * i + 1), fbits(S7[i + 1])))
            R = Rec(); a1_consts(R); gen_f64(R, 48); a1_consts2(R)
            if F32EARLY: f32_gen(R, 48)
            rest1 = R.l[A1SPLIT:]
            for l_ in R.l[:A1SPLIT]: A(l_)
            A("s_barrier")
            A("s_mov_b32 %s, 0x%x" % (s(sT1), X2))
            def xi():
                for t in range(7): A.vm("buffer_load_dword %s, v1, %s, %s offen offset:%d sc1" % (v(4 + t), SWS, s(sT1), 128 * t))
            FINEON[0] = True
            fstamp(A)
            poll_loads(A, xi, range(4, 11), 11, DLY[0], (lambda: [A(x) for x in rest1]) if rest1 else None)
            stamp(A)
            a1_compute(A, Z1)
            stamp(A)
            R = Rec(); a2_consts(R)
            if not F32EARLY: f32_gen(R, 48)
            k_ = R.l.index("W_HERE")
            for l_ in R.l[:k_]: A(l_)
            A("s_lshl_b32 %s, s2, 13" % s(sT2))
            A("s_add_u32 %s, %s, 0x%x" % (s(sT2), s(sT2), CNT))
            A("s_add_u32 %s, %s, 4096" % (s(sT3), s(sT2)))
            A("v_lshlrev_b32 v57, 4, v0")
            if STASH:
                A.vm("buffer_load_dwordx4 %s, v57, %s, %s offen" % (v(WV, 4), SWS, s(sT2)))
                A.wtok = A.vm("buffer_load_dwordx4 %s, v57, %s, %s offen" % (v(WV + 4, 4), SWS, s(sT3)))
            else: a2_wload(A)
            A.rest2 = R.l[k_ + 1 + A2SPLIT:]
            for l_ in R.l[k_ + 1:k_ + 1 + A2SPLIT]: A(l_)
            fstamp(A)
            A("s_barrier")
        late = SCHED == "late"
        def a2_after():
            if l == 0:
                if WU2_AT == "a2":
                    for i in range(7): wu2(i)()
                if PZA == "a2":
                    for op in poison_ops(A, [H0, X1], 173, 168, False): op()
                    A.p1tok = A.ptok
                A.bgq = ([] if late else trw1(16, 0, 0)) + (poison_ops(A, [U0, X2, Z1], 173, 168, False) if PZB == "a2" else [])
        a2_phase(A, zb, tb, l == 1, a2_after)
        stamp(A)
        if STOP == 2 + 5 * l: fin(); break
        R = Rec(); a3_consts(R)
        if l == 0:
            if WU2_AT == "w23":
                for i in range(7): wu2(i)()
            if PZB == "w23":
                for op in poison_ops(A, [U0, X2, Z1], 173, 168, False): op()
            A("s_waitcnt lgkmcnt(0)")
            A.bgq = dma_chunk(A, 1, 0 if late else 16, 16, PW1)
        A.mix(R.l, 2)
        A.bg_flush()
        A("s_barrier")
        def a3_after():
            if l == 0:
                if WU2_AT == "a3":
                    for i in range(7): wu2(i)()
                A.bgq = trw1(16, 0 if late else 128, 0)
        a3_phase(A, l, tb, xo, hb, a3_after, (lambda: None) if l == 0 else None)
        stamp(A)
        if STOP == 3 + 5 * l: fin(); break
        R = Rec(); b_consts(R); tr_addr(R, vTR, 4, 8)
        VW2 = 28
        if l == 0:
            A("s_waitcnt lgkmcnt(0)")
            if not C3MID: A.bgq = dma_chunk(A, 2, 0, 12, PW2)
        A.mix(R.l, 2)
        A.bg_flush()
        A("s_barrier")
        trw2 = lambda: tr_ops(12, vTR, (0, 8), lambda r: v(W2V + r, 2))
        def b1_tail():
            if l == 0:
                A.bg_flush()
                A("s_waitcnt lgkmcnt(0)")
                A.bgq = dma_chunk(A, 2, 12, 16, VW2)
        def b1_first():
            if l == 0:
                R2 = Rec(); w2_voffs(R2, VW2, 14)
                A.bgq = ([] if C3MID else trw2()) + [(lambda o=R2.l[k:k + 4]: [A(x) for x in o]) for k in range(0, len(R2.l), 4)]
        hooks = {}
        if l == 0 and CPF2:
            def h_cpf():
                A("s_getpc_b64 s[36:37]")
                A.label("L_pc2")
                A("s_add_u32 s36, s36, L_layer1-L_pc2")
                A("s_addc_u32 s37, s37, 0")
                A("s_and_b32 s37, s37, 0xffff")
                A("s_mov_b32 s38, L_code_end-L_layer1")
                A("s_mov_b32 s39, 0x20000")
                A("s_lshr_b32 s40, s2, 3")
                A("s_lshl_b32 s40, s40, 10")
                A("v_lshlrev_b32 v15, 2, v0")
                A.vm("buffer_load_dword v15, v15, s[36:39], s40 offen")
            hooks[CPF2] = h_cpf
        if l == 0 and C3MID:
            def h_c3(): A.bgq = dma_chunk(A, 2, 0, 12, VW2)
            def h_tr():
                A.bg_flush()
                A.trwait = A.last_dma
            def h_tr2():
                A.wvm(A.trwait)
                A.bgq = pairs(trw2())
            hooks = {C3MID: h_c3, 20: h_tr, 22: h_tr2}
        def skip_pre(l=l):
            A("s_waitcnt vmcnt(0)")
            if l == 0:
                w2_voffs(A, VW2, 14)
                if C3MID:
                    for op in dma_chunk(A, 2, 0, 12, VW2): op()
                    A("s_waitcnt vmcnt(0)")
                for op in trw2(): op()
                A("s_waitcnt lgkmcnt(0)")
                for op in dma_chunk(A, 2, 12, 16, VW2): op()
                A("v_mul_u32_u24 v16, 7168, v0")
                A("s_mov_b32 %s, 0x%x" % (s(sT2), H0))
                def hi_():
                    A("buffer_load_dword v17, v16, %s, %s offen sc1" % (SWS, s(sT2)))
                    A("v_mov_b32 v18, 0")
                    A("v_mov_b32 v19, 0")
                poll_loads(A, hi_, range(17, 20), 20, 16)
                A("s_barrier")
        colds.append(b_all(A, l, hb, ub, xo, b1_first, b1_tail, skip_pre, VW2, hooks))
        stamp(A)
        if STOP == 5 + 5 * l: fin(); break
    else:
        fin()
    for c in colds: c()
    A.label("L_exit")
    A("s_endpgm")
    A.label("L_code_end")
    lines, n = fix_hazards_fast(A.lines)
    if ALIGN:
        lines, fx, lf = align_pass(lines, ALIGN, ALNOP)
        print("align fixed", fx, "left", lf, file=sys.stderr)
    pr = [p for p in lint_waits(lines) if "overflow" not in p[2]]
    for p in pr[:6]: print("LINT", p, file=sys.stderr)
    hdr = open("cdna_kernels/%s.s.ref" % NAME).read().split("; Override launch")[0]
    out = hdr + "; @launch grid=(256,1,1) block=(256,1,1) lds=%d\n" % LDS_TOTAL
    out += '.amdgcn_target "amdgcn-amd-amdhsa--gfx950"\n.text\n.globl %s\n.p2align 8\n.type %s,@function\n' % (KN, KN)
    out += "\n".join(lines) + "\n"
    out += """.section .rodata,"a"
.p2align 6
.amdhsa_kernel %s
  .amdhsa_next_free_vgpr 512
  .amdhsa_next_free_sgpr 102
  .amdhsa_accum_offset 256
  .amdhsa_group_segment_fixed_size 0
  .amdhsa_kernarg_size 88
  .amdhsa_user_sgpr_count 2
  .amdhsa_user_sgpr_kernarg_segment_ptr 1
  .amdhsa_system_sgpr_workgroup_id_x 1
.end_amdhsa_kernel
""" % KN
    print("nops inserted:", n, "lines:", len(lines), "stamps:", nstamp[0], file=sys.stderr)
    return out

if __name__ == "__main__":
    outp = sys.argv[1] if len(sys.argv) > 1 else "p1.s"
    open(outp, "w").write(build())
    import subprocess
    r = subprocess.run(["clang", "-x", "assembler", "-target", "amdgcn-amd-amdhsa", "-mcpu=gfx950", "-c", outp, "-o", "chk.o"], capture_output=True, text=True)
    if r.returncode: print("ASM ERROR", r.stderr[:1500])
    else:
        o = subprocess.run(["llvm-readelf", "-S", "chk.o"], capture_output=True, text=True).stdout
        print("text bytes", [int(l.split()[-6 if len(l.split()) > 10 else -5], 16) for l in o.splitlines() if " .text" in l], file=sys.stderr)
```

```python
import math, struct, sys, os
from asmlib import *

NAME = "interleave_layers__spectral_gfnet__mixer_token_mlp__prompt"
S, D, F = 2048, 448, 1792
MB2 = 0x200000
Z0, Z1, T0, T1, WT, X1, X2, X3, H0, H1, U0, U1, CNT = [MB2 * i for i in range(13)]
WS_BYTES = 0x2000000
PROFOFF = 0x1C00000
PROF = int(os.environ.get("PROF", 0))
STOP = int(os.environ.get("STOP", 99))
SLEEP = int(os.environ.get("SLEEP", 2))
WUPRE = int(os.environ.get("WUPRE", 4))
XP = int(os.environ.get("XP", 0)); WU2_AT = os.environ.get("WU2_AT", "a3"); WU2FL = os.environ.get("WU2FL", " nt"); DMAFL = os.environ.get("DMAFL", "")
NT = os.environ.get("NT", "")
SCHED = os.environ.get("SCHED", "win")
DLY = [int(x) for x in os.environ.get("DLY", "0,0,10,12,12").split(",")]
MAP = os.environ.get("MAP", "x"); KROT = int(os.environ.get("KROT", 0))
AUTO2 = int(os.environ.get("AUTO2", 9)); AUTO3 = int(os.environ.get("AUTO3", 7))
FAKE16 = int(os.environ.get("FAKE16", 0))
STFL = os.environ.get("STFL", " sc1")
assert int(os.environ.get("FULLB", 1)) or STFL == " sc1"
PRE1 = int(os.environ.get("PRE1", 32)); PRE2 = int(os.environ.get("PRE2", 32))
DW = int(os.environ.get("DW", 64)); MAP1 = os.environ.get("MAP1", "x"); X2T = int(os.environ.get("X2T", 1))
OUTFL = os.environ.get("OUTFL", "").replace("_", " ")
EXM = int(os.environ.get("EXM", 0))
ALIGN = int(os.environ.get("ALIGN", 0)); ALNOP = int(os.environ.get("ALNOP", 0))
F32EARLY = int(os.environ.get("F32EARLY", 0))
PZ = int(os.environ.get("PZ", 1))
STASH = int(os.environ.get("STASH", 0)); STASHFL = os.environ.get("STASHFL", "").replace("_", " ")
RALL = int(os.environ.get("RALL", 2))
WU1POS = int(os.environ.get("WU1POS", 1))
STN = int(os.environ.get("STN", 0)); STM = int(os.environ.get("STM", 0))
WHOOK = int(os.environ.get("WHOOK", 1)); C4IN = os.environ.get("C4IN", "win")
NCNT = int(os.environ.get("NCNT", 32)); BDLY = int(os.environ.get("BDLY", 0)); BSLP = int(os.environ.get("BSLP", 2))
LATEB = int(os.environ.get("LATEB", 0)); OVL = int(os.environ.get("OVL", 2)); T1AT = int(os.environ.get("T1AT", 6)); T1N = int(os.environ.get("T1N", 2)); EBG = int(os.environ.get("EBG", 6)); BOOST = int(os.environ.get("BOOST", 2)); BOOSTB1 = int(os.environ.get("BOOSTB1", 0)); EN = [int(x) for x in os.environ.get("EN", "6,4,6").split(",")]
SPLITLD = int(os.environ.get("SPLITLD", 1))
DIAGHIT = int(os.environ.get("DIAGHIT", 0))
NOCHK = int(os.environ.get("NOCHK", 0)); NOLD = int(os.environ.get("NOLD", 0))
C3MID = int(os.environ.get("C3MID", 0))
A1SPLIT = int(os.environ.get("A1SPLIT", 999)); A2SPLIT = int(os.environ.get("A2SPLIT", 999))
FBK = int(os.environ.get("FBK", 0)); EARLYPF = int(os.environ.get("EARLYPF", 1))
CPF2 = int(os.environ.get("CPF2", 0))
PZA = os.environ.get("PZA", "a2"); PZB = os.environ.get("PZB", "a2")
GLD = int(os.environ.get("GLD", 0))
X7D = int(os.environ.get("X7D", 0))
FASTR = int(os.environ.get("FASTR", 1))
MASKED = int(os.environ.get("MASKED", 1)); FULLB = int(os.environ.get("FULLB", 1))
ROT = int(os.environ.get("ROT", 1)); WU1 = int(os.environ.get("WU1", 3))

def fbits(x): return "0x%08x" % struct.unpack("<I", struct.pack("<f", x))[0]
C7 = [math.cos(2 * math.pi * r / 7) for r in range(4)]
S7 = [math.sin(2 * math.pi * r / 7) for r in range(4)]
CV = "v_cvt_pk_bf16_f32"; M16 = "v_mfma_f32_16x16x32_bf16"; M32 = "v_mfma_f32_32x32x16_bf16"

sX, sWS, sWR, sWI, sW1, sB1, sW2, sB2, sOUT, sDBG = 4, 6, 8, 10, 12, 14, 16, 18, 20, 22
SW1, SW2, SWS = "s[24:27]", "s[28:31]", "s[32:35]"
SB = 36
sW, sWAVE, sDT, sFT, sST, sA1, sA2, sBUD = 48, 49, 50, 51, 52, 53, 54, 55
sT0, sT1, sT2, sT3 = 56, 57, 58, 59
sRING, sT4, sT5, sT6 = 60, 61, 62, 63
sC = 98
sWB1, sWB2 = 12, 16
sDT2, sROT1 = 64, 65
sSH1, sSH2, sEND = 99, 100, 101
SCR = 131072
LDS_TOTAL = 163840
LSTR = 272
YSTR = 448 * 4 + 64
HSTR = 896 + 32
A3_Y = 32 * LSTR
A3_H = A3_Y + 8 * YSTR
XL = 0
F64R, F64I = 96, 112
W2V = 160

nstamp = [0]
CLK = [int(x) for x in os.environ.get("CLK", "").split(",") if x]
BUDA = [int(x) for x in os.environ.get("BUDA", "22,23").split(",")]
BUDB = [int(x) for x in os.environ.get("BUDB", "23,24").split(",")]
FINE = int(os.environ.get("FINE", 0)); FINEON = [False]
def fstamp(A):
    if FINE: stamp(A)
DIAG = int(os.environ.get("DIAG", -1))
ndiag = [1]
def stamp(A):
    if DIAG >= 0:
        if ndiag[0] == DIAG:
            A("s_memrealtime s[96:97]")
            A("s_waitcnt lgkmcnt(0)")
        ndiag[0] += 1
    if not PROF: return
    if FINE and not FINEON[0]: return
    i = nstamp[0]; nstamp[0] += 1
    assert i < 32
    A("s_memrealtime s[8:9]")
    A("s_waitcnt lgkmcnt(0)")
    A("s_mov_b32 %s, s8" % s(66 + i))
    if CLK and i in CLK:
        A("s_memtime s[8:9]")
        A("s_waitcnt lgkmcnt(0)")
        if i == CLK[0]: A("s_mov_b32 s97, s8")
        else: A("s_sub_u32 s97, s8, s97")
        return
    for slot, st in ((30, BUDA), (31, BUDB)) if not CLK else ():
        if i == st[0]: A("s_mov_b32 %s, %s" % (s(66 + slot), s(sBUD)))
        if i == st[1]:
            A("s_sub_u32 %s, %s, %s" % (s(66 + slot), s(66 + slot), s(sBUD)))
            A("s_add_u32 %s, %s, 1000" % (s(66 + slot), s(66 + slot)))

def prof_end(A):
    if DIAG >= 0:
        stamp(A)
        l1, l2 = A.newlabel("dg"), A.newlabel("dg")
        A("s_cmp_lg_u32 s2, 75")
        A("s_cbranch_scc1 %s" % l2)
        A("s_memrealtime s[92:93]")
        A("s_waitcnt lgkmcnt(0)")
        if DIAG == 100:
            A("s_memtime s[96:97]")
            A("s_waitcnt lgkmcnt(0)")
        A("s_sub_u32 s96, s96, s94")
        if DIAG == 100: A("s_lshr_b32 s96, s96, 5")
        A("s_min_u32 s96, s96, 20000")
        A.label(l1)
        A("s_memrealtime s[90:91]")
        A("s_waitcnt lgkmcnt(0)")
        A("s_sub_u32 s90, s90, s92")
        A("s_cmp_lt_u32 s90, s96")
        A("s_cbranch_scc1 %s" % l1)
        A.label(l2)
    if not PROF: return
    A("s_waitcnt vmcnt(0)")
    stamp(A)
    n = 32
    A("s_lshl_b32 s56, s2, 9")
    A("s_add_u32 s56, s56, 0x%x" % PROFOFF)
    A("v_lshrrev_b32 v1, 6, v0")
    A("v_lshlrev_b32 v1, 7, v1")
    for i in range(n):
        A("v_mov_b32 v2, %s" % s(66 + i))
        A("buffer_store_dword v2, v1, %s, s56 offen offset:%d" % (SWS, 4 * i))

def c7(r):
    r %= 7; r = min(r, 7 - r); return s(SB + 2 * (r - 1), 2)
def s7(r):
    r %= 7
    return (s(SB + 6 + 2 * (r - 1), 2), 1) if r <= 3 else (s(SB + 6 + 2 * (7 - r - 1), 2), -1)

def red32(R, x, t):
    for m in ("quad_perm:[1,0,3,2]", "quad_perm:[2,3,0,1]", "row_half_mirror", "row_mirror"):
        R("v_add_f32_dpp %s, %s, %s %s row_mask:0xf bank_mask:0xf" % (v(x), v(x), v(x), m))
    R("v_mov_b32 %s, %s" % (v(t), v(x)))
    R("v_permlane16_swap_b32 %s, %s" % (v(x), v(t)))
    R("v_add_f32 %s, %s, %s" % (v(x), v(x), v(t)))

def gen_frags(R, nidx, qreg, ksteps, denom, dre, dim, tmp):
    nf, ang, n13 = tmp, tmp + 1, tmp + 2
    R("v_cvt_f32_u32 %s, %s" % (v(nf), v(nidx)))
    R("v_cvt_f32_u32 %s, %s" % (v(ang), v(qreg)))
    R("v_mul_f32 %s, %s, %s" % (v(nf), fbits(1.0 / denom), v(nf)))
    R("v_mul_f32 %s, 4.0, %s" % (v(ang), v(ang)))
    R("v_mul_f32 %s, %s, %s" % (v(n13), fbits(13.0), v(nf)))
    R("v_mul_f32 %s, %s, %s" % (v(ang), v(ang), v(nf)))
    n = 4 * ksteps
    def sc(i): return tmp + 3 + 2 * (i % 2), tmp + 4 + 2 * (i % 2)
    for i in range(n + 1):
        if i < n:
            cs, sn = sc(i)
            R("v_cos_f32 %s, %s" % (v(cs), v(ang)))
            R("v_sin_f32 %s, %s" % (v(sn), v(ang)))
            if i < n - 1: R("v_add_f32 %s, %s, %s" % (v(ang), v(ang), v(nf if i % 4 < 3 else n13)))
        if i > 0:
            cs, sn = sc(i - 1)
            R("%s %s, %s, %s" % (CV, v(dre + i - 1), v(cs), v(sn)))
            R("%s %s, -%s, %s" % (CV, v(dim + i - 1), v(sn), v(cs)))

def gen_f64(R, tmp):
    R("v_lshrrev_b32 %s, 6, v0" % v(tmp + 7))
    R("v_and_b32 %s, 15, v0" % v(tmp + 8))
    R("v_lshl_add_u32 %s, %s, 4, %s" % (v(tmp + 7), v(tmp + 7), v(tmp + 8)))
    R("v_bfe_u32 %s, v0, 4, 2" % v(tmp + 8))
    gen_frags(R, tmp + 7, tmp + 8, 4, 64, F64R, F64I, tmp)

def unpack7(R, src, dst):
    for t in range(7):
        R("v_lshlrev_b32 %s, 16, %s" % (v(dst + 2 * t), v(src + t)))
        R("v_and_b32 %s, 0xffff0000, %s" % (v(dst + 2 * t + 1), v(src + t)))

def stats_streams(z, a1, a2, t1, t2):
    R1 = Rec(); R2 = Rec()
    R1("v_pk_add_f32 %s, %s, %s" % (v(a1, 2), v(z, 2), v(z + 2, 2)))
    for k in range(2, 7): R1("v_pk_add_f32 %s, %s, %s" % (v(a1, 2), v(a1, 2), v(z + 2 * k, 2)))
    R1("v_add_f32 %s, %s, %s" % (v(a1), v(a1), v(a1 + 1)))
    red32(R1, a1, t1)
    R2("v_pk_mul_f32 %s, %s, %s" % (v(a2, 2), v(z, 2), v(z, 2)))
    for k in range(1, 7): R2("v_pk_fma_f32 %s, %s, %s, %s" % (v(a2, 2), v(z + 2 * k, 2), v(z + 2 * k, 2), v(a2, 2)))
    R2("v_add_f32 %s, %s, %s" % (v(a2), v(a2), v(a2 + 1)))
    red32(R2, a2, t2)
    return R1.l, R2.l

def mean_var(A, a1, a2):
    A("v_mul_f32 %s, %s, %s" % (v(a1), fbits(1.0 / D), v(a1)))
    A("v_mul_f32 %s, %s, %s" % (v(a2), fbits(1.0 / D), v(a2)))
    A("v_fma_f32 %s, -%s, %s, %s" % (v(a2), v(a1), v(a1), v(a2)))
    A("v_max_f32 %s, 0, %s" % (v(a2), v(a2)))

def poison(A, region, vtid16, vm1):
    A("s_lshl_b32 %s, s2, 13" % s(sT3))
    A("s_add_u32 %s, %s, 0x%x" % (s(sT3), s(sT3), region))
    A.vm("buffer_store_dwordx4 %s, %s, %s, %s offen sc1" % (v(vm1, 4), v(vtid16), SWS, s(sT3)))
    A("s_add_u32 %s, %s, 4096" % (s(sT3), s(sT3)))
    A.ptok = A.vm("buffer_store_dwordx4 %s, %s, %s, %s offen sc1" % (v(vm1, 4), v(vtid16), SWS, s(sT3)))

def poison_list(A, regions, t):
    A("v_lshlrev_b32 %s, 4, v0" % v(t))
    for k in range(4): A("v_mov_b32 %s, -1" % v(t + 2 + k))
    for r in regions: poison(A, r, t, t + 2)

def poison_ops(A, regions, va, vd, setup=True):
    ops = []
    if setup:
        def st():
            A("v_lshlrev_b32 %s, 4, v0" % v(va))
            for k in range(4): A("v_mov_b32 %s, -1" % v(vd + k))
        ops.append(st)
    for r in regions:
        for h in range(2):
            def op(r=r, h=h):
                A("s_lshl_b32 %s, s2, 13" % s(sC))
                A("s_add_u32 %s, %s, 0x%x" % (s(sC), s(sC), r + 4096 * h))
                A.ptok = A.vm("buffer_store_dwordx4 %s, %s, %s, %s offen sc1" % (v(vd, 4), v(va), SWS, s(sC)))
            ops.append(op)
    return ops

def maxchain(A, regs, t):
    regs = list(regs)
    A("v_max3_u32 %s, %s, %s, %s" % (v(t), v(regs[0]), v(regs[1]), v(regs[2])))
    regs = regs[3:]
    while len(regs) >= 2:
        A("v_max3_u32 %s, %s, %s, %s" % (v(t), v(t), v(regs[0]), v(regs[1]))); regs = regs[2:]
    if regs: A("v_max_u32 %s, %s, %s" % (v(t), v(t), v(regs[0])))

def poll_loads(A, issue, regs, t, dly=0, after=None, slp=None):
    lt, lo = A.newlabel("poll"), A.newlabel("pollok")
    if dly: A("s_sleep %d" % dly)
    if after:
        lc = A.newlabel("pollc")
        issue(); tk_ = A.vmn - 1
        after()
        A.wvm(tk_)
        A("s_branch %s" % lc)
        n0 = A.vmn
    A.label(lt)
    issue()
    A("s_waitcnt vmcnt(0)")
    if after:
        A.vmn = n0
        A.label(lc)
    maxchain(A, regs, t)
    A("v_cmp_eq_u32 vcc, -1, %s" % v(t))
    A("s_cbranch_vccz %s" % lo)
    A("s_cmp_eq_u32 %s, 0" % s(sBUD))
    A("s_cbranch_scc1 %s" % lo)
    A("s_sub_u32 %s, %s, 1" % (s(sBUD), s(sBUD)))
    if MASKED: A("s_mov_b64 exec, vcc")
    if slp or SLEEP: A("s_sleep %d" % (slp or SLEEP))
    A("s_branch %s" % lt)
    A.label(lo)
    if MASKED: A("s_mov_b64 exec, -1")

def dma_lane(R, dst, rowstride, t):
    R("v_bfe_u32 %s, v0, 3, 3" % v(t))
    R("s_mov_b32 %s, %d" % (s(sC), rowstride))
    R("v_mul_lo_u32 %s, %s, %s" % (v(dst), v(t), s(sC)))
    R("v_bfe_u32 %s, v0, 4, 1" % v(t))
    R("v_lshlrev_b32 %s, 2, %s" % (v(t), v(t)))
    R("v_and_b32 %s, 7, v0" % v(t + 1))
    R("v_xor_b32 %s, %s, %s" % (v(t), v(t), v(t + 1)))
    R("v_lshl_add_u32 %s, %s, 4, %s" % (v(dst), v(t), v(dst)))

def w1_voffs(R, dst, t):
    dma_lane(R, dst, 32 * 3584, t)
    R("s_lshl_b32 %s, %s, 7" % (s(sC), s(sFT)))
    R("s_or_b32 %s, %s, %s" % (s(sC), s(sC), s(sA1)))
    R("v_add_u32 %s, %s, %s" % (v(dst), s(sC), v(dst)))
    for i in range(1, 4):
        qd, h = i // 2, i % 2
        R("v_add_u32 %s, 0x%x, %s" % (v(dst + i), (512 * qd + 256 * h) * 3584 - ((qd % 2) * 2 + h) * 1024, v(dst)))

def w2_voffs(R, dst, t):
    dma_lane(R, dst, 4096, t)
    R("s_lshl_b32 %s, %s, 7" % (s(sC), s(sST)))
    R("s_or_b32 %s, %s, %s" % (s(sC), s(sC), s(sA2)))
    R("v_add_u32 %s, %s, %s" % (v(dst), s(sC), v(dst)))
    for i in range(1, 4):
        p, h = i // 2, i % 2
        R("v_add_u32 %s, 0x%x, %s" % (v(dst + i), p * 65536 + h * 32768 - (p * 2 + h) * 1024, v(dst)))

def tr_addr(R, dst, rowsel_hi, t, swap16=False):
    R("v_bfe_u32 %s, v0, 2, 2" % v(t))
    R("v_bfe_u32 %s, v0, 5, 1" % v(t + 1))
    R("v_mul_u32_u24 %s, %d, %s" % (v(t + 1), rowsel_hi, v(t + 1)))
    R("v_add_u32 %s, %s, %s" % (v(t + 1), v(t + 1), v(t)))
    R("v_lshlrev_b32 %s, 7, %s" % (v(dst), v(t + 1)))
    R("v_lshrrev_b32 %s, 4, v0" % v(t))
    R("v_xor_b32 %s, %s, v0" % (v(t), v(t)))
    R("v_bfe_u32 %s, %s, 3, 1" % (v(t), v(t)))
    R("v_lshl_add_u32 %s, %s, 6, %s" % (v(dst), v(t), v(dst)))
    if swap16:
        R("v_lshrrev_b32 %s, 2, v0" % v(t))
        R("v_xor_b32 %s, %s, v0" % (v(t), v(t)))
        R("v_bfe_u32 %s, %s, 4, 1" % (v(t), v(t)))
    else:
        R("v_bfe_u32 %s, v0, 4, 1" % v(t))
    R("v_lshl_add_u32 %s, %s, 5, %s" % (v(dst), v(t), v(dst)))
    R("v_and_b32 %s, 3, v0" % v(t))
    R("v_lshl_add_u32 %s, %s, 3, %s" % (v(dst), v(t), v(dst)))
    R("v_add_u32 %s, %s, %s" % (v(dst), s(sRING), v(dst)))
    R("v_xor_b32 %s, 64, %s" % (v(dst + 1), v(dst)))

def dma_chunk(A, which, ks0, n, voff, slot0=0):
    ops = []
    assert ks0 % 2 == 0 and n % 2 == 0
    for p in range(n // 2):
        for k in range(4):
            def op(p=p, k=k):
                if k == 0:
                    npair = n // 2
                    if KROT == 1:
                        A("s_add_u32 m0, %s, %d" % (s(sRING), (slot0 + 2 * p) * 2048))
                        A("s_add_u32 %s, %s, %d" % (s(sT4), s(sSH1 if which == 1 else sSH2), ks0 // 2 + p))
                    else:
                        if p == 0:
                            A("s_mov_b32 %s, %s" % (s(sT6), s(sROT1 if which == 1 else sDT2)))
                            for _ in range((7 // npair)):
                                A("s_cmp_ge_u32 %s, %d" % (s(sT6), npair))
                                A("s_cselect_b32 %s, %d, 0" % (s(sT4), npair))
                                A("s_sub_u32 %s, %s, %s" % (s(sT6), s(sT6), s(sT4)))
                        else:
                            A("s_add_u32 %s, %s, 1" % (s(sT6), s(sT6)))
                            A("s_cmp_eq_u32 %s, %d" % (s(sT6), npair))
                            A("s_cselect_b32 %s, 0, %s" % (s(sT6), s(sT6)))
                        A("s_lshl_b32 %s, %s, 12" % (s(sT4), s(sT6)))
                        A("s_add_u32 %s, %s, %s" % (s(sT4), s(sT4), s(sRING)))
                        A("s_add_u32 m0, %s, %d" % (s(sT4), slot0 * 2048))
                        A("s_add_u32 %s, %s, %d" % (s(sT4), s(sT6), ks0 // 2))
                        if KROT == 5:
                            if which == 2 and ks0 // 2 + npair > 12:
                                A("s_cmp_ge_u32 %s, 12" % s(sT4))
                                A("s_cselect_b32 s3, 1, 3")
                            else:
                                A("s_mov_b32 s3, 3")
                            A("s_add_u32 %s, %s, %s" % (s(sT5), s(sT4), s(sSH1)))
                            A("s_and_b32 %s, %s, s3" % (s(sT5), s(sT5)))
                            A("s_andn2_b32 %s, %s, s3" % (s(sT4), s(sT4)))
                            A("s_or_b32 %s, %s, %s" % (s(sT4), s(sT4), s(sT5)))
                        elif KROT: A("s_add_u32 %s, %s, %s" % (s(sT4), s(sT4), s(sSH1 if which == 1 else sSH2)))
                    if which == 1:
                        A("s_bfe_u32 %s, %s, 0x30001" % (s(sT5), s(sT4)))
                        A("s_bitcmp1_b32 %s, 0" % s(sT4))
                        A("s_cselect_b32 %s, %s, %s" % (s(sT4), s(sWB1 + 1), s(sWB1)))
                        A("s_mul_i32 %s, %s, 3584" % (s(sT5), s(sT5)))
                        A("s_add_u32 %s, %s, %s" % (s(sT5), s(sT5), s(sT4)))
                    else:
                        A("s_cmp_ge_u32 %s, 14" % s(sT4))
                        A("s_cselect_b32 %s, %s, %s" % (s(sT5), s(sWB2 + 1), s(sWB2)))
                        A("s_add_u32 %s, %s, %s" % (s(sT5), s(sT5), s(sT4)))
                        A("s_lshl_b32 %s, %s, 17" % (s(sT5), s(sT5)))
                A.last_dma = A.vm("buffer_load_dwordx4 %s, %s, %s offen offset:%d%s lds" % (v(voff + k), SW1 if which == 1 else SW2, s(sT5), k * 1024, DMAFL))
            ops.append(op)
    return ops

def tr_chunk(A, n, addr, rows, dstfn):
    for i in range(n):
        for tl in range(2):
            for rd in range(2):
                A.ds("ds_read_b64_tr_b16 %s, %s offset:%d" % (dstfn(8 * i + 4 * tl + 2 * rd), v(addr + tl), i * 2048 + rows[rd] * 128))

PW1, PTR1, PW2 = 240, 248, 250

def a1_consts(R):
    R("s_lshr_b32 %s, %s, 3" % (s(sT0), s(sW)))
    R("s_and_b32 %s, %s, 7" % (s(sT1), s(sW)))
    R("s_lshl_b32 %s, %s, 3" % (s(sT1), s(sT1)))
    R("v_lshrrev_b32 v1, 5, v0")
    R("v_add_u32 v1, %s, v1" % s(sT1))
    R("v_lshlrev_b32 v1, 5, v1")
    R("v_add_u32 v1, %s, v1" % s(sT0))
    R("v_mul_u32_u24 v1, 896, v1")
    R("v_and_b32 v2, 31, v0")
    R("v_lshl_add_u32 v1, v2, 2, v1")

def a1_consts2(R):
    TC, TS = 20, 26
    R("v_cvt_f32_u32 v14, v2")
    R("v_mul_f32 v14, %s, v14" % fbits(2.0 / 448))
    R("v_add_f32 v15, %s, v14" % fbits(1.0 / 448))
    for k in range(1, 4):
        if k == 1: a0, a1_ = 14, 15
        else:
            a0, a1_ = 16, 17
            R("v_mul_f32 v16, %s, v14" % fbits(float(k)))
            R("v_mul_f32 v17, %s, v15" % fbits(float(k)))
        R("v_cos_f32 %s, %s" % (v(TC + 2 * (k - 1)), v(a0)))
        R("v_cos_f32 %s, %s" % (v(TC + 2 * (k - 1) + 1), v(a1_)))
        R("v_sin_f32 %s, %s" % (v(TS + 2 * (k - 1)), v(a0)))
        R("v_sin_f32 %s, %s" % (v(TS + 2 * (k - 1) + 1), v(a1_)))
    R("v_lshrrev_b32 v3, 5, v0")
    R("v_mul_u32_u24 v3, %d, v3" % LSTR)
    R("v_lshl_add_u32 v3, v2, 3, v3")
    R("v_add_u32 v3, 0x%x, v3" % SCR)
    R("v_bfe_u32 v13, v0, 4, 2")
    R("v_and_b32 v12, 15, v0")
    R("v_mul_u32_u24 v18, %d, v12" % LSTR)
    R("v_lshl_add_u32 v18, v13, 4, v18")
    R("v_add_u32 v18, 0x%x, v18" % SCR)
    R("v_lshrrev_b32 v19, 1, v13")
    R("v_lshl_add_u32 v19, v19, 6, v12")
    R("v_lshrrev_b32 v14, 6, v0")
    R("v_lshl_add_u32 v19, v14, 4, v19")
    R("v_lshlrev_b32 v19, 5, v19")
    R("v_and_b32 v14, 1, v13")
    R("v_lshl_add_u32 v19, v14, 4, v19")

def a1_compute(A, zout, hook1=lambda: None, hook2=lambda: None):
    XR, TC, TS, Z = 4, 20, 26, 32
    unpack7(A, XR, Z)
    s1, s2 = stats_streams(Z, 46, 60, 4, 5)
    Dq = Rec()
    P, Q = 48, 54
    for t in range(1, 4):
        Dq("v_pk_add_f32 %s, %s, %s" % (v(P + 2 * (t - 1), 2), v(Z + 2 * t, 2), v(Z + 2 * (7 - t), 2)))
        Dq("v_pk_add_f32 %s, %s, %s neg_lo:[0,1] neg_hi:[0,1]" % (v(Q + 2 * (t - 1), 2), v(Z + 2 * t, 2), v(Z + 2 * (7 - t), 2)))
    RE, IM = 64, 70
    for k in range(1, 4):
        Rr, N = 76 + 4 * (k % 2), 78 + 4 * (k % 2)
        for t in range(1, 4):
            Dq("v_pk_fma_f32 %s, %s, %s, %s" % (v(Rr, 2), v(P + 2 * (t - 1), 2), c7(t * k), v(Z, 2) if t == 1 else v(Rr, 2)))
        for t in range(1, 4):
            cs, sg = s7(t * k)
            if t == 1: Dq("v_pk_mul_f32 %s, %s, %s" % (v(N, 2), v(Q, 2), cs))
            else:
                neg = "" if sg == 1 else " neg_lo:[1,0,0] neg_hi:[1,0,0]"
                Dq("v_pk_fma_f32 %s, %s, %s, %s%s" % (v(N, 2), v(Q + 2 * (t - 1), 2), cs, v(N, 2), neg))
        tc, ts = v(TC + 2 * (k - 1), 2), v(TS + 2 * (k - 1), 2)
        re, im = v(RE + 2 * (k - 1), 2), v(IM + 2 * (k - 1), 2)
        Dq("v_pk_mul_f32 %s, %s, %s" % (re, v(N, 2), ts))
        Dq("v_pk_mul_f32 %s, %s, %s" % (im, v(N, 2), tc))
        Dq("v_pk_fma_f32 %s, %s, %s, %s neg_lo:[0,0,1] neg_hi:[0,0,1]" % (re, v(Rr, 2), tc, re))
        Dq("v_pk_fma_f32 %s, %s, %s, %s" % (im, v(Rr, 2), ts, im))
    Dq("v_pk_add_f32 v[6:7], %s, %s" % (v(Z, 2), v(P, 2)))
    Dq("v_pk_add_f32 v[8:9], %s, %s" % (v(P + 2, 2), v(P + 4, 2)))
    Dq("v_pk_add_f32 v[6:7], v[6:7], v[8:9]")
    for l in zipmix(Dq.l, s1, s2): A(l)
    mean_var(A, 46, 60)
    A("v_add_f32 v60, %s, v60" % fbits(1e-5))
    A("v_rsq_f32 v60, v60")
    A("v_mul_f32 v46, %s, v46" % fbits(-7.0))
    A("v_mul_f32 v60, %s, v60" % fbits(1.0 / (448.0 * 2048.0)))
    A("v_pk_add_f32 v[6:7], v[6:7], v[46:47] op_sel_hi:[1,0]")
    for k in range(6):
        A("v_pk_mul_f32 %s, %s, v[60:61] op_sel_hi:[1,0]" % (v(RE + 2 * k, 2), v(RE + 2 * k, 2)))
    A("v_pk_mul_f32 v[6:7], v[6:7], v[60:61] op_sel_hi:[1,0]")
    for k in range(1, 4):
        o = 32 + 2 * k
        A("%s %s, %s, -%s" % (CV, v(o), v(RE + 2 * (k - 1)), v(IM + 2 * (k - 1))))
        A("%s %s, %s, -%s" % (CV, v(o + 1), v(RE + 2 * (k - 1) + 1), v(IM + 2 * (k - 1) + 1)))
        A.ds("ds_write_b64 v3, %s offset:%d" % (v(o, 2), k * 8 * LSTR))
    A("%s v32, v6, 0" % CV)
    A("%s v33, v7, 0" % CV)
    A.ds("ds_write_b64 v3, v[32:33]")
    hook1()
    A("s_lshl_b32 %s, %s, 13" % (s(sT0), s(sW)))
    A("s_add_u32 %s, %s, 0x%x" % (s(sT0), s(sT0), zout))
    A("s_add_u32 %s, %s, 4096" % (s(sT1), s(sT0)))
    A("s_waitcnt lgkmcnt(0)")
    fstamp(A)
    A("s_barrier")
    fstamp(A)
    AF = 64
    tk = []
    for mt in range(2):
        for t in range(4):
            tk.append(A.ds("ds_read_b128 %s, v18 offset:%d" % (v(AF + 16 * mt + 4 * t, 4), mt * 16 * LSTR + 64 * t)))
    DR, DI = 32, 40
    h2 = hook2()
    def fin_(mt):
        for r in range(4):
            A("%s %s, %s, %s" % (CV, v(48 + 4 * mt + r), v(DR + 4 * mt + r), v(DI + 4 * mt + r)))
        A.vm("buffer_store_dwordx4 %s, v19, %s, %s offen sc1" % (v(48 + 4 * mt, 4), SWS, s(sT0 + mt)))
    for mt in range(2):
        for t in range(4):
            A.wds(tk[4 * mt + t])
            A("%s %s, %s, %s, %s" % (M16, v(DR + 4 * mt, 4), v(AF + 16 * mt + 4 * t, 4), v(F64R + 4 * t, 4), "0" if t == 0 else v(DR + 4 * mt, 4)))
            A("%s %s, %s, %s, %s" % (M16, v(DI + 4 * mt, 4), v(AF + 16 * mt + 4 * t, 4), v(F64I + 4 * t, 4), "0" if t == 0 else v(DI + 4 * mt, 4)))
            if mt == 1 and t == 2: fin_(0)
    if h2: h2()
    fin_(1)

F32R, F32I = 128, 144
TW1, TW2, WV = 16, 24, 8
def a2_consts(R):
    R("v_and_b32 v2, 15, v0")
    R("v_bfe_u32 v3, v0, 4, 2")
    R("v_lshrrev_b32 v4, 6, v0")
    R("v_lshrrev_b32 v5, 1, v4")
    R("v_lshl_add_u32 v5, v5, 4, v2")
    R("v_lshlrev_b32 v5, 3, v5")
    R("v_and_b32 v6, 1, v4")
    R("v_lshl_add_u32 v5, v6, 2, v5")
    R("v_lshrrev_b32 v6, 1, v3")
    R("v_add_u32 v5, v5, v6")
    R("v_lshlrev_b32 v5, 13, v5")
    R("v_and_b32 v7, 1, v3")
    R("v_lshl_add_u32 v5, v7, 4, v5")
    R("v_lshl_add_u32 v56, v4, 4, v2")
    R("v_lshl_add_u32 v6, v56, 2, v6")
    R("v_lshlrev_b32 v6, 13, v6")
    R("v_lshl_add_u32 v7, v7, 4, v6")
    R("v_lshlrev_b32 v6, 8, v2")
    R("v_lshl_add_u32 v6, v4, 6, v6")
    R("v_lshl_add_u32 v6, v3, 4, v6")
    R("W_HERE")
    R("v_cvt_f32_u32 v57, v56")
    R("v_cvt_f32_u32 v58, v3")
    R("v_mul_f32 v57, %s, v57" % fbits(1.0 / 2048))
    R("v_mul_f32 v58, 4.0, v58")
    R("v_mul_f32 v59, %s, v57" % fbits(13.0))
    R("v_mul_f32 v58, v58, v57")
    for i in range(8):
        R("v_cos_f32 v60, v58"); R("v_sin_f32 v61, v58")
        if i < 7: R("v_add_f32 v58, v58, %s" % v(57 if i != 3 else 59))
        R("v_cvt_pk_f16_f32 %s, v60, -v61" % v(TW1 + i))
    R("v_lshlrev_b32 v56, 4, v4")
    R("v_lshl_add_u32 v56, v3, 2, v56")
    R("v_cvt_f32_u32 v56, v56")
    R("v_add_u32 v47, 16, v2")
    for nt in range(2):
        R("v_cvt_f32_u32 v57, %s" % v(2 if nt == 0 else 47))
        R("v_mul_f32 v57, %s, v57" % fbits(1.0 / 2048))
        R("v_mul_f32 v58, v56, v57")
        for r in range(4):
            R("v_cos_f32 v60, v58"); R("v_sin_f32 v61, v58")
            if r < 3: R("v_add_f32 v58, v58, v57")
            R("v_cvt_pk_f16_f32 %s, v60, v61" % v(TW2 + 4 * nt + r))

def f32_gen(R, t):
    R("v_and_b32 %s, 15, v0" % v(t + 7))
    R("v_bfe_u32 %s, v0, 4, 2" % v(t + 8))
    R("v_add_u32 %s, 16, %s" % (v(t + 9), v(t + 7)))
    for mt in range(2):
        gen_frags(R, t + 7 + 2 * mt, t + 8, 2, 32, F32R + 8 * mt, F32I + 8 * mt, t)

def cmul_mix(A, ar, ai, tw, t):
    A("v_fma_mix_f32 %s, %s, %s, 0 op_sel:[0,1,0] op_sel_hi:[0,1,0]" % (v(t), v(ai), v(tw)))
    A("v_fma_mix_f32 %s, %s, %s, 0 op_sel:[0,0,0] op_sel_hi:[0,1,0]" % (v(t + 1), v(ai), v(tw)))
    A("v_fma_mix_f32 %s, %s, %s, %s op_sel:[0,1,0] op_sel_hi:[0,1,0]" % (v(ai), v(ar), v(tw), v(t + 1)))
    A("v_fma_mix_f32 %s, %s, %s, -%s op_sel:[0,0,0] op_sel_hi:[0,1,0]" % (v(ar), v(ar), v(tw), v(t)))

def a2_wload(A):
    A("s_lshr_b32 %s, %s, 6" % (s(sT2), s(sW)))
    A("s_lshl_b32 %s, %s, 11" % (s(sT2), s(sT2)))
    A("s_and_b32 %s, %s, 63" % (s(sT3), s(sW)))
    A("s_lshl_b32 %s, %s, 5" % (s(sT3), s(sT3)))
    A("s_add_u32 %s, %s, %s" % (s(sT2), s(sT2), s(sT3)))
    A("s_add_u32 %s, %s, 0x%x" % (s(sT2), s(sT2), WT))
    A("s_add_u32 %s, %s, 16384" % (s(sT3), s(sT2)))
    for mt in range(2):
        A.wtok = A.vm("buffer_load_dwordx4 %s, v7, %s, %s offen sc1" % (v(WV + 4 * mt, 4), SWS, s(sT2 + mt)))

def a2_phase(A, zin, tout, poll, after_loads, post=lambda: None):
    A("s_lshl_b32 %s, %s, 5" % (s(sT0), s(sW)))
    A("s_add_u32 %s, %s, 0x%x" % (s(sT0), s(sT0), zin))
    A("s_add_u32 %s, %s, 16384" % (s(sT1), s(sT0)))
    G = 32
    def issue():
        A.vm("buffer_load_dwordx4 %s, v5, %s, %s offen sc1" % (v(G, 4), SWS, s(sT0)))
        return A.vm("buffer_load_dwordx4 %s, v5, %s, %s offen sc1" % (v(G + 4, 4), SWS, s(sT1)))
    A("v_lshlrev_b32 v62, 4, v0")
    A("v_lshl_add_u32 v62, v4, 10, v62")
    A("v_add_u32 v62, 0x%x, v62" % SCR)
    A("v_and_b32 v63, 63, v0")
    A("v_lshlrev_b32 v63, 4, v63")
    A("v_add_u32 v63, 0x%x, v63" % SCR)
    if poll:
        tw_tok = A.wtok
        poll_loads(A, issue, range(G, G + 8), 40, DLY[1], (lambda: [A(x) for x in A.rest2]) if A.rest2 else None)
    else:
        tz = issue(); a2_wload(A); tw_tok = A.wtok; post(); A.wvm(tz)
    stamp(A)
    A.ds("ds_write_b128 v62, %s" % v(G, 4))
    A.ds("ds_write_b128 v62, %s offset:1024" % v(G + 4, 4))
    after_loads()
    A("s_waitcnt lgkmcnt(0)")
    A("s_barrier")
    fstamp(A)
    DA = 64
    tk = [A.ds("ds_read_b128 %s, v63 offset:%d" % (v(DA + 4 * f, 4), 1024 * f)) for f in range(8)]
    GR, GI, P1, XR, XI, WR_, WI_, HR, HI = 32, 40, 48, 64, 72, 80, 88, 32, 40
    def mm(d, a_, b_, first): return "%s %s, %s, %s, %s" % (M16, v(d, 4), v(a_, 4), v(b_, 4), "0" if first else v(d, 4))
    def weave(ms, vs, lead=0, pre=None):
        n = len(ms) - lead; k = 0
        for i, m_ in enumerate(ms):
            if pre: pre(i)
            A(m_)
            if i >= lead:
                tgt = len(vs) * (i - lead + 1) // n
                while k < tgt:
                    (A.ds if vs[k].startswith("ds_") else A.vm if vs[k].startswith("buffer") else A)(vs[k]); k += 1
            if i % 2: A.bg()
    def tw(rr, ii, twr, dst, idx, tmp, swap):
        R = Rec()
        for i in idx:
            cmul_mix(R, rr + i, ii + i, twr + i, tmp + 2 * (i % 2))
            R("%s %s, %s, %s" % ((CV, v(dst + i), v(ii + i), v(rr + i)) if swap else (CV, v(dst + i), v(rr + i), v(ii + i))))
        return R.l
    def st1(mt): return [mm((GR, GI)[c] + 4 * mt, DA + 16 * mt + 4 * t, (F64R, F64I)[c] + 4 * t, t == 0) for t in range(4) for c in range(2)]
    weave(st1(0), [], pre=lambda i: A.wds(tk[i // 2]) if i % 2 == 0 else None)
    weave(st1(1), tw(GR, GI, TW1, P1, range(4), 56, False), lead=2, pre=lambda i: A.wds(tk[4 + i // 2]) if i % 2 == 0 else None)
    fstamp(A)
    def st2(ks): return [mm((XR, XI)[c] + 4 * mt, (F32R, F32I)[c] + 8 * mt + 4 * ks, P1 + 4 * ks, ks == 0) for mt in range(2) for c in range(2)]
    weave(st2(0), tw(GR, GI, TW1, P1, range(4, 8), 56, False))
    A.wvm(tw_tok)
    un = []
    for i in range(8):
        un += ["v_lshlrev_b32 %s, 16, %s" % (v(WR_ + i), v(WV + i)), "v_and_b32 %s, 0xffff0000, %s" % (v(WI_ + i), v(WV + i))]
    weave(st2(1), un)
    def wm(idx):
        R = Rec()
        for i in idx:
            xr, xi, wr, wi = v(XR + i, 2), v(XI + i, 2), v(WR_ + i, 2), v(WI_ + i, 2)
            t_ = 56 + 4 * ((i // 2) % 2) if False else 56
            R("v_pk_mul_f32 v[56:57], %s, %s" % (xi, wi))
            R("v_pk_mul_f32 v[58:59], %s, %s" % (xi, wr))
            R("v_pk_fma_f32 v[56:57], %s, %s, v[56:57] neg_lo:[0,0,1] neg_hi:[0,0,1]" % (xr, wr))
            R("v_pk_fma_f32 v[58:59], %s, %s, v[58:59]" % (xr, wi))
            R("%s %s, v58, v56" % (CV, v(P1 + i)))
            R("%s %s, v59, v57" % (CV, v(P1 + i + 1)))
        return R.l
    A.st(STM)
    for l_ in wm((0, 2)): A(l_)
    def st3(ks): return [mm((HI, HR)[c] + 4 * nt, P1 + 4 * ks, (F32R, F32I)[c] + 8 * nt + 4 * ks, ks == 0) for nt in range(2) for c in range(2)]
    weave(st3(0), wm((4, 6)))
    weave(st3(1), ["v_lshlrev_b32 v62, 4, v0", "v_add_u32 v62, 0x%x, v62" % (SCR + 8192),
                   "s_lshl_b32 %s, %s, 13" % (s(sT0), s(sW)), "s_add_u32 %s, %s, 0x%x" % (s(sT0), s(sT0), tout), "s_add_u32 %s, %s, 4096" % (s(sT1), s(sT0))])
    A.st(STM)
    for h in range(2):
        for i, l_ in enumerate(tw(HR, HI, TW2, P1, range(4 * h, 4 * h + 4), 64, True)):
            A(l_)
            if i % 5 == 4: A.bg()
        A.ds("ds_write_b128 v62, %s offset:%d" % (v(P1 + 4 * h, 4), 4096 * h))
    A.st(STN)
    if not poll and PZ: A.wvm(A.p1tok)
    A("s_waitcnt lgkmcnt(0)")
    fstamp(A)
    A("s_barrier")
    fstamp(A)
    tk = [A.ds("ds_read_b128 %s, v63 offset:%d" % (v(DA + 4 * f, 4), 8192 + 1024 * f)) for f in range(8)]
    A.st(STN)
    TR, TI = 32, 40
    def st4(nt): return [mm((TI, TR)[c] + 4 * nt, (F64R, F64I)[c] + 4 * t, DA + 16 * nt + 4 * t, t == 0) for t in range(4) for c in range(2)]
    def fin_(nt):
        return ["%s %s, %s, %s" % (CV, v(48 + 4 * nt + r), v(TI + 4 * nt + r), v(TR + 4 * nt + r)) for r in range(4)] + \
               ["buffer_store_dwordx4 %s, v6, %s, %s offen sc1" % (v(48 + 4 * nt, 4), SWS, s(sT0 + nt))]
    weave(st4(0), [], pre=lambda i: A.wds(tk[i // 2]) if i % 2 == 0 else None)
    weave(st4(1), fin_(0), lead=4, pre=lambda i: A.wds(tk[4 + i // 2]) if i % 2 == 0 else None)
    A.st(STM)
    for l_ in fin_(1): (A.vm if l_.startswith("buffer") else A)(l_)
    A.bg_flush()

def a3_consts(R):
    a1_consts(R)
    R("v_lshlrev_b32 v3, 13, v0")
    R("v_lshrrev_b32 v11, 6, v0")
    R("v_and_b32 v12, 15, v0")
    R("v_mul_u32_u24 v15, %d, v12" % LSTR)
    R("v_lshl_add_u32 v12, v11, 4, v12")
    R("v_bfe_u32 v13, v0, 4, 2")
    R("v_lshl_add_u32 v15, v13, 4, v15")
    R("v_add_u32 v15, 0x%x, v15" % SCR)
    R("v_lshrrev_b32 v14, 1, v11")
    R("v_lshlrev_b32 v14, 4, v14")
    R("v_and_b32 v30, 1, v11")
    R("v_lshl_add_u32 v14, v30, 1, v14")
    R("v_mul_u32_u24 v14, %d, v14" % LSTR)
    R("v_and_b32 v30, 63, v0")
    R("v_lshl_add_u32 v14, v30, 2, v14")
    R("v_add_u32 v14, 0x%x, v14" % SCR)
    TW = 24
    R("v_cvt_f32_u32 v30, v12")
    for k in range(1, 4):
        R("v_mul_f32 v31, %s, v30" % fbits(k / 448.0))
        R("v_cos_f32 %s, v31" % v(TW + 2 * (k - 1)))
        R("v_sin_f32 %s, v31" % v(TW + 2 * (k - 1) + 1))
    for k in range(6): R("v_add_f32 %s, %s, %s" % (v(TW + k), v(TW + k), v(TW + k)))
    R("v_mul_u32_u24 v62, %d, v13" % (2 * YSTR))
    R("v_lshl_add_u32 v62, v12, 2, v62")
    R("v_add_u32 v62, 0x%x, v62" % (SCR + A3_Y))
    R("v_lshrrev_b32 v31, 5, v0")
    R("v_mul_u32_u24 v30, %d, v31" % HSTR)
    R("v_lshl_add_u32 v30, v2, 2, v30")
    R("v_add_u32 v30, 0x%x, v30" % (SCR + A3_H))
    R("v_mul_u32_u24 v63, %d, v31" % YSTR)
    R("v_lshl_add_u32 v63, v2, 3, v63")
    R("v_add_u32 v63, 0x%x, v63" % (SCR + A3_Y))
    R("v_bfe_u32 v31, v0, 2, 2")
    R("v_mul_u32_u24 v31, %d, v31" % HSTR)
    R("v_and_b32 v12, 3, v0")
    R("v_lshl_add_u32 v31, v12, 3, v31")
    R("v_lshl_add_u32 v31, v13, 5, v31")
    R("v_lshl_add_u32 v31, v11, 7, v31")
    R("v_add_u32 v31, 0x%x, v31" % (SCR + A3_H))
    R("v_lshlrev_b32 v12, 4, v0")

def a3_phase(A, l, tin, xout, hout, after_loads, post=None):
    XR, TV, TW = 4, 16, 24
    if l == 0:
        for t in range(7): A.vm("global_load_dword %s, v1, %s offset:%d" % (v(XR + t), s(sX, 2), 128 * t))
    else:
        A("s_mov_b32 %s, 0x%x" % (s(sT1), X2))
        for t in range(7): A.vm("buffer_load_dword %s, v1, %s, %s offen offset:%d sc1" % (v(XR + t), SWS, s(sT1), 128 * t))
    A("s_lshl_b32 %s, %s, 5" % (s(sT0), s(sW)))
    A("s_add_u32 %s, %s, 0x%x" % (s(sT0), s(sT0), tin))
    def issue():
        A.vm("buffer_load_dwordx4 %s, v3, %s, %s offen sc1" % (v(TV, 4), SWS, s(sT0)))
        A.vm("buffer_load_dwordx4 %s, v3, %s, %s offen offset:16 sc1" % (v(TV + 4, 4), SWS, s(sT0)))
    poll_loads(A, issue, range(TV, TV + 8), 32, DLY[2] if post is None else 0, post)
    stamp(A)
    for row in range(8):
        A.ds("ds_write_b32 v14, %s offset:%d" % (v(TV + row), (4 * (row // 2) + (row & 1)) * LSTR))
    after_loads()
    A("s_waitcnt lgkmcnt(0)")
    A("s_barrier")
    fstamp(A)
    AF = 64
    tk = []
    for mt in range(2):
        for t in range(4):
            tk.append(A.ds("ds_read_b128 %s, v15 offset:%d" % (v(AF + 16 * mt + 4 * t, 4), mt * 16 * LSTR + 64 * t)))
    DR, DI = 32, 40
    Z = 128
    unpack7(A, XR, Z)
    UR, UI, U0 = 48, 54, DR
    def twk(k):
        tw = v(TW + 2 * (k - 1), 2)
        vr, vi = v(DR + 2 * k, 2), v(DI + 2 * k, 2)
        ur, ui = v(UR + 2 * (k - 1), 2), v(UI + 2 * (k - 1), 2)
        return ["v_pk_mul_f32 %s, %s, %s op_sel:[0,1] op_sel_hi:[1,1]" % (ur, vi, tw),
                "v_pk_mul_f32 %s, %s, %s op_sel:[0,0] op_sel_hi:[1,0]" % (ui, vi, tw),
                "v_pk_fma_f32 %s, %s, %s, %s op_sel:[0,0,0] op_sel_hi:[1,0,1] neg_lo:[0,0,1] neg_hi:[0,0,1]" % (ur, vr, tw, ur),
                "v_pk_fma_f32 %s, %s, %s, %s op_sel:[0,1,0] op_sel_hi:[1,1,1]" % (ui, vr, tw, ui)]
    early = twk(1)
    for t in range(1, 4):
        early.append("v_pk_fma_f32 %s, %s, %s, %s" % (v((16, 20, 68)[t - 1], 2), v(UR, 2), c7(t), v(U0, 2)))
        early.append("v_pk_mul_f32 %s, %s, %s" % (v((18, 22, 70)[t - 1], 2), v(UI, 2), s7(t)[0]))
    early.append("v_pk_add_f32 v[60:61], %s, %s" % (v(U0, 2), v(UR, 2)))
    for mt in range(2):
        for t in range(4):
            A.wds(tk[4 * mt + t])
            A("%s %s, %s, %s, %s" % (M16, v(DI + 4 * mt, 4), v(AF + 16 * mt + 4 * t, 4), v(F64R + 4 * t, 4), "0" if t == 0 else v(DI + 4 * mt, 4)))
            A("%s %s, %s, %s, %s" % (M16, v(DR + 4 * mt, 4), v(AF + 16 * mt + 4 * t, 4), v(F64I + 4 * t, 4), "0" if t == 0 else v(DR + 4 * mt, 4)))
            if mt == 1 and t >= 2:
                for l_ in early[(t - 2) * 4:(t - 1) * 4]: A(l_)
            A.bg()
    for l_ in early[8:]: A(l_)
    A.st(STM)
    for k in (2, 3):
        for l_ in twk(k): A(l_)
        A.bg()
    def ywrite(pair, t):
        A.ds("ds_write_b32 v62, %s offset:%d" % (v(pair), 256 * t))
        A.ds("ds_write_b32 v62, %s offset:%d" % (v(pair + 1), YSTR + 256 * t))
    A("v_pk_add_f32 v[66:67], %s, %s" % (v(UR + 2, 2), v(UR + 4, 2)))
    A("v_pk_add_f32 v[64:65], v[60:61], v[66:67]")
    ywrite(64, 0)
    for t in range(1, 4):
        aa, bb, y1, y2 = (16, 20, 68)[t - 1], (18, 22, 70)[t - 1], 40 + 4 * (t % 2), 42 + 4 * (t % 2)
        for k in range(2, 4):
            A("v_pk_fma_f32 %s, %s, %s, %s" % (v(aa, 2), v(UR + 2 * (k - 1), 2), c7(t * k), v(aa, 2)))
            cs, sg = s7(t * k)
            neg = "" if sg == 1 else " neg_lo:[1,0,0] neg_hi:[1,0,0]"
            A("v_pk_fma_f32 %s, %s, %s, %s%s" % (v(bb, 2), v(UI + 2 * (k - 1), 2), cs, v(bb, 2), neg))
        A("v_pk_add_f32 %s, %s, %s neg_lo:[0,1] neg_hi:[0,1]" % (v(y1, 2), v(aa, 2), v(bb, 2)))
        A("v_pk_add_f32 %s, %s, %s" % (v(y2, 2), v(aa, 2), v(bb, 2)))
        ywrite(y1, t); ywrite(y2, 7 - t)
        A.bg(2)
    A.st(STN)
    A("s_waitcnt lgkmcnt(0)")
    fstamp(A)
    A("s_barrier")
    fstamp(A)
    Y = 64
    tk = [A.ds("ds_read_b64 %s, v63 offset:%d" % (v(Y + 2 * t, 2), 256 * t)) for t in range(7)]
    A.bg(3)
    A.st(STN)
    for t in range(7):
        A.wds(tk[t])
        A("v_pk_add_f32 %s, %s, %s" % (v(Z + 2 * t, 2), v(Z + 2 * t, 2), v(Y + 2 * t, 2)))
    s1, s2 = stats_streams(Z, 46, 48, 50, 51)
    St = ["ds_write_b32 v30, %s offset:%d" % (v(XR + t), 128 * t + XL - A3_H + 65536 if False else 0) for t in range(0)]
    A("v_subrev_u32 v52, %d, v30" % (A3_H - XL))
    A("v_mov_b32 v53, %s" % fbits(1e-10))
    A("s_mov_b32 %s, %s" % (s(sT2), fbits(1.0 + 1e-5)))
    St = []
    for t in range(7):
        St += ["%s %s, %s, %s" % (CV, v(XR + t), v(Z + 2 * t), v(Z + 2 * t + 1)), "ds_write_b32 v52, %s offset:%d" % (v(XR + t), 128 * t)]
    for ln in zipmix(s1, s2, St):
        if ln.startswith("ds_"): A.ds(ln)
        else: A(ln)
    mean_var(A, 46, 48)
    A.st(STM)
    A("v_fma_f32 v48, v48, %s, v53" % s(sT2))
    A("v_rsq_f32 v48, v48")
    A("s_mul_i32 %s, %s, 7168" % (s(sT0), s(sW)))
    A("s_add_u32 %s, %s, 0x%x" % (s(sT0), s(sT0), hout))
    A("v_mul_f32 v46, -v46, v48" if False else "v_mul_f32 v46, v46, v48")
    for t in range(7):
        A("v_pk_fma_f32 %s, %s, v[48:49], v[46:47] op_sel_hi:[1,0,0] neg_lo:[0,0,1] neg_hi:[0,0,1]" % (v(Z + 2 * t, 2), v(Z + 2 * t, 2)))
    for t in range(7):
        A("%s %s, %s, %s" % (CV, v(64 + t), v(Z + 2 * t), v(Z + 2 * t + 1)))
        A.ds("ds_write_b32 v30, %s offset:%d" % (v(64 + t), 128 * t))
    A("s_add_u32 %s, %s, 4096" % (s(sT1), s(sT0)))
    A.st(STN)
    A("s_waitcnt lgkmcnt(0)")
    fstamp(A)
    A("s_barrier")
    fstamp(A)
    A.auto = 0
    A.ds("ds_read_b64_tr_b16 v[20:21], v31")
    A.ds("ds_read_b64_tr_b16 v[22:23], v31 offset:%d" % (4 * HSTR))
    A.ds("ds_read_b64_tr_b16 v[24:25], v31 offset:512")
    A.ds("ds_read_b64_tr_b16 v[26:27], v31 offset:%d" % (4 * HSTR + 512))
    A("v_cmp_gt_u32 vcc, 192, v0")
    A("v_mov_b32 v13, 0x80000000")
    A("v_cndmask_b32 v13, v13, v12, vcc")
    A("v_and_b32 v14, 63, v0")
    A("v_lshlrev_b32 v15, 4, v14")
    A("s_mul_i32 %s, %s, %d" % (s(sT2), s(sWAVE), 2 * HSTR))
    A("s_add_u32 %s, %s, 0x%x" % (s(sT2), s(sT2), SCR + XL))
    A("v_add_u32 v16, %s, v15" % s(sT2))
    A.ds("ds_read_b128 v[32:35], v16")
    A.ds("ds_read_b128 v[36:39], v16 offset:%d" % HSTR)
    A("v_readfirstlane_b32 %s, v1" % s(sT2))
    A("v_mov_b32 v17, 0x80000000")
    A("s_waitcnt lgkmcnt(4)")
    A.vm("buffer_store_dwordx4 v[20:23], v12, %s, %s offen sc1" % (SWS, s(sT0)))
    A("v_cmp_gt_u32 vcc, 56, v14")
    A("s_add_u32 %s, %s, 0x%x" % (s(sT2), s(sT2), xout))
    A("s_add_u32 %s, %s, %d" % (s(sT3), s(sT2), 32 * 896))
    A("v_cndmask_b32 v15, v17, v15, vcc")
    A("s_waitcnt lgkmcnt(2)")
    A.vm("buffer_store_dwordx4 v[24:27], v13, %s, %s offen sc1" % (SWS, s(sT1)))
    A("s_waitcnt lgkmcnt(0)")
    A.vm("buffer_store_dwordx4 v[32:35], v15, %s, %s offen sc1" % (SWS, s(sT2)))
    A.vm("buffer_store_dwordx4 v[36:39], v15, %s, %s offen sc1" % (SWS, s(sT3)))
    A.bg_flush()

ACC, RINGV, WF, RT = 96, 32, 128, 128
DEPTH = int(os.environ.get("DEPTH", 6))
vF1_, vF2_, vTR, vRR, vTW, vTRD, vG0, vG1 = 2, 3, 4, 6, 7, 14, 24, 25
BIAS = 16
NV = 12
TILE = SCR + 24576

def b_consts(R):
    R("v_bfe_u32 v8, v0, 5, 1")
    R("v_mul_u32_u24 v8, 448, v8")
    R("s_mul_i32 %s, %s, %d" % (s(sC), s(sDT), DW))
    R("v_add_u32 v8, %s, v8" % s(sC))
    R("v_and_b32 v9, 31, v0")
    R("v_add_lshl_u32 %s, v8, v9, 4" % v(vF1_))
    R("v_lshrrev_b32 %s, 2, v0" % v(vF2_))
    R("v_and_b32 %s, 16, %s" % (v(vF2_), v(vF2_)))
    R("v_xor_b32 v9, v9, %s" % v(vF2_))
    R("v_add_lshl_u32 %s, v8, v9, 4" % v(vF2_))
    R("v_and_b32 v8, 63, v0")
    R("v_lshlrev_b32 v8, 4, v8")
    R("v_add_u32 %s, 0x%x, v8" % (v(vRR), SCR))

def red_addr(A):
    for x in range(4):
        A("s_xor_b32 %s, %s, %d" % (s(sC), s(sWAVE), x))
        A("s_mul_i32 %s, %s, 6144" % (s(sC), s(sC)))
        A("v_add_u32 %s, %s, %s" % (v(10 + x), s(sC), v(vRR)))

def b_all(A, l, hin, uout, xin, first, tail1, skip_pre, vW2, hooks={}):
    cold = []
    sH, sU = sT0, sT1
    seq = [(0, p, q) for p in range(2) for q in range(16)] + [(1, p, q) for p in range(2) for q in range(14)]
    N1 = 32
    tok = {}
    def ld(i, track=True, hs=(0, 1)):
        g, p, q = seq[i]
        r = RINGV + 8 * (i % 8)
        emit_ = A.vm if track else A
        for h in hs:
            if GLD:
                A("s_add_u32 s46, %s, %d" % (s((38, 40)[g]), (2 * q + h) * 14336))
                A("s_addc_u32 s47, %s, 0" % s((39, 41)[g]))
                t_ = emit_("global_load_dwordx4 %s, %s, s[46:47] offset:%d sc1" % (v(r + 4 * h, 4), v((vF1_, vF2_)[g]), 512 * p))
                continue
            A("s_add_u32 %s, %s, %d" % (s(sEND), s((sH, sU)[g]), (2 * q + h) * 14336))
            msk = DW < 64 and p == 1
            if msk: A("s_mov_b64 exec, %s" % s((36, 38)[g], 2))
            t_ = emit_("buffer_load_dwordx4 %s, %s, %s, %s offen offset:%d sc1" % (v(r + 4 * h, 4), v((vF1_, vF2_)[g]), SWS, s(sEND), 0 if DIAGHIT else 512 * p))
            if msk: A("s_mov_b64 exec, -1")
        return t_
    def branch(i):
        lr, lb = A.newlabel("rty"), A.newlabel("bk")
        A("s_cbranch_vccnz %s" % lr)
        A.label(lb)
        cold.append((lr, lb, i))
    accb = lambda p: (96, 128)[p]
    wfb = lambda p: (128, 96)[p]
    def wop(g, p, ks, wt):
        if g == 0: return a(8 * ks + 4 * wt, 4)
        if ks < NV: return v(W2V + 8 * ks + 4 * wt, 4)
        return v(wfb(p) + 16 * ((ks // 2) % 2) + 8 * (ks % 2) + 4 * wt, 4)
    def wreads(i):
        g, p, q = seq[i]
        if g == 0 or 2 * q < NV: return []
        return ["ds_read_b64_tr_b16 %s, %s offset:%d" % (v(wfb(p) + 16 * (q % 2) + 8 * h + 4 * tl + 2 * rd, 2), v(vTR + tl), (2 * q + h - NV) * 2048 + (0, 8)[rd] * 128)
                for h in range(2) for tl in range(2) for rd in range(2)]
    c0 = -2.0 * math.sqrt(2.0 / math.pi) * math.log2(math.e)
    skip1, skip2, b2e = A.newlabel("b1skip"), A.newlabel("b2skip"), A.newlabel("b2e")
    A("s_mul_i32 %s, %s, %d" % (s(sH), s(sWAVE), 32 * 14336))
    A("s_add_u32 %s, %s, 0x%x" % (s(sH), s(sH), hin))
    A("s_mul_i32 %s, %s, %d" % (s(sU), s(sWAVE), 28 * 14336))
    A("s_add_u32 %s, %s, 0x%x" % (s(sU), s(sU), uout))
    if GLD:
        A("s_add_u32 s38, %s, %s" % (s(sWS), s(sH)))
        A("s_addc_u32 s39, %s, 0" % s(sWS + 1))
        A("s_add_u32 s40, %s, %s" % (s(sWS), s(sU)))
        A("s_addc_u32 s41, %s, 0" % s(sWS + 1))
    if DW < 64:
        A("s_mov_b32 s36, 0xffffff")
        A("s_mov_b32 s37, s36")
        A("s_bitcmp1_b32 %s, 0" % s(sWAVE))
        A("s_cselect_b32 s38, 0xffff00ff, s36")
        A("s_mov_b32 s39, s38")
    A("s_lshr_b32 %s, %s, 1" % (s(sT2), s(sWAVE)))
    A("s_lshl_b32 %s, %s, 5" % (s(sT2), s(sT2)))
    A("s_lshl_b32 %s, %s, 6" % (s(sT3), s(sST)))
    A("s_add_u32 %s, %s, %s" % (s(sT2), s(sT2), s(sT3)))
    A("v_and_b32 v9, 31, v0")
    A("v_add_lshl_u32 v9, v9, %s, 1" % s(sT2))
    A("v_and_b32 v9, 0xfff, v9")
    A.vm("global_load_ushort v26, v9, %s" % s(sB2, 2))
    A("s_cmp_lg_u32 %s, 0" % s(sA1))
    A("s_cbranch_scc1 %s" % skip1)
    A("s_lshl_b32 %s, %s, 5" % (s(sT2), s(sWAVE)))
    A("s_lshl_b32 %s, %s, 7" % (s(sT3), s(sFT)))
    A("s_add_u32 %s, %s, %s" % (s(sT2), s(sT2), s(sT3)))
    A("v_bfe_u32 v9, v0, 5, 1")
    A("v_lshlrev_b32 v9, 3, v9")
    A("v_add_u32 v9, %s, v9" % s(sT2))
    A.vm("global_load_dwordx2 v[28:29], v9, %s" % s(sB1, 2))
    btok = A.vm("global_load_dwordx2 v[30:31], v9, %s offset:16" % s(sB1, 2))
    A("s_lshl_b32 s44, %s, 2" % s(sFT))
    A("s_add_u32 s44, s44, %s" % s(sWAVE))
    A("s_mul_i32 s44, s44, 14336")
    A("s_add_u32 s44, s44, 0x%x" % uout)
    A("s_mov_b32 s42, %s" % fbits(c0 * 0.044715))
    A("s_mov_b32 s43, s42")
    if DLY[3] and (l == 1 or C3MID): A("s_sleep %d" % DLY[3])
    for i in range(DEPTH): tok[i] = ld(i)
    A.wvm(btok)
    for k in range(4):
        A("v_lshlrev_b32 %s, 16, %s" % (v(BIAS + 2 * k), v(28 + k)))
        A("v_and_b32 %s, 0xffff0000, %s" % (v(BIAS + 2 * k + 1), v(28 + k)))
    A("v_mov_b32 v27, %s" % fbits(c0))
    def acc_init(g, p):
        out = []
        for k in range(8):
            out.append("v_mov_b32 %s, %s" % (v(accb(p) + k), v(BIAS + k)) if g == 0 else "v_lshlrev_b32 %s, 16, v26" % v(accb(p) + k))
            out.append("v_mov_b32 %s, 0" % v(accb(p) + 8 + k))
        return out
    for l_ in acc_init(0, 0): A(l_)
    def epilogue(g, p, mid=None):
        R = accb(p); T = R + 8; E = []; tk = {}
        for x in (2, 3, 1):
            for gg in range(2):
                E.append("ds_write_b128 %s, %s offset:%d" % (v(10 + x), v(R + 8 * x + 4 * gg, 4), (x - 1) * 2048 + gg * 1024))
        E.append("BREAK")
        E.append("s_waitcnt lgkmcnt(0)")
        if mid: E.append(mid)
        E.append("s_barrier")
        for k in range(6):
            E.append(lambda k=k: tk.__setitem__(k, A.ds("ds_read_b128 %s, v10 offset:%d" % (v(T + 4 * k, 4), k * 1024))))
        E.append("BREAK")
        for x in range(3):
            E.append(lambda x=x: A.wds(tk[2 * x + 1]))
            for k in range(0, 8, 2): E.append("v_pk_add_f32 %s, %s, %s" % (v(R + k, 2), v(R + k, 2), v(T + 8 * x + k, 2)))
        if g == 0:
            for k in range(0, 8, 2): E.append("v_pk_mul_f32 %s, %s, %s" % (v(T + k, 2), v(R + k, 2), v(R + k, 2)))
            for k in range(0, 8, 2): E.append("v_pk_fma_f32 %s, %s, s[42:43], v[26:27] op_sel:[0,0,1] op_sel_hi:[1,1,1]" % (v(T + k, 2), v(T + k, 2)))
            for k in range(0, 8, 2): E.append("v_pk_mul_f32 %s, %s, %s" % (v(T + k, 2), v(T + k, 2), v(R + k, 2)))
            for k in range(8): E.append("v_exp_f32 %s, %s" % (v(T + k), v(T + k)))
            for k in range(0, 8, 2): E.append("v_pk_add_f32 %s, %s, 1.0 op_sel_hi:[1,0]" % (v(T + k, 2), v(T + k, 2)))
            for k in range(8): E.append("v_rcp_f32 %s, %s" % (v(T + k), v(T + k)))
            for k in range(0, 8, 2): E.append("v_pk_mul_f32 %s, %s, %s" % (v(R + k, 2), v(R + k, 2), v(T + k, 2)))
            for k in range(4): E.append("%s %s, %s, %s" % (CV, v(T + 8 + k), v(R + 2 * k), v(R + 2 * k + 1)))
            if DW < 64 and p == 1: E.append("s_mov_b64 exec, s[36:37]")
            E.append("buffer_store_dwordx4 %s, %s, %s, s44 offen offset:%d sc1" % (v(T + 8, 4), v(vF1_), SWS, 512 * p))
            if DW < 64 and p == 1: E.append("s_mov_b64 exec, -1")
        else:
            for k in range(4): E.append("%s %s, %s, %s" % (CV, v(T + k), v(R + 2 * k), v(R + 2 * k + 1)))
            E.append("v_xor_b32 v15, %d, %s" % (64 * p, v(vTW)))
            E.append("ds_write_b64 v15, %s" % v(T, 2))
            E.append("v_xor_b32 v15, %d, %s" % (64 * p + 16, v(vTW)))
            E.append("ds_write_b64 v15, %s" % v(T + 2, 2))
        return E
    eq = []
    def erun(n):
        while eq and n > 0:
            it = eq.pop(0)
            if it == "BREAK":
                if n < 90: return
                A.bg(EBG); continue
            if callable(it): it()
            elif it.startswith("ds_"): A.ds(it)
            elif it.startswith("buffer"): A.vm(it)
            else: A(it)
            n -= 2 if (isinstance(it, str) and ("exp" in it or "rcp" in it)) else 1
    A.wvm(tok[0])
    maxchain(A, range(RINGV, RINGV + 8), 8)
    A("v_cmp_eq_u32 vcc, -1, v8")
    branch(0)
    stamp(A)
    first()
    XV = 64 + 0
    def xissue(track=True):
        e_ = A.vm if track else A
        e_("buffer_load_dwordx4 %s, %s, %s, %s offen sc1" % (v(A.XV, 4), v(vG0), SWS, s(sT2)))
        return e_("buffer_load_dwordx4 %s, %s, %s, %s offen sc1" % (v(A.XV + 4, 4), v(vG1), SWS, s(sT2)))
    for i, (g, p, q) in enumerate(seq):
        nq = (16, 14)[g]
        if i == N1:
            A.label(b2e)
            stamp(A)
        r = RINGV + 8 * (i % 8); rn = RINGV + 8 * ((i + 1) % 8)
        more = i + 1 < len(seq)
        wr = wreads(i + 1) if more else []
        def mf(h, wt):
            acc = v(accb(p) + 16 * wt, 16)
            wreg = wop(g, p, 2 * q + h, wt); freg = v(r + 4 * h, 4)
            AA, BB = (wreg, freg) if g == 0 else (freg, wreg)
            if FAKE16:
                for e_ in range(2):
                    ac = v(accb(p) + 16 * wt + 8 * h + 4 * e_, 4)
                    o_ = (wop(g, p, 2 * q + (h ^ e_), wt), v(r + 4 * h, 4))
                    A("%s %s, %s, %s, %s" % (M16, ac, o_[0], o_[1], "0" if q == 0 else ac))
                return
            A("%s %s, %s, %s, %s" % (M32, acc, AA, BB, "0" if (q == 0 and h == 0 and wt == 1) else acc))
        mf(0, 1)
        lateb = LATEB and N1 - DEPTH <= i < N1
        nxt = None
        if i + DEPTH < len(seq) and not lateb and (i + DEPTH) not in tok: nxt = i + DEPTH
        elif BOOST == 2 and i + 7 < len(seq) and (i + 7) not in tok and not lateb and i > 8 and q < 8: nxt = i + 7
        if NOLD and l == 1 and nxt is not None:
            tok[nxt] = 0; nxt = None
        if nxt is not None:
            if SPLITLD: ld(nxt, True, (0,))
            else: tok[nxt] = ld(nxt)
        chk = more and not (LATEB and i == N1 - 1)
        if NOCHK and l == 1 and more:
            A.wvm(tok[i + 1]); chk = False
        if i + DEPTH == len(seq):
            A.XV = 16
            A("s_mov_b32 %s, 0x%x" % (s(sT2), xin))
            A.xt = xissue()
            if l == 0:
                A.bgq = poison_ops(A, [T1, H1, U1, X3], 27, 28)
        if l == 0 and wr and i == N1 + NV // 2 - 1: A.wvm(A.last_dma)
        for t_ in wr[:3]: A.ds(t_)
        mf(0, 0)
        erun(EN[0])
        for t_ in wr[3:6]: A.ds(t_)
        if chk:
            A.wvm(tok[i + 1])
            A("v_max3_u32 v8, %s, %s, %s" % (v(rn), v(rn + 1), v(rn + 2)))
            A("v_max3_u32 v9, %s, %s, %s" % (v(rn + 3), v(rn + 4), v(rn + 5)))
        mf(1, 1)
        if nxt is not None and SPLITLD == 1: tok[nxt] = ld(nxt, True, (1,))
        erun(EN[1])
        for t_ in wr[6:]: wtok = A.ds(t_)
        if q == 4: assert not eq or OVL == 0 or g == 0, eq
        if chk:
            A("v_max3_u32 v8, v8, %s, %s" % (v(rn + 6), v(rn + 7)))
            A("v_max_u32 v8, v8, v9")
            A("v_cmp_eq_u32 vcc, -1, v8")
        mf(1, 0)
        if nxt is not None and SPLITLD == 2: tok[nxt] = ld(nxt, True, (1,))
        if chk: branch(i + 1)
        if LATEB and i == N1 - 1:
            for k_ in range(N1, N1 + DEPTH): tok[k_] = ld(k_)
        if i in hooks: hooks[i]()
        if i == N1 - T1AT: tail1()
        erun(EN[2])
        if (p == 1 and q == 9) or (g == 1 and p == 0 and q == 3):
            assert not eq
            A("s_barrier")
        if q == nq - 1 and more:
            for l_ in acc_init(seq[i + 1][0], seq[i + 1][1]): A(l_)
        A.bg(T1N if (i >= N1 - T1AT and i < N1) else 2 if (i + DEPTH >= len(seq) or (C3MID and 12 <= i < 26)) else 1)
        if wr: A.wds(wtok)
        if i == 13: red_addr(A)
        if i == N1 + 8:
            A("v_lshrrev_b32 v15, 6, v0")
            A("v_bfe_u32 v9, v0, 3, 3")
            A("v_lshl_add_u32 v9, v15, 4, v9")
            A("s_lshl_b32 %s, %s, 6" % (s(sT3), s(sST)))
            A("v_add_u32 %s, %s, v9" % (v(vG0), s(sT3)))
            A("v_mul_u32_u24 %s, 896, %s" % (v(vG0), v(vG0)))
            A("v_and_b32 v15, 7, v0")
            A("v_lshl_add_u32 %s, v15, 4, %s" % (v(vG0), v(vG0)))
            A("s_mul_i32 %s, %s, %d" % (s(sT3), s(sDT), 2 * DW))
            A("v_add_u32 %s, %s, %s" % (v(vG0), s(sT3), v(vG0)))
            if DW < 64:
                A("v_cmp_eq_u32 s[40:41], 7, v15")
                A("v_mov_b32 %s, 0x80000000" % v(vG1))
                A("v_cndmask_b32 %s, %s, %s, s[40:41]" % (v(vG0), v(vG0), v(vG1)))
            A("v_add_u32 %s, %d, %s" % (v(vG1), 8 * 896, v(vG0)))
            A("v_xor_b32 v15, v15, v9")
            A("v_and_b32 v15, 7, v15")
            A("v_lshlrev_b32 %s, 7, v9" % v(vTRD))
            A("v_lshl_add_u32 %s, v15, 4, %s" % (v(vTRD), v(vTRD)))
            A("v_add_u32 %s, 0x%x, %s" % (v(vTRD), TILE, v(vTRD)))
        if i == N1 + 9:
            A("v_bfe_u32 v9, v0, 7, 1")
            A("v_lshlrev_b32 v9, 5, v9")
            A("v_and_b32 v15, 31, v0")
            A("v_add_u32 v9, v9, v15")
            A("v_bfe_u32 v15, v0, 6, 1")
            A("v_lshlrev_b32 v15, 1, v15")
            A("v_xor_b32 v15, v15, v9")
            A("v_and_b32 v15, 7, v15")
            A("v_lshlrev_b32 %s, 7, v9" % v(vTW))
            A("v_lshl_add_u32 %s, v15, 4, %s" % (v(vTW), v(vTW)))
            A("v_bfe_u32 v15, v0, 5, 1")
            A("v_lshl_add_u32 %s, v15, 3, %s" % (v(vTW), v(vTW)))
            A("v_add_u32 %s, 0x%x, %s" % (v(vTW), TILE, v(vTW)))
        if q == nq - 1:
            last = not more
            if p == 1: stamp(A)
            XU = 96
            def xcheck():
                lo, lt = A.newlabel("xok"), A.newlabel("xrty")
                A.wvm(A.xt)
                A.label(lt)
                maxchain(A, range(A.XV, A.XV + 8), 8)
                A("v_cmp_eq_u32 vcc, -1, v8")
                A("s_cbranch_vccz %s" % lo)
                A("s_cmp_eq_u32 %s, 0" % s(sBUD))
                A("s_cbranch_scc1 %s" % lo)
                A("s_sub_u32 %s, %s, 1" % (s(sBUD), s(sBUD)))
                xissue(False)
                A("s_waitcnt vmcnt(0)")
                A("s_branch %s" % lt)
                A.label(lo)
                for k in range(8):
                    A("v_lshlrev_b32 %s, 16, %s" % (v(XU + 2 * k), v(A.XV + k)))
                    A("v_and_b32 %s, 0xffff0000, %s" % (v(XU + 2 * k + 1), v(A.XV + k)))
            if last and l == 1: srd(A, 24, sOUT, S * D * 2)
            if BOOST and more and not (LATEB and i == N1 - 1) and (BOOSTB1 or i != N1 - 1):
                for k_ in range(i + DEPTH + 1, i + 9): tok[k_] = ld(k_)
            eq += epilogue(g, p, xcheck if last else None)
            if p == 1 or not (OVL >> g) & 1:
                erun(1000)
                if g == 0 and p == 1:
                    A.bg_flush()
                    stamp(A)
                    if LATEB:
                        A.wvm(tok[N1])
                        maxchain(A, range(rn, rn + 8), 8)
                        A("v_cmp_eq_u32 vcc, -1, v8")
                        branch(N1)
    dst = (SWS, s(sT2), " sc1") if l == 0 else (SW1, "0", OUTFL)
    if l == 0: A("s_mov_b32 %s, 0x%x" % (s(sT2), X2))
    A("s_waitcnt lgkmcnt(0)")
    A("s_barrier")
    t0 = A.ds("ds_read_b128 v[48:51], %s" % v(vTRD))
    t1 = A.ds("ds_read_b128 v[52:55], %s offset:1024" % v(vTRD))
    XU = 96
    for j in range(2):
        A.wds((t0, t1)[j])
        for k in range(4 * j, 4 * j + 4):
            A("v_lshlrev_b32 %s, 16, %s" % (v(32 + 2 * k), v(48 + k)))
            A("v_and_b32 %s, 0xffff0000, %s" % (v(32 + 2 * k + 1), v(48 + k)))
        for k in range(4 * j, 4 * j + 4):
            A("v_pk_add_f32 %s, %s, %s" % (v(XU + 2 * k, 2), v(XU + 2 * k, 2), v(32 + 2 * k, 2)))
        for k in range(4 * j, 4 * j + 4):
            A("%s %s, %s, %s" % (CV, v(56 + k), v(XU + 2 * k), v(XU + 2 * k + 1)))
        A.vm("buffer_store_dwordx4 %s, %s, %s, %s offen%s" % (v(56 + 4 * j, 4), v(vG0 + j), dst[0], dst[1], dst[2]))
    A.bg_flush()
    done = A.newlabel("bdone")
    def emit_cold():
        A.label(skip1)
        skip_pre()
        A("s_cmp_lg_u32 %s, 0" % s(sA2))
        A("s_cbranch_scc1 %s" % skip2)
        red_addr(A)
        r0 = RINGV + 8 * (N1 % 8)
        poll_loads(A, lambda: ld(N1, False), range(r0, r0 + 8), 8, 32, None, 8)
        if X7D: A("s_sleep %d" % X7D)
        for i in range(N1 + 1, N1 + DEPTH): ld(i, False)
        for l_ in acc_init(1, 0): A(l_)
        A("s_waitcnt vmcnt(0)")
        A("s_branch %s" % b2e)
        A.label(skip2)
        A("s_waitcnt vmcnt(0)")
        if l == 0: poison_list(A, [T1, H1, U1, X3], 32)
        A("s_branch %s" % done)
        for lr, lb, i in cold:
            A.label(lr)
            A("s_cmp_eq_u32 %s, 0" % s(sBUD))
            A("s_cbranch_scc1 %s" % lb)
            A("s_sub_u32 %s, %s, 1" % (s(sBUD), s(sBUD)))
            fast = FASTR and i < min(RALL, 2)
            if SLEEP and not fast: A("s_sleep %d" % SLEEP)
            last_ = (DEPTH if i == 0 else min(i + DEPTH, len(seq))) if (i < RALL or i in (N1, N1 + 1, N1 + 14, N1 + 15)) else i + 1
            for k2 in range(i, last_): ld(k2, False)
            A("s_waitcnt vmcnt(%d)" % (2 * (last_ - i - 1) if fast else 0))
            r = RINGV + 8 * (i % 8)
            maxchain(A, range(r, r + 8), 8)
            A("v_cmp_eq_u32 vcc, -1, v8")
            A("s_cbranch_vccnz %s" % lr)
            A("s_branch %s" % lb)
    A.label(done)
    return emit_cold

def srd(A, d, base, nbytes):
    A("s_mov_b32 %s, %s" % (s(d), s(base)))
    A("s_and_b32 %s, %s, 0xffff" % (s(d + 1), s(base + 1)))
    if isinstance(nbytes, int): A("s_mov_b32 %s, 0x%x" % (s(d + 2), nbytes))
    else: A("s_mov_b32 %s, %s" % (s(d + 2), nbytes))
    A("s_mov_b32 %s, 0x20000" % s(d + 3))

def build():
    A = Asm2()
    KN = NAME + "_kernel"
    def emit(R):
        for l_ in R.l: A(l_)
    A.label(KN)
    A("s_cmp_ge_u32 s2, 256")
    A("s_cbranch_scc1 L_exit")
    A("s_load_dwordx2 %s, s[0:1], 0" % s(sX, 2))
    A("s_getpc_b64 s[36:37]")
    A.label("L_pc")
    if EARLYPF:
        A("v_lshlrev_b32 v150, 5, v0")
        A.vm("global_load_dword v151, v150, s[36:37]" + NT)
    A("s_load_dwordx2 %s, s[0:1], 80" % s(sWS, 2))
    A("s_load_dwordx8 %s, s[0:1], 32" % s(sW1, 8))
    A("s_load_dwordx4 %s, s[0:1], 8" % s(sWR, 4))
    A("s_load_dwordx4 %s, s[0:1], 64" % s(sOUT, 4))
    if DIAG >= 0: A("s_memrealtime s[94:95]" if DIAG != 100 else "s_memtime s[94:95]")
    if PROF:
        for i in range(32): A("s_mov_b32 %s, 0" % s(66 + i))
        A("s_memrealtime s[64:65]")
    A("s_and_b32 %s, s2, 7" % s(sT0))
    A("s_lshr_b32 %s, s2, 3" % s(sT1))
    A("s_lshl_b32 %s, %s, 5" % (s(sW), s(sT0)))
    A("s_add_u32 %s, %s, %s" % (s(sW), s(sW), s(sT1)))
    a1_consts(A)
    A("v_lshrrev_b32 v3, 6, v0")
    A("v_readfirstlane_b32 %s, v3" % s(sWAVE))
    A("s_and_b32 s37, s37, 0xffff")
    A("s_mov_b32 s38, L_code_end-L_pc")
    A("s_mov_b32 s39, 0x20000")
    A("s_lshl_b32 s40, s2, 9")
    A("s_and_b32 s40, s40, 0x1f000")
    A("v_lshlrev_b32 v179, 4, v0")
    A("s_mov_b32 s34, 0x%x" % WS_BYTES)
    A("s_mov_b32 s35, 0x20000")
    A("s_mov_b32 s26, 0x%x" % (S * F * 2))
    A("s_mov_b32 s27, 0x20000")
    A("s_and_b32 s56, s2, 7")
    A("s_lshr_b32 s57, s2, 3")
    A("s_lshl_b32 s58, s57, 2")
    A("s_add_u32 s58, s58, %s" % s(sWAVE))
    A("v_bfe_u32 v152, v0, 5, 1")
    A("v_and_b32 v153, 31, v0")
    A("v_lshlrev_b32 v153, 4, v153")
    A("s_lshl_b32 s59, s56, 9")
    A("v_add_u32 v153, s59, v153")
    A("v_lshl_add_u32 v254, v152, 12, v153")
    A("v_mul_u32_u24 v152, 3584, v152")
    A("v_add_u32 v152, v152, v153")
    A("s_mul_i32 s41, s58, %d" % (16 * 3584))
    A("s_cmp_eq_u32 s56, 7")
    A("s_cselect_b32 s41, 0x80000000, s41")
    A("v_add_u32 v152, s41, v152")
    A("s_mul_i32 s59, s58, %d" % (14 * 4096))
    A("v_add_u32 v254, s59, v254")
    A("s_and_b32 s42, s2, 63")
    A("s_lshr_b32 s43, s2, 6")
    A("v_and_b32 v146, 63, v0")
    A("v_mul_u32_u24 v140, 14, v146")
    A("v_sub_u32 v141, %d, v140" % (445 * 2))
    A("v_cmp_lt_u32 %s, 31, v146" % s(sT5, 2))
    A("s_lshl_b32 s44, s43, 2")
    A("s_add_u32 s44, s44, %s" % s(sWAVE))
    A("v_cndmask_b32 v140, v140, v141, %s" % s(sT5, 2))
    A("s_lshl_b32 s44, s44, 7")
    A("s_add_u32 s44, s44, s42")
    A("v_mov_b32 v142, 1")
    A("v_cndmask_b32 v141, v142, -1, %s" % s(sT5, 2))
    A("s_movk_i32 s45, 450")
    for e in range(2):
        A("v_mul_i32_i24 %s, s44, v141" % v(147 + e))
        A("s_mul_i32 s3, s44, 450")
        A("v_and_b32 %s, 0x7ff, %s" % (v(147 + e), v(147 + e)))
        A("s_add_u32 s3, s3, 448")
        A("v_mad_u32_u24 %s, %s, s45, v140" % (v(147 + e), v(147 + e)))
        A("v_mov_b32 %s, s3" % v(149 + e))
        if e == 0: A("s_add_u32 s44, s44, 64")
    A("v_mov_b32 v140, 0x05040100")
    A("v_mov_b32 v141, 0x07060302")
    A("v_cndmask_b32 v142, v140, v141, %s" % s(sT5, 2))
    A("v_cndmask_b32 v143, v141, v140, %s" % s(sT5, 2))
    A("v_mov_b32 v140, 0x80000000")
    A("v_cndmask_b32 v144, 0, v140, %s" % s(sT5, 2))
    A("s_lshl_b32 s42, s42, 2")
    A("s_add_u32 s42, s42, s43")
    A("s_lshl_b32 s42, s42, 2")
    A("s_add_u32 s42, s42, %s" % s(sWAVE))
    A("s_lshl_b32 s42, s42, 11")
    A("s_add_u32 s3, s42, 0x%x" % WT)
    A("v_lshlrev_b32 v145, 4, v146")
    A("s_waitcnt lgkmcnt(0)")
    if PROF:
        A("s_mov_b32 s66, s64"); nstamp[0] = 1
    A("s_mov_b32 s32, %s" % s(sWS))
    A("s_and_b32 s33, %s, 0xffff" % s(sWS + 1))
    if NCNT:
        lz, lz2 = A.newlabel("nz"), A.newlabel("nz")
        A("s_lshl_b32 %s, s2, 2" % s(sT5))
        A("s_or_b32 %s, %s, %s" % (s(sT5), s(sT5), s(sWAVE)))
        A("s_cmp_lg_u32 %s, 0" % s(sT5))
        A("s_cbranch_scc1 %s" % lz)
        A("v_lshlrev_b32 v12, 7, v0")
        A("v_mov_b32 v13, 0")
        A("s_mov_b32 %s, 0x%x" % (s(sT5), CNT))
        A("buffer_store_dword v13, v12, %s, %s offen sc1" % (SWS, s(sT5)))
        A.label(lz)
        zmark = A.vmn
    for t in range(7): tx = A.vm("global_load_dword %s, v1, %s offset:%d%s" % (v(4 + t), s(sX, 2), 128 * t, NT))
    for e in range(2):
        A.vm("global_load_dwordx2 %s, %s, %s%s" % (v(128 + 4 * e, 2), v(147 + e), s(sWR, 2), NT))
        A.vm("global_load_dwordx2 %s, %s, %s%s" % (v(130 + 4 * e, 2), v(147 + e), s(sWI, 2), NT))
        A.vm("global_load_ushort %s, %s, %s%s" % (v(136 + 2 * e), v(149 + e), s(sWR, 2), NT))
        twp = A.vm("global_load_ushort %s, %s, %s%s" % (v(137 + 2 * e), v(149 + e), s(sWI, 2), NT))
    A.vm("buffer_load_dword v151, v179, s[36:39], s40 offen" + NT)
    A("s_mov_b32 s24, %s" % s(sW1))
    A("s_and_b32 s25, %s, 0xffff" % s(sW1 + 1))
    A("s_mov_b32 s41, 0")
    srd(A, 28, sW2, S * F * 2)
    A("v_mov_b32 v255, v152")
    def wu1(idx, sr):
        for i in idx:
            A("s_mov_b32 %s, %d" % (s(sr), 7168 * i))
            A.vm("buffer_load_dwordx4 v[160:163], v255, %s, %s offen" % (SW1, s(sr)))
    if WU1POS == 0: wu1({1: range(8), 3: (0, 1, 4, 5), 4: (0, 1, 4, 5)}.get(WU1, ()), 41)
    def wu2(i):
        def f():
            A.vm("buffer_load_dwordx4 v[160:163], v254, %s, 0 offen" % SW2)
            A("v_add_u32 v254, 8192, v254")
        return f
    if XP: stamp(A)
    if WU2_AT == "start":
        for i in range(7): wu2(i)()
    if WU1POS == 1: wu1({1: range(8), 3: (0, 1, 4, 5), 4: (0, 1, 4, 5)}.get(WU1, ()), 41)
    poison_list(A, [T0], 154)
    if not FBK:
        if NCNT:
            A("s_lshl_b32 %s, s2, 2" % s(sT5))
            A("s_or_b32 %s, %s, %s" % (s(sT5), s(sT5), s(sWAVE)))
            A("s_cmp_lg_u32 %s, 0" % s(sT5))
            A("s_cbranch_scc1 %s" % lz2)
            A("v_mov_b32 v62, 0")
            A("v_mov_b32 v63, 1")
            A("s_waitcnt vmcnt(%d)" % (A.vmn - zmark))
            A("global_store_dword v62, v63, %s sc1" % s(sDBG, 2))
            A.label(lz2)
    stamp(A)
    if DW == 64:
        A("s_mul_i32 %s, s57, 37" % s(sT2))
        A("s_lshr_b32 %s, %s, 8" % (s(sT2), s(sT2)))
        A("s_mul_i32 %s, %s, 7" % (s(sDT2), s(sT2)))
        A("s_sub_u32 %s, s57, %s" % (s(sDT2), s(sDT2)))
        A("s_cmp_lt_u32 s57, 28")
        A("s_cselect_b32 %s, 0, 0x80000000" % s(sA2))
    else:
        A("s_lshr_b32 %s, s57, 3" % s(sT2))
        A("s_and_b32 %s, s57, 7" % s(sDT2))
        A("s_mov_b32 %s, 0" % s(sA2))
    A("s_lshl_b32 %s, s56, 2" % s(sST))
    A("s_add_u32 %s, %s, %s" % (s(sST), s(sST), s(sT2)))
    if MAP1 == "x":
        A("s_mov_b32 %s, %s" % (s(sFT), s(sST)))
        A("s_mov_b32 %s, %s" % (s(sDT), s(sDT2)))
        A("s_mov_b32 %s, %s" % (s(sROT1), s(sDT2)))
        A("s_cmp_lt_u32 s56, 7")
        A("s_cselect_b32 %s, %s, 0x80000000" % (s(sA1), s(sA2)))
    else:
        A("s_and_b32 %s, s56, 1" % s(sDT))
        A("s_lshl_b32 %s, %s, 2" % (s(sDT), s(sDT)))
        A("s_and_b32 %s, s57, 3" % s(sT2))
        A("s_add_u32 %s, %s, %s" % (s(sDT), s(sDT), s(sT2)))
        A("s_lshl_b32 %s, %s, 1" % (s(sROT1), s(sT2)))
        A("s_lshr_b32 s56, s56, 1")
        A("s_lshr_b32 s57, s57, 2")
        A("s_mul_i32 %s, s56, 7" % s(sFT))
        A("s_add_u32 %s, %s, s57" % (s(sFT), s(sFT)))
        A("s_cmp_lt_u32 %s, %d" % (s(sDT), 448 // DW))
        A("s_cselect_b32 %s, 0, 0x80000000" % s(sA1))
        A("s_mov_b32 %s, %s" % (s(sA2), s(sA1)))
        A("s_cmp_lt_u32 s57, 7")
        A("s_cselect_b32 %s, %s, 0x80000000" % (s(sA1), s(sA1)))
        A("s_lshl_b32 %s, s56, 3" % s(sST))
        A("s_add_u32 %s, %s, s57" % (s(sST), s(sST)))
        A("s_mov_b32 %s, %s" % (s(sDT2), s(sROT1)))
    A("s_lshl_b32 %s, %s, 1" % (s(sSH1), s(sDT)))
    A("s_mov_b32 %s, %s" % (s(sSH2), s(sSH1)))
    if KROT == 3:
        A("s_and_b32 %s, %s, 3" % (s(sT2), s(sFT)))
        A("s_lshl_b32 %s, %s, 2" % (s(sSH1), s(sT2)))
        A("s_mul_i32 %s, %s, 7" % (s(sSH2), s(sT2)))
        A("s_add_u32 %s, %s, 1" % (s(sSH2), s(sSH2)))
        A("s_lshr_b32 %s, %s, 1" % (s(sSH2), s(sSH2)))
    if KROT in (4, 5):
        A("s_and_b32 %s, %s, 3" % (s(sT2), s(sST)))
        A("s_mov_b32 %s, %s" % (s(sSH1), s(sT2)))
        A("s_mov_b32 %s, %s" % (s(sSH2), s(sT2)))
    if not KROT:
        A("s_mov_b32 %s, 0" % s(sSH1))
        A("s_mov_b32 %s, 0" % s(sSH2))
    A("s_mov_b32 %s, 200000" % s(sBUD))
    A("s_lshl_b32 %s, %s, 15" % (s(sRING), s(sWAVE)))
    A("s_mul_i32 %s, %s, %d" % (s(sWB1), s(sWAVE), 8 * 3584))
    A("s_add_u32 %s, %s, %d" % (s(sWB1 + 1), s(sWB1), 1024 * 3584))
    A("s_mul_i32 %s, %s, 14" % (s(sWB2), s(sWAVE)))
    A("s_sub_u32 %s, %s, 14" % (s(sWB2 + 1), s(sWB2)))
    for i in range(3):
        A("s_mov_b32 %s, %s" % (s(SB + 2 * i), fbits(C7[i + 1])))
        A("s_mov_b32 %s, %s" % (s(SB + 2 * i + 1), fbits(C7[i + 1])))
        A("s_mov_b32 %s, %s" % (s(SB + 6 + 2 * i), fbits(S7[i + 1])))
        A("s_mov_b32 %s, %s" % (s(SB + 6 + 2 * i + 1), fbits(S7[i + 1])))
    A("s_lshl_b32 %s, %s, 3" % (s(sT0), s(sWAVE)))
    A("s_add_u32 %s, %s, 0x%x" % (s(sT0), s(sT0), SCR + 16384))
    A("v_lshl_add_u32 v177, v146, 5, %s" % s(sT0))
    A("s_lshl_b32 %s, %s, 11" % (s(sT0), s(sWAVE)))
    A("s_add_u32 %s, %s, 0x%x" % (s(sT0), s(sT0), SCR + 16384))
    A("v_add_u32 v178, %s, v145" % s(sT0))
    w1_voffs(A, PW1, 164)
    DU1 = lambda u, g: dma_chunk(A, 1, 4 * u, 4, PW1, 4 * g)
    DU2 = lambda u, g, vo=PW2: dma_chunk(A, 2, 4 * u, 4, vo, 4 * g)
    R = Rec(); a1_consts2(R); gen_f64(R, 48)
    if SCHED == "unit": A.bgq = DU1(0, 0) + DU1(1, 1)
    A.mix(R.l, 8)
    A.bg_flush()
    stamp(A)
    A.wvm(tx)
    if FBK:
        A("s_lshl_b32 %s, s2, 2" % s(sT0))
        A("s_or_b32 %s, %s, %s" % (s(sT0), s(sT0), s(sWAVE)))
        A("s_cmp_lg_u32 %s, 0" % s(sT0))
        A("s_cbranch_scc1 %s" % lz2)
        A("v_mov_b32 v62, 0")
        A("v_mov_b32 v63, 1")
        A("global_store_dword v62, v63, %s sc1" % s(sDBG, 2))
        A.label(lz2)
    stamp(A)
    WO, WTm = 164, 172
    def whook1():
        A("v_cmp_lt_u32 %s, 31, v146" % s(sT5, 2))
        A("v_cmp_eq_u32 vcc, 32, v146")
        A.wvm(twp)
        for e in range(2):
            r0, i0_ = 128 + 4 * e, 130 + 4 * e
            A("v_cndmask_b32 %s, %s, %s, %s" % (v(WTm), v(r0), v(r0 + 1), s(sT5, 2)))
            A("v_cndmask_b32 %s, %s, %s, %s" % (v(WTm + 1), v(r0 + 1), v(r0), s(sT5, 2)))
            A("v_cndmask_b32 %s, %s, %s, %s" % (v(WTm + 2), v(i0_), v(i0_ + 1), s(sT5, 2)))
            A("v_cndmask_b32 %s, %s, %s, %s" % (v(WTm + 3), v(i0_ + 1), v(i0_), s(sT5, 2)))
            for sl in range(4):
                A("v_perm_b32 %s, %s, %s, %s" % (v(WO + 2 * sl + e), v(WTm + 2 + sl // 2), v(WTm + sl // 2), v(142 + sl % 2)))
                A("v_xor_b32 %s, %s, v144" % (v(WO + 2 * sl + e), v(WO + 2 * sl + e)))
            A("v_lshl_or_b32 %s, %s, 16, %s" % (v(WTm + 4), v(137 + 2 * e), v(136 + 2 * e)))
            A("v_cndmask_b32 %s, %s, %s, vcc" % (v(WO + e), v(WO + e), v(WTm + 4)))
        for sl in range(4):
            A.ds("ds_write_b64 v177, %s offset:%d" % (v(WO + 2 * sl, 2), 2048 * sl))
    def whook2():
        t0 = A.ds("ds_read_b128 %s, v178" % v(WO, 4))
        t1 = A.ds("ds_read_b128 %s, v178 offset:1024" % v(WO + 4, 4))
        def st():
            A.wds(t1)
            A.vm("buffer_store_dwordx4 %s, v145, %s, s3 offen sc1" % (v(WO, 4), SWS))
            A.vm("buffer_store_dwordx4 %s, v145, %s, s3 offen offset:1024 sc1" % (v(WO + 4, 4), SWS))
        return st
    if WHOOK:
        a1_compute(A, Z0, whook1, whook2)
        if NCNT:
            A("v_mov_b32 v11, 0")
            A.vm("global_load_dword v12, v11, %s sc1" % s(sDBG, 2))
    else:
        a1_compute(A, Z0)
        if NCNT:
            A("v_mov_b32 v11, 0")
            A.vm("global_load_dword v12, v11, %s sc1" % s(sDBG, 2))
        whook1()
        A("s_waitcnt lgkmcnt(0)")
        A("s_barrier")
        whook2()()
    stamp(A)
    A("s_waitcnt vmcnt(0)")
    A("s_barrier")
    lw = A.newlabel("nb")
    A("s_cmp_lg_u32 %s, 0" % s(sWAVE))
    A("s_cbranch_scc1 %s" % lw)
    if FBK:
        lt, lo = A.newlabel("fb"), A.newlabel("fbok")
        A("v_cmp_ne_u32 vcc, 0, v12")
        A("v_readfirstlane_b32 s10, v12")
        A("v_mov_b32 v12, 1")
        A("s_mov_b64 exec, 1")
        A("s_cbranch_vccnz %s" % lt)
        A("global_atomic_add v11, v12, %s offset:128 sc1" % s(sDBG, 2))
        A("s_branch %s" % lo)
        A.label(lt)
        A("s_and_b32 %s, s2, %d" % (s(sT0), NCNT - 1))
        A("s_lshl_b32 %s, %s, 7" % (s(sT0), s(sT0)))
        A("s_add_u32 %s, %s, 0x%x" % (s(sT0), s(sT0), CNT))
        A("buffer_atomic_add v12, v11, %s, %s offen sc1" % (SWS, s(sT0)))
        A.label(lo)
    elif NCNT:
        lt, lo = A.newlabel("rdy"), A.newlabel("rdyok")
        A.label(lt)
        A("v_cmp_ne_u32 vcc, 0, v12")
        A("s_cbranch_vccnz %s" % lo)
        A("s_cmp_eq_u32 %s, 0" % s(sBUD))
        A("s_cbranch_scc1 %s" % lo)
        A("s_sub_u32 %s, %s, 1" % (s(sBUD), s(sBUD)))
        A("s_sleep 4")
        A("global_load_dword v12, v11, %s sc1" % s(sDBG, 2))
        A("s_waitcnt vmcnt(0)")
        A("s_branch %s" % lt)
        A.label(lo)
        A("s_and_b32 %s, s2, %d" % (s(sT0), NCNT - 1))
        A("s_lshl_b32 %s, %s, 7" % (s(sT0), s(sT0)))
        A("s_add_u32 %s, %s, 0x%x" % (s(sT0), s(sT0), CNT))
        A("v_mov_b32 v12, 1")
        A("s_mov_b64 exec, 1")
        A("buffer_atomic_add v12, v11, %s, %s offen sc1" % (SWS, s(sT0)))
    else:
        A("s_and_b32 %s, s2, 1" % s(sT0))
        A("s_lshl_b32 %s, %s, 7" % (s(sT0), s(sT0)))
        A("v_mov_b32 v11, %s" % s(sT0))
        A("v_mov_b32 v12, 1")
        A("s_mov_b64 exec, 1")
        A("global_atomic_add v11, v12, %s sc1" % s(sDBG, 2))
    A("s_mov_b64 exec, -1")
    A.label(lw)
    stamp(A)
    if WU2_AT == "beta":
        for i in range(7): wu2(i)()
    A("s_min_u32 %s, %s, 27" % (s(sT0), s(sFT)))
    A("s_lshl_b32 %s, %s, 7" % (s(sT0), s(sT0)))
    A("v_mov_b32 v164, %s" % s(sT0))
    A.vm("global_load_dword v172, v164, %s" % s(sB1, 2))
    A("s_min_u32 %s, %s, 31" % (s(sT0), s(sST)))
    A("s_lshl_b32 %s, %s, 7" % (s(sT0), s(sT0)))
    A("v_mov_b32 v164, %s" % s(sT0))
    A.vm("global_load_dword v172, v164, %s" % s(sB2, 2))
    wu1({2: (0, 1, 4, 5, 2, 3, 6, 7), 3: (2, 3, 6, 7)}.get(WU1, ()), sT0)
    for op in poison_ops(A, ([H0, X1] if PZA == "beta" else []) + ([U0, X2, Z1] if PZB == "beta" else []), 173, 168): op()
    A.p1tok = 0
    R = Rec(); a2_consts(R); f32_gen(R, 48); R.l.remove("W_HERE"); tr_addr(R, PTR1, 8, 164, True); w2_voffs(R, PW2, 164)
    if SCHED == "win": A.bgq = dma_chunk(A, 1, 0, 16, PW1)
    A.mix(R.l, 5)
    A.bg_flush()
    lw = A.newlabel("nb")
    A("s_cmp_lg_u32 %s, 0" % s(sWAVE))
    A("s_cbranch_scc1 %s" % lw)
    A("v_and_b32 v56, %d, v0" % ((NCNT or 2) - 1))
    A("v_lshlrev_b32 v56, 7, v56")
    A("s_mov_b32 %s, 0x%x" % (s(sT0), CNT))
    A("v_and_b32 v59, 1, v0")
    A("v_lshlrev_b32 v59, 7, v59")
    if BDLY: A("s_sleep %d" % BDLY)
    lt, lo = A.newlabel("bar"), A.newlabel("barok")
    A.label(lt)
    if FBK:
        assert NCNT == 32
        A("global_load_dword v58, v59, %s sc1" % s(sDBG, 2))
        A("buffer_load_dword v57, v56, %s, %s offen sc1" % (SWS, s(sT0)))
        A("s_waitcnt vmcnt(0)")
        for m in ("quad_perm:[1,0,3,2]", "quad_perm:[2,3,0,1]", "row_half_mirror", "row_mirror"):
            A("v_add_u32_dpp v57, v57, v57 %s row_mask:0xf bank_mask:0xf" % m)
        A("v_readlane_b32 %s, v58, 0" % s(sT1))
        A("v_readlane_b32 %s, v58, 1" % s(sT2))
        A("v_readlane_b32 %s, v57, 0" % s(sT3))
        A("v_readlane_b32 %s, v57, 16" % s(sC))
        A("s_add_u32 %s, %s, %s" % (s(sT2), s(sT2), s(sT3)))
        A("s_add_u32 %s, %s, %s" % (s(sT2), s(sT2), s(sC)))
        A("s_cmp_eq_u32 s10, 0")
        A("s_cselect_b32 %s, 0, %s" % (s(sT2), s(sT2)))
        A("s_mov_b32 s10, %s" % s(sT1))
        A("s_cmp_ge_u32 %s, 256" % s(sT2))
        A("s_cbranch_scc1 %s" % lo)
    else:
        if NCNT: A("buffer_load_dword v57, v56, %s, %s offen sc1" % (SWS, s(sT0)))
        else: A("global_load_dword v57, v56, %s sc1" % s(sDBG, 2))
        A("s_waitcnt vmcnt(0)")
        A("v_cmp_gt_u32 vcc, %d, v57" % (256 // (NCNT or 2)))
        A("s_cbranch_vccz %s" % lo)
    A("s_cmp_eq_u32 %s, 0" % s(sBUD))
    A("s_cbranch_scc1 %s" % lo)
    A("s_sub_u32 %s, %s, 1" % (s(sBUD), s(sBUD)))
    A("s_sleep %d" % BSLP)
    A("s_branch %s" % lt)
    A.label(lo)
    A.label(lw)
    A("s_barrier")
    stamp(A)
    colds = []
    def fin():
        prof_end(A)
        A("s_endpgm")
    def tr_ops(n, addr, rows, dstfn, slot0=0):
        q = []
        for i in range(slot0, slot0 + n):
            def trp(i=i):
                for tl in range(2):
                    for rd in range(2):
                        A.trtok = A.ds("ds_read_b64_tr_b16 %s, %s offset:%d" % (dstfn(8 * i + 4 * tl + 2 * rd), v(addr + tl), i * 2048 + rows[rd] * 128))
            q.append(trp)
        return q
    def after_tr(ops):
        f = ops[0]
        return [lambda: (A.wds(A.trtok), f())] + ops[1:]
    def waitdma(ops):
        f = ops[0]; tk__ = A.last_dma
        return [lambda: (A.wvm(tk__), f())] + ops[1:]
    def pairs(ops): return [(lambda o=ops[k:k + 2]: [x() for x in o]) for k in range(0, len(ops), 2)]
    def mark(name): return lambda: setattr(A, name, A.last_dma)
    trw1 = lambda n, base, s0: tr_ops(n, PTR1, (0, 4), lambda r: a(base + r, 2), s0)
    for l in range(2):
        zb, tb, hb, ub, xo = ((Z0, T0, H0, U0, X1), (Z1, T1, H1, U1, X3))[l]
        if l == 1:
            A.label("L_layer1")
            for i in range(3):
                A("s_mov_b32 %s, %s" % (s(SB + 2 * i), fbits(C7[i + 1])))
                A("s_mov_b32 %s, %s" % (s(SB + 2 * i + 1), fbits(C7[i + 1])))
                A("s_mov_b32 %s, %s" % (s(SB + 6 + 2 * i), fbits(S7[i + 1])))
                A("s_mov_b32 %s, %s" % (s(SB + 6 + 2 * i + 1), fbits(S7[i + 1])))
            R = Rec(); a1_consts(R); gen_f64(R, 48); a1_consts2(R)
            if F32EARLY: f32_gen(R, 48)
            rest1 = R.l[A1SPLIT:]
            for l_ in R.l[:A1SPLIT]: A(l_)
            A("s_barrier")
            A("s_mov_b32 %s, 0x%x" % (s(sT1), X2))
            def xi():
                for t in range(7): A.vm("buffer_load_dword %s, v1, %s, %s offen offset:%d sc1" % (v(4 + t), SWS, s(sT1), 128 * t))
            FINEON[0] = True
            fstamp(A)
            poll_loads(A, xi, range(4, 11), 11, DLY[0], (lambda: [A(x) for x in rest1]) if rest1 else None)
            stamp(A)
            a1_compute(A, Z1)
            stamp(A)
            R = Rec(); a2_consts(R)
            if not F32EARLY: f32_gen(R, 48)
            k_ = R.l.index("W_HERE")
            for l_ in R.l[:k_]: A(l_)
            A("s_lshl_b32 %s, s2, 13" % s(sT2))
            A("s_add_u32 %s, %s, 0x%x" % (s(sT2), s(sT2), CNT))
            A("s_add_u32 %s, %s, 4096" % (s(sT3), s(sT2)))
            A("v_lshlrev_b32 v57, 4, v0")
            if STASH:
                A.vm("buffer_load_dwordx4 %s, v57, %s, %s offen" % (v(WV, 4), SWS, s(sT2)))
                A.wtok = A.vm("buffer_load_dwordx4 %s, v57, %s, %s offen" % (v(WV + 4, 4), SWS, s(sT3)))
            else: a2_wload(A)
            A.rest2 = R.l[k_ + 1 + A2SPLIT:]
            for l_ in R.l[k_ + 1:k_ + 1 + A2SPLIT]: A(l_)
            fstamp(A)
            A("s_barrier")
        late = SCHED == "late"
        def a2_after():
            if l == 0:
                if WU2_AT == "a2":
                    for i in range(7): wu2(i)()
                if PZA == "a2":
                    for op in poison_ops(A, [H0, X1], 173, 168, False): op()
                    A.p1tok = A.ptok
                A.bgq = ([] if late else trw1(16, 0, 0)) + (poison_ops(A, [U0, X2, Z1], 173, 168, False) if PZB == "a2" else [])
        a2_phase(A, zb, tb, l == 1, a2_after)
        stamp(A)
        if STOP == 2 + 5 * l: fin(); break
        R = Rec(); a3_consts(R)
        if l == 0:
            if WU2_AT == "w23":
                for i in range(7): wu2(i)()
            if PZB == "w23":
                for op in poison_ops(A, [U0, X2, Z1], 173, 168, False): op()
            A("s_waitcnt lgkmcnt(0)")
            A.bgq = dma_chunk(A, 1, 0 if late else 16, 16, PW1)
        A.mix(R.l, 2)
        A.bg_flush()
        A("s_barrier")
        def a3_after():
            if l == 0:
                if WU2_AT == "a3":
                    for i in range(7): wu2(i)()
                A.bgq = trw1(16, 0 if late else 128, 0)
        a3_phase(A, l, tb, xo, hb, a3_after, (lambda: None) if l == 0 else None)
        stamp(A)
        if STOP == 3 + 5 * l: fin(); break
        R = Rec(); b_consts(R); tr_addr(R, vTR, 4, 8)
        VW2 = 28
        if l == 0:
            A("s_waitcnt lgkmcnt(0)")
            if not C3MID: A.bgq = dma_chunk(A, 2, 0, 12, PW2)
        A.mix(R.l, 2)
        A.bg_flush()
        A("s_barrier")
        trw2 = lambda: tr_ops(12, vTR, (0, 8), lambda r: v(W2V + r, 2))
        def b1_tail():
            if l == 0:
                A.bg_flush()
                A("s_waitcnt lgkmcnt(0)")
                A.bgq = dma_chunk(A, 2, 12, 16, VW2)
        def b1_first():
            if l == 0:
                R2 = Rec(); w2_voffs(R2, VW2, 14)
                A.bgq = ([] if C3MID else trw2()) + [(lambda o=R2.l[k:k + 4]: [A(x) for x in o]) for k in range(0, len(R2.l), 4)]
        hooks = {}
        if l == 0 and CPF2:
            def h_cpf():
                A("s_getpc_b64 s[36:37]")
                A.label("L_pc2")
                A("s_add_u32 s36, s36, L_layer1-L_pc2")
                A("s_addc_u32 s37, s37, 0")
                A("s_and_b32 s37, s37, 0xffff")
                A("s_mov_b32 s38, L_code_end-L_layer1")
                A("s_mov_b32 s39, 0x20000")
                A("s_lshr_b32 s40, s2, 3")
                A("s_lshl_b32 s40, s40, 10")
                A("v_lshlrev_b32 v15, 2, v0")
                A.vm("buffer_load_dword v15, v15, s[36:39], s40 offen")
            hooks[CPF2] = h_cpf
        if l == 0 and C3MID:
            def h_c3(): A.bgq = dma_chunk(A, 2, 0, 12, VW2)
            def h_tr():
                A.bg_flush()
                A.trwait = A.last_dma
            def h_tr2():
                A.wvm(A.trwait)
                A.bgq = pairs(trw2())
            hooks = {C3MID: h_c3, 20: h_tr, 22: h_tr2}
        def skip_pre(l=l):
            A("s_waitcnt vmcnt(0)")
            if l == 0:
                w2_voffs(A, VW2, 14)
                if C3MID:
                    for op in dma_chunk(A, 2, 0, 12, VW2): op()
                    A("s_waitcnt vmcnt(0)")
                for op in trw2(): op()
                A("s_waitcnt lgkmcnt(0)")
                for op in dma_chunk(A, 2, 12, 16, VW2): op()
                A("v_mul_u32_u24 v16, 7168, v0")
                A("s_mov_b32 %s, 0x%x" % (s(sT2), H0))
                def hi_():
                    A("buffer_load_dword v17, v16, %s, %s offen sc1" % (SWS, s(sT2)))
                    A("v_mov_b32 v18, 0")
                    A("v_mov_b32 v19, 0")
                poll_loads(A, hi_, range(17, 20), 20, 16)
                A("s_barrier")
        colds.append(b_all(A, l, hb, ub, xo, b1_first, b1_tail, skip_pre, VW2, hooks))
        stamp(A)
        if STOP == 5 + 5 * l: fin(); break
    else:
        fin()
    for c in colds: c()
    A.label("L_exit")
    A("s_endpgm")
    A.label("L_code_end")
    lines, n = fix_hazards_fast(A.lines)
    if ALIGN:
        lines, fx, lf = align_pass(lines, ALIGN, ALNOP)
        print("align fixed", fx, "left", lf, file=sys.stderr)
    pr = [p for p in lint_waits(lines) if "overflow" not in p[2]]
    for p in pr[:6]: print("LINT", p, file=sys.stderr)
    hdr = open("cdna_kernels/%s.s.ref" % NAME).read().split("; Override launch")[0]
    out = hdr + "; @launch grid=(256,1,1) block=(256,1,1) lds=%d\n" % LDS_TOTAL
    out += '.amdgcn_target "amdgcn-amd-amdhsa--gfx950"\n.text\n.globl %s\n.p2align 8\n.type %s,@function\n' % (KN, KN)
    out += "\n".join(lines) + "\n"
    out += """.section .rodata,"a"
.p2align 6
.amdhsa_kernel %s
  .amdhsa_next_free_vgpr 512
  .amdhsa_next_free_sgpr 102
  .amdhsa_accum_offset 256
  .amdhsa_group_segment_fixed_size 0
  .amdhsa_kernarg_size 88
  .amdhsa_user_sgpr_count 2
  .amdhsa_user_sgpr_kernarg_segment_ptr 1
  .amdhsa_system_sgpr_workgroup_id_x 1
.end_amdhsa_kernel
""" % KN
    print("nops inserted:", n, "lines:", len(lines), "stamps:", nstamp[0], file=sys.stderr)
    return out

if __name__ == "__main__":
    outp = sys.argv[1] if len(sys.argv) > 1 else "p1.s"
    open(outp, "w").write(build())
    import subprocess
    r = subprocess.run(["clang", "-x", "assembler", "-target", "amdgcn-amd-amdhsa", "-mcpu=gfx950", "-c", outp, "-o", "chk.o"], capture_output=True, text=True)
    if r.returncode: print("ASM ERROR", r.stderr[:1500])
    else:
        o = subprocess.run(["llvm-readelf", "-S", "chk.o"], capture_output=True, text=True).stdout
        print("text bytes", [int(l.split()[-6 if len(l.split()) > 10 else -5], 16) for l in o.splitlines() if " .text" in l], file=sys.stderr)
```

```python
import math, struct, sys, os
from asmlib import *

NAME = "interleave_layers__spectral_gfnet__mixer_token_mlp__prompt"
S, D, F = 2048, 448, 1792
MB2 = 0x200000
Z0, Z1, T0, T1, WT, X1, X2, X3, H0, H1, U0, U1, CNT = [MB2 * i for i in range(13)]
WS_BYTES = 0x2000000
PROFOFF = 0x1C00000
PROF = int(os.environ.get("PROF", 0))
STOP = int(os.environ.get("STOP", 99))
SLEEP = int(os.environ.get("SLEEP", 2))
WUPRE = int(os.environ.get("WUPRE", 4))
XP = int(os.environ.get("XP", 0)); WU2_AT = os.environ.get("WU2_AT", "a3"); WU2FL = os.environ.get("WU2FL", " nt"); DMAFL = os.environ.get("DMAFL", "")
NT = os.environ.get("NT", "").replace("_", " ")
SCHED = os.environ.get("SCHED", "win")
DLY = [int(x) for x in os.environ.get("DLY", "0,0,10,12,12").split(",")]
MAP = os.environ.get("MAP", "x"); KROT = int(os.environ.get("KROT", 0))
AUTO2 = int(os.environ.get("AUTO2", 9)); AUTO3 = int(os.environ.get("AUTO3", 7))
FAKE16 = int(os.environ.get("FAKE16", 0))
STFL = os.environ.get("STFL", " sc1")
assert int(os.environ.get("FULLB", 1)) or STFL == " sc1"
PRE1 = int(os.environ.get("PRE1", 32)); PRE2 = int(os.environ.get("PRE2", 32))
DW = int(os.environ.get("DW", 64)); MAP1 = os.environ.get("MAP1", "x"); X2T = int(os.environ.get("X2T", 1))
OUTFL = os.environ.get("OUTFL", "").replace("_", " ")
EXM = int(os.environ.get("EXM", 0))
ALIGN = int(os.environ.get("ALIGN", 0)); ALNOP = int(os.environ.get("ALNOP", 0))
F32EARLY = int(os.environ.get("F32EARLY", 0))
PZ = int(os.environ.get("PZ", 1))
STASH = int(os.environ.get("STASH", 0)); STASHFL = os.environ.get("STASHFL", "").replace("_", " ")
RALL = int(os.environ.get("RALL", 2))
WU1POS = int(os.environ.get("WU1POS", 1))
STN = int(os.environ.get("STN", 0)); STM = int(os.environ.get("STM", 0))
WHOOK = int(os.environ.get("WHOOK", 1)); C4IN = os.environ.get("C4IN", "win")
NCNT = int(os.environ.get("NCNT", 32)); BDLY = int(os.environ.get("BDLY", 0)); BSLP = int(os.environ.get("BSLP", 2))
LATEB = int(os.environ.get("LATEB", 0)); OVL = int(os.environ.get("OVL", 2)); T1AT = int(os.environ.get("T1AT", 6)); T1N = int(os.environ.get("T1N", 2)); EBG = int(os.environ.get("EBG", 6)); BOOST = int(os.environ.get("BOOST", 2)); BOOSTB1 = int(os.environ.get("BOOSTB1", 0)); EN = [int(x) for x in os.environ.get("EN", "6,4,6,0").split(",")]
SPLITLD = int(os.environ.get("SPLITLD", 1))
DIAGHIT = int(os.environ.get("DIAGHIT", 0))
NOCHK = int(os.environ.get("NOCHK", 0)); NOLD = int(os.environ.get("NOLD", 0))
C3MID = int(os.environ.get("C3MID", 0))
A1SPLIT = int(os.environ.get("A1SPLIT", 999)); A2SPLIT = int(os.environ.get("A2SPLIT", 999))
FBK = int(os.environ.get("FBK", 0)); EARLYPF = int(os.environ.get("EARLYPF", 1))
CPF2 = int(os.environ.get("CPF2", 0))
PZA = os.environ.get("PZA", "a2"); PZB = os.environ.get("PZB", "a2")
GLD = int(os.environ.get("GLD", 0))
X7D = int(os.environ.get("X7D", 0))
FASTR = int(os.environ.get("FASTR", 1))
SCAL = int(os.environ.get("SCAL", 1))
PAUSE = [int(x) for x in os.environ.get("PAUSE", "0,0").split(",")]
_l = lambda k, d: [int(x) for x in os.environ.get(k, d).split(",")]
ENG = [_l("EN0", "6,4,6,2"), _l("EN1", "6,4,6,0")]; PAUSEG = [_l("PAUSE0", "5,2"), _l("PAUSE1", "0,0")]
WNT1 = os.environ.get("WNT1", "").replace("_", " "); WNT2 = os.environ.get("WNT2", "").replace("_", " ")
TLBW = int(os.environ.get("TLBW", 0))
EARLYB = int(os.environ.get("EARLYB", 0))
if EARLYB: NCNT = 0
P0POS = int(os.environ.get("P0POS", 0))
B15D = int(os.environ.get("B15D", 0))
MASKED = int(os.environ.get("MASKED", 1)); FULLB = int(os.environ.get("FULLB", 1))
ROT = int(os.environ.get("ROT", 1)); WU1 = int(os.environ.get("WU1", 3))

def fbits(x): return "0x%08x" % struct.unpack("<I", struct.pack("<f", x))[0]
C7 = [math.cos(2 * math.pi * r / 7) for r in range(4)]
S7 = [math.sin(2 * math.pi * r / 7) for r in range(4)]
CV = "v_cvt_pk_bf16_f32"; M16 = "v_mfma_f32_16x16x32_bf16"; M32 = "v_mfma_f32_32x32x16_bf16"

sX, sWS, sWR, sWI, sW1, sB1, sW2, sB2, sOUT, sDBG = 4, 6, 8, 10, 12, 14, 16, 18, 20, 22
SW1, SW2, SWS = "s[24:27]", "s[28:31]", "s[32:35]"
SB = 36
sW, sWAVE, sDT, sFT, sST, sA1, sA2, sBUD = 48, 49, 50, 51, 52, 53, 54, 55
sT0, sT1, sT2, sT3 = 56, 57, 58, 59
sRING, sT4, sT5, sT6 = 60, 61, 62, 63
sC = 98
sWB1, sWB2 = 12, 16
sDT2, sROT1 = 64, 65
sSH1, sSH2, sEND = 99, 100, 101
SCR = 131072
LDS_TOTAL = 163840
LSTR = 272
YSTR = 448 * 4 + 64
HSTR = 896 + 32
A3_Y = 32 * LSTR
A3_H = A3_Y + 8 * YSTR
XL = 0
F64R, F64I = 96, 112
W2V = 160

nstamp = [0]
CLK = [int(x) for x in os.environ.get("CLK", "").split(",") if x]
BUDA = [int(x) for x in os.environ.get("BUDA", "22,23").split(",")]
BUDB = [int(x) for x in os.environ.get("BUDB", "23,24").split(",")]
FINE = int(os.environ.get("FINE", 0)); FINEON = [False]
def fstamp(A):
    if FINE: stamp(A)
DIAG = int(os.environ.get("DIAG", -1))
ndiag = [1]
def stamp(A):
    if DIAG >= 0:
        if ndiag[0] == DIAG:
            A("s_memrealtime s[96:97]")
            A("s_waitcnt lgkmcnt(0)")
        ndiag[0] += 1
    if not PROF: return
    if FINE and not FINEON[0]: return
    i = nstamp[0]; nstamp[0] += 1
    assert i < 32
    A("s_memrealtime s[8:9]")
    A("s_waitcnt lgkmcnt(0)")
    A("s_mov_b32 %s, s8" % s(66 + i))
    if CLK and i in CLK:
        A("s_memtime s[8:9]")
        A("s_waitcnt lgkmcnt(0)")
        if i == CLK[0]: A("s_mov_b32 s97, s8")
        else: A("s_sub_u32 s97, s8, s97")
        return
    for slot, st in ((30, BUDA), (31, BUDB)) if not CLK else ():
        if i == st[0]: A("s_mov_b32 %s, %s" % (s(66 + slot), s(sBUD)))
        if i == st[1]:
            A("s_sub_u32 %s, %s, %s" % (s(66 + slot), s(66 + slot), s(sBUD)))
            A("s_add_u32 %s, %s, 1000" % (s(66 + slot), s(66 + slot)))

def prof_end(A):
    if DIAG >= 0:
        stamp(A)
        l1, l2 = A.newlabel("dg"), A.newlabel("dg")
        A("s_cmp_lg_u32 s2, 75")
        A("s_cbranch_scc1 %s" % l2)
        A("s_memrealtime s[92:93]")
        A("s_waitcnt lgkmcnt(0)")
        if DIAG == 100:
            A("s_memtime s[96:97]")
            A("s_waitcnt lgkmcnt(0)")
        A("s_sub_u32 s96, s96, s94")
        if DIAG == 100: A("s_lshr_b32 s96, s96, 5")
        A("s_min_u32 s96, s96, 20000")
        A.label(l1)
        A("s_memrealtime s[90:91]")
        A("s_waitcnt lgkmcnt(0)")
        A("s_sub_u32 s90, s90, s92")
        A("s_cmp_lt_u32 s90, s96")
        A("s_cbranch_scc1 %s" % l1)
        A.label(l2)
    if not PROF: return
    A("s_waitcnt vmcnt(0)")
    stamp(A)
    n = 32
    A("s_lshl_b32 s56, s2, 9")
    A("s_add_u32 s56, s56, 0x%x" % PROFOFF)
    A("v_lshrrev_b32 v1, 6, v0")
    A("v_lshlrev_b32 v1, 7, v1")
    for i in range(n):
        A("v_mov_b32 v2, %s" % s(66 + i))
        A("buffer_store_dword v2, v1, %s, s56 offen offset:%d" % (SWS, 4 * i))

def c7(r):
    r %= 7; r = min(r, 7 - r); return s(SB + 2 * (r - 1), 2)
def s7(r):
    r %= 7
    return (s(SB + 6 + 2 * (r - 1), 2), 1) if r <= 3 else (s(SB + 6 + 2 * (7 - r - 1), 2), -1)

def red32(R, x, t):
    for m in ("quad_perm:[1,0,3,2]", "quad_perm:[2,3,0,1]", "row_half_mirror", "row_mirror"):
        R("v_add_f32_dpp %s, %s, %s %s row_mask:0xf bank_mask:0xf" % (v(x), v(x), v(x), m))
    R("v_mov_b32 %s, %s" % (v(t), v(x)))
    R("v_permlane16_swap_b32 %s, %s" % (v(x), v(t)))
    R("v_add_f32 %s, %s, %s" % (v(x), v(x), v(t)))

def gen_frags(R, nidx, qreg, ksteps, denom, dre, dim, tmp):
    nf, ang, n13 = tmp, tmp + 1, tmp + 2
    R("v_cvt_f32_u32 %s, %s" % (v(nf), v(nidx)))
    R("v_cvt_f32_u32 %s, %s" % (v(ang), v(qreg)))
    R("v_mul_f32 %s, %s, %s" % (v(nf), fbits(1.0 / denom), v(nf)))
    R("v_mul_f32 %s, 4.0, %s" % (v(ang), v(ang)))
    R("v_mul_f32 %s, %s, %s" % (v(n13), fbits(13.0), v(nf)))
    R("v_mul_f32 %s, %s, %s" % (v(ang), v(ang), v(nf)))
    n = 4 * ksteps
    def sc(i): return tmp + 3 + 2 * (i % 2), tmp + 4 + 2 * (i % 2)
    for i in range(n + 1):
        if i < n:
            cs, sn = sc(i)
            R("v_cos_f32 %s, %s" % (v(cs), v(ang)))
            R("v_sin_f32 %s, %s" % (v(sn), v(ang)))
            if i < n - 1: R("v_add_f32 %s, %s, %s" % (v(ang), v(ang), v(nf if i % 4 < 3 else n13)))
        if i > 0:
            cs, sn = sc(i - 1)
            R("%s %s, %s, %s" % (CV, v(dre + i - 1), v(cs), v(sn)))
            R("%s %s, -%s, %s" % (CV, v(dim + i - 1), v(sn), v(cs)))

def gen_f64(R, tmp):
    R("v_lshrrev_b32 %s, 6, v0" % v(tmp + 7))
    R("v_and_b32 %s, 15, v0" % v(tmp + 8))
    R("v_lshl_add_u32 %s, %s, 4, %s" % (v(tmp + 7), v(tmp + 7), v(tmp + 8)))
    R("v_bfe_u32 %s, v0, 4, 2" % v(tmp + 8))
    gen_frags(R, tmp + 7, tmp + 8, 4, 64, F64R, F64I, tmp)

def unpack7(R, src, dst):
    for t in range(7):
        R("v_lshlrev_b32 %s, 16, %s" % (v(dst + 2 * t), v(src + t)))
        R("v_and_b32 %s, 0xffff0000, %s" % (v(dst + 2 * t + 1), v(src + t)))

def stats_streams(z, a1, a2, t1, t2):
    R1 = Rec(); R2 = Rec()
    R1("v_pk_add_f32 %s, %s, %s" % (v(a1, 2), v(z, 2), v(z + 2, 2)))
    for k in range(2, 7): R1("v_pk_add_f32 %s, %s, %s" % (v(a1, 2), v(a1, 2), v(z + 2 * k, 2)))
    R1("v_add_f32 %s, %s, %s" % (v(a1), v(a1), v(a1 + 1)))
    red32(R1, a1, t1)
    R2("v_pk_mul_f32 %s, %s, %s" % (v(a2, 2), v(z, 2), v(z, 2)))
    for k in range(1, 7): R2("v_pk_fma_f32 %s, %s, %s, %s" % (v(a2, 2), v(z + 2 * k, 2), v(z + 2 * k, 2), v(a2, 2)))
    R2("v_add_f32 %s, %s, %s" % (v(a2), v(a2), v(a2 + 1)))
    red32(R2, a2, t2)
    return R1.l, R2.l

def mean_var(A, a1, a2):
    A("v_mul_f32 %s, %s, %s" % (v(a1), fbits(1.0 / D), v(a1)))
    A("v_mul_f32 %s, %s, %s" % (v(a2), fbits(1.0 / D), v(a2)))
    A("v_fma_f32 %s, -%s, %s, %s" % (v(a2), v(a1), v(a1), v(a2)))
    A("v_max_f32 %s, 0, %s" % (v(a2), v(a2)))

def poison(A, region, vtid16, vm1):
    A("s_lshl_b32 %s, s2, 13" % s(sT3))
    A("s_add_u32 %s, %s, 0x%x" % (s(sT3), s(sT3), region))
    A.vm("buffer_store_dwordx4 %s, %s, %s, %s offen sc1" % (v(vm1, 4), v(vtid16), SWS, s(sT3)))
    A("s_add_u32 %s, %s, 4096" % (s(sT3), s(sT3)))
    A.ptok = A.vm("buffer_store_dwordx4 %s, %s, %s, %s offen sc1" % (v(vm1, 4), v(vtid16), SWS, s(sT3)))

def poison_list(A, regions, t):
    A("v_lshlrev_b32 %s, 4, v0" % v(t))
    for k in range(4): A("v_mov_b32 %s, -1" % v(t + 2 + k))
    for r in regions: poison(A, r, t, t + 2)

def poison_ops(A, regions, va, vd, setup=True):
    ops = []
    if setup:
        def st():
            A("v_lshlrev_b32 %s, 4, v0" % v(va))
            for k in range(4): A("v_mov_b32 %s, -1" % v(vd + k))
        ops.append(st)
    for r in regions:
        for h in range(2):
            def op(r=r, h=h):
                A("s_lshl_b32 %s, s2, 13" % s(sC))
                A("s_add_u32 %s, %s, 0x%x" % (s(sC), s(sC), r + 4096 * h))
                A.ptok = A.vm("buffer_store_dwordx4 %s, %s, %s, %s offen sc1" % (v(vd, 4), v(va), SWS, s(sC)))
            ops.append(op)
    return ops

def maxchain(A, regs, t):
    regs = list(regs)
    A("v_max3_u32 %s, %s, %s, %s" % (v(t), v(regs[0]), v(regs[1]), v(regs[2])))
    regs = regs[3:]
    while len(regs) >= 2:
        A("v_max3_u32 %s, %s, %s, %s" % (v(t), v(t), v(regs[0]), v(regs[1]))); regs = regs[2:]
    if regs: A("v_max_u32 %s, %s, %s" % (v(t), v(t), v(regs[0])))

def poll_loads(A, issue, regs, t, dly=0, after=None, slp=None):
    lt, lo = A.newlabel("poll"), A.newlabel("pollok")
    if dly: A("s_sleep %d" % dly)
    if after:
        lc = A.newlabel("pollc")
        issue(); tk_ = A.vmn - 1
        after()
        A.wvm(tk_)
        A("s_branch %s" % lc)
        n0 = A.vmn
    A.label(lt)
    issue()
    A("s_waitcnt vmcnt(0)")
    if after:
        A.vmn = n0
        A.label(lc)
    maxchain(A, regs, t)
    A("v_cmp_eq_u32 vcc, -1, %s" % v(t))
    A("s_cbranch_vccz %s" % lo)
    A("s_cmp_eq_u32 %s, 0" % s(sBUD))
    A("s_cbranch_scc1 %s" % lo)
    A("s_sub_u32 %s, %s, 1" % (s(sBUD), s(sBUD)))
    if MASKED: A("s_mov_b64 exec, vcc")
    if slp or SLEEP: A("s_sleep %d" % (slp or SLEEP))
    A("s_branch %s" % lt)
    A.label(lo)
    if MASKED: A("s_mov_b64 exec, -1")

def dma_lane(R, dst, rowstride, t):
    R("v_bfe_u32 %s, v0, 3, 3" % v(t))
    R("s_mov_b32 %s, %d" % (s(sC), rowstride))
    R("v_mul_lo_u32 %s, %s, %s" % (v(dst), v(t), s(sC)))
    R("v_bfe_u32 %s, v0, 4, 1" % v(t))
    R("v_lshlrev_b32 %s, 2, %s" % (v(t), v(t)))
    R("v_and_b32 %s, 7, v0" % v(t + 1))
    R("v_xor_b32 %s, %s, %s" % (v(t), v(t), v(t + 1)))
    R("v_lshl_add_u32 %s, %s, 4, %s" % (v(dst), v(t), v(dst)))

def w1_voffs(R, dst, t):
    dma_lane(R, dst, 32 * 3584, t)
    R("s_lshl_b32 %s, %s, 7" % (s(sC), s(sFT)))
    R("s_or_b32 %s, %s, %s" % (s(sC), s(sC), s(sA1)))
    R("v_add_u32 %s, %s, %s" % (v(dst), s(sC), v(dst)))
    for i in range(1, 4):
        qd, h = i // 2, i % 2
        R("v_add_u32 %s, 0x%x, %s" % (v(dst + i), (512 * qd + 256 * h) * 3584 - ((qd % 2) * 2 + h) * 1024, v(dst)))

def w2_voffs(R, dst, t):
    dma_lane(R, dst, 4096, t)
    R("s_lshl_b32 %s, %s, 7" % (s(sC), s(sST)))
    R("s_or_b32 %s, %s, %s" % (s(sC), s(sC), s(sA2)))
    R("v_add_u32 %s, %s, %s" % (v(dst), s(sC), v(dst)))
    for i in range(1, 4):
        p, h = i // 2, i % 2
        R("v_add_u32 %s, 0x%x, %s" % (v(dst + i), p * 65536 + h * 32768 - (p * 2 + h) * 1024, v(dst)))

def tr_addr(R, dst, rowsel_hi, t, swap16=False):
    R("v_bfe_u32 %s, v0, 2, 2" % v(t))
    R("v_bfe_u32 %s, v0, 5, 1" % v(t + 1))
    R("v_mul_u32_u24 %s, %d, %s" % (v(t + 1), rowsel_hi, v(t + 1)))
    R("v_add_u32 %s, %s, %s" % (v(t + 1), v(t + 1), v(t)))
    R("v_lshlrev_b32 %s, 7, %s" % (v(dst), v(t + 1)))
    R("v_lshrrev_b32 %s, 4, v0" % v(t))
    R("v_xor_b32 %s, %s, v0" % (v(t), v(t)))
    R("v_bfe_u32 %s, %s, 3, 1" % (v(t), v(t)))
    R("v_lshl_add_u32 %s, %s, 6, %s" % (v(dst), v(t), v(dst)))
    if swap16:
        R("v_lshrrev_b32 %s, 2, v0" % v(t))
        R("v_xor_b32 %s, %s, v0" % (v(t), v(t)))
        R("v_bfe_u32 %s, %s, 4, 1" % (v(t), v(t)))
    else:
        R("v_bfe_u32 %s, v0, 4, 1" % v(t))
    R("v_lshl_add_u32 %s, %s, 5, %s" % (v(dst), v(t), v(dst)))
    R("v_and_b32 %s, 3, v0" % v(t))
    R("v_lshl_add_u32 %s, %s, 3, %s" % (v(dst), v(t), v(dst)))
    R("v_add_u32 %s, %s, %s" % (v(dst), s(sRING), v(dst)))
    R("v_xor_b32 %s, 64, %s" % (v(dst + 1), v(dst)))

def dma_chunk(A, which, ks0, n, voff, slot0=0):
    ops = []
    assert ks0 % 2 == 0 and n % 2 == 0
    for p in range(n // 2):
        for k in range(4):
            def op(p=p, k=k):
                if k == 0:
                    npair = n // 2
                    if KROT == 1:
                        A("s_add_u32 m0, %s, %d" % (s(sRING), (slot0 + 2 * p) * 2048))
                        A("s_add_u32 %s, %s, %d" % (s(sT4), s(sSH1 if which == 1 else sSH2), ks0 // 2 + p))
                    else:
                        if p == 0:
                            A("s_mov_b32 %s, %s" % (s(sT6), s(sROT1 if which == 1 else sDT2)))
                            for _ in range((7 // npair)):
                                A("s_cmp_ge_u32 %s, %d" % (s(sT6), npair))
                                A("s_cselect_b32 %s, %d, 0" % (s(sT4), npair))
                                A("s_sub_u32 %s, %s, %s" % (s(sT6), s(sT6), s(sT4)))
                        else:
                            A("s_add_u32 %s, %s, 1" % (s(sT6), s(sT6)))
                            A("s_cmp_eq_u32 %s, %d" % (s(sT6), npair))
                            A("s_cselect_b32 %s, 0, %s" % (s(sT6), s(sT6)))
                        A("s_lshl_b32 %s, %s, 12" % (s(sT4), s(sT6)))
                        A("s_add_u32 %s, %s, %s" % (s(sT4), s(sT4), s(sRING)))
                        A("s_add_u32 m0, %s, %d" % (s(sT4), slot0 * 2048))
                        A("s_add_u32 %s, %s, %d" % (s(sT4), s(sT6), ks0 // 2))
                        if KROT == 5:
                            if which == 2 and ks0 // 2 + npair > 12:
                                A("s_cmp_ge_u32 %s, 12" % s(sT4))
                                A("s_cselect_b32 s3, 1, 3")
                            else:
                                A("s_mov_b32 s3, 3")
                            A("s_add_u32 %s, %s, %s" % (s(sT5), s(sT4), s(sSH1)))
                            A("s_and_b32 %s, %s, s3" % (s(sT5), s(sT5)))
                            A("s_andn2_b32 %s, %s, s3" % (s(sT4), s(sT4)))
                            A("s_or_b32 %s, %s, %s" % (s(sT4), s(sT4), s(sT5)))
                        elif KROT: A("s_add_u32 %s, %s, %s" % (s(sT4), s(sT4), s(sSH1 if which == 1 else sSH2)))
                    if which == 1:
                        A("s_bfe_u32 %s, %s, 0x30001" % (s(sT5), s(sT4)))
                        A("s_bitcmp1_b32 %s, 0" % s(sT4))
                        A("s_cselect_b32 %s, %s, %s" % (s(sT4), s(sWB1 + 1), s(sWB1)))
                        A("s_mul_i32 %s, %s, 3584" % (s(sT5), s(sT5)))
                        A("s_add_u32 %s, %s, %s" % (s(sT5), s(sT5), s(sT4)))
                    else:
                        A("s_cmp_ge_u32 %s, 14" % s(sT4))
                        A("s_cselect_b32 %s, %s, %s" % (s(sT5), s(sWB2 + 1), s(sWB2)))
                        A("s_add_u32 %s, %s, %s" % (s(sT5), s(sT5), s(sT4)))
                        A("s_lshl_b32 %s, %s, 17" % (s(sT5), s(sT5)))
                A.last_dma = A.vm("buffer_load_dwordx4 %s, %s, %s offen offset:%d%s lds" % (v(voff + k), SW1 if which == 1 else SW2, s(sT5), k * 1024, DMAFL))
            ops.append(op)
    return ops

def tr_chunk(A, n, addr, rows, dstfn):
    for i in range(n):
        for tl in range(2):
            for rd in range(2):
                A.ds("ds_read_b64_tr_b16 %s, %s offset:%d" % (dstfn(8 * i + 4 * tl + 2 * rd), v(addr + tl), i * 2048 + rows[rd] * 128))

PW1, PTR1, PW2 = 240, 248, 250

def a1_consts(R):
    R("s_lshr_b32 %s, %s, 3" % (s(sT0), s(sW)))
    R("s_and_b32 %s, %s, 7" % (s(sT1), s(sW)))
    R("s_lshl_b32 %s, %s, 3" % (s(sT1), s(sT1)))
    R("v_lshrrev_b32 v1, 5, v0")
    R("v_add_u32 v1, %s, v1" % s(sT1))
    R("v_lshlrev_b32 v1, 5, v1")
    R("v_add_u32 v1, %s, v1" % s(sT0))
    R("v_mul_u32_u24 v1, 896, v1")
    R("v_and_b32 v2, 31, v0")
    R("v_lshl_add_u32 v1, v2, 2, v1")

def a1_consts2(R):
    TC, TS = 20, 26
    R("v_cvt_f32_u32 v14, v2")
    R("v_mul_f32 v14, %s, v14" % fbits(2.0 / 448))
    R("v_add_f32 v15, %s, v14" % fbits(1.0 / 448))
    for k in range(1, 4):
        if k == 1: a0, a1_ = 14, 15
        else:
            a0, a1_ = 16, 17
            R("v_mul_f32 v16, %s, v14" % fbits(float(k)))
            R("v_mul_f32 v17, %s, v15" % fbits(float(k)))
        R("v_cos_f32 %s, %s" % (v(TC + 2 * (k - 1)), v(a0)))
        R("v_cos_f32 %s, %s" % (v(TC + 2 * (k - 1) + 1), v(a1_)))
        R("v_sin_f32 %s, %s" % (v(TS + 2 * (k - 1)), v(a0)))
        R("v_sin_f32 %s, %s" % (v(TS + 2 * (k - 1) + 1), v(a1_)))
    R("v_lshrrev_b32 v3, 5, v0")
    R("v_mul_u32_u24 v3, %d, v3" % LSTR)
    R("v_lshl_add_u32 v3, v2, 3, v3")
    R("v_add_u32 v3, 0x%x, v3" % SCR)
    R("v_bfe_u32 v13, v0, 4, 2")
    R("v_and_b32 v12, 15, v0")
    R("v_mul_u32_u24 v18, %d, v12" % LSTR)
    R("v_lshl_add_u32 v18, v13, 4, v18")
    R("v_add_u32 v18, 0x%x, v18" % SCR)
    R("v_lshrrev_b32 v19, 1, v13")
    R("v_lshl_add_u32 v19, v19, 6, v12")
    R("v_lshrrev_b32 v14, 6, v0")
    R("v_lshl_add_u32 v19, v14, 4, v19")
    R("v_lshlrev_b32 v19, 5, v19")
    R("v_and_b32 v14, 1, v13")
    R("v_lshl_add_u32 v19, v14, 4, v19")

def a1_compute(A, zout, hook1=lambda: None, hook2=lambda: None):
    XR, TC, TS, Z = 4, 20, 26, 32
    unpack7(A, XR, Z)
    s1, s2 = stats_streams(Z, 46, 60, 4, 5)
    Dq = Rec()
    P, Q = 48, 54
    for t in range(1, 4):
        Dq("v_pk_add_f32 %s, %s, %s" % (v(P + 2 * (t - 1), 2), v(Z + 2 * t, 2), v(Z + 2 * (7 - t), 2)))
        Dq("v_pk_add_f32 %s, %s, %s neg_lo:[0,1] neg_hi:[0,1]" % (v(Q + 2 * (t - 1), 2), v(Z + 2 * t, 2), v(Z + 2 * (7 - t), 2)))
    RE, IM = 64, 70
    for k in range(1, 4):
        Rr, N = 76 + 4 * (k % 2), 78 + 4 * (k % 2)
        for t in range(1, 4):
            Dq("v_pk_fma_f32 %s, %s, %s, %s" % (v(Rr, 2), v(P + 2 * (t - 1), 2), c7(t * k), v(Z, 2) if t == 1 else v(Rr, 2)))
        for t in range(1, 4):
            cs, sg = s7(t * k)
            if t == 1: Dq("v_pk_mul_f32 %s, %s, %s" % (v(N, 2), v(Q, 2), cs))
            else:
                neg = "" if sg == 1 else " neg_lo:[1,0,0] neg_hi:[1,0,0]"
                Dq("v_pk_fma_f32 %s, %s, %s, %s%s" % (v(N, 2), v(Q + 2 * (t - 1), 2), cs, v(N, 2), neg))
        tc, ts = v(TC + 2 * (k - 1), 2), v(TS + 2 * (k - 1), 2)
        re, im = v(RE + 2 * (k - 1), 2), v(IM + 2 * (k - 1), 2)
        Dq("v_pk_mul_f32 %s, %s, %s" % (re, v(N, 2), ts))
        Dq("v_pk_mul_f32 %s, %s, %s" % (im, v(N, 2), tc))
        Dq("v_pk_fma_f32 %s, %s, %s, %s neg_lo:[0,0,1] neg_hi:[0,0,1]" % (re, v(Rr, 2), tc, re))
        Dq("v_pk_fma_f32 %s, %s, %s, %s" % (im, v(Rr, 2), ts, im))
    Dq("v_pk_add_f32 v[6:7], %s, %s" % (v(Z, 2), v(P, 2)))
    Dq("v_pk_add_f32 v[8:9], %s, %s" % (v(P + 2, 2), v(P + 4, 2)))
    Dq("v_pk_add_f32 v[6:7], v[6:7], v[8:9]")
    for l in zipmix(Dq.l, s1, s2): A(l)
    mean_var(A, 46, 60)
    A("v_add_f32 v60, %s, v60" % fbits(1e-5))
    A("v_rsq_f32 v60, v60")
    A("v_mul_f32 v46, %s, v46" % fbits(-7.0))
    A("v_mul_f32 v60, %s, v60" % fbits(1.0 / (448.0 * 2048.0)))
    A("v_pk_add_f32 v[6:7], v[6:7], v[46:47] op_sel_hi:[1,0]")
    for k in range(6):
        A("v_pk_mul_f32 %s, %s, v[60:61] op_sel_hi:[1,0]" % (v(RE + 2 * k, 2), v(RE + 2 * k, 2)))
    A("v_pk_mul_f32 v[6:7], v[6:7], v[60:61] op_sel_hi:[1,0]")
    for k in range(1, 4):
        o = 32 + 2 * k
        A("%s %s, %s, -%s" % (CV, v(o), v(RE + 2 * (k - 1)), v(IM + 2 * (k - 1))))
        A("%s %s, %s, -%s" % (CV, v(o + 1), v(RE + 2 * (k - 1) + 1), v(IM + 2 * (k - 1) + 1)))
        A.ds("ds_write_b64 v3, %s offset:%d" % (v(o, 2), k * 8 * LSTR))
    A("%s v32, v6, 0" % CV)
    A("%s v33, v7, 0" % CV)
    A.ds("ds_write_b64 v3, v[32:33]")
    hook1()
    A("s_lshl_b32 %s, %s, 13" % (s(sT0), s(sW)))
    A("s_add_u32 %s, %s, 0x%x" % (s(sT0), s(sT0), zout))
    A("s_add_u32 %s, %s, 4096" % (s(sT1), s(sT0)))
    A("s_waitcnt lgkmcnt(0)")
    fstamp(A)
    A("s_barrier")
    fstamp(A)
    AF = 64
    tk = []
    for mt in range(2):
        for t in range(4):
            tk.append(A.ds("ds_read_b128 %s, v18 offset:%d" % (v(AF + 16 * mt + 4 * t, 4), mt * 16 * LSTR + 64 * t)))
    DR, DI = 32, 40
    h2 = hook2()
    def fin_(mt):
        for r in range(4):
            A("%s %s, %s, %s" % (CV, v(48 + 4 * mt + r), v(DR + 4 * mt + r), v(DI + 4 * mt + r)))
        A.vm("buffer_store_dwordx4 %s, v19, %s, %s offen sc1" % (v(48 + 4 * mt, 4), SWS, s(sT0 + mt)))
    for mt in range(2):
        for t in range(4):
            A.wds(tk[4 * mt + t])
            A("%s %s, %s, %s, %s" % (M16, v(DR + 4 * mt, 4), v(AF + 16 * mt + 4 * t, 4), v(F64R + 4 * t, 4), "0" if t == 0 else v(DR + 4 * mt, 4)))
            A("%s %s, %s, %s, %s" % (M16, v(DI + 4 * mt, 4), v(AF + 16 * mt + 4 * t, 4), v(F64I + 4 * t, 4), "0" if t == 0 else v(DI + 4 * mt, 4)))
            if mt == 1 and t == 2: fin_(0)
    if h2: h2()
    fin_(1)

F32R, F32I = 128, 144
TW1, TW2, WV = 16, 24, 8
def a2_consts(R):
    R("v_and_b32 v2, 15, v0")
    R("v_bfe_u32 v3, v0, 4, 2")
    R("v_lshrrev_b32 v4, 6, v0")
    R("v_lshrrev_b32 v5, 1, v4")
    R("v_lshl_add_u32 v5, v5, 4, v2")
    R("v_lshlrev_b32 v5, 3, v5")
    R("v_and_b32 v6, 1, v4")
    R("v_lshl_add_u32 v5, v6, 2, v5")
    R("v_lshrrev_b32 v6, 1, v3")
    R("v_add_u32 v5, v5, v6")
    R("v_lshlrev_b32 v5, 13, v5")
    R("v_and_b32 v7, 1, v3")
    R("v_lshl_add_u32 v5, v7, 4, v5")
    R("v_lshl_add_u32 v56, v4, 4, v2")
    R("v_lshl_add_u32 v6, v56, 2, v6")
    R("v_lshlrev_b32 v6, 13, v6")
    R("v_lshl_add_u32 v7, v7, 4, v6")
    R("v_lshlrev_b32 v6, 8, v2")
    R("v_lshl_add_u32 v6, v4, 6, v6")
    R("v_lshl_add_u32 v6, v3, 4, v6")
    R("W_HERE")
    R("v_cvt_f32_u32 v57, v56")
    R("v_cvt_f32_u32 v58, v3")
    R("v_mul_f32 v57, %s, v57" % fbits(1.0 / 2048))
    R("v_mul_f32 v58, 4.0, v58")
    R("v_mul_f32 v59, %s, v57" % fbits(13.0))
    R("v_mul_f32 v58, v58, v57")
    for i in range(8):
        R("v_cos_f32 v60, v58"); R("v_sin_f32 v61, v58")
        if i < 7: R("v_add_f32 v58, v58, %s" % v(57 if i != 3 else 59))
        R("v_cvt_pk_f16_f32 %s, v60, -v61" % v(TW1 + i))
    R("v_lshlrev_b32 v56, 4, v4")
    R("v_lshl_add_u32 v56, v3, 2, v56")
    R("v_cvt_f32_u32 v56, v56")
    R("v_add_u32 v47, 16, v2")
    for nt in range(2):
        R("v_cvt_f32_u32 v57, %s" % v(2 if nt == 0 else 47))
        R("v_mul_f32 v57, %s, v57" % fbits(1.0 / 2048))
        R("v_mul_f32 v58, v56, v57")
        for r in range(4):
            R("v_cos_f32 v60, v58"); R("v_sin_f32 v61, v58")
            if r < 3: R("v_add_f32 v58, v58, v57")
            R("v_cvt_pk_f16_f32 %s, v60, v61" % v(TW2 + 4 * nt + r))

def f32_gen(R, t):
    R("v_and_b32 %s, 15, v0" % v(t + 7))
    R("v_bfe_u32 %s, v0, 4, 2" % v(t + 8))
    R("v_add_u32 %s, 16, %s" % (v(t + 9), v(t + 7)))
    for mt in range(2):
        gen_frags(R, t + 7 + 2 * mt, t + 8, 2, 32, F32R + 8 * mt, F32I + 8 * mt, t)

def cmul_mix(A, ar, ai, tw, t):
    A("v_fma_mix_f32 %s, %s, %s, 0 op_sel:[0,1,0] op_sel_hi:[0,1,0]" % (v(t), v(ai), v(tw)))
    A("v_fma_mix_f32 %s, %s, %s, 0 op_sel:[0,0,0] op_sel_hi:[0,1,0]" % (v(t + 1), v(ai), v(tw)))
    A("v_fma_mix_f32 %s, %s, %s, %s op_sel:[0,1,0] op_sel_hi:[0,1,0]" % (v(ai), v(ar), v(tw), v(t + 1)))
    A("v_fma_mix_f32 %s, %s, %s, -%s op_sel:[0,0,0] op_sel_hi:[0,1,0]" % (v(ar), v(ar), v(tw), v(t)))

def a2_wload(A):
    A("s_lshr_b32 %s, %s, 6" % (s(sT2), s(sW)))
    A("s_lshl_b32 %s, %s, 11" % (s(sT2), s(sT2)))
    A("s_and_b32 %s, %s, 63" % (s(sT3), s(sW)))
    A("s_lshl_b32 %s, %s, 5" % (s(sT3), s(sT3)))
    A("s_add_u32 %s, %s, %s" % (s(sT2), s(sT2), s(sT3)))
    A("s_add_u32 %s, %s, 0x%x" % (s(sT2), s(sT2), WT))
    A("s_add_u32 %s, %s, 16384" % (s(sT3), s(sT2)))
    for mt in range(2):
        A.wtok = A.vm("buffer_load_dwordx4 %s, v7, %s, %s offen sc1" % (v(WV + 4 * mt, 4), SWS, s(sT2 + mt)))

def a2_phase(A, zin, tout, poll, after_loads, post=lambda: None):
    A("s_lshl_b32 %s, %s, 5" % (s(sT0), s(sW)))
    A("s_add_u32 %s, %s, 0x%x" % (s(sT0), s(sT0), zin))
    A("s_add_u32 %s, %s, 16384" % (s(sT1), s(sT0)))
    G = 32
    def issue():
        A.vm("buffer_load_dwordx4 %s, v5, %s, %s offen sc1" % (v(G, 4), SWS, s(sT0)))
        return A.vm("buffer_load_dwordx4 %s, v5, %s, %s offen sc1" % (v(G + 4, 4), SWS, s(sT1)))
    A("v_lshlrev_b32 v62, 4, v0")
    A("v_lshl_add_u32 v62, v4, 10, v62")
    A("v_add_u32 v62, 0x%x, v62" % SCR)
    A("v_and_b32 v63, 63, v0")
    A("v_lshlrev_b32 v63, 4, v63")
    A("v_add_u32 v63, 0x%x, v63" % SCR)
    if poll:
        tw_tok = A.wtok
        poll_loads(A, issue, range(G, G + 8), 40, DLY[1], (lambda: [A(x) for x in A.rest2]) if A.rest2 else None)
    else:
        if EARLYB:
            poll_loads(A, issue, range(G, G + 8), 40, 0, lambda: a2_wload(A))
            tw_tok = A.wtok
        else:
            tz = issue(); a2_wload(A); tw_tok = A.wtok; post(); A.wvm(tz)
    stamp(A)
    A.ds("ds_write_b128 v62, %s" % v(G, 4))
    A.ds("ds_write_b128 v62, %s offset:1024" % v(G + 4, 4))
    after_loads()
    A("s_waitcnt lgkmcnt(0)")
    A("s_barrier")
    fstamp(A)
    DA = 64
    tk = [A.ds("ds_read_b128 %s, v63 offset:%d" % (v(DA + 4 * f, 4), 1024 * f)) for f in range(8)]
    GR, GI, P1, XR, XI, WR_, WI_, HR, HI = 32, 40, 48, 64, 72, 80, 88, 32, 40
    def mm(d, a_, b_, first): return "%s %s, %s, %s, %s" % (M16, v(d, 4), v(a_, 4), v(b_, 4), "0" if first else v(d, 4))
    def weave(ms, vs, lead=0, pre=None):
        n = len(ms) - lead; k = 0
        for i, m_ in enumerate(ms):
            if pre: pre(i)
            A(m_)
            if i >= lead:
                tgt = len(vs) * (i - lead + 1) // n
                while k < tgt:
                    (A.ds if vs[k].startswith("ds_") else A.vm if vs[k].startswith("buffer") else A)(vs[k]); k += 1
            if i % 2: A.bg()
    def tw(rr, ii, twr, dst, idx, tmp, swap):
        R = Rec()
        for i in idx:
            cmul_mix(R, rr + i, ii + i, twr + i, tmp + 2 * (i % 2))
            R("%s %s, %s, %s" % ((CV, v(dst + i), v(ii + i), v(rr + i)) if swap else (CV, v(dst + i), v(rr + i), v(ii + i))))
        return R.l
    def st1(mt): return [mm((GR, GI)[c] + 4 * mt, DA + 16 * mt + 4 * t, (F64R, F64I)[c] + 4 * t, t == 0) for t in range(4) for c in range(2)]
    weave(st1(0), [], pre=lambda i: A.wds(tk[i // 2]) if i % 2 == 0 else None)
    weave(st1(1), tw(GR, GI, TW1, P1, range(4), 56, False), lead=2, pre=lambda i: A.wds(tk[4 + i // 2]) if i % 2 == 0 else None)
    fstamp(A)
    def st2(ks): return [mm((XR, XI)[c] + 4 * mt, (F32R, F32I)[c] + 8 * mt + 4 * ks, P1 + 4 * ks, ks == 0) for mt in range(2) for c in range(2)]
    weave(st2(0), tw(GR, GI, TW1, P1, range(4, 8), 56, False))
    A.wvm(tw_tok)
    if EARLYB and not poll:
        lo_, lt_ = A.newlabel("wok"), A.newlabel("wrty")
        A.label(lt_)
        maxchain(A, range(WV, WV + 8), 60)
        A("v_cmp_eq_u32 vcc, -1, v60")
        A("s_cbranch_vccz %s" % lo_)
        A("s_cmp_eq_u32 %s, 0" % s(sBUD))
        A("s_cbranch_scc1 %s" % lo_)
        A("s_sub_u32 %s, %s, 1" % (s(sBUD), s(sBUD)))
        n0_ = A.vmn; wt_ = A.wtok; a2_wload(A); A.vmn = n0_; A.wtok = wt_
        A("s_waitcnt vmcnt(0)")
        A("s_branch %s" % lt_)
        A.label(lo_)
    un = []
    for i in range(8):
        un += ["v_lshlrev_b32 %s, 16, %s" % (v(WR_ + i), v(WV + i)), "v_and_b32 %s, 0xffff0000, %s" % (v(WI_ + i), v(WV + i))]
    weave(st2(1), un)
    def wm(idx):
        R = Rec()
        for i in idx:
            xr, xi, wr, wi = v(XR + i, 2), v(XI + i, 2), v(WR_ + i, 2), v(WI_ + i, 2)
            t_ = 56 + 4 * ((i // 2) % 2) if False else 56
            R("v_pk_mul_f32 v[56:57], %s, %s" % (xi, wi))
            R("v_pk_mul_f32 v[58:59], %s, %s" % (xi, wr))
            R("v_pk_fma_f32 v[56:57], %s, %s, v[56:57] neg_lo:[0,0,1] neg_hi:[0,0,1]" % (xr, wr))
            R("v_pk_fma_f32 v[58:59], %s, %s, v[58:59]" % (xr, wi))
            R("%s %s, v58, v56" % (CV, v(P1 + i)))
            R("%s %s, v59, v57" % (CV, v(P1 + i + 1)))
        return R.l
    A.st(STM)
    for l_ in wm((0, 2)): A(l_)
    def st3(ks): return [mm((HI, HR)[c] + 4 * nt, P1 + 4 * ks, (F32R, F32I)[c] + 8 * nt + 4 * ks, ks == 0) for nt in range(2) for c in range(2)]
    weave(st3(0), wm((4, 6)))
    weave(st3(1), ["v_lshlrev_b32 v62, 4, v0", "v_add_u32 v62, 0x%x, v62" % (SCR + 8192),
                   "s_lshl_b32 %s, %s, 13" % (s(sT0), s(sW)), "s_add_u32 %s, %s, 0x%x" % (s(sT0), s(sT0), tout), "s_add_u32 %s, %s, 4096" % (s(sT1), s(sT0))])
    A.st(STM)
    for h in range(2):
        for i, l_ in enumerate(tw(HR, HI, TW2, P1, range(4 * h, 4 * h + 4), 64, True)):
            A(l_)
            if i % 5 == 4: A.bg()
        A.ds("ds_write_b128 v62, %s offset:%d" % (v(P1 + 4 * h, 4), 4096 * h))
    A.st(STN)
    if not poll and PZ: A.wvm(A.p1tok)
    A("s_waitcnt lgkmcnt(0)")
    fstamp(A)
    A("s_barrier")
    fstamp(A)
    tk = [A.ds("ds_read_b128 %s, v63 offset:%d" % (v(DA + 4 * f, 4), 8192 + 1024 * f)) for f in range(8)]
    A.st(STN)
    TR, TI = 32, 40
    def st4(nt): return [mm((TI, TR)[c] + 4 * nt, (F64R, F64I)[c] + 4 * t, DA + 16 * nt + 4 * t, t == 0) for t in range(4) for c in range(2)]
    def fin_(nt):
        return ["%s %s, %s, %s" % (CV, v(48 + 4 * nt + r), v(TI + 4 * nt + r), v(TR + 4 * nt + r)) for r in range(4)] + \
               ["buffer_store_dwordx4 %s, v6, %s, %s offen sc1" % (v(48 + 4 * nt, 4), SWS, s(sT0 + nt))]
    weave(st4(0), [], pre=lambda i: A.wds(tk[i // 2]) if i % 2 == 0 else None)
    weave(st4(1), fin_(0), lead=4, pre=lambda i: A.wds(tk[4 + i // 2]) if i % 2 == 0 else None)
    A.st(STM)
    for l_ in fin_(1): (A.vm if l_.startswith("buffer") else A)(l_)
    A.bg_flush()

def a3_consts(R):
    a1_consts(R)
    R("v_lshlrev_b32 v3, 13, v0")
    R("v_lshrrev_b32 v11, 6, v0")
    R("v_and_b32 v12, 15, v0")
    R("v_mul_u32_u24 v15, %d, v12" % LSTR)
    R("v_lshl_add_u32 v12, v11, 4, v12")
    R("v_bfe_u32 v13, v0, 4, 2")
    R("v_lshl_add_u32 v15, v13, 4, v15")
    R("v_add_u32 v15, 0x%x, v15" % SCR)
    R("v_lshrrev_b32 v14, 1, v11")
    R("v_lshlrev_b32 v14, 4, v14")
    R("v_and_b32 v30, 1, v11")
    R("v_lshl_add_u32 v14, v30, 1, v14")
    R("v_mul_u32_u24 v14, %d, v14" % LSTR)
    R("v_and_b32 v30, 63, v0")
    R("v_lshl_add_u32 v14, v30, 2, v14")
    R("v_add_u32 v14, 0x%x, v14" % SCR)
    TW = 24
    R("v_cvt_f32_u32 v30, v12")
    for k in range(1, 4):
        R("v_mul_f32 v31, %s, v30" % fbits(k / 448.0))
        R("v_cos_f32 %s, v31" % v(TW + 2 * (k - 1)))
        R("v_sin_f32 %s, v31" % v(TW + 2 * (k - 1) + 1))
    for k in range(6): R("v_add_f32 %s, %s, %s" % (v(TW + k), v(TW + k), v(TW + k)))
    R("v_mul_u32_u24 v62, %d, v13" % (2 * YSTR))
    R("v_lshl_add_u32 v62, v12, 2, v62")
    R("v_add_u32 v62, 0x%x, v62" % (SCR + A3_Y))
    R("v_lshrrev_b32 v31, 5, v0")
    R("v_mul_u32_u24 v30, %d, v31" % HSTR)
    R("v_lshl_add_u32 v30, v2, 2, v30")
    R("v_add_u32 v30, 0x%x, v30" % (SCR + A3_H))
    R("v_mul_u32_u24 v63, %d, v31" % YSTR)
    R("v_lshl_add_u32 v63, v2, 3, v63")
    R("v_add_u32 v63, 0x%x, v63" % (SCR + A3_Y))
    R("v_bfe_u32 v31, v0, 2, 2")
    R("v_mul_u32_u24 v31, %d, v31" % HSTR)
    R("v_and_b32 v12, 3, v0")
    R("v_lshl_add_u32 v31, v12, 3, v31")
    R("v_lshl_add_u32 v31, v13, 5, v31")
    R("v_lshl_add_u32 v31, v11, 7, v31")
    R("v_add_u32 v31, 0x%x, v31" % (SCR + A3_H))
    R("v_lshlrev_b32 v12, 4, v0")

def a3_phase(A, l, tin, xout, hout, after_loads, post=None):
    XR, TV, TW = 4, 16, 24
    if l == 0:
        for t in range(7): A.vm("global_load_dword %s, v1, %s offset:%d" % (v(XR + t), s(sX, 2), 128 * t))
    else:
        A("s_mov_b32 %s, 0x%x" % (s(sT1), X2))
        for t in range(7): A.vm("buffer_load_dword %s, v1, %s, %s offen offset:%d sc1" % (v(XR + t), SWS, s(sT1), 128 * t))
    A("s_lshl_b32 %s, %s, 5" % (s(sT0), s(sW)))
    A("s_add_u32 %s, %s, 0x%x" % (s(sT0), s(sT0), tin))
    def issue():
        A.vm("buffer_load_dwordx4 %s, v3, %s, %s offen sc1" % (v(TV, 4), SWS, s(sT0)))
        A.vm("buffer_load_dwordx4 %s, v3, %s, %s offen offset:16 sc1" % (v(TV + 4, 4), SWS, s(sT0)))
    poll_loads(A, issue, range(TV, TV + 8), 32, DLY[2] if post is None else 0, post)
    stamp(A)
    for row in range(8):
        A.ds("ds_write_b32 v14, %s offset:%d" % (v(TV + row), (4 * (row // 2) + (row & 1)) * LSTR))
    after_loads()
    A("s_waitcnt lgkmcnt(0)")
    A("s_barrier")
    fstamp(A)
    AF = 64
    tk = []
    for mt in range(2):
        for t in range(4):
            tk.append(A.ds("ds_read_b128 %s, v15 offset:%d" % (v(AF + 16 * mt + 4 * t, 4), mt * 16 * LSTR + 64 * t)))
    DR, DI = 32, 40
    Z = 128
    unpack7(A, XR, Z)
    UR, UI, U0 = 48, 54, DR
    def twk(k):
        tw = v(TW + 2 * (k - 1), 2)
        vr, vi = v(DR + 2 * k, 2), v(DI + 2 * k, 2)
        ur, ui = v(UR + 2 * (k - 1), 2), v(UI + 2 * (k - 1), 2)
        return ["v_pk_mul_f32 %s, %s, %s op_sel:[0,1] op_sel_hi:[1,1]" % (ur, vi, tw),
                "v_pk_mul_f32 %s, %s, %s op_sel:[0,0] op_sel_hi:[1,0]" % (ui, vi, tw),
                "v_pk_fma_f32 %s, %s, %s, %s op_sel:[0,0,0] op_sel_hi:[1,0,1] neg_lo:[0,0,1] neg_hi:[0,0,1]" % (ur, vr, tw, ur),
                "v_pk_fma_f32 %s, %s, %s, %s op_sel:[0,1,0] op_sel_hi:[1,1,1]" % (ui, vr, tw, ui)]
    early = twk(1)
    for t in range(1, 4):
        early.append("v_pk_fma_f32 %s, %s, %s, %s" % (v((16, 20, 68)[t - 1], 2), v(UR, 2), c7(t), v(U0, 2)))
        early.append("v_pk_mul_f32 %s, %s, %s" % (v((18, 22, 70)[t - 1], 2), v(UI, 2), s7(t)[0]))
    early.append("v_pk_add_f32 v[60:61], %s, %s" % (v(U0, 2), v(UR, 2)))
    for mt in range(2):
        for t in range(4):
            A.wds(tk[4 * mt + t])
            A("%s %s, %s, %s, %s" % (M16, v(DI + 4 * mt, 4), v(AF + 16 * mt + 4 * t, 4), v(F64R + 4 * t, 4), "0" if t == 0 else v(DI + 4 * mt, 4)))
            A("%s %s, %s, %s, %s" % (M16, v(DR + 4 * mt, 4), v(AF + 16 * mt + 4 * t, 4), v(F64I + 4 * t, 4), "0" if t == 0 else v(DR + 4 * mt, 4)))
            if mt == 1 and t >= 2:
                for l_ in early[(t - 2) * 4:(t - 1) * 4]: A(l_)
            A.bg()
    for l_ in early[8:]: A(l_)
    A.st(STM)
    for k in (2, 3):
        for l_ in twk(k): A(l_)
        A.bg()
    def ywrite(pair, t):
        A.ds("ds_write_b32 v62, %s offset:%d" % (v(pair), 256 * t))
        A.ds("ds_write_b32 v62, %s offset:%d" % (v(pair + 1), YSTR + 256 * t))
    A("v_pk_add_f32 v[66:67], %s, %s" % (v(UR + 2, 2), v(UR + 4, 2)))
    A("v_pk_add_f32 v[64:65], v[60:61], v[66:67]")
    ywrite(64, 0)
    for t in range(1, 4):
        aa, bb, y1, y2 = (16, 20, 68)[t - 1], (18, 22, 70)[t - 1], 40 + 4 * (t % 2), 42 + 4 * (t % 2)
        for k in range(2, 4):
            A("v_pk_fma_f32 %s, %s, %s, %s" % (v(aa, 2), v(UR + 2 * (k - 1), 2), c7(t * k), v(aa, 2)))
            cs, sg = s7(t * k)
            neg = "" if sg == 1 else " neg_lo:[1,0,0] neg_hi:[1,0,0]"
            A("v_pk_fma_f32 %s, %s, %s, %s%s" % (v(bb, 2), v(UI + 2 * (k - 1), 2), cs, v(bb, 2), neg))
        A("v_pk_add_f32 %s, %s, %s neg_lo:[0,1] neg_hi:[0,1]" % (v(y1, 2), v(aa, 2), v(bb, 2)))
        A("v_pk_add_f32 %s, %s, %s" % (v(y2, 2), v(aa, 2), v(bb, 2)))
        ywrite(y1, t); ywrite(y2, 7 - t)
        A.bg(2)
    A.st(STN)
    A("s_waitcnt lgkmcnt(0)")
    fstamp(A)
    A("s_barrier")
    fstamp(A)
    Y = 64
    tk = [A.ds("ds_read_b64 %s, v63 offset:%d" % (v(Y + 2 * t, 2), 256 * t)) for t in range(7)]
    A.bg(3)
    A.st(STN)
    for t in range(7):
        A.wds(tk[t])
        A("v_pk_add_f32 %s, %s, %s" % (v(Z + 2 * t, 2), v(Z + 2 * t, 2), v(Y + 2 * t, 2)))
    s1, s2 = stats_streams(Z, 46, 48, 50, 51)
    St = ["ds_write_b32 v30, %s offset:%d" % (v(XR + t), 128 * t + XL - A3_H + 65536 if False else 0) for t in range(0)]
    A("v_subrev_u32 v52, %d, v30" % (A3_H - XL))
    A("v_mov_b32 v53, %s" % fbits(1e-10))
    A("s_mov_b32 %s, %s" % (s(sT2), fbits(1.0 + 1e-5)))
    St = []
    for t in range(7):
        St += ["%s %s, %s, %s" % (CV, v(XR + t), v(Z + 2 * t), v(Z + 2 * t + 1)), "ds_write_b32 v52, %s offset:%d" % (v(XR + t), 128 * t)]
    for ln in zipmix(s1, s2, St):
        if ln.startswith("ds_"): A.ds(ln)
        else: A(ln)
    mean_var(A, 46, 48)
    A.st(STM)
    A("v_fma_f32 v48, v48, %s, v53" % s(sT2))
    A("v_rsq_f32 v48, v48")
    A("s_mul_i32 %s, %s, 7168" % (s(sT0), s(sW)))
    A("s_add_u32 %s, %s, 0x%x" % (s(sT0), s(sT0), hout))
    A("v_mul_f32 v46, -v46, v48" if False else "v_mul_f32 v46, v46, v48")
    for t in range(7):
        A("v_pk_fma_f32 %s, %s, v[48:49], v[46:47] op_sel_hi:[1,0,0] neg_lo:[0,0,1] neg_hi:[0,0,1]" % (v(Z + 2 * t, 2), v(Z + 2 * t, 2)))
    for t in range(7):
        A("%s %s, %s, %s" % (CV, v(64 + t), v(Z + 2 * t), v(Z + 2 * t + 1)))
        A.ds("ds_write_b32 v30, %s offset:%d" % (v(64 + t), 128 * t))
    A("s_add_u32 %s, %s, 4096" % (s(sT1), s(sT0)))
    A.st(STN)
    A("s_waitcnt lgkmcnt(0)")
    fstamp(A)
    A("s_barrier")
    fstamp(A)
    A.auto = 0
    A.ds("ds_read_b64_tr_b16 v[20:21], v31")
    A.ds("ds_read_b64_tr_b16 v[22:23], v31 offset:%d" % (4 * HSTR))
    A.ds("ds_read_b64_tr_b16 v[24:25], v31 offset:512")
    A.ds("ds_read_b64_tr_b16 v[26:27], v31 offset:%d" % (4 * HSTR + 512))
    A("v_cmp_gt_u32 vcc, 192, v0")
    A("v_mov_b32 v13, 0x80000000")
    A("v_cndmask_b32 v13, v13, v12, vcc")
    A("v_and_b32 v14, 63, v0")
    A("v_lshlrev_b32 v15, 4, v14")
    A("s_mul_i32 %s, %s, %d" % (s(sT2), s(sWAVE), 2 * HSTR))
    A("s_add_u32 %s, %s, 0x%x" % (s(sT2), s(sT2), SCR + XL))
    A("v_add_u32 v16, %s, v15" % s(sT2))
    A.ds("ds_read_b128 v[32:35], v16")
    A.ds("ds_read_b128 v[36:39], v16 offset:%d" % HSTR)
    A("v_readfirstlane_b32 %s, v1" % s(sT2))
    A("v_mov_b32 v17, 0x80000000")
    A("s_waitcnt lgkmcnt(4)")
    A.vm("buffer_store_dwordx4 v[20:23], v12, %s, %s offen sc1" % (SWS, s(sT0)))
    A("v_cmp_gt_u32 vcc, 56, v14")
    A("s_add_u32 %s, %s, 0x%x" % (s(sT2), s(sT2), xout))
    A("s_add_u32 %s, %s, %d" % (s(sT3), s(sT2), 32 * 896))
    A("v_cndmask_b32 v15, v17, v15, vcc")
    A("s_waitcnt lgkmcnt(2)")
    A.vm("buffer_store_dwordx4 v[24:27], v13, %s, %s offen sc1" % (SWS, s(sT1)))
    A("s_waitcnt lgkmcnt(0)")
    A.vm("buffer_store_dwordx4 v[32:35], v15, %s, %s offen sc1" % (SWS, s(sT2)))
    A.vm("buffer_store_dwordx4 v[36:39], v15, %s, %s offen sc1" % (SWS, s(sT3)))
    A.bg_flush()

ACC, RINGV, WF, RT = 96, 32, 128, 128
DEPTH = int(os.environ.get("DEPTH", 6))
vF1_, vF2_, vTR, vRR, vTW, vTRD, vG0, vG1 = 2, 3, 4, 6, 7, 14, 24, 25
BIAS = 16
NV = 12
TILE = SCR + 24576

def b_consts(R):
    R("v_bfe_u32 v8, v0, 5, 1")
    R("v_mul_u32_u24 v8, 448, v8")
    R("s_mul_i32 %s, %s, %d" % (s(sC), s(sDT), DW))
    R("v_add_u32 v8, %s, v8" % s(sC))
    R("v_and_b32 v9, 31, v0")
    R("v_add_lshl_u32 %s, v8, v9, 4" % v(vF1_))
    R("v_lshrrev_b32 %s, 2, v0" % v(vF2_))
    R("v_and_b32 %s, 16, %s" % (v(vF2_), v(vF2_)))
    R("v_xor_b32 v9, v9, %s" % v(vF2_))
    R("v_add_lshl_u32 %s, v8, v9, 4" % v(vF2_))
    R("v_and_b32 v8, 63, v0")
    R("v_lshlrev_b32 v8, 4, v8")
    R("v_add_u32 %s, 0x%x, v8" % (v(vRR), SCR))

def red_addr(A):
    for x in range(4):
        A("s_xor_b32 %s, %s, %d" % (s(sC), s(sWAVE), x))
        A("s_mul_i32 %s, %s, 6144" % (s(sC), s(sC)))
        A("v_add_u32 %s, %s, %s" % (v(10 + x), s(sC), v(vRR)))

def b_all(A, l, hin, uout, xin, first, tail1, skip_pre, vW2, hooks={}):
    cold = []
    sH, sU = sT0, sT1
    seq = [(0, p, q) for p in range(2) for q in range(16)] + [(1, p, q) for p in range(2) for q in range(14)]
    N1 = 32
    tok = {}
    def ld(i, track=True, hs=(0, 1)):
        g, p, q = seq[i]
        r = RINGV + 8 * (i % 8)
        emit_ = A.vm if track else A
        for h in hs:
            if GLD:
                A("s_add_u32 s46, %s, %d" % (s((38, 40)[g]), (2 * q + h) * 14336))
                A("s_addc_u32 s47, %s, 0" % s((39, 41)[g]))
                t_ = emit_("global_load_dwordx4 %s, %s, s[46:47] offset:%d sc1" % (v(r + 4 * h, 4), v((vF1_, vF2_)[g]), 512 * p))
                continue
            A("s_add_u32 %s, %s, %d" % (s(sEND), s((sH, sU)[g]), (2 * q + h) * 14336))
            msk = DW < 64 and p == 1
            if msk: A("s_mov_b64 exec, %s" % s((36, 38)[g], 2))
            t_ = emit_("buffer_load_dwordx4 %s, %s, %s, %s offen offset:%d sc1" % (v(r + 4 * h, 4), v((vF1_, vF2_)[g]), SWS, s(sEND), 0 if DIAGHIT else 512 * p))
            if msk: A("s_mov_b64 exec, -1")
        return t_
    def branch(i):
        lr, lb = A.newlabel("rty"), A.newlabel("bk")
        A("s_cbranch_vccnz %s" % lr)
        A.label(lb)
        cold.append((lr, lb, i))
    accb = lambda p: (96, 128)[p]
    wfb = lambda p: (128, 96)[p]
    def wop(g, p, ks, wt):
        if g == 0: return a(8 * ks + 4 * wt, 4)
        if ks < NV: return v(W2V + 8 * ks + 4 * wt, 4)
        return v(wfb(p) + 16 * ((ks // 2) % 2) + 8 * (ks % 2) + 4 * wt, 4)
    def wreads(i):
        g, p, q = seq[i]
        if g == 0 or 2 * q < NV: return []
        return ["ds_read_b64_tr_b16 %s, %s offset:%d" % (v(wfb(p) + 16 * (q % 2) + 8 * h + 4 * tl + 2 * rd, 2), v(vTR + tl), (2 * q + h - NV) * 2048 + (0, 8)[rd] * 128)
                for h in range(2) for tl in range(2) for rd in range(2)]
    c0 = -2.0 * math.sqrt(2.0 / math.pi) * math.log2(math.e)
    skip1, skip2, b2e = A.newlabel("b1skip"), A.newlabel("b2skip"), A.newlabel("b2e")
    A("s_mul_i32 %s, %s, %d" % (s(sH), s(sWAVE), 32 * 14336))
    A("s_add_u32 %s, %s, 0x%x" % (s(sH), s(sH), hin))
    A("s_mul_i32 %s, %s, %d" % (s(sU), s(sWAVE), 28 * 14336))
    A("s_add_u32 %s, %s, 0x%x" % (s(sU), s(sU), uout))
    if GLD:
        A("s_add_u32 s38, %s, %s" % (s(sWS), s(sH)))
        A("s_addc_u32 s39, %s, 0" % s(sWS + 1))
        A("s_add_u32 s40, %s, %s" % (s(sWS), s(sU)))
        A("s_addc_u32 s41, %s, 0" % s(sWS + 1))
    if DW < 64:
        A("s_mov_b32 s36, 0xffffff")
        A("s_mov_b32 s37, s36")
        A("s_bitcmp1_b32 %s, 0" % s(sWAVE))
        A("s_cselect_b32 s38, 0xffff00ff, s36")
        A("s_mov_b32 s39, s38")
    if l == 1 and TLBW & 4:
        A("v_mov_b32 v9, 0")
        A.vm("global_load_dword v26, v9, %s" % s(sOUT, 2))
    A("s_lshr_b32 %s, %s, 1" % (s(sT2), s(sWAVE)))
    A("s_lshl_b32 %s, %s, 5" % (s(sT2), s(sT2)))
    A("s_lshl_b32 %s, %s, 6" % (s(sT3), s(sST)))
    A("s_add_u32 %s, %s, %s" % (s(sT2), s(sT2), s(sT3)))
    A("v_and_b32 v9, 31, v0")
    A("v_add_lshl_u32 v9, v9, %s, 1" % s(sT2))
    A("v_and_b32 v9, 0xfff, v9")
    A.vm("global_load_ushort v26, v9, %s" % s(sB2, 2))
    A("s_cmp_lg_u32 %s, 0" % s(sA1))
    A("s_cbranch_scc1 %s" % skip1)
    A("s_lshl_b32 %s, %s, 5" % (s(sT2), s(sWAVE)))
    A("s_lshl_b32 %s, %s, 7" % (s(sT3), s(sFT)))
    A("s_add_u32 %s, %s, %s" % (s(sT2), s(sT2), s(sT3)))
    A("v_bfe_u32 v9, v0, 5, 1")
    A("v_lshlrev_b32 v9, 3, v9")
    A("v_add_u32 v9, %s, v9" % s(sT2))
    A.vm("global_load_dwordx2 v[28:29], v9, %s" % s(sB1, 2))
    btok = A.vm("global_load_dwordx2 v[30:31], v9, %s offset:16" % s(sB1, 2))
    A("s_lshl_b32 s44, %s, 2" % s(sFT))
    A("s_add_u32 s44, s44, %s" % s(sWAVE))
    A("s_mul_i32 s44, s44, 14336")
    A("s_add_u32 s44, s44, 0x%x" % uout)
    A("s_mov_b32 s42, %s" % fbits(c0 * 0.044715))
    A("s_mov_b32 s43, s42")
    if DLY[3] and (l == 1 or C3MID): A("s_sleep %d" % DLY[3])
    for i in range(DEPTH): tok[i] = ld(i)
    A.wvm(btok)
    for k in range(4):
        A("v_lshlrev_b32 %s, 16, %s" % (v(BIAS + 2 * k), v(28 + k)))
        A("v_and_b32 %s, 0xffff0000, %s" % (v(BIAS + 2 * k + 1), v(28 + k)))
    A("v_mov_b32 v27, %s" % fbits(c0))
    def acc_init(g, p):
        out = []
        for k in range(8):
            out.append("v_mov_b32 %s, %s" % (v(accb(p) + k), v(BIAS + k)) if g == 0 else "v_lshlrev_b32 %s, 16, v26" % v(accb(p) + k))
            out.append("v_mov_b32 %s, 0" % v(accb(p) + 8 + k))
        return out
    for l_ in acc_init(0, 0): A(l_)
    def epilogue(g, p, mid=None):
        R = accb(p); T = R + 8; E = []; tk = {}
        for x in (2, 3, 1):
            for gg in range(2):
                E.append("ds_write_b128 %s, %s offset:%d" % (v(10 + x), v(R + 8 * x + 4 * gg, 4), (x - 1) * 2048 + gg * 1024))
        E.append("BREAK")
        E.append("s_waitcnt lgkmcnt(0)")
        if mid: E.append(mid)
        E.append("s_barrier")
        for k in range(6):
            E.append(lambda k=k: tk.__setitem__(k, A.ds("ds_read_b128 %s, v10 offset:%d" % (v(T + 4 * k, 4), k * 1024))))
        E.append("BREAK")
        sc = SCAL and p == 0 and (OVL >> g) & 1
        def op2(name, d, a_, b_):
            if sc: return ["v_%s_f32 %s, %s, %s" % (name, v(d + k), v(a_ + k), v(b_ + k)) for k in range(8)]
            return ["v_pk_%s_f32 %s, %s, %s" % (name, v(d + k, 2), v(a_ + k, 2), v(b_ + k, 2)) for k in range(0, 8, 2)]
        for x in range(3):
            E.append(lambda x=x: A.wds(tk[2 * x + 1]))
            E += op2("add", R, R, T + 8 * x)
        if g == 0:
            E += op2("mul", T, R, R)
            if sc: E += ["v_fma_f32 %s, %s, s42, v27" % (v(T + k), v(T + k)) for k in range(8)]
            else: E += ["v_pk_fma_f32 %s, %s, s[42:43], v[26:27] op_sel:[0,0,1] op_sel_hi:[1,1,1]" % (v(T + k, 2), v(T + k, 2)) for k in range(0, 8, 2)]
            E += op2("mul", T, T, R)
            for k in range(8): E.append("v_exp_f32 %s, %s" % (v(T + k), v(T + k)))
            if sc: E += ["v_add_f32 %s, 1.0, %s" % (v(T + k), v(T + k)) for k in range(8)]
            else: E += ["v_pk_add_f32 %s, %s, 1.0 op_sel_hi:[1,0]" % (v(T + k, 2), v(T + k, 2)) for k in range(0, 8, 2)]
            for k in range(8): E.append("v_rcp_f32 %s, %s" % (v(T + k), v(T + k)))
            E += op2("mul", R, R, T)
            for k in range(4): E.append("%s %s, %s, %s" % (CV, v(T + 8 + k), v(R + 2 * k), v(R + 2 * k + 1)))
            if DW < 64 and p == 1: E.append("s_mov_b64 exec, s[36:37]")
            E.append("buffer_store_dwordx4 %s, %s, %s, s44 offen offset:%d sc1" % (v(T + 8, 4), v(vF1_), SWS, 512 * p))
            if DW < 64 and p == 1: E.append("s_mov_b64 exec, -1")
        else:
            for k in range(4): E.append("%s %s, %s, %s" % (CV, v(T + k), v(R + 2 * k), v(R + 2 * k + 1)))
            E.append("v_xor_b32 v15, %d, %s" % (64 * p, v(vTW)))
            E.append("ds_write_b64 v15, %s" % v(T, 2))
            E.append("v_xor_b32 v15, %d, %s" % (64 * p + 16, v(vTW)))
            E.append("ds_write_b64 v15, %s" % v(T + 2, 2))
        return E
    eq = []
    pause = [0]
    def erun(n):
        if n < 90 and pause[0] > 0:
            pause[0] -= 1; return
        while eq and n > 0:
            it = eq.pop(0)
            if it == "BREAK":
                if n < 90:
                    PS = PAUSEG[A.curg]; pause[0] = PS.pop(0); PS.append(pause[0]); return
                A.bg(EBG); continue
            if callable(it): it()
            elif it.startswith("ds_"): A.ds(it)
            elif it.startswith("buffer"): A.vm(it)
            else: A(it)
            n -= 2 if (isinstance(it, str) and ("exp" in it or "rcp" in it)) else 1
    A.wvm(tok[0])
    maxchain(A, range(RINGV, RINGV + 8), 8)
    A("v_cmp_eq_u32 vcc, -1, v8")
    branch(0)
    stamp(A)
    first()
    XV = 64 + 0
    def xissue(track=True):
        e_ = A.vm if track else A
        e_("buffer_load_dwordx4 %s, %s, %s, %s offen sc1" % (v(A.XV, 4), v(vG0), SWS, s(sT2)))
        return e_("buffer_load_dwordx4 %s, %s, %s, %s offen sc1" % (v(A.XV + 4, 4), v(vG1), SWS, s(sT2)))
    for i, (g, p, q) in enumerate(seq):
        nq = (16, 14)[g]
        A.curg = g
        if i == N1:
            A.label(b2e)
            stamp(A)
        r = RINGV + 8 * (i % 8); rn = RINGV + 8 * ((i + 1) % 8)
        more = i + 1 < len(seq)
        wr = wreads(i + 1) if more else []
        def mf(h, wt):
            acc = v(accb(p) + 16 * wt, 16)
            wreg = wop(g, p, 2 * q + h, wt); freg = v(r + 4 * h, 4)
            AA, BB = (wreg, freg) if g == 0 else (freg, wreg)
            if FAKE16:
                for e_ in range(2):
                    ac = v(accb(p) + 16 * wt + 8 * h + 4 * e_, 4)
                    o_ = (wop(g, p, 2 * q + (h ^ e_), wt), v(r + 4 * h, 4))
                    A("%s %s, %s, %s, %s" % (M16, ac, o_[0], o_[1], "0" if q == 0 else ac))
                return
            A("%s %s, %s, %s, %s" % (M32, acc, AA, BB, "0" if (q == 0 and h == 0 and wt == 1) else acc))
        mf(0, 1)
        erun(ENG[g][3])
        lateb = LATEB and N1 - DEPTH <= i < N1
        nxt = None
        if i + DEPTH < len(seq) and not lateb and (i + DEPTH) not in tok: nxt = i + DEPTH
        elif BOOST == 2 and i + 7 < len(seq) and (i + 7) not in tok and not lateb and i > 8 and q < 8: nxt = i + 7
        if NOLD and l == 1 and nxt is not None:
            tok[nxt] = 0; nxt = None
        if nxt is not None:
            if SPLITLD: ld(nxt, True, (0,))
            else: tok[nxt] = ld(nxt)
        chk = more and not (LATEB and i == N1 - 1)
        if NOCHK and more and (NOCHK == 1 and l == 1 or NOCHK == 2 and seq[i + 1][2] >= 4):
            A.wvm(tok[i + 1]); chk = False
        if i + DEPTH == len(seq):
            A.XV = 16
            A("s_mov_b32 %s, 0x%x" % (s(sT2), xin))
            A.xt = xissue()
            if l == 0:
                A.bgq = poison_ops(A, [T1, H1, U1, X3], 27, 28)
        if wr: assert not eq, eq
        if l == 0 and wr and i == N1 + NV // 2 - 1: A.wvm(A.last_dma)
        for t_ in wr[:3]: A.ds(t_)
        mf(0, 0)
        erun(ENG[g][0])
        for t_ in wr[3:6]: A.ds(t_)
        if chk:
            A.wvm(tok[i + 1])
            A("v_max3_u32 v8, %s, %s, %s" % (v(rn), v(rn + 1), v(rn + 2)))
            A("v_max3_u32 v9, %s, %s, %s" % (v(rn + 3), v(rn + 4), v(rn + 5)))
        mf(1, 1)
        if nxt is not None and SPLITLD == 1: tok[nxt] = ld(nxt, True, (1,))
        erun(ENG[g][1])
        for t_ in wr[6:]: wtok = A.ds(t_)
        if chk:
            A("v_max3_u32 v8, v8, %s, %s" % (v(rn + 6), v(rn + 7)))
            A("v_max_u32 v8, v8, v9")
            A("v_cmp_eq_u32 vcc, -1, v8")
        mf(1, 0)
        if nxt is not None and SPLITLD == 2: tok[nxt] = ld(nxt, True, (1,))
        if chk: branch(i + 1)
        if LATEB and i == N1 - 1:
            for k_ in range(N1, N1 + DEPTH): tok[k_] = ld(k_)
        if i in hooks: hooks[i]()
        if i == N1 - T1AT: tail1()
        erun(ENG[g][2])
        if (p == 1 and q == (12 if g == 0 else 9)) or (g == 1 and p == 0 and q == 3):
            assert not eq
            A("s_barrier")
        if q == nq - 1 and more:
            for l_ in acc_init(seq[i + 1][0], seq[i + 1][1]): A(l_)
        A.bg(T1N if (i >= N1 - T1AT and i < N1) else 2 if (i + DEPTH >= len(seq) or (C3MID and 12 <= i < 26)) else 1)
        if wr: A.wds(wtok)
        if i == 13: red_addr(A)
        if i == N1 + 8:
            A("v_lshrrev_b32 v15, 6, v0")
            A("v_bfe_u32 v9, v0, 3, 3")
            A("v_lshl_add_u32 v9, v15, 4, v9")
            A("s_lshl_b32 %s, %s, 6" % (s(sT3), s(sST)))
            A("v_add_u32 %s, %s, v9" % (v(vG0), s(sT3)))
            A("v_mul_u32_u24 %s, 896, %s" % (v(vG0), v(vG0)))
            A("v_and_b32 v15, 7, v0")
            A("v_lshl_add_u32 %s, v15, 4, %s" % (v(vG0), v(vG0)))
            A("s_mul_i32 %s, %s, %d" % (s(sT3), s(sDT), 2 * DW))
            A("v_add_u32 %s, %s, %s" % (v(vG0), s(sT3), v(vG0)))
            if DW < 64:
                A("v_cmp_eq_u32 s[40:41], 7, v15")
                A("v_mov_b32 %s, 0x80000000" % v(vG1))
                A("v_cndmask_b32 %s, %s, %s, s[40:41]" % (v(vG0), v(vG0), v(vG1)))
            A("v_add_u32 %s, %d, %s" % (v(vG1), 8 * 896, v(vG0)))
            A("v_xor_b32 v15, v15, v9")
            A("v_and_b32 v15, 7, v15")
            A("v_lshlrev_b32 %s, 7, v9" % v(vTRD))
            A("v_lshl_add_u32 %s, v15, 4, %s" % (v(vTRD), v(vTRD)))
            A("v_add_u32 %s, 0x%x, %s" % (v(vTRD), TILE, v(vTRD)))
        if i == N1 + 9:
            A("v_bfe_u32 v9, v0, 7, 1")
            A("v_lshlrev_b32 v9, 5, v9")
            A("v_and_b32 v15, 31, v0")
            A("v_add_u32 v9, v9, v15")
            A("v_bfe_u32 v15, v0, 6, 1")
            A("v_lshlrev_b32 v15, 1, v15")
            A("v_xor_b32 v15, v15, v9")
            A("v_and_b32 v15, 7, v15")
            A("v_lshlrev_b32 %s, 7, v9" % v(vTW))
            A("v_lshl_add_u32 %s, v15, 4, %s" % (v(vTW), v(vTW)))
            A("v_bfe_u32 v15, v0, 5, 1")
            A("v_lshl_add_u32 %s, v15, 3, %s" % (v(vTW), v(vTW)))
            A("v_add_u32 %s, 0x%x, %s" % (v(vTW), TILE, v(vTW)))
        if q == nq - 1:
            last = not more
            if p == 1: stamp(A)
            XU = 96
            def xcheck():
                lo, lt = A.newlabel("xok"), A.newlabel("xrty")
                A.wvm(A.xt)
                A.label(lt)
                maxchain(A, range(A.XV, A.XV + 8), 8)
                A("v_cmp_eq_u32 vcc, -1, v8")
                A("s_cbranch_vccz %s" % lo)
                A("s_cmp_eq_u32 %s, 0" % s(sBUD))
                A("s_cbranch_scc1 %s" % lo)
                A("s_sub_u32 %s, %s, 1" % (s(sBUD), s(sBUD)))
                xissue(False)
                A("s_waitcnt vmcnt(0)")
                A("s_branch %s" % lt)
                A.label(lo)
                for k in range(8):
                    A("v_lshlrev_b32 %s, 16, %s" % (v(XU + 2 * k), v(A.XV + k)))
                    A("v_and_b32 %s, 0xffff0000, %s" % (v(XU + 2 * k + 1), v(A.XV + k)))
            if last and l == 1: srd(A, 24, sOUT, S * D * 2)
            if BOOST and more and not (LATEB and i == N1 - 1) and (BOOSTB1 or i != N1 - 1):
                for k_ in range(i + DEPTH + 1, i + 9): tok[k_] = ld(k_)
            eq += epilogue(g, p, xcheck if last else None)
            if p == 1 or not (OVL >> g) & 1:
                erun(1000)
                if g == 0 and p == 1:
                    A.bg_flush()
                    stamp(A)
                    if LATEB:
                        A.wvm(tok[N1])
                        maxchain(A, range(rn, rn + 8), 8)
                        A("v_cmp_eq_u32 vcc, -1, v8")
                        branch(N1)
    dst = (SWS, s(sT2), " sc1") if l == 0 else (SW1, "0", OUTFL)
    if l == 0: A("s_mov_b32 %s, 0x%x" % (s(sT2), X2))
    A("s_waitcnt lgkmcnt(0)")
    A("s_barrier")
    t0 = A.ds("ds_read_b128 v[48:51], %s" % v(vTRD))
    t1 = A.ds("ds_read_b128 v[52:55], %s offset:1024" % v(vTRD))
    XU = 96
    for j in range(2):
        A.wds((t0, t1)[j])
        for k in range(4 * j, 4 * j + 4):
            A("v_lshlrev_b32 %s, 16, %s" % (v(32 + 2 * k), v(48 + k)))
            A("v_and_b32 %s, 0xffff0000, %s" % (v(32 + 2 * k + 1), v(48 + k)))
        for k in range(4 * j, 4 * j + 4):
            A("v_pk_add_f32 %s, %s, %s" % (v(XU + 2 * k, 2), v(XU + 2 * k, 2), v(32 + 2 * k, 2)))
        for k in range(4 * j, 4 * j + 4):
            A("%s %s, %s, %s" % (CV, v(56 + k), v(XU + 2 * k), v(XU + 2 * k + 1)))
        A.vm("buffer_store_dwordx4 %s, %s, %s, %s offen%s" % (v(56 + 4 * j, 4), v(vG0 + j), dst[0], dst[1], dst[2]))
    A.bg_flush()
    done = A.newlabel("bdone")
    def emit_cold():
        A.label(skip1)
        skip_pre()
        A("s_cmp_lg_u32 %s, 0" % s(sA2))
        A("s_cbranch_scc1 %s" % skip2)
        red_addr(A)
        r0 = RINGV + 8 * (N1 % 8)
        poll_loads(A, lambda: ld(N1, False), range(r0, r0 + 8), 8, 32, None, 8)
        if X7D: A("s_sleep %d" % X7D)
        for i in range(N1 + 1, N1 + DEPTH): ld(i, False)
        for l_ in acc_init(1, 0): A(l_)
        A("s_waitcnt vmcnt(0)")
        A("s_branch %s" % b2e)
        A.label(skip2)
        A("s_waitcnt vmcnt(0)")
        if l == 0: poison_list(A, [T1, H1, U1, X3], 32)
        A("s_branch %s" % done)
        for lr, lb, i in cold:
            A.label(lr)
            A("s_cmp_eq_u32 %s, 0" % s(sBUD))
            A("s_cbranch_scc1 %s" % lb)
            A("s_sub_u32 %s, %s, 1" % (s(sBUD), s(sBUD)))
            fast = FASTR and i < min(RALL, 2)
            if SLEEP and not fast: A("s_sleep %d" % SLEEP)
            last_ = (DEPTH if i == 0 else min(i + DEPTH, len(seq))) if (i < RALL or i in (N1, N1 + 1, N1 + 14, N1 + 15)) else i + 1
            for k2 in range(i, last_): ld(k2, False)
            A("s_waitcnt vmcnt(%d)" % (2 * (last_ - i - 1) if fast else 0))
            r = RINGV + 8 * (i % 8)
            maxchain(A, range(r, r + 8), 8)
            A("v_cmp_eq_u32 vcc, -1, v8")
            A("s_cbranch_vccnz %s" % lr)
            A("s_branch %s" % lb)
    A.label(done)
    return emit_cold

def srd(A, d, base, nbytes):
    A("s_mov_b32 %s, %s" % (s(d), s(base)))
    A("s_and_b32 %s, %s, 0xffff" % (s(d + 1), s(base + 1)))
    if isinstance(nbytes, int): A("s_mov_b32 %s, 0x%x" % (s(d + 2), nbytes))
    else: A("s_mov_b32 %s, %s" % (s(d + 2), nbytes))
    A("s_mov_b32 %s, 0x20000" % s(d + 3))

DOC = """;
; Hand-offs between workgroups: write-through (sc1) stores, sc1 loads. The first one is a counter barrier (counters are
; cleared by workgroup 0 and announced through d_debug); every later buffer is first filled with an all-ones pattern by this
"""

def build():
    global NCNT
    if EARLYB: NCNT = 0
    A = Asm2()
    KN = NAME + "_kernel"
    def emit(R):
        for l_ in R.l: A(l_)
    A.label(KN)
    A("s_cmp_ge_u32 s2, 256")
    A("s_cbranch_scc1 L_exit")
    A("s_load_dwordx2 %s, s[0:1], 0" % s(sX, 2))
    A("s_getpc_b64 s[36:37]")
    A.label("L_pc")
    if EARLYPF:
        A("v_lshlrev_b32 v150, 5, v0")
        A.vm("global_load_dword v151, v150, s[36:37]" + NT)
    A("s_load_dwordx2 %s, s[0:1], 80" % s(sWS, 2))
    A("s_load_dwordx8 %s, s[0:1], 32" % s(sW1, 8))
    A("s_load_dwordx4 %s, s[0:1], 8" % s(sWR, 4))
    A("s_load_dwordx4 %s, s[0:1], 64" % s(sOUT, 4))
    if DIAG >= 0: A("s_memrealtime s[94:95]" if DIAG != 100 else "s_memtime s[94:95]")
    if PROF:
        for i in range(32): A("s_mov_b32 %s, 0" % s(66 + i))
        A("s_memrealtime s[64:65]")
    A("s_and_b32 %s, s2, 7" % s(sT0))
    A("s_lshr_b32 %s, s2, 3" % s(sT1))
    A("s_lshl_b32 %s, %s, 5" % (s(sW), s(sT0)))
    A("s_add_u32 %s, %s, %s" % (s(sW), s(sW), s(sT1)))
    a1_consts(A)
    A("v_lshrrev_b32 v3, 6, v0")
    A("v_readfirstlane_b32 %s, v3" % s(sWAVE))
    A("s_and_b32 s37, s37, 0xffff")
    A("s_mov_b32 s38, L_code_end-L_pc")
    A("s_mov_b32 s39, 0x20000")
    A("s_lshl_b32 s40, s2, 9")
    A("s_and_b32 s40, s40, 0x1f000")
    A("v_lshlrev_b32 v179, 4, v0")
    A("s_mov_b32 s34, 0x%x" % WS_BYTES)
    A("s_mov_b32 s35, 0x20000")
    A("s_mov_b32 s26, 0x%x" % (S * F * 2))
    A("s_mov_b32 s27, 0x20000")
    A("s_and_b32 s56, s2, 7")
    A("s_lshr_b32 s57, s2, 3")
    A("s_lshl_b32 s58, s57, 2")
    A("s_add_u32 s58, s58, %s" % s(sWAVE))
    A("v_bfe_u32 v152, v0, 5, 1")
    A("v_and_b32 v153, 31, v0")
    A("v_lshlrev_b32 v153, 4, v153")
    A("s_lshl_b32 s59, s56, 9")
    A("v_add_u32 v153, s59, v153")
    A("v_lshl_add_u32 v254, v152, 12, v153")
    A("v_mul_u32_u24 v152, 3584, v152")
    A("v_add_u32 v152, v152, v153")
    A("s_mul_i32 s41, s58, %d" % (16 * 3584))
    A("s_cmp_eq_u32 s56, 7")
    A("s_cselect_b32 s41, 0x80000000, s41")
    A("v_add_u32 v152, s41, v152")
    A("s_mul_i32 s59, s58, %d" % (14 * 4096))
    A("v_add_u32 v254, s59, v254")
    A("s_and_b32 s42, s2, 63")
    A("s_lshr_b32 s43, s2, 6")
    A("v_and_b32 v146, 63, v0")
    A("v_mul_u32_u24 v140, 14, v146")
    A("v_sub_u32 v141, %d, v140" % (445 * 2))
    A("v_cmp_lt_u32 %s, 31, v146" % s(sT5, 2))
    A("s_lshl_b32 s44, s43, 2")
    A("s_add_u32 s44, s44, %s" % s(sWAVE))
    A("v_cndmask_b32 v140, v140, v141, %s" % s(sT5, 2))
    A("s_lshl_b32 s44, s44, 7")
    A("s_add_u32 s44, s44, s42")
    A("v_mov_b32 v142, 1")
    A("v_cndmask_b32 v141, v142, -1, %s" % s(sT5, 2))
    A("s_movk_i32 s45, 450")
    for e in range(2):
        A("v_mul_i32_i24 %s, s44, v141" % v(147 + e))
        A("s_mul_i32 s3, s44, 450")
        A("v_and_b32 %s, 0x7ff, %s" % (v(147 + e), v(147 + e)))
        A("s_add_u32 s3, s3, 448")
        A("v_mad_u32_u24 %s, %s, s45, v140" % (v(147 + e), v(147 + e)))
        A("v_mov_b32 %s, s3" % v(149 + e))
        if e == 0: A("s_add_u32 s44, s44, 64")
    A("v_mov_b32 v140, 0x05040100")
    A("v_mov_b32 v141, 0x07060302")
    A("v_cndmask_b32 v142, v140, v141, %s" % s(sT5, 2))
    A("v_cndmask_b32 v143, v141, v140, %s" % s(sT5, 2))
    A("v_mov_b32 v140, 0x80000000")
    A("v_cndmask_b32 v144, 0, v140, %s" % s(sT5, 2))
    A("s_lshl_b32 s42, s42, 2")
    A("s_add_u32 s42, s42, s43")
    A("s_lshl_b32 s42, s42, 2")
    A("s_add_u32 s42, s42, %s" % s(sWAVE))
    A("s_lshl_b32 s42, s42, 11")
    A("s_add_u32 s3, s42, 0x%x" % WT)
    A("v_lshlrev_b32 v145, 4, v146")
    A("s_waitcnt lgkmcnt(0)")
    if PROF:
        A("s_mov_b32 s66, s64"); nstamp[0] = 1
    A("s_mov_b32 s32, %s" % s(sWS))
    A("s_and_b32 s33, %s, 0xffff" % s(sWS + 1))
    if NCNT:
        lz, lz2 = A.newlabel("nz"), A.newlabel("nz")
        A("s_lshl_b32 %s, s2, 2" % s(sT5))
        A("s_or_b32 %s, %s, %s" % (s(sT5), s(sT5), s(sWAVE)))
        A("s_cmp_lg_u32 %s, 0" % s(sT5))
        A("s_cbranch_scc1 %s" % lz)
        A("v_lshlrev_b32 v12, 7, v0")
        A("v_mov_b32 v13, 0")
        A("s_mov_b32 %s, 0x%x" % (s(sT5), CNT))
        A("buffer_store_dword v13, v12, %s, %s offen sc1" % (SWS, s(sT5)))
        A.label(lz)
        zmark = A.vmn
    def p0():
        poison_list(A, [T0], 154)
        if EARLYB:
            A("s_lshl_b32 %s, %s, 13" % (s(sT3), s(sW)))
            A("s_add_u32 %s, %s, 0x%x" % (s(sT3), s(sT3), Z0))
            A.vm("buffer_store_dwordx4 v[156:159], v154, %s, %s offen sc1" % (SWS, s(sT3)))
            A("s_add_u32 %s, %s, 4096" % (s(sT3), s(sT3)))
            A.vm("buffer_store_dwordx4 v[156:159], v154, %s, %s offen sc1" % (SWS, s(sT3)))
            A.vm("buffer_store_dwordx4 v[156:159], v145, %s, s3 offen sc1" % SWS)
            A.p0tok = A.vm("buffer_store_dwordx4 v[156:159], v145, %s, s3 offen offset:1024 sc1" % SWS)
    if P0POS == 2: p0()
    for t in range(7): tx = A.vm("global_load_dword %s, v1, %s offset:%d%s" % (v(4 + t), s(sX, 2), 128 * t, NT))
    if P0POS == 1: p0()
    for e in range(2):
        A.vm("global_load_dwordx2 %s, %s, %s%s" % (v(128 + 4 * e, 2), v(147 + e), s(sWR, 2), NT))
        A.vm("global_load_dwordx2 %s, %s, %s%s" % (v(130 + 4 * e, 2), v(147 + e), s(sWI, 2), NT))
        A.vm("global_load_ushort %s, %s, %s%s" % (v(136 + 2 * e), v(149 + e), s(sWR, 2), NT))
        twp = A.vm("global_load_ushort %s, %s, %s%s" % (v(137 + 2 * e), v(149 + e), s(sWI, 2), NT))
    A.vm("buffer_load_dword v151, v179, s[36:39], s40 offen" + NT)
    A("s_mov_b32 s24, %s" % s(sW1))
    A("s_and_b32 s25, %s, 0xffff" % s(sW1 + 1))
    A("s_mov_b32 s41, 0")
    srd(A, 28, sW2, S * F * 2)
    A("v_mov_b32 v255, v152")
    def wu1(idx, sr):
        for i in idx:
            A("s_mov_b32 %s, %d" % (s(sr), 7168 * i))
            A.vm("buffer_load_dwordx4 v[160:163], v255, %s, %s offen%s" % (SW1, s(sr), WNT1))
    if WU1POS == 0: wu1({1: range(8), 3: (0, 1, 4, 5), 4: (0, 1, 4, 5)}.get(WU1, ()), 41)
    def wu2(i):
        def f():
            A.vm("buffer_load_dwordx4 v[160:163], v254, %s, 0 offen%s" % (SW2, WNT2))
            A("v_add_u32 v254, 8192, v254")
        return f
    if XP: stamp(A)
    if WU2_AT == "start":
        for i in range(7): wu2(i)()
    if WU1POS == 1: wu1({1: range(8), 3: (0, 1, 4, 5), 4: (0, 1, 4, 5)}.get(WU1, ()), 41)
    if P0POS == 0: p0()
    if not FBK:
        if NCNT:
            A("s_lshl_b32 %s, s2, 2" % s(sT5))
            A("s_or_b32 %s, %s, %s" % (s(sT5), s(sT5), s(sWAVE)))
            A("s_cmp_lg_u32 %s, 0" % s(sT5))
            A("s_cbranch_scc1 %s" % lz2)
            A("v_mov_b32 v62, 0")
            A("v_mov_b32 v63, 1")
            A("s_waitcnt vmcnt(%d)" % (A.vmn - zmark))
            A("global_store_dword v62, v63, %s sc1" % s(sDBG, 2))
            A.label(lz2)
    A.p1last = A.vmn - 1
    stamp(A)
    if DW == 64:
        A("s_mul_i32 %s, s57, 37" % s(sT2))
        A("s_lshr_b32 %s, %s, 8" % (s(sT2), s(sT2)))
        A("s_mul_i32 %s, %s, 7" % (s(sDT2), s(sT2)))
        A("s_sub_u32 %s, s57, %s" % (s(sDT2), s(sDT2)))
        A("s_cmp_lt_u32 s57, 28")
        A("s_cselect_b32 %s, 0, 0x80000000" % s(sA2))
    else:
        A("s_lshr_b32 %s, s57, 3" % s(sT2))
        A("s_and_b32 %s, s57, 7" % s(sDT2))
        A("s_mov_b32 %s, 0" % s(sA2))
    A("s_lshl_b32 %s, s56, 2" % s(sST))
    A("s_add_u32 %s, %s, %s" % (s(sST), s(sST), s(sT2)))
    if MAP1 == "x":
        A("s_mov_b32 %s, %s" % (s(sFT), s(sST)))
        A("s_mov_b32 %s, %s" % (s(sDT), s(sDT2)))
        A("s_mov_b32 %s, %s" % (s(sROT1), s(sDT2)))
        A("s_cmp_lt_u32 s56, 7")
        A("s_cselect_b32 %s, %s, 0x80000000" % (s(sA1), s(sA2)))
    else:
        A("s_and_b32 %s, s56, 1" % s(sDT))
        A("s_lshl_b32 %s, %s, 2" % (s(sDT), s(sDT)))
        A("s_and_b32 %s, s57, 3" % s(sT2))
        A("s_add_u32 %s, %s, %s" % (s(sDT), s(sDT), s(sT2)))
        A("s_lshl_b32 %s, %s, 1" % (s(sROT1), s(sT2)))
        A("s_lshr_b32 s56, s56, 1")
        A("s_lshr_b32 s57, s57, 2")
        A("s_mul_i32 %s, s56, 7" % s(sFT))
        A("s_add_u32 %s, %s, s57" % (s(sFT), s(sFT)))
        A("s_cmp_lt_u32 %s, %d" % (s(sDT), 448 // DW))
        A("s_cselect_b32 %s, 0, 0x80000000" % s(sA1))
        A("s_mov_b32 %s, %s" % (s(sA2), s(sA1)))
        A("s_cmp_lt_u32 s57, 7")
        A("s_cselect_b32 %s, %s, 0x80000000" % (s(sA1), s(sA1)))
        A("s_lshl_b32 %s, s56, 3" % s(sST))
        A("s_add_u32 %s, %s, s57" % (s(sST), s(sST)))
        A("s_mov_b32 %s, %s" % (s(sDT2), s(sROT1)))
    A("s_lshl_b32 %s, %s, 1" % (s(sSH1), s(sDT)))
    A("s_mov_b32 %s, %s" % (s(sSH2), s(sSH1)))
    if KROT == 3:
        A("s_and_b32 %s, %s, 3" % (s(sT2), s(sFT)))
        A("s_lshl_b32 %s, %s, 2" % (s(sSH1), s(sT2)))
        A("s_mul_i32 %s, %s, 7" % (s(sSH2), s(sT2)))
        A("s_add_u32 %s, %s, 1" % (s(sSH2), s(sSH2)))
        A("s_lshr_b32 %s, %s, 1" % (s(sSH2), s(sSH2)))
    if KROT in (4, 5):
        A("s_and_b32 %s, %s, 3" % (s(sT2), s(sST)))
        A("s_mov_b32 %s, %s" % (s(sSH1), s(sT2)))
        A("s_mov_b32 %s, %s" % (s(sSH2), s(sT2)))
    if not KROT:
        A("s_mov_b32 %s, 0" % s(sSH1))
        A("s_mov_b32 %s, 0" % s(sSH2))
    A("s_mov_b32 %s, 200000" % s(sBUD))
    A("s_lshl_b32 %s, %s, 15" % (s(sRING), s(sWAVE)))
    A("s_mul_i32 %s, %s, %d" % (s(sWB1), s(sWAVE), 8 * 3584))
    A("s_add_u32 %s, %s, %d" % (s(sWB1 + 1), s(sWB1), 1024 * 3584))
    A("s_mul_i32 %s, %s, 14" % (s(sWB2), s(sWAVE)))
    A("s_sub_u32 %s, %s, 14" % (s(sWB2 + 1), s(sWB2)))
    for i in range(3):
        A("s_mov_b32 %s, %s" % (s(SB + 2 * i), fbits(C7[i + 1])))
        A("s_mov_b32 %s, %s" % (s(SB + 2 * i + 1), fbits(C7[i + 1])))
        A("s_mov_b32 %s, %s" % (s(SB + 6 + 2 * i), fbits(S7[i + 1])))
        A("s_mov_b32 %s, %s" % (s(SB + 6 + 2 * i + 1), fbits(S7[i + 1])))
    A("s_lshl_b32 %s, %s, 3" % (s(sT0), s(sWAVE)))
    A("s_add_u32 %s, %s, 0x%x" % (s(sT0), s(sT0), SCR + 16384))
    A("v_lshl_add_u32 v177, v146, 5, %s" % s(sT0))
    A("s_lshl_b32 %s, %s, 11" % (s(sT0), s(sWAVE)))
    A("s_add_u32 %s, %s, 0x%x" % (s(sT0), s(sT0), SCR + 16384))
    A("v_add_u32 v178, %s, v145" % s(sT0))
    w1_voffs(A, PW1, 164)
    DU1 = lambda u, g: dma_chunk(A, 1, 4 * u, 4, PW1, 4 * g)
    DU2 = lambda u, g, vo=PW2: dma_chunk(A, 2, 4 * u, 4, vo, 4 * g)
    R = Rec(); a1_consts2(R); gen_f64(R, 48)
    if SCHED == "unit": A.bgq = DU1(0, 0) + DU1(1, 1)
    A.mix(R.l, 8)
    A.bg_flush()
    stamp(A)
    A.wvm(tx)
    if FBK:
        A("s_lshl_b32 %s, s2, 2" % s(sT0))
        A("s_or_b32 %s, %s, %s" % (s(sT0), s(sT0), s(sWAVE)))
        A("s_cmp_lg_u32 %s, 0" % s(sT0))
        A("s_cbranch_scc1 %s" % lz2)
        A("v_mov_b32 v62, 0")
        A("v_mov_b32 v63, 1")
        A("global_store_dword v62, v63, %s sc1" % s(sDBG, 2))
        A.label(lz2)
    stamp(A)
    WO, WTm = 164, 172
    def whook1():
        A("v_cmp_lt_u32 %s, 31, v146" % s(sT5, 2))
        A("v_cmp_eq_u32 vcc, 32, v146")
        A.wvm(twp)
        for e in range(2):
            r0, i0_ = 128 + 4 * e, 130 + 4 * e
            A("v_cndmask_b32 %s, %s, %s, %s" % (v(WTm), v(r0), v(r0 + 1), s(sT5, 2)))
            A("v_cndmask_b32 %s, %s, %s, %s" % (v(WTm + 1), v(r0 + 1), v(r0), s(sT5, 2)))
            A("v_cndmask_b32 %s, %s, %s, %s" % (v(WTm + 2), v(i0_), v(i0_ + 1), s(sT5, 2)))
            A("v_cndmask_b32 %s, %s, %s, %s" % (v(WTm + 3), v(i0_ + 1), v(i0_), s(sT5, 2)))
            for sl in range(4):
                A("v_perm_b32 %s, %s, %s, %s" % (v(WO + 2 * sl + e), v(WTm + 2 + sl // 2), v(WTm + sl // 2), v(142 + sl % 2)))
                A("v_xor_b32 %s, %s, v144" % (v(WO + 2 * sl + e), v(WO + 2 * sl + e)))
            A("v_lshl_or_b32 %s, %s, 16, %s" % (v(WTm + 4), v(137 + 2 * e), v(136 + 2 * e)))
            A("v_cndmask_b32 %s, %s, %s, vcc" % (v(WO + e), v(WO + e), v(WTm + 4)))
        for sl in range(4):
            A.ds("ds_write_b64 v177, %s offset:%d" % (v(WO + 2 * sl, 2), 2048 * sl))
        if EARLYB: A.wvm(A.p1last)
    def whook2():
        t0 = A.ds("ds_read_b128 %s, v178" % v(WO, 4))
        t1 = A.ds("ds_read_b128 %s, v178 offset:1024" % v(WO + 4, 4))
        if EARLYB:
            lw_ = A.newlabel("na")
            A("s_cmp_lg_u32 %s, 0" % s(sWAVE))
            A("s_cbranch_scc1 %s" % lw_)
            A("s_and_b32 %s, s2, 1" % s(sC))
            A("s_lshl_b32 %s, %s, 7" % (s(sC), s(sC)))
            A("v_mov_b32 v180, %s" % s(sC))
            A("v_mov_b32 v181, 1")
            A("s_mov_b64 exec, 1")
            A("global_atomic_add v180, v181, %s sc1" % s(sDBG, 2))
            A("s_mov_b64 exec, -1")
            A.label(lw_)
        def st():
            A.wds(t1)
            A.vm("buffer_store_dwordx4 %s, v145, %s, s3 offen sc1" % (v(WO, 4), SWS))
            A.vm("buffer_store_dwordx4 %s, v145, %s, s3 offen offset:1024 sc1" % (v(WO + 4, 4), SWS))
        return st
    if WHOOK:
        if P0POS == 4: p0()
        a1_compute(A, Z0, whook1, whook2)
        if P0POS == 3: p0()
        if NCNT:
            A("v_mov_b32 v11, 0")
            A.vm("global_load_dword v12, v11, %s sc1" % s(sDBG, 2))
    else:
        a1_compute(A, Z0)
        if NCNT:
            A("v_mov_b32 v11, 0")
            A.vm("global_load_dword v12, v11, %s sc1" % s(sDBG, 2))
        whook1()
        A("s_waitcnt lgkmcnt(0)")
        A("s_barrier")
        whook2()()
    stamp(A)
    if not EARLYB:
        A("s_waitcnt vmcnt(0)")
        A("s_barrier")
        lw = A.newlabel("nb")
        A("s_cmp_lg_u32 %s, 0" % s(sWAVE))
        A("s_cbranch_scc1 %s" % lw)
        if FBK:
            lt, lo = A.newlabel("fb"), A.newlabel("fbok")
            A("v_cmp_ne_u32 vcc, 0, v12")
            A("v_readfirstlane_b32 s10, v12")
            A("v_mov_b32 v12, 1")
            A("s_mov_b64 exec, 1")
            A("s_cbranch_vccnz %s" % lt)
            A("global_atomic_add v11, v12, %s offset:128 sc1" % s(sDBG, 2))
            A("s_branch %s" % lo)
            A.label(lt)
            A("s_and_b32 %s, s2, %d" % (s(sT0), NCNT - 1))
            A("s_lshl_b32 %s, %s, 7" % (s(sT0), s(sT0)))
            A("s_add_u32 %s, %s, 0x%x" % (s(sT0), s(sT0), CNT))
            A("buffer_atomic_add v12, v11, %s, %s offen sc1" % (SWS, s(sT0)))
            A.label(lo)
        elif NCNT:
            lt, lo = A.newlabel("rdy"), A.newlabel("rdyok")
            A.label(lt)
            A("v_cmp_ne_u32 vcc, 0, v12")
            A("s_cbranch_vccnz %s" % lo)
            A("s_cmp_eq_u32 %s, 0" % s(sBUD))
            A("s_cbranch_scc1 %s" % lo)
            A("s_sub_u32 %s, %s, 1" % (s(sBUD), s(sBUD)))
            A("s_sleep 4")
            A("global_load_dword v12, v11, %s sc1" % s(sDBG, 2))
            A("s_waitcnt vmcnt(0)")
            A("s_branch %s" % lt)
            A.label(lo)
            A("s_and_b32 %s, s2, %d" % (s(sT0), NCNT - 1))
            A("s_lshl_b32 %s, %s, 7" % (s(sT0), s(sT0)))
            A("s_add_u32 %s, %s, 0x%x" % (s(sT0), s(sT0), CNT))
            A("v_mov_b32 v12, 1")
            A("s_mov_b64 exec, 1")
            A("buffer_atomic_add v12, v11, %s, %s offen sc1" % (SWS, s(sT0)))
        else:
            A("s_and_b32 %s, s2, 1" % s(sT0))
            A("s_lshl_b32 %s, %s, 7" % (s(sT0), s(sT0)))
            A("v_mov_b32 v11, %s" % s(sT0))
            A("v_mov_b32 v12, 1")
            A("s_mov_b64 exec, 1")
            A("global_atomic_add v11, v12, %s sc1" % s(sDBG, 2))
        A("s_mov_b64 exec, -1")
        A.label(lw)
    stamp(A)
    if WU2_AT == "beta":
        for i in range(7): wu2(i)()
    A("s_min_u32 %s, %s, 27" % (s(sT0), s(sFT)))
    A("s_lshl_b32 %s, %s, 7" % (s(sT0), s(sT0)))
    A("v_mov_b32 v164, %s" % s(sT0))
    A.vm("global_load_dword v172, v164, %s" % s(sB1, 2))
    A("s_min_u32 %s, %s, 31" % (s(sT0), s(sST)))
    A("s_lshl_b32 %s, %s, 7" % (s(sT0), s(sT0)))
    A("v_mov_b32 v164, %s" % s(sT0))
    A.vm("global_load_dword v172, v164, %s" % s(sB2, 2))
    if TLBW & 1:
        A("v_mov_b32 v164, 0")
        A.vm("global_load_dword v172, v164, %s" % s(sOUT, 2))
    if TLBW & 2:
        A("v_lshrrev_b32 v164, 6, v0")
        A("v_lshlrev_b32 v164, 21, v164")
        A.vm("buffer_load_dword v172, v164, %s, 0 offen" % SW2)
    wu1({2: (0, 1, 4, 5, 2, 3, 6, 7), 3: (2, 3, 6, 7)}.get(WU1, ()), sT0)
    for op in poison_ops(A, ([H0, X1] if PZA == "beta" else []) + ([U0, X2, Z1] if PZB == "beta" else []), 173, 168): op()
    A.p1tok = 0
    R = Rec(); a2_consts(R); f32_gen(R, 48); R.l.remove("W_HERE"); tr_addr(R, PTR1, 8, 164, True); w2_voffs(R, PW2, 164)
    def tr_ops(n, addr, rows, dstfn, slot0=0):
        q = []
        for i in range(slot0, slot0 + n):
            def trp(i=i):
                for tl in range(2):
                    for rd in range(2):
                        A.trtok = A.ds("ds_read_b64_tr_b16 %s, %s offset:%d" % (dstfn(8 * i + 4 * tl + 2 * rd), v(addr + tl), i * 2048 + rows[rd] * 128))
            q.append(trp)
        return q
    def after_tr(ops):
        f = ops[0]
        return [lambda: (A.wds(A.trtok), f())] + ops[1:]
    def waitdma(ops):
        f = ops[0]; tk__ = A.last_dma
        return [lambda: (A.wvm(tk__), f())] + ops[1:]
    def pairs(ops): return [(lambda o=ops[k:k + 2]: [x() for x in o]) for k in range(0, len(ops), 2)]
    def mark(name): return lambda: setattr(A, name, A.last_dma)
    trw1 = lambda n, base, s0: tr_ops(n, PTR1, (0, 4), lambda r: a(base + r, 2), s0)
    if SCHED == "win": A.bgq = dma_chunk(A, 1, 0, 16, PW1)
    if SCHED == "b15": A.bgq = dma_chunk(A, 1, 0, 8, PW1) + [mark("c1a")] + dma_chunk(A, 1, 8, 8, PW1, 8)
    A.mix(R.l, 5)
    A.bg_flush()
    if SCHED == "b15":
        A.wvm(A.c1a)
        for op in trw1(8, 0, 0): op()
        for op in after_tr(dma_chunk(A, 1, 16, 8, PW1)): op()
    lw = A.newlabel("nb")
    A("s_cmp_lg_u32 %s, 0" % s(sWAVE))
    A("s_cbranch_scc1 %s" % lw)
    A("v_and_b32 v56, %d, v0" % ((NCNT or 2) - 1))
    A("v_lshlrev_b32 v56, 7, v56")
    A("s_mov_b32 %s, 0x%x" % (s(sT0), CNT))
    A("v_and_b32 v59, 1, v0")
    A("v_lshlrev_b32 v59, 7, v59")
    if BDLY: A("s_sleep %d" % BDLY)
    lt, lo = A.newlabel("bar"), A.newlabel("barok")
    A.label(lt)
    if FBK:
        assert NCNT == 32
        A("global_load_dword v58, v59, %s sc1" % s(sDBG, 2))
        A("buffer_load_dword v57, v56, %s, %s offen sc1" % (SWS, s(sT0)))
        A("s_waitcnt vmcnt(0)")
        for m in ("quad_perm:[1,0,3,2]", "quad_perm:[2,3,0,1]", "row_half_mirror", "row_mirror"):
            A("v_add_u32_dpp v57, v57, v57 %s row_mask:0xf bank_mask:0xf" % m)
        A("v_readlane_b32 %s, v58, 0" % s(sT1))
        A("v_readlane_b32 %s, v58, 1" % s(sT2))
        A("v_readlane_b32 %s, v57, 0" % s(sT3))
        A("v_readlane_b32 %s, v57, 16" % s(sC))
        A("s_add_u32 %s, %s, %s" % (s(sT2), s(sT2), s(sT3)))
        A("s_add_u32 %s, %s, %s" % (s(sT2), s(sT2), s(sC)))
        A("s_cmp_eq_u32 s10, 0")
        A("s_cselect_b32 %s, 0, %s" % (s(sT2), s(sT2)))
        A("s_mov_b32 s10, %s" % s(sT1))
        A("s_cmp_ge_u32 %s, 256" % s(sT2))
        A("s_cbranch_scc1 %s" % lo)
    else:
        if NCNT: A("buffer_load_dword v57, v56, %s, %s offen sc1" % (SWS, s(sT0)))
        else: A("global_load_dword v57, v56, %s sc1" % s(sDBG, 2))
        A("s_waitcnt vmcnt(0)")
        A("v_cmp_gt_u32 vcc, %d, v57" % (256 // (NCNT or 2)))
        A("s_cbranch_vccz %s" % lo)
    A("s_cmp_eq_u32 %s, 0" % s(sBUD))
    A("s_cbranch_scc1 %s" % lo)
    A("s_sub_u32 %s, %s, 1" % (s(sBUD), s(sBUD)))
    A("s_sleep %d" % BSLP)
    A("s_branch %s" % lt)
    A.label(lo)
    A.label(lw)
    A("s_barrier")
    stamp(A)
    colds = []
    def fin():
        prof_end(A)
        A("s_endpgm")
    for l in range(2):
        zb, tb, hb, ub, xo = ((Z0, T0, H0, U0, X1), (Z1, T1, H1, U1, X3))[l]
        if l == 1:
            A.label("L_layer1")
            for i in range(3):
                A("s_mov_b32 %s, %s" % (s(SB + 2 * i), fbits(C7[i + 1])))
                A("s_mov_b32 %s, %s" % (s(SB + 2 * i + 1), fbits(C7[i + 1])))
                A("s_mov_b32 %s, %s" % (s(SB + 6 + 2 * i), fbits(S7[i + 1])))
                A("s_mov_b32 %s, %s" % (s(SB + 6 + 2 * i + 1), fbits(S7[i + 1])))
            R = Rec(); a1_consts(R); gen_f64(R, 48); a1_consts2(R)
            if F32EARLY: f32_gen(R, 48)
            rest1 = R.l[A1SPLIT:]
            for l_ in R.l[:A1SPLIT]: A(l_)
            A("s_barrier")
            A("s_mov_b32 %s, 0x%x" % (s(sT1), X2))
            def xi():
                for t in range(7): A.vm("buffer_load_dword %s, v1, %s, %s offen offset:%d sc1" % (v(4 + t), SWS, s(sT1), 128 * t))
            FINEON[0] = True
            fstamp(A)
            poll_loads(A, xi, range(4, 11), 11, DLY[0], (lambda: [A(x) for x in rest1]) if rest1 else None)
            stamp(A)
            a1_compute(A, Z1)
            stamp(A)
            R = Rec(); a2_consts(R)
            if not F32EARLY: f32_gen(R, 48)
            k_ = R.l.index("W_HERE")
            for l_ in R.l[:k_]: A(l_)
            A("s_lshl_b32 %s, s2, 13" % s(sT2))
            A("s_add_u32 %s, %s, 0x%x" % (s(sT2), s(sT2), CNT))
            A("s_add_u32 %s, %s, 4096" % (s(sT3), s(sT2)))
            A("v_lshlrev_b32 v57, 4, v0")
            if STASH:
                A.vm("buffer_load_dwordx4 %s, v57, %s, %s offen" % (v(WV, 4), SWS, s(sT2)))
                A.wtok = A.vm("buffer_load_dwordx4 %s, v57, %s, %s offen" % (v(WV + 4, 4), SWS, s(sT3)))
            else: a2_wload(A)
            A.rest2 = R.l[k_ + 1 + A2SPLIT:]
            for l_ in R.l[k_ + 1:k_ + 1 + A2SPLIT]: A(l_)
            fstamp(A)
            A("s_barrier")
        late = SCHED == "late"
        def a2_after():
            if l == 0:
                if WU2_AT == "a2":
                    for i in range(7): wu2(i)()
                if PZA == "a2":
                    for op in poison_ops(A, [H0, X1], 173, 168, False): op()
                    A.p1tok = A.ptok
                A.bgq = ([] if late else (trw1(8, 0, 8) + trw1(8, 128, 0)) if SCHED == "b15" else trw1(16, 0, 0)) + (poison_ops(A, [U0, X2, Z1], 173, 168, False) if PZB == "a2" else [])
        a2_phase(A, zb, tb, l == 1, a2_after)
        stamp(A)
        if STOP == 2 + 5 * l: fin(); break
        R = Rec(); a3_consts(R)
        if l == 0:
            if WU2_AT == "w23":
                for i in range(7): wu2(i)()
            if PZB == "w23":
                for op in poison_ops(A, [U0, X2, Z1], 173, 168, False): op()
            A("s_waitcnt lgkmcnt(0)")
            A.bgq = dma_chunk(A, 1, 24, 8, PW1, 8) if SCHED == "b15" else dma_chunk(A, 1, 0 if late else 16, 16, PW1)
        A.mix(R.l, 2)
        A.bg_flush()
        A("s_barrier")
        def a3_after():
            if l == 0:
                if WU2_AT == "a3":
                    for i in range(7): wu2(i)()
                A.bgq = trw1(8, 128, 8) if SCHED == "b15" else trw1(16, 0 if late else 128, 0)
        if l == 0 and SCHED == "b15" and B15D: A("s_sleep %d" % B15D)
        a3_phase(A, l, tb, xo, hb, a3_after, (lambda: None) if l == 0 else None)
        stamp(A)
        if STOP == 3 + 5 * l: fin(); break
        R = Rec(); b_consts(R); tr_addr(R, vTR, 4, 8)
        VW2 = 28
        if l == 0:
            A("s_waitcnt lgkmcnt(0)")
            if not C3MID: A.bgq = dma_chunk(A, 2, 0, 12, PW2)
        A.mix(R.l, 2)
        A.bg_flush()
        A("s_barrier")
        trw2 = lambda: tr_ops(12, vTR, (0, 8), lambda r: v(W2V + r, 2))
        def b1_tail():
            if l == 0:
                A.bg_flush()
                A("s_waitcnt lgkmcnt(0)")
                A.bgq = dma_chunk(A, 2, 12, 16, VW2)
        def b1_first():
            if l == 0:
                R2 = Rec(); w2_voffs(R2, VW2, 14)
                A.bgq = ([] if C3MID else trw2()) + [(lambda o=R2.l[k:k + 4]: [A(x) for x in o]) for k in range(0, len(R2.l), 4)]
        hooks = {}
        if l == 0 and CPF2:
            def h_cpf():
                A("s_getpc_b64 s[36:37]")
                A.label("L_pc2")
                A("s_add_u32 s36, s36, L_layer1-L_pc2")
                A("s_addc_u32 s37, s37, 0")
                A("s_and_b32 s37, s37, 0xffff")
                A("s_mov_b32 s38, L_code_end-L_layer1")
                A("s_mov_b32 s39, 0x20000")
                A("s_lshr_b32 s40, s2, 3")
                A("s_lshl_b32 s40, s40, 10")
                A("v_lshlrev_b32 v15, 2, v0")
                A.vm("buffer_load_dword v15, v15, s[36:39], s40 offen")
            hooks[CPF2] = h_cpf
        if l == 0 and C3MID:
            def h_c3(): A.bgq = dma_chunk(A, 2, 0, 12, VW2)
            def h_tr():
                A.bg_flush()
                A.trwait = A.last_dma
            def h_tr2():
                A.wvm(A.trwait)
                A.bgq = pairs(trw2())
            hooks = {C3MID: h_c3, 20: h_tr, 22: h_tr2}
        def skip_pre(l=l):
            A("s_waitcnt vmcnt(0)")
            if l == 0:
                w2_voffs(A, VW2, 14)
                if C3MID:
                    for op in dma_chunk(A, 2, 0, 12, VW2): op()
                    A("s_waitcnt vmcnt(0)")
                for op in trw2(): op()
                A("s_waitcnt lgkmcnt(0)")
                for op in dma_chunk(A, 2, 12, 16, VW2): op()
                A("v_mul_u32_u24 v16, 7168, v0")
                A("s_mov_b32 %s, 0x%x" % (s(sT2), H0))
                def hi_():
                    A("buffer_load_dword v17, v16, %s, %s offen sc1" % (SWS, s(sT2)))
                    A("v_mov_b32 v18, 0")
                    A("v_mov_b32 v19, 0")
                poll_loads(A, hi_, range(17, 20), 20, 16)
                A("s_barrier")
        colds.append(b_all(A, l, hb, ub, xo, b1_first, b1_tail, skip_pre, VW2, hooks))
        stamp(A)
        if STOP == 5 + 5 * l: fin(); break
    else:
        fin()
    for c in colds: c()
    A.label("L_exit")
    A("s_endpgm")
    A.label("L_code_end")
    lines, n = fix_hazards_fast(A.lines)
    if ALIGN:
        lines, fx, lf = align_pass(lines, ALIGN, ALNOP)
        print("align fixed", fx, "left", lf, file=sys.stderr)
    pr = [p for p in lint_waits(lines) if "overflow" not in p[2]]
    for p in pr[:6]: print("LINT", p, file=sys.stderr)
    hdr = open("cdna_kernels/%s.s.ref" % NAME).read().split("; Override launch")[0]
    out = hdr + "; @launch grid=(256,1,1) block=(256,1,1) lds=%d\n" % LDS_TOTAL
    out += DOC
    lines = [l + "   ; back-off before / between polls of a hand-off" if l.strip().startswith("s_sleep") else l for l in lines]
    out += '.amdgcn_target "amdgcn-amd-amdhsa--gfx950"\n.text\n.globl %s\n.p2align 8\n.type %s,@function\n' % (KN, KN)
    out += "\n".join(lines) + "\n"
    out += """.section .rodata,"a"
.p2align 6
.amdhsa_kernel %s
  .amdhsa_next_free_vgpr 512
  .amdhsa_next_free_sgpr 102
  .amdhsa_accum_offset 256
  .amdhsa_group_segment_fixed_size 0
  .amdhsa_kernarg_size 88
  .amdhsa_user_sgpr_count 2
  .amdhsa_user_sgpr_kernarg_segment_ptr 1
  .amdhsa_system_sgpr_workgroup_id_x 1
.end_amdhsa_kernel
""" % KN
    print("nops inserted:", n, "lines:", len(lines), "stamps:", nstamp[0], file=sys.stderr)
    return out

if __name__ == "__main__":
    outp = sys.argv[1] if len(sys.argv) > 1 else "p1.s"
    open(outp, "w").write(build())
    import subprocess
    r = subprocess.run(["clang", "-x", "assembler", "-target", "amdgcn-amd-amdhsa", "-mcpu=gfx950", "-c", outp, "-o", "chk.o"], capture_output=True, text=True)
    if r.returncode: print("ASM ERROR", r.stderr[:1500])
    else:
        o = subprocess.run(["llvm-readelf", "-S", "chk.o"], capture_output=True, text=True).stdout
        print("text bytes", [int(l.split()[-6 if len(l.split()) > 10 else -5], 16) for l in o.splitlines() if " .text" in l], file=sys.stderr)
```
